```python
import torch

def _softmax(x, axis=-1):
    return torch.softmax(x, dim=axis)
def _gelu(x):
    return torch.nn.functional.gelu(x, approximate="tanh")
def _silu(x):
    return torch.nn.functional.silu(x)
def _sigmoid(x):
    return torch.sigmoid(x)
def _layernorm(x, axis=-1, eps=1e-5):
    m = x.mean(dim=axis, keepdim=True)
    v = x.var(dim=axis, keepdim=True, unbiased=False)
    return (x - m) / torch.sqrt(v + eps)
def _scatter_add(tgt, idx, src, axis=0):
    return tgt.clone().index_add_(axis, idx, src)
def _segment_sum(src, seg, n):
    out = torch.zeros((n,) + src.shape[1:], dtype=src.dtype)
    return out.index_add_(0, seg, src)
def _pad(x, pw):
    flat = tuple(v for pair in reversed(pw) for v in pair)
    return torch.nn.functional.pad(x, flat)

kernel_name = 'sequential_preLN__gqa_block_cached__glu_gated_bilinear__decode'

def setup_inputs():

    _w = (lambda a: (lambda t: t.to(torch.bfloat16) if t.is_floating_point() else t)(torch.as_tensor(a)))
    def _A_setup():
        B, Sq, D = 1, 1, 512
        Hq, Hkv, Sk, Dh = 32, 32, 32768, 128
        assert Hq % Hkv == 0, (Hq, Hkv)
        return {
            "x": _w((lambda *s: torch.randn(*s, dtype=torch.bfloat16) * 0.05)(B, Sq, D)),
            "k_cache": _w((lambda *s: torch.randn(*s, dtype=torch.bfloat16) * 3.2)(B, Hkv, Sk, Dh)),
            "v_cache": _w((lambda *s: torch.randn(*s, dtype=torch.bfloat16) * 1.6)(B, Hkv, Sk, Dh)),
            "wq": _w((lambda *s: torch.randn(*s, dtype=torch.bfloat16) * 3.2)(D, Hq * Dh) * (D ** -0.5)),
            "wo": _w((lambda *s: torch.randn(*s, dtype=torch.bfloat16) * 1.6)(Hq * Dh, D) * ((Hq * Dh) ** -0.5)),
        }
    _A_in = _A_setup()

    def _B_setup():
        B, S, D, F = 1, 1, 512, 1376
        return {
            "x": _w((lambda *s: torch.randn(*s, dtype=torch.bfloat16) * 0.05)(B, S, D)),
            "w_gate": _w((lambda *s: torch.randn(*s, dtype=torch.bfloat16) * 1.6)(D, F) * (D ** -0.5)),
            "w_up": _w((lambda *s: torch.randn(*s, dtype=torch.bfloat16) * 1.6)(D, F) * (D ** -0.5)),
            "w_down": _w((lambda *s: torch.randn(*s, dtype=torch.bfloat16) * 1.6)(F, D) * (F ** -0.5)),
        }
    _B_in = _B_setup()

    return {
        "A_x": _A_in["x"],
        "A_k_cache": _A_in["k_cache"],
        "A_v_cache": _A_in["v_cache"],
        "A_wq": _A_in["wq"],
        "A_wo": _A_in["wo"],
        "B_x": _B_in["x"],
        "B_w_gate": _B_in["w_gate"],
        "B_w_up": _B_in["w_up"],
        "B_w_down": _B_in["w_down"],
    }

def reference(A_x, A_k_cache, A_v_cache, A_wq, A_wo, B_x, B_w_gate, B_w_up, B_w_down):
    def _A_ref(x, k_cache, v_cache, wq, wo):
        B, Sq, D = x.shape
        Hq, Dh = 32, 128
        Hkv = k_cache.shape[1]
        rep = Hq // Hkv
        q = (lambda x, *d: x.permute(*d))((x @ wq).reshape(B, Sq, Hq, Dh), 0, 2, 1, 3)
        k = (lambda x, n, axis: torch.repeat_interleave(x, n, dim=axis))(k_cache, rep, axis=1)
        v = (lambda x, n, axis: torch.repeat_interleave(x, n, dim=axis))(v_cache, rep, axis=1)
        scores = torch.einsum("bhqd,bhkd->bhqk", q, k) * (Dh ** -0.5)
        p = _softmax(scores, axis=-1)
        o = torch.einsum("bhqk,bhkd->bhqd", p, v)
        return (lambda x, *d: x.permute(*d))(o, 0, 2, 1, 3).reshape(B, Sq, Hq * Dh) @ wo

    def _B_ref(x, w_gate, w_up, w_down):
        g = torch.einsum("bsd,df->bsf", x, w_gate)
        u = torch.einsum("bsd,df->bsf", x, w_up)
        h = g * u
        return torch.einsum("bsf,fd->bsd", h, w_down)

    x = A_x
    h = x + _A_ref(_layernorm(x, axis=-1), A_k_cache, A_v_cache, A_wq, A_wo)
    h2 = h + _B_ref(_layernorm(h, axis=-1), B_w_gate, B_w_up, B_w_down)
    return h2
```

```python
import re

REG_RE = re.compile(r'^(-|abs\()?([vsa])(\d+)\)?$')
RNG_RE = re.compile(r'^(-|abs\()?([vsa])\[(\d+):(\d+)\]\)?$')

def regs_of(op):
    op = op.strip()
    m = REG_RE.match(op)
    if m: return [(m.group(2), int(m.group(3)))]
    m = RNG_RE.match(op)
    if m: return [(m.group(2), i) for i in range(int(m.group(3)), int(m.group(4)) + 1)]
    if op == 'vcc': return [('s', 'vcc')]
    if op == 'exec': return [('s', 'exec')]
    if op == 'm0': return [('s', 'm0')]
    return []

TRANS = ('v_exp_f32', 'v_log_f32', 'v_rcp_f32', 'v_rsq_f32', 'v_sqrt_f32', 'v_sin_f32', 'v_cos_f32')

class Ins:
    __slots__ = ('text', 'op', 'kind', 'wr', 'rd', 'dpp', 'states', 'mfma_c', 'mfma_ab')

def split_ops(rest):
    out = []; depth = 0; cur = ''
    for ch in rest:
        if ch == '[': depth += 1
        if ch == ']': depth -= 1
        if ch == ',' and depth == 0:
            out.append(cur.strip()); cur = ''
        else: cur += ch
    if cur.strip(): out.append(cur.strip())
    return out

def parse(text):
    t = text.split(';')[0].strip()
    ins = Ins(); ins.text = text; ins.dpp = False; ins.states = 1; ins.mfma_c = []; ins.mfma_ab = []
    parts = t.split(None, 1)
    op = parts[0]; rest = parts[1] if len(parts) > 1 else ''
    ins.op = op
    ops = split_ops(rest)
    mods = ''
    if ops:
        lp = ops[-1].split()
        ops[-1] = lp[0]; mods = ' '.join(lp[1:])
    R = lambda i: regs_of(ops[i]) if i < len(ops) else []
    allr = lambda a: [r for i in range(a, len(ops)) for r in regs_of(ops[i])]
    wr = []; rd = []
    if op == 's_nop':
        ins.kind = 'nop'; ins.states = int(ops[0], 0) + 1
    elif op.startswith('v_mfma'):
        ins.kind = 'mfma'; wr = R(0); rd = allr(1); ins.mfma_ab = R(1) + R(2); ins.mfma_c = R(3)
    elif op.startswith('v_cmp'):
        ins.kind = 'valu'; wr = R(0); rd = allr(1)
    elif op.startswith('v_readfirstlane') or op.startswith('v_readlane'):
        ins.kind = 'valu'; wr = R(0); rd = allr(1)
    elif op.startswith('v_permlane'):
        ins.kind = 'valu'; wr = R(0) + R(1); rd = R(0) + R(1)
    elif op.startswith('v_add_co') or op.startswith('v_addc_co') or op.startswith('v_sub_co'):
        ins.kind = 'valu'; wr = R(0) + R(1); rd = allr(2)
    elif op.startswith('v_'):
        ins.kind = 'valu'; wr = R(0); rd = allr(1)
        if op.startswith('v_fmac') or op.startswith('v_dot2c') or op.startswith('v_writelane') or op.startswith('v_pk_fmac'):
            rd = rd + R(0)
        if op.startswith('v_cndmask') and len(ops) == 3: rd = rd + [('s', 'vcc')]
        if 'row_' in mods or 'quad_perm' in mods or '_dpp' in op: ins.dpp = True
    elif op.startswith('ds_'):
        ins.kind = 'ds'
        if op.startswith('ds_read') or '_rtn' in op or op.startswith('ds_bpermute') or op.startswith('ds_swizzle'):
            wr = R(0); rd = allr(1)
        else: rd = allr(0)
    elif op.startswith('buffer_') or op.startswith('global_'):
        ins.kind = 'vmem'
        islds = (' lds' in (' ' + mods)) or 'load_lds' in op
        if 'load' in op and not islds:
            wr = R(0); rd = allr(1)
        elif 'atomic' in op and 'sc0' in mods:
            wr = R(0); rd = allr(1)
        else:
            rd = allr(0)
        if islds: rd = rd + [('s', 'm0')]
    elif op.startswith('s_'):
        ins.kind = 'salu'
        if op.startswith('s_cmp') or op.startswith('s_cbranch') or op.startswith('s_branch') or op in ('s_waitcnt', 's_barrier', 's_sleep', 's_endpgm', 's_setprio', 's_bitcmp1_b32', 's_bitcmp0_b32'):
            rd = allr(0)
        elif 'saveexec' in op:
            wr = R(0) + [('s', 'exec')]; rd = allr(1) + [('s', 'exec')]
        else:
            wr = R(0); rd = allr(1)
    else:
        raise ValueError('unknown op: ' + text)
    ins.wr = wr; ins.rd = rd
    return ins

class Asm:
    def __init__(self):
        self.out = []
        self.hist = []
        self.nops = 0
    def raw(self, s):
        self.out.append(s)
    def comment(self, s):
        self.out.append('    ; ' + s)
    def label(self, name):
        self.settle()
        self.out.append(name + ':')
        self.hist = []
    def settle(self, n=None):
        need = 0
        dist = 0
        for p in reversed(self.hist):
            if p.kind == 'mfma': need = max(need, 8 - dist)
            elif p.kind == 'valu':
                k = 2
                if any(r[0] == 's' for r in p.wr): k = 5
                need = max(need, k - dist)
            elif p.kind == 'vmem' and ('store' in p.op) and ('x4' in p.op or 'x3' in p.op): need = max(need, 2 - dist)
            elif p.kind == 'salu' and ('s', 'm0') in p.wr: need = max(need, 1 - dist)
            dist += p.states
            if dist >= 12: break
        if need > 0: self._nop(need)
    def _nop(self, n):
        while n > 0:
            k = min(n, 16)
            ins = parse(f's_nop {k-1}')
            self.out.append(f'    s_nop {k-1}')
            self.hist.append(ins); self.nops += k
            n -= k
    def need_states(self, c):
        need = 0; dist = 0
        crd = set(c.rd); cwr = set(c.wr)
        for p in reversed(self.hist):
            pw = set(p.wr); k = 0
            if p.kind == 'valu':
                vw = {r for r in pw if r[0] in 'va'}; sw = {r for r in pw if r[0] == 's'}
                if c.kind == 'mfma' and vw & crd: k = max(k, 2)
                if c.kind == 'valu' and c.dpp and vw & crd: k = max(k, 2)
                if c.kind == 'valu' and c.op.startswith('v_permlane') and vw & crd: k = max(k, 2)
                if c.kind == 'valu' and (c.op.startswith('v_readlane') or c.op.startswith('v_readfirstlane')) and vw & crd: k = max(k, 1)
                if p.op.startswith(TRANS) and c.kind in ('valu', 'mfma') and vw & crd: k = max(k, 1 if c.kind == 'valu' else 2)
                if p.op.startswith(TRANS) and c.kind in ('ds', 'vmem') and vw & crd: k = max(k, 1)
                if sw & crd:
                    if c.kind == 'valu': k = max(k, 4 if (c.op.startswith('v_readlane') or c.op.startswith('v_writelane')) else 2)
                    if c.kind == 'vmem': k = max(k, 5)
                    if c.kind == 'salu': k = max(k, 1) if not c.op.startswith('s_cbranch') else k
                    if c.kind == 'ds': k = max(k, 2)
            elif p.kind == 'mfma':
                if c.kind == 'mfma':
                    if pw & set(c.mfma_ab): k = max(k, 8)
                    cc = set(c.mfma_c)
                    if pw & cc and pw != cc: k = max(k, 6)
                    if pw & cwr and not (pw == cc): k = max(k, 6)
                else:
                    if pw & (crd | cwr): k = max(k, 8)
                    if c.kind == 'valu' and set(p.mfma_c) & cwr: k = max(k, 3)
            elif p.kind == 'salu':
                if ('s', 'm0') in pw and ('s', 'm0') in crd and c.kind in ('vmem', 'ds'): k = max(k, 1)
            elif p.kind == 'vmem':
                if 'store' in p.op and ('x4' in p.op or 'x3' in p.op) and c.kind == 'valu':
                    data = {r for r in p.rd if r[0] == 'v'}
                    if data & cwr: k = max(k, 2)
            need = max(need, k - dist)
            dist += p.states
            if dist >= 12: break
        return need
    def I(self, text):
        for ln in text.strip().split('\n'):
            ln = ln.strip()
            if not ln: continue
            if ln.startswith(';'):
                self.out.append('    ' + ln); continue
            c = parse(ln)
            if c.op.startswith('s_cbranch') or c.op == 's_branch':
                self.settle()
            n = self.need_states(c)
            if n > 0: self._nop(n)
            self.out.append('    ' + ln)
            self.hist.append(c)
            if len(self.hist) > 16: self.hist = self.hist[-16:]
    def text(self):
        return '\n'.join(self.out) + '\n'
```

```python
import sys, json
from asmlib import Asm

KN = "sequential_preLN__gqa_block_cached__glu_gated_bilinear__decode"

DEF = dict(D=18, R=8, stamps=False, dump=False, nt="nt", sleep_c=1, sleep_t=4, prio=True)

def lds_map(R):
    ring = R * 16384
    m = {}
    m['RING'] = 0
    m['STAGE'] = ring
    f = ring + 16384
    m['FILLED'] = f
    m['NEXT'] = f + 16
    m['QCNT'] = f + 32
    m['FINCNT'] = f + 36
    m['CLEARED'] = f + 40
    m['TAILGO'] = f + 44
    m['XXT'] = f + 256
    m['QP'] = f + 256 + 2048
    m['QB'] = m['QP'] + 2048
    m['FINO'] = m['QB'] + 1024
    m['FINML'] = m['FINO'] + 2048
    m['OALL'] = m['FINML'] + 64
    m['XN2'] = m['OALL'] + 1024
    m['HH'] = m['XN2'] + 4096
    m['END'] = m['HH'] + 64
    return m

WS_PO = 0x0
WS_ML = 0x20000
WS_Y = 0x21000
WS_P = 0x28000
WS_STAMP = 0x20000000
NF = 43
W0, F0, O0 = 0, 64, 107
NO = 16

LOG2E = 0x3fb8aa3b
SCALE = 0x3db504f3
EPS = 0x3727c5ac

def gen(**kw):
    P = dict(DEF); P.update(kw)
    D = P['D']; R = P['R']; NT = P['nt']
    M = lds_map(R)
    ldsz = (M['END'] + 255) // 256 * 256
    assert ldsz <= 163840, ldsz
    a = Asm(); I = a.I
    stamps = P['stamps']

    def spin():
        I("s_sub_u32 s89, s89, 1")
        I("s_cbranch_scc1 L_end")

    def stamp(slot):
        if not stamps: return
        I("s_memrealtime s[90:91]")
        I("s_waitcnt lgkmcnt(0)")
        I("s_lshl_b32 s92, s2, 8")
        I(f"s_add_u32 s92, s92, {WS_STAMP + slot * 8}")
        I("s_add_u32 s92, s26, s92")
        I("s_addc_u32 s93, s27, 0")
        I("v_mov_b32 v164, s90")
        I("v_mov_b32 v165, s91")
        I("v_mov_b32 v166, 0")
        I("s_mov_b64 s[94:95], exec")
        I("s_mov_b64 exec, 1")
        I("global_store_dwordx2 v166, v[164:165], s[92:93]")
        I("s_mov_b64 exec, s[94:95]")

    a.raw(f"; @launch grid=(256,1,1) block=(576,1,1) lds={ldsz}")
    a.raw('.amdgcn_target "amdgcn-amd-amdhsa--gfx950"')
    a.raw(".text")
    a.raw(f".globl {KN}_kernel")
    a.raw(".p2align 8")
    a.raw(f".type {KN}_kernel,@function")
    a.raw(f"{KN}_kernel:")
    I("s_cmp_ge_u32 s2, 256")
    I("s_cbranch_scc1 L_end")
    I("s_load_dwordx16 s[4:19], s[0:1], 0")
    I("s_load_dwordx8 s[20:27], s[0:1], 64")
    I("v_lshrrev_b32 v2, 6, v0")
    I("v_and_b32 v1, 63, v0")
    I("v_readfirstlane_b32 s28, v2")
    I("s_and_b32 s29, s2, 31")
    I("s_lshr_b32 s30, s2, 5")
    I("s_lshl_b32 s31, s29, 3")
    I("s_add_u32 s31, s31, s30")
    I("s_mov_b32 s89, 0x800000")
    I("s_waitcnt lgkmcnt(0)")
    I("s_cmp_eq_u32 s28, 0")
    I("s_cbranch_scc1 L_loader")
    I("s_cmp_lt_u32 s28, 5")
    I("s_cbranch_scc1 L_consumer")
    I("s_branch L_tail")

    a.label("L_loader")
    if P['prio']: I("s_setprio 3")
    stamp(0)
    I(f"""
    s_mov_b32 s32, s6
    s_and_b32 s33, s7, 0xffff
    s_mov_b32 s34, 0x10000000
    s_mov_b32 s35, 0x20000
    s_mov_b32 s36, s8
    s_and_b32 s37, s9, 0xffff
    s_mov_b32 s38, 0x10000000
    s_mov_b32 s39, 0x20000
    s_lshl_b32 s44, s29, 23
    s_lshl_b32 s45, s30, 20
    s_add_u32 s44, s44, s45
    v_lshrrev_b32 v8, 4, v1
    v_and_b32 v9, 15, v1
    v_lshlrev_b32 v10, 8, v8
    v_add_u32 v10, s44, v10
    """)
    for tt in range(4):
        I(f"v_add_u32 v11, {4*tt}, v8")
        I("v_xor_b32 v11, v11, v9")
        I("v_lshlrev_b32 v11, 4, v11")
        I(f"v_add_u32 v{2+tt}, v10, v11")
    for tp in range(2):
        I(f"v_add_u32 v11, {4*tp}, v8")
        I("v_lshlrev_b32 v11, 1, v11")
        I("v_xor_b32 v11, v11, v9")
        I("v_lshlrev_b32 v11, 4, v11")
        I(f"v_add_u32 v{6+tp}, v10, v11")
    u0 = (D - 1) % 8
    half0 = (u0 - D + 1) // 8 - 1
    I(f"""
    s_mov_b32 s46, 0
    s_mov_b32 s48, 0
    s_mov_b32 s49, {half0}
    s_mov_b32 s50, 0
    v_mov_b32 v12, {M['FILLED']}
    v_mov_b32 v13, {M['NEXT']}
    """)
    NT_TILES = 128
    def loads_of_tile(first):
        for u in range(16):
            grp = u // 4
            if u % 4 == 0:
                I(f"s_add_u32 m0, s48, {grp * 4096}")
                if u == 4 or u == 12: pass
            I(f"s_waitcnt vmcnt({D-1})")
            if u % 8 == u0:
                I("s_add_u32 s49, s49, 1")
                I("v_mov_b32 v14, s49")
                if not first:
                    I("ds_write_b32 v12, v14")
            isv = u >= 8
            t = u % 8
            so = "s46" if t < 4 else "s47"
            if isv: I(f"buffer_load_dwordx4 v{6 + (t & 1)}, s[36:39], {so} offen offset:{(t % 4) * 1024} {NT} lds")
            else:   I(f"buffer_load_dwordx4 v{2 + (t & 3)}, s[32:35], {so} offen offset:{(t % 4) * 1024} {NT} lds")
    assert D >= 16
    I("s_add_u32 s47, s46, 4096")
    loads_of_tile(True)
    I(f"""
    v_mov_b32 v16, 0
    v_mov_b32 v17, 1
    v_mov_b32 v18, 2
    v_mov_b32 v19, 3
    v_mov_b32 v20, 0
    v_mov_b32 v21, 0
    v_mov_b32 v22, 0
    v_mov_b32 v23, 0
    v_mov_b32 v15, s49
    ds_write_b32 v12, v15
    ds_write_b128 v13, v[16:19]
    ds_write_b128 v13, v[20:23] offset:16
    s_waitcnt lgkmcnt(0)
    s_barrier
    s_mov_b32 s51, 0
    """)
    I("ds_read_b128 v[16:19], v13")
    a.label("L_ld_tile")
    I(f"""
    s_add_u32 s50, s50, 1
    s_add_u32 s46, s46, 8192
    s_add_u32 s47, s46, 4096
    s_add_u32 s48, s48, 16384
    s_cmp_ge_u32 s48, {R*16384}
    s_cselect_b32 s48, 0, s48
    s_sub_u32 s52, s50, {R-1}
    """)
    a.label("L_ld_free")
    spin()
    I("""
    s_waitcnt lgkmcnt(0)
    v_min3_u32 v20, v16, v17, v18
    v_min_u32 v20, v20, v19
    v_readfirstlane_b32 s51, v20
    ds_read_b128 v[16:19], v13
    s_cmp_ge_i32 s51, s52
    s_cbranch_scc0 L_ld_free
    """)
    loads_of_tile(False)
    I(f"s_cmp_lt_u32 s50, {NT_TILES-1}")
    I("s_cbranch_scc1 L_ld_tile")
    N = NT_TILES * 16
    last_u = 8 + u0
    completed = (N - 16) + last_u - D + 1
    T = completed + 8
    while T <= N:
        I(f"s_waitcnt vmcnt({N - T})")
        I("s_add_u32 s49, s49, 1")
        I("v_mov_b32 v14, s49")
        I("ds_write_b32 v12, v14")
        T += 8
    I("s_waitcnt lgkmcnt(0)")
    stamp(1)
    I("s_endpgm")

    a.label("L_consumer")
    I("s_sub_u32 s40, s28, 1")
    I(f"""
    s_mov_b32 s32, s10
    s_and_b32 s33, s11, 0xffff
    s_mov_b32 s34, 0x400000
    s_mov_b32 s35, 0x20000
    v_lshlrev_b32 v2, 4, v1
    global_load_dwordx4 v[30:33], v2, s[4:5]
    v_lshrrev_b32 v8, 4, v1
    v_and_b32 v9, 15, v1
    s_lshl_b32 s41, s40, 7
    v_add_u32 v3, s41, v8
    v_lshlrev_b32 v3, 13, v3
    v_lshlrev_b32 v4, 4, v9
    v_add_u32 v3, v3, v4
    s_lshl_b32 s41, s29, 8
    v_add_u32 v3, s41, v3
    """)
    for t in range(32):
        I(f"s_mov_b32 s42, {t * 32768}")
        I(f"buffer_load_dwordx4 v[{40+4*t}:{43+4*t}], v3, s[32:35], s42 offen")
    I("s_barrier")
    def wave_sum(v, t):
        for r in (8, 4, 2, 1):
            I(f"v_add_f32_dpp v{v}, v{v}, v{v} row_ror:{r} row_mask:0xf bank_mask:0xf")
        I(f"v_mov_b32 v{t}, v{v}")
        I(f"v_permlane16_swap_b32 v{v}, v{t}")
        I(f"v_add_f32 v{v}, v{v}, v{t}")
        I(f"v_mov_b32 v{t}, v{v}")
        I(f"v_permlane32_swap_b32 v{v}, v{t}")
        I(f"v_add_f32 v{v}, v{v}, v{t}")
    def unpack8(src, dst):
        for j in range(4):
            I(f"v_lshlrev_b32 v{dst+2*j}, 16, v{src+j}")
            I(f"v_and_b32 v{dst+2*j+1}, s43, v{src+j}")
    def layernorm8(x, tmp, outpk):
        s, t, mb, den = tmp, tmp+1, tmp+2, tmp+3
        I(f"v_add_f32 v{s}, v{x}, v{x+1}")
        for j in range(2, 8): I(f"v_add_f32 v{s}, v{s}, v{x+j}")
        wave_sum(s, t)
        I(f"v_mul_f32 v{s}, 0x3b000000, v{s}")
        I(f"v_cvt_pk_bf16_f32 v{mb}, v{s}, v{s}")
        I(f"v_and_b32 v{mb}, s43, v{mb}")
        I(f"v_sub_f32 v{t}, v{x}, v{s}")
        I(f"v_mul_f32 v{den}, v{t}, v{t}")
        for j in range(1, 8):
            I(f"v_sub_f32 v{t}, v{x+j}, v{s}")
            I(f"v_fmac_f32 v{den}, v{t}, v{t}")
        wave_sum(den, t)
        I(f"v_mul_f32 v{den}, 0x3b000000, v{den}")
        I(f"v_cvt_pk_bf16_f32 v{den}, v{den}, v{den}")
        I(f"v_and_b32 v{den}, s43, v{den}")
        I(f"v_add_f32 v{den}, {hex(EPS)}, v{den}")
        I(f"v_cvt_pk_bf16_f32 v{den}, v{den}, v{den}")
        I(f"v_and_b32 v{den}, s43, v{den}")
        I(f"v_sqrt_f32 v{den}, v{den}")
        I(f"v_cvt_pk_bf16_f32 v{den}, v{den}, v{den}")
        I(f"v_and_b32 v{den}, s43, v{den}")
        I(f"v_rcp_f32 v{den}, v{den}")
        for j in range(0, 8, 2):
            I(f"v_sub_f32 v{x+j}, v{x+j}, v{mb}")
            I(f"v_sub_f32 v{x+j+1}, v{x+j+1}, v{mb}")
            I(f"v_cvt_pk_bf16_f32 v{t}, v{x+j}, v{x+j+1}")
            I(f"v_lshlrev_b32 v{x+j}, 16, v{t}")
            I(f"v_and_b32 v{x+j+1}, s43, v{t}")
            I(f"v_mul_f32 v{x+j}, v{x+j}, v{den}")
            I(f"v_mul_f32 v{x+j+1}, v{x+j+1}, v{den}")
    I("s_mov_b32 s43, 0xffff0000")
    I("s_waitcnt vmcnt(32)")
    unpack8(30, 10)
    layernorm8(10, 2+2, None)
    for e in range(8):
        I(f"v_cvt_pk_bf16_f32 v{18+e}, v{10+e}, v{10+e}")
    I(f"""
    v_lshlrev_b32 v4, 9, v8
    v_lshlrev_b32 v5, 3, v9
    v_add_u32 v4, v4, v5
    v_add_u32 v4, {M['XXT']}, v4
    """)
    for g in range(4):
        I(f"v_mov_b32 v26, v{18+g}")
        I(f"v_mov_b32 v27, v{18+g+4}")
        I(f"ds_write_b64 v4, v[26:27] offset:{g*128}")
    I(f"""
    v_and_b32 v5, 1, v9
    v_mov_b32 v6, 0xffff
    v_mov_b32 v7, s43
    v_cmp_eq_u32 vcc, 1, v5
    v_cndmask_b32 v5, v6, v7, vcc
    v_lshrrev_b32 v6, 1, v9
    """)
    for j in range(4):
        I(f"v_cmp_eq_u32 vcc, {j}, v6")
        I(f"v_cndmask_b32 v{10+j}, 0, v5, vcc")
    I(f"""
    s_lshl_b32 s41, s40, 9
    s_add_u32 s41, s41, {M['XXT']}
    v_lshlrev_b32 v4, 7, v8
    v_add_u32 v4, s41, v4
    s_waitcnt lgkmcnt(0)
    ds_read_b128 v[30:33], v4
    ds_read_b128 v[34:37], v4 offset:16
    """)
    for i in range(8):
        vb = 30 + 4 * (i % 2)
        I(f"s_waitcnt lgkmcnt({1 if i < 7 else 0})")
        for tt in range(4):
            t = 4 * i + tt
            bb = 18 + 4 * (t % 2)
            for j in range(4):
                I(f"v_and_b32 v{bb+j}, v{vb+tt}, v{10+j}")
            if tt == 0 or True:
                I(f"s_waitcnt vmcnt({31 - t})")
            c = "0" if t == 0 else "v[26:29]"
            I(f"v_mfma_f32_16x16x32_bf16 v[26:29], v[{40+4*t}:{43+4*t}], v[{bb}:{bb+3}], {c}")
        if i + 2 < 8:
            I(f"ds_read_b128 v[{vb}:{vb+3}], v4 offset:{16*(i+2)}")
    I(f"""
    s_lshl_b32 s41, s40, 9
    s_add_u32 s41, s41, {M['QP']}
    v_lshlrev_b32 v4, 7, v8
    v_lshlrev_b32 v5, 2, v9
    v_add_u32 v4, v4, v5
    v_add_u32 v4, s41, v4
    v_cmp_gt_u32 vcc, 8, v9
    s_and_saveexec_b64 s[44:45], vcc
    """)
    for r in range(4):
        I(f"ds_write_b32 v4, v{26+r} offset:{32*r}")
    I(f"""
    s_mov_b64 exec, s[44:45]
    s_waitcnt lgkmcnt(0)
    v_mov_b32 v5, {M['QCNT']}
    v_mov_b32 v6, 1
    ds_add_u32 v5, v6
    """)
    a.label("L_q_wait")
    spin()
    I("""
    ds_read_b32 v6, v5
    s_waitcnt lgkmcnt(0)
    v_readfirstlane_b32 s41, v6
    s_cmp_ge_u32 s41, 256
    s_cbranch_scc0 L_q_wait
    """)
    I(f"""
    v_lshlrev_b32 v4, 3, v1
    v_add_u32 v4, {M['QP']}, v4
    ds_read_b64 v[10:11], v4
    ds_read_b64 v[12:13], v4 offset:512
    ds_read_b64 v[14:15], v4 offset:1024
    ds_read_b64 v[16:17], v4 offset:1536
    s_lshl_b32 s41, s40, 8
    s_add_u32 s41, s41, {M['QB']}
    v_lshlrev_b32 v5, 2, v1
    v_add_u32 v5, s41, v5
    s_waitcnt lgkmcnt(0)
    v_add_f32 v10, v10, v12
    v_add_f32 v14, v14, v16
    v_add_f32 v11, v11, v13
    v_add_f32 v15, v15, v17
    v_add_f32 v10, v10, v14
    v_add_f32 v11, v11, v15
    v_cvt_pk_bf16_f32 v10, v10, v11
    ds_write_b32 v5, v10
    v_lshlrev_b32 v5, 4, v8
    v_add_u32 v5, s41, v5
    s_waitcnt lgkmcnt(0)
    ds_read_b128 v[40:43], v5
    ds_read_b128 v[44:47], v5 offset:64
    ds_read_b128 v[48:51], v5 offset:128
    ds_read_b128 v[52:55], v5 offset:192
    """)
    if P['dump']:
        I(f"""
        s_lshl_b32 s41, s2, 8
        s_add_u32 s41, s41, 0x100000
        v_lshlrev_b32 v4, 2, v1
        v_add_u32 v4, s41, v4
        global_store_dword v4, v10, s[26:27]
        """)
    I(f"""
    v_xor_b32 v2, v8, v9
    v_lshlrev_b32 v2, 4, v2
    v_lshlrev_b32 v10, 8, v9
    v_add_u32 v2, v2, v10
    v_lshrrev_b32 v10, 2, v9
    v_and_b32 v11, 3, v9
    v_lshlrev_b32 v12, 2, v8
    v_add_u32 v12, v12, v10
    v_and_b32 v13, 7, v12
    v_lshlrev_b32 v13, 1, v13
    v_lshrrev_b32 v14, 1, v11
    v_xor_b32 v13, v13, v14
    v_lshlrev_b32 v13, 4, v13
    v_and_b32 v14, 1, v11
    v_lshlrev_b32 v14, 3, v14
    v_lshlrev_b32 v3, 8, v12
    v_add_u32 v3, v3, v13
    v_add_u32 v3, v3, v14
    v_add_u32 v3, 8192, v3
    v_mov_b32 v4, 0xff800000
    v_mov_b32 v5, 0
    v_mov_b32 v6, 0
    v_mov_b32 v7, {M['FILLED']}
    s_lshl_b32 s41, s40, 2
    s_add_u32 s41, s41, {M['NEXT']}
    v_mov_b32 v38, s41
    s_mov_b32 s44, {hex(LOG2E)}
    s_mov_b32 s45, {hex(SCALE)}
    s_mov_b32 s46, s40
    s_lshl_b32 s47, s40, 14
    s_mov_b32 s48, -100
    """)
    for r in range(56, 88): I(f"v_mov_b32 v{r}, 0")
    I("s_waitcnt lgkmcnt(0)")
    stamp(2)
    a.label("L_c_tile")
    def wait_half(lbl, k):
        I(f"s_lshl_b32 s49, s46, 1")
        I(f"s_add_u32 s49, s49, {k}")
        I(f"s_cmp_ge_i32 s48, s49")
        I(f"s_cbranch_scc1 {lbl}_ok")
        a.label(f"{lbl}_poll")
        spin()
        I("ds_read_b32 v39, v7")
        I("s_waitcnt lgkmcnt(0)")
        I("v_readfirstlane_b32 s48, v39")
        I("s_cmp_ge_i32 s48, s49")
        I(f"s_cbranch_scc1 {lbl}_ok")
        I(f"s_sleep {P['sleep_c']}")
        I(f"s_branch {lbl}_poll")
        a.label(f"{lbl}_ok")
    wait_half("L_c_k", 1)
    I("v_add_u32 v10, s47, v2")
    for j in range(1, 4): I(f"v_xor_b32 v{10+j}, {j << 6}, v10")
    KF = 88
    for j in range(4):
        I(f"ds_read_b128 v[{KF+4*j}:{KF+4*j+3}], v{10+j}")
        I(f"ds_read_b128 v[{KF+16+4*j}:{KF+16+4*j+3}], v{10+j} offset:4096")
    for j in range(4):
        I(f"s_waitcnt lgkmcnt({6 - 2*j})")
        c0 = "0" if j == 0 else "v[18:21]"
        c1 = "0" if j == 0 else "v[22:25]"
        I(f"v_mfma_f32_16x16x32_bf16 v[18:21], v[{KF+4*j}:{KF+4*j+3}], v[{40+4*j}:{43+4*j}], {c0}")
        I(f"v_mfma_f32_16x16x32_bf16 v[22:25], v[{KF+16+4*j}:{KF+16+4*j+3}], v[{40+4*j}:{43+4*j}], {c1}")
    I("v_add_u32 v10, s47, v3")
    for nb in range(1, 8): I(f"v_xor_b32 v{10+nb}, {nb << 5}, v10")
    S = 18
    for p in range(4): I(f"v_cvt_pk_bf16_f32 v{30+p}, v{S+2*p}, v{S+2*p+1}")
    for p in range(4):
        I(f"v_lshlrev_b32 v{S+2*p}, 16, v{30+p}")
        I(f"v_and_b32 v{S+2*p+1}, s43, v{30+p}")
    for i in range(8): I(f"v_mul_f32 v{S+i}, s45, v{S+i}")
    for p in range(4): I(f"v_cvt_pk_bf16_f32 v{30+p}, v{S+2*p}, v{S+2*p+1}")
    for p in range(4):
        I(f"v_lshlrev_b32 v{S+2*p}, 16, v{30+p}")
        I(f"v_and_b32 v{S+2*p+1}, s43, v{30+p}")
    I(f"""
    v_max3_f32 v34, v{S}, v{S+1}, v{S+2}
    v_max3_f32 v35, v{S+3}, v{S+4}, v{S+5}
    v_max3_f32 v34, v34, v{S+6}, v{S+7}
    v_max_f32 v34, v34, v35
    v_mov_b32 v35, v34
    v_permlane32_swap_b32 v34, v35
    v_max_f32 v34, v34, v35
    v_mov_b32 v35, v34
    v_permlane16_swap_b32 v34, v35
    v_max_f32 v34, v34, v35
    v_cmp_gt_f32 vcc, v34, v4
    s_cbranch_vccz L_c_norescale
    v_sub_f32 v35, v4, v34
    v_mul_f32 v35, s44, v35
    v_exp_f32 v35, v35
    v_mov_b32 v4, v34
    v_mul_f32 v6, s44, v34
    v_mul_f32 v5, v5, v35
    """)
    for r in range(56, 88): I(f"v_mul_f32 v{r}, v{r}, v35")
    a.label("L_c_norescale")
    for i in range(8): I(f"v_fma_f32 v{S+i}, v{S+i}, s44, -v6")
    for i in range(8): I(f"v_exp_f32 v{S+i}, v{S+i}")
    for p in range(4): I(f"v_cvt_pk_bf16_f32 v{26+p}, v{S+2*p}, v{S+2*p+1}")
    I(f"""
    v_add_f32 v30, v{S}, v{S+1}
    v_add_f32 v31, v{S+2}, v{S+3}
    v_add_f32 v32, v{S+4}, v{S+5}
    v_add_f32 v33, v{S+6}, v{S+7}
    v_add_f32 v30, v30, v31
    v_add_f32 v32, v32, v33
    v_add_f32 v30, v30, v32
    v_add_f32 v5, v5, v30
    """)
    wait_half("L_c_v", 2)
    def vread(nb):
        I(f"ds_read_b64_tr_b16 v[{KF+4*nb}:{KF+4*nb+1}], v{10+nb}")
        I(f"ds_read_b64_tr_b16 v[{KF+4*nb+2}:{KF+4*nb+3}], v{10+nb} offset:4096")
    def pv(nb):
        I(f"v_mfma_f32_16x16x32_bf16 v[{56+4*nb}:{59+4*nb}], v[26:29], v[{KF+4*nb}:{KF+4*nb+3}], v[{56+4*nb}:{59+4*nb}]")
    for nb in range(7): vread(nb)
    I("s_waitcnt lgkmcnt(6)")
    for nb in range(4): pv(nb)
    vread(7)
    I("s_waitcnt lgkmcnt(2)")
    for nb in range(4, 7): pv(nb)
    I("s_add_u32 s46, s46, 4")
    I("v_mov_b32 v30, s46")
    I("s_waitcnt lgkmcnt(0)")
    I("ds_write_b32 v38, v30")
    pv(7)
    I(f"""
    s_add_u32 s47, s47, {4*16384}
    s_cmp_ge_u32 s47, {R*16384}
    s_cselect_b32 s49, {R*16384}, 0
    s_sub_u32 s47, s47, s49
    s_cmp_lt_u32 s46, {NT_TILES}
    s_cbranch_scc1 L_c_tile
    """)
    stamp(3)
    I(f"""
    v_mov_b32 v30, v5
    v_permlane32_swap_b32 v5, v30
    v_add_f32 v5, v5, v30
    v_mov_b32 v30, v5
    v_permlane16_swap_b32 v5, v30
    v_add_f32 v5, v5, v30
    s_lshl_b32 s41, s40, 9
    s_add_u32 s41, s41, {M['FINO']}
    v_and_b32 v9, 15, v1
    v_lshlrev_b32 v10, 2, v9
    v_add_u32 v10, s41, v10
    """)
    for nb in range(8): I(f"ds_write_b32 v10, v{56+4*nb} offset:{64*nb}")
    I(f"""
    s_lshl_b32 s41, s40, 3
    s_add_u32 s41, s41, {M['FINML']}
    v_mov_b32 v10, s41
    ds_write_b64 v10, v[4:5]
    v_mov_b32 v11, {M['FINCNT']}
    v_mov_b32 v12, 1
    s_waitcnt lgkmcnt(0)
    s_mov_b64 exec, 1
    ds_add_rtn_u32 v13, v11, v12
    s_waitcnt lgkmcnt(0)
    s_mov_b64 exec, -1
    v_readfirstlane_b32 s41, v13
    s_cmp_eq_u32 s41, 3
    s_cbranch_scc0 L_end
    """)
    I(f"""
    v_mov_b32 v11, {M['TAILGO']}
    ds_write_b32 v11, v12
    v_lshlrev_b32 v10, 3, v1
    v_add_u32 v10, {M['FINO']}, v10
    v_mov_b32 v11, {M['FINML']}
    ds_read_b128 v[20:23], v11
    ds_read_b128 v[24:27], v11 offset:16
    ds_read_b64 v[12:13], v10
    ds_read_b64 v[14:15], v10 offset:512
    ds_read_b64 v[16:17], v10 offset:1024
    ds_read_b64 v[18:19], v10 offset:1536
    v_mov_b32 v11, {M['CLEARED']}
    """)
    a.label("L_c_clr")
    spin()
    I("""
    ds_read_b32 v28, v11
    s_waitcnt lgkmcnt(0)
    v_readfirstlane_b32 s41, v28
    s_cmp_eq_u32 s41, 0
    s_cbranch_scc1 L_c_clr
    """)
    I(f"""
    v_max3_f32 v28, v20, v22, v24
    v_max_f32 v28, v28, v26
    v_sub_f32 v20, v20, v28
    v_sub_f32 v22, v22, v28
    v_sub_f32 v24, v24, v28
    v_sub_f32 v26, v26, v28
    v_mul_f32 v20, s44, v20
    v_mul_f32 v22, s44, v22
    v_mul_f32 v24, s44, v24
    v_mul_f32 v26, s44, v26
    v_exp_f32 v20, v20
    v_exp_f32 v22, v22
    v_exp_f32 v24, v24
    v_exp_f32 v26, v26
    v_mul_f32 v12, v12, v20
    v_mul_f32 v13, v13, v20
    v_mul_f32 v29, v21, v20
    v_fmac_f32 v12, v14, v22
    v_fmac_f32 v13, v15, v22
    v_fmac_f32 v29, v23, v22
    v_fmac_f32 v12, v16, v24
    v_fmac_f32 v13, v17, v24
    v_fmac_f32 v29, v25, v24
    v_fmac_f32 v12, v18, v26
    v_fmac_f32 v13, v19, v26
    v_fmac_f32 v29, v27, v26
    s_mov_b32 s41, 0xfffffffe
    v_min_u32 v12, s41, v12
    v_min_u32 v13, s41, v13
    v_min_u32 v28, s41, v28
    v_min_u32 v29, s41, v29
    s_lshl_b32 s41, s31, 9
    v_lshlrev_b32 v10, 3, v1
    v_add_u32 v10, s41, v10
    global_store_dwordx2 v10, v[12:13], s[26:27] sc1
    s_lshl_b32 s41, s31, 3
    s_add_u32 s41, s41, {WS_ML}
    v_mov_b32 v10, s41
    s_mov_b64 exec, 1
    global_store_dwordx2 v10, v[28:29], s[26:27] sc1
    s_mov_b64 exec, -1
    """)
    stamp(4)
    I("s_endpgm")

    a.label("L_tail")
    I("s_sub_u32 s40, s28, 5")
    I("s_mov_b32 s43, 0xffff0000")
    I("s_barrier")
    I(f"""
    v_lshrrev_b32 v8, 4, v1
    v_and_b32 v9, 15, v1
    s_cmp_eq_u32 s40, 0
    s_cbranch_scc0 L_t_noclear
    """)
    I(f"""
    v_mov_b32 v10, -1
    v_mov_b32 v11, -1
    v_mov_b32 v12, -1
    v_mov_b32 v13, -1
    s_lshl_b32 s41, s31, 9
    v_lshlrev_b32 v4, 3, v1
    v_add_u32 v4, s41, v4
    global_store_dwordx2 v4, v[10:11], s[26:27] sc1
    s_lshl_b32 s41, s31, 3
    s_add_u32 s41, s41, {WS_ML}
    v_mov_b32 v4, s41
    global_store_dwordx2 v4, v[10:11], s[26:27] sc1
    s_cmp_lt_u32 s2, {F0}
    s_cbranch_scc0 L_t_clr_f
    s_lshr_b32 s41, s2, 3
    s_lshl_b32 s41, s41, 11
    s_and_b32 s42, s2, 7
    s_lshl_b32 s42, s42, 8
    s_add_u32 s41, s41, s42
    s_add_u32 s41, s41, {WS_Y}
    v_lshlrev_b32 v4, 2, v1
    v_add_u32 v4, s41, v4
    global_store_dword v4, v10, s[26:27] sc1
    s_branch L_t_clr_done
    """)
    a.label("L_t_clr_f")
    I(f"""
    s_cmp_lt_u32 s2, {O0}
    s_cbranch_scc0 L_t_clr_done
    s_sub_u32 s41, s2, {F0}
    s_lshl_b32 s41, s41, 11
    s_add_u32 s41, s41, {WS_P}
    v_lshlrev_b32 v4, 4, v1
    v_add_u32 v4, s41, v4
    global_store_dwordx4 v4, v[10:13], s[26:27] sc1
    global_store_dwordx4 v4, v[10:13], s[26:27] offset:1024 sc1
    """)
    a.label("L_t_clr_done")
    I(f"""
    s_waitcnt vmcnt(0)
    v_mov_b32 v4, {M['CLEARED']}
    v_mov_b32 v5, 1
    ds_write_b32 v4, v5
    v_mov_b32 v4, 0
    s_mov_b64 exec, 1
    global_atomic_add v4, v5, s[24:25] sc1
    s_mov_b64 exec, -1
    """)
    a.label("L_t_noclear")
    I(f"""
    s_cmp_lt_u32 s2, {F0}
    s_cbranch_scc1 L_t_w
    s_cmp_lt_u32 s2, {O0}
    s_cbranch_scc1 L_t_f
    s_cmp_lt_u32 s2, {O0+NO}
    s_cbranch_scc0 L_end
    s_cmp_eq_u32 s40, 0
    s_cbranch_scc1 L_t_o
    s_endpgm
    """)

    STG = M['STAGE']
    def stage_setup():
        I(f"s_lshl_b32 s41, s40, 12")
        I(f"s_add_u32 s41, s41, {STG}")
    def stage_round(addr, step_bytes, trbase, rowstride, dst, nks, nbs):
        for u in range(4):
            I(f"s_add_u32 m0, s41, {u*1024}")
            I(f"s_nop 0")
            I(f"global_load_lds_dwordx4 v[{addr}:{addr+1}], off")
            I(f"v_add_co_u32 v{addr}, vcc, {step_bytes}, v{addr}")
            I(f"v_addc_co_u32 v{addr+1}, vcc, 0, v{addr+1}, vcc")
        I("s_waitcnt vmcnt(0)")
        d = dst
        for ks in range(nks):
            for nb in range(nbs):
                for h in range(2):
                    off = (32*ks + 4*h) * rowstride + nb * 32
                    I(f"ds_read_b64_tr_b16 v[{d+2*h}:{d+2*h+1}], v{trbase} offset:{off}")
                d += 4
        I("s_waitcnt lgkmcnt(0)")
    def tr_addr(reg, rowstride):
        I(f"v_lshrrev_b32 v10, 2, v9")
        I(f"v_lshlrev_b32 v11, 3, v8")
        I(f"v_add_u32 v10, v10, v11")
        I(f"v_mul_u32_u24 v10, {rowstride}, v10")
        I(f"v_and_b32 v11, 3, v9")
        I(f"v_lshlrev_b32 v11, 3, v11")
        I(f"v_add_u32 v10, v10, v11")
        I(f"v_add_u32 v{reg}, s41, v10")
    def wait_clears_and_go(lbl):
        a.label(f"{lbl}_clr")
        spin()
        I(f"""
        v_mov_b32 v4, 0
        global_load_dword v5, v4, s[24:25] sc1
        s_waitcnt vmcnt(0)
        v_readfirstlane_b32 s42, v5
        s_cmp_ge_u32 s42, 256
        s_cbranch_scc1 {lbl}_go0
        s_sleep 16
        s_branch {lbl}_clr
        """)
        a.label(f"{lbl}_go0")
        I(f"v_mov_b32 v4, {M['TAILGO']}")
        a.label(f"{lbl}_go")
        spin()
        I(f"""
        ds_read_b32 v5, v4
        s_waitcnt lgkmcnt(0)
        v_readfirstlane_b32 s42, v5
        s_cmp_lg_u32 s42, 0
        s_cbranch_scc1 {lbl}_run
        s_sleep {P['sleep_t']}
        s_branch {lbl}_go
        """)
        a.label(f"{lbl}_run")
    def check_valid(regs, lbl, tmp):
        rs = list(regs)
        I(f"v_max3_u32 v{tmp}, v{rs[0]}, v{rs[1]}, v{rs[2]}")
        rs = rs[3:]
        while len(rs) >= 2:
            I(f"v_max3_u32 v{tmp}, v{tmp}, v{rs[0]}, v{rs[1]}"); rs = rs[2:]
        if rs: I(f"v_max_u32 v{tmp}, v{tmp}, v{rs[0]}")
        I(f"v_cmp_eq_u32 vcc, -1, v{tmp}")
        I(f"s_cbranch_vccnz {lbl}")

    WB = 64
    a.label("L_t_w")
    stage_setup()
    tr_addr(14, 32)
    I(f"""
    s_lshr_b32 s44, s2, 3
    s_and_b32 s45, s2, 7
    s_lshl_b32 s46, s44, 19
    s_lshl_b32 s47, s45, 7
    s_add_u32 s46, s46, s47
    s_lshl_b32 s47, s40, 5
    s_add_u32 s46, s46, s47
    v_lshrrev_b32 v10, 1, v1
    v_lshlrev_b32 v10, 10, v10
    v_and_b32 v11, 1, v1
    v_lshlrev_b32 v11, 4, v11
    v_add_u32 v10, v10, v11
    v_add_u32 v10, s46, v10
    v_mov_b32 v13, s13
    v_add_co_u32 v12, vcc, s12, v10
    v_addc_co_u32 v13, vcc, 0, v13, vcc
    """)
    for rr in range(4):
        stage_round(12, 32 * 1024, 14, 32, WB + 16 * rr, 4, 1)
    stamp(8)
    I(f"""
    s_lshl_b32 s46, s44, 2
    s_add_u32 s46, s46, s40
    s_lshl_b32 s47, s46, 12
    v_lshlrev_b32 v14, 4, v1
    v_add_u32 v14, s47, v14
    s_lshl_b32 s47, s46, 6
    s_add_u32 s47, s47, {WS_ML}
    v_mov_b32 v15, s47
    """)
    wait_clears_and_go("L_w")
    stamp(9)
    a.label("L_w_poll")
    spin()
    for i in range(4): I(f"global_load_dwordx4 v[{16+4*i}:{19+4*i}], v14, s[26:27] offset:{1024*i} sc1")
    for i in range(4): I(f"global_load_dwordx4 v[{32+4*i}:{35+4*i}], v15, s[26:27] offset:{16*i} sc1")
    I("s_waitcnt vmcnt(0)")
    check_valid(range(16, 48), "L_w_poll", 48)
    stamp(10)
    I("""
    v_max3_f32 v48, v32, v34, v36
    v_max3_f32 v49, v38, v40, v42
    v_max3_f32 v48, v48, v44, v46
    v_max_f32 v48, v48, v49
    s_mov_b32 s47, 0x3fb8aa3b
    """)
    for j in range(8):
        I(f"v_sub_f32 v{32+2*j}, v{32+2*j}, v48")
    for j in range(8):
        I(f"v_mul_f32 v{32+2*j}, s47, v{32+2*j}")
    for j in range(8):
        I(f"v_exp_f32 v{32+2*j}, v{32+2*j}")
    I("v_mul_f32 v49, v32, v33")
    for j in range(1, 8): I(f"v_fmac_f32 v49, v{32+2*j}, v{33+2*j}")
    I("v_cmp_lt_u32 vcc, 31, v1")
    for i in range(4): I(f"v_cndmask_b32 v{50+i}, v{32+4*i}, v{34+4*i}, vcc")
    I("v_rcp_f32 v49, v49")
    for c in range(4):
        I(f"v_mul_f32 v{16+c}, v{16+c}, v50")
    for i in range(1, 4):
        for c in range(4):
            I(f"v_fmac_f32 v{16+c}, v{16+4*i+c}, v{50+i}")
    for c in range(4):
        I(f"v_mov_b32 v{20+c}, v{16+c}")
    for c in range(4):
        I(f"v_permlane32_swap_b32 v{16+c}, v{20+c}")
    for c in range(4):
        I(f"v_add_f32 v{16+c}, v{16+c}, v{20+c}")
    for c in range(4):
        I(f"v_mul_f32 v{16+c}, v{16+c}, v49")
    I(f"""
    v_cvt_pk_bf16_f32 v16, v16, v17
    v_cvt_pk_bf16_f32 v17, v18, v19
    v_and_b32 v10, 31, v1
    v_lshlrev_b32 v10, 3, v10
    s_lshl_b32 s47, s40, 8
    s_add_u32 s47, s47, {M['OALL']}
    v_add_u32 v10, s47, v10
    ds_write_b64 v10, v[16:17]
    v_lshlrev_b32 v10, 4, v8
    v_add_u32 v10, {M['OALL']}, v10
    s_lshl_b32 s47, s44, 11
    s_lshl_b32 s46, s45, 8
    s_add_u32 s47, s47, s46
    s_lshl_b32 s46, s40, 6
    s_add_u32 s47, s47, s46
    s_add_u32 s47, s47, {WS_Y}
    v_lshlrev_b32 v11, 2, v9
    v_add_u32 v11, s47, v11
    s_waitcnt lgkmcnt(0)
    s_barrier
    """)
    def gemv16(abase_reg, wb, acc, tmp):
        for q in range(2):
            for ks in range(8):
                I(f"ds_read_b128 v[{tmp+4*ks}:{tmp+4*ks+3}], v{abase_reg} offset:{(8*q+ks)*64}")
            for ks in range(8):
                I(f"s_waitcnt lgkmcnt({7-ks})")
                c = "0" if (q == 0 and ks == 0) else f"v[{acc}:{acc+3}]"
                I(f"v_mfma_f32_16x16x32_bf16 v[{acc}:{acc+3}], v[{tmp+4*ks}:{tmp+4*ks+3}], v[{wb+4*(8*q+ks)}:{wb+4*(8*q+ks)+3}], {c}")
    gemv16(10, WB, 12, 16)
    I(f"""
    s_mov_b32 s47, 0xfffffffe
    v_min_u32 v12, s47, v12
    s_mov_b64 exec, 0xffff
    global_store_dword v11, v12, s[26:27] sc1
    s_mov_b64 exec, -1
    """)
    stamp(11)
    I("s_endpgm")

    a.label("L_t_f")
    stage_setup()
    tr_addr(14, 32)
    I(f"""
    s_sub_u32 s44, s2, {F0}
    s_lshl_b32 s46, s44, 6
    s_lshl_b32 s47, s40, 4
    s_add_u32 s46, s46, s47
    v_lshrrev_b32 v10, 1, v1
    v_mul_u32_u24 v10, 2752, v10
    v_add_u32 v10, s46, v10
    v_and_b32 v11, 1, v1
    v_cmp_eq_u32 vcc, 1, v11
    v_mov_b32 v12, s16
    v_mov_b32 v13, s17
    v_mov_b32 v15, s18
    v_mov_b32 v11, s19
    v_cndmask_b32 v12, v12, v15, vcc
    v_cndmask_b32 v13, v13, v11, vcc
    v_add_co_u32 v12, vcc, v12, v10
    v_addc_co_u32 v13, vcc, 0, v13, vcc
    """)
    for rr in range(4):
        stage_round(12, 32 * 2752, 14, 32, WB + 16 * rr, 4, 1)
    tr_addr(14, 128)
    DB = WB + 64
    for rr in range(2):
        I(f"""
        s_lshl_b32 s46, s44, 15
        s_lshl_b32 s47, s40, 8
        s_add_u32 s46, s46, s47
        s_add_u32 s46, s46, {128*rr}
        v_lshrrev_b32 v10, 3, v1
        v_lshlrev_b32 v10, 10, v10
        v_and_b32 v11, 7, v1
        v_lshlrev_b32 v11, 4, v11
        v_add_u32 v10, v10, v11
        v_add_u32 v10, s46, v10
        v_mov_b32 v13, s21
        v_add_co_u32 v12, vcc, s20, v10
        v_addc_co_u32 v13, vcc, 0, v13, vcc
        """)
        stage_round(12, 8 * 1024, 14, 128, DB + 16 * rr, 1, 4)
    I(f"""
    v_and_b32 v10, 31, v1
    v_lshlrev_b32 v11, 3, v10
    s_lshl_b32 s46, s40, 8
    v_add_u32 v11, s46, v11
    global_load_dwordx2 v[6:7], v11, s[4:5]
    v_lshlrev_b32 v14, 4, v10
    v_lshrrev_b32 v11, 5, v1
    v_lshlrev_b32 v11, 11, v11
    v_add_u32 v14, v14, v11
    s_lshl_b32 s46, s40, 9
    s_add_u32 s46, s46, {WS_Y}
    v_add_u32 v14, s46, v14
    s_waitcnt vmcnt(0)
    """)
    stamp(12)
    wait_clears_and_go("L_f")
    stamp(13)
    a.label("L_f_poll")
    spin()
    I("global_load_dwordx4 v[16:19], v14, s[26:27] sc1")
    I("v_add_u32 v15, 4096, v14")
    I("global_load_dwordx4 v[20:23], v15, s[26:27] sc1")
    I("v_add_u32 v15, 8192, v14")
    I("global_load_dwordx4 v[24:27], v15, s[26:27] sc1")
    I("v_add_u32 v15, 12288, v14")
    I("global_load_dwordx4 v[28:31], v15, s[26:27] sc1")
    I("s_waitcnt vmcnt(0)")
    check_valid(range(16, 32), "L_f_poll", 32)
    stamp(14)
    for c in range(4):
        I(f"v_add_f32 v{16+c}, v{16+c}, v{20+c}")
        I(f"v_add_f32 v{24+c}, v{24+c}, v{28+c}")
    for c in range(4): I(f"v_add_f32 v{16+c}, v{16+c}, v{24+c}")
    for c in range(4): I(f"v_mov_b32 v{20+c}, v{16+c}")
    for c in range(4): I(f"v_permlane32_swap_b32 v{16+c}, v{20+c}")
    for c in range(4): I(f"v_add_f32 v{16+c}, v{16+c}, v{20+c}")
    I(f"""
    v_cvt_pk_bf16_f32 v16, v16, v17
    v_cvt_pk_bf16_f32 v17, v18, v19
    v_lshlrev_b32 v20, 16, v16
    v_and_b32 v21, s43, v16
    v_lshlrev_b32 v22, 16, v17
    v_and_b32 v23, s43, v17
    v_lshlrev_b32 v24, 16, v6
    v_and_b32 v25, s43, v6
    v_lshlrev_b32 v26, 16, v7
    v_and_b32 v27, s43, v7
    v_add_f32 v20, v20, v24
    v_add_f32 v21, v21, v25
    v_add_f32 v22, v22, v26
    v_add_f32 v23, v23, v27
    v_cvt_pk_bf16_f32 v16, v20, v21
    v_cvt_pk_bf16_f32 v17, v22, v23
    v_and_b32 v10, 31, v1
    v_lshlrev_b32 v10, 3, v10
    s_lshl_b32 s47, s40, 8
    s_add_u32 s47, s47, {M['OALL']}
    v_add_u32 v10, s47, v10
    ds_write_b64 v10, v[16:17]
    v_lshlrev_b32 v10, 4, v1
    v_add_u32 v10, {M['OALL']}, v10
    s_waitcnt lgkmcnt(0)
    s_barrier
    ds_read_b128 v[16:19], v10
    s_waitcnt lgkmcnt(0)
    """)
    unpack8(16, 20)
    layernorm8(20, 28, None)
    for p in range(4): I(f"v_cvt_pk_bf16_f32 v{16+p}, v{20+2*p}, v{21+2*p}")
    I(f"""
    s_lshl_b32 s47, s40, 10
    s_add_u32 s47, s47, {M['XN2']}
    v_lshlrev_b32 v10, 4, v1
    v_add_u32 v10, s47, v10
    ds_write_b128 v10, v[16:19]
    v_lshlrev_b32 v10, 4, v8
    v_add_u32 v10, s47, v10
    s_waitcnt lgkmcnt(0)
    """)
    gemv16(10, WB, 12, 16)
    I(f"""
    v_cvt_pk_bf16_f32 v12, v12, v12
    v_and_b32 v12, s43, v12
    v_mov_b32_dpp v13, v12 row_ror:8 row_mask:0xf bank_mask:0xf
    v_mul_f32 v12, v12, v13
    v_cvt_pk_bf16_f32 v12, v12, v12
    v_and_b32 v10, 7, v1
    v_lshlrev_b32 v10, 1, v10
    s_lshl_b32 s47, s40, 4
    s_add_u32 s47, s47, {M['HH']}
    v_add_u32 v10, s47, v10
    ds_write_b16 v10, v12
    v_lshlrev_b32 v10, 4, v8
    v_add_u32 v10, {M['HH']}, v10
    s_lshl_b32 s47, s44, 11
    s_lshl_b32 s46, s40, 9
    s_add_u32 s47, s47, s46
    s_add_u32 s47, s47, {WS_P}
    v_lshlrev_b32 v11, 2, v9
    v_add_u32 v11, s47, v11
    s_waitcnt lgkmcnt(0)
    s_barrier
    ds_read_b128 v[16:19], v10
    s_waitcnt lgkmcnt(0)
    """)
    for nb in range(8):
        I(f"v_mfma_f32_16x16x32_bf16 v[{20+4*nb}:{23+4*nb}], v[16:19], v[{DB+4*nb}:{DB+4*nb+3}], 0")
    I("s_mov_b32 s47, 0xfffffffe")
    for nb in range(8): I(f"v_min_u32 v{20+4*nb}, s47, v{20+4*nb}")
    I("s_mov_b64 exec, 0xffff")
    for nb in range(8): I(f"global_store_dword v11, v{20+4*nb}, s[26:27] offset:{64*nb} sc1")
    I("s_mov_b64 exec, -1")
    stamp(15)
    I("s_endpgm")

    a.label("L_t_o")
    I(f"""
    s_sub_u32 s44, s2, {O0}
    v_and_b32 v10, 7, v1
    v_lshlrev_b32 v11, 3, v10
    s_lshl_b32 s46, s44, 6
    v_add_u32 v11, s46, v11
    global_load_dwordx2 v[6:7], v11, s[4:5]
    v_mov_b32 v3, v11
    v_lshlrev_b32 v14, 4, v10
    v_lshrrev_b32 v12, 3, v1
    v_lshlrev_b32 v12, 11, v12
    v_add_u32 v14, v14, v12
    s_lshl_b32 s46, s44, 7
    v_add_u32 v14, s46, v14
    v_add_u32 v15, {WS_Y}, v14
    s_add_u32 s32, s26, {WS_P}
    s_addc_u32 s33, s27, 0
    s_and_b32 s33, s33, 0xffff
    s_mov_b32 s34, {NF * 2048}
    s_mov_b32 s35, 0x20000
    s_waitcnt vmcnt(0)
    """)
    wait_clears_and_go("L_o")
    stamp(16)
    def red_r8(base, tmp):
        for c in range(4): I(f"v_add_f32_dpp v{base+c}, v{base+c}, v{base+c} row_ror:8 row_mask:0xf bank_mask:0xf")
        for c in range(4): I(f"v_mov_b32 v{tmp+c}, v{base+c}")
        for c in range(4): I(f"v_permlane16_swap_b32 v{base+c}, v{tmp+c}")
        for c in range(4): I(f"v_add_f32 v{base+c}, v{base+c}, v{tmp+c}")
        for c in range(4): I(f"v_mov_b32 v{tmp+c}, v{base+c}")
        for c in range(4): I(f"v_permlane32_swap_b32 v{base+c}, v{tmp+c}")
        for c in range(4): I(f"v_add_f32 v{base+c}, v{base+c}, v{tmp+c}")
    a.label("L_o_polly")
    spin()
    I("global_load_dwordx4 v[16:19], v15, s[26:27] sc1")
    I("s_waitcnt vmcnt(0)")
    check_valid(range(16, 20), "L_o_polly", 20)
    red_r8(16, 20)
    I(f"""
    v_cvt_pk_bf16_f32 v16, v16, v17
    v_cvt_pk_bf16_f32 v17, v18, v19
    v_lshlrev_b32 v20, 16, v16
    v_and_b32 v21, s43, v16
    v_lshlrev_b32 v22, 16, v17
    v_and_b32 v23, s43, v17
    v_lshlrev_b32 v24, 16, v6
    v_and_b32 v25, s43, v6
    v_lshlrev_b32 v26, 16, v7
    v_and_b32 v27, s43, v7
    v_add_f32 v20, v20, v24
    v_add_f32 v21, v21, v25
    v_add_f32 v22, v22, v26
    v_add_f32 v23, v23, v27
    v_cvt_pk_bf16_f32 v16, v20, v21
    v_cvt_pk_bf16_f32 v17, v22, v23
    v_lshlrev_b32 v48, 16, v16
    v_and_b32 v49, s43, v16
    v_lshlrev_b32 v50, 16, v17
    v_and_b32 v51, s43, v17
    """)
    stamp(17)
    a.label("L_o_pollp")
    spin()
    for u in range(6):
        I(f"s_mov_b32 s46, {u * 8 * 2048}")
        I(f"buffer_load_dwordx4 v[{16+4*u}:{19+4*u}], v14, s[32:35], s46 offen sc1")
    I("s_waitcnt vmcnt(0)")
    check_valid(range(16, 40), "L_o_pollp", 40)
    stamp(18)
    for c in range(4):
        I(f"v_add_f32 v{16+c}, v{16+c}, v{20+c}")
        I(f"v_add_f32 v{24+c}, v{24+c}, v{28+c}")
        I(f"v_add_f32 v{32+c}, v{32+c}, v{36+c}")
    for c in range(4):
        I(f"v_add_f32 v{16+c}, v{16+c}, v{24+c}")
    for c in range(4):
        I(f"v_add_f32 v{16+c}, v{16+c}, v{32+c}")
    red_r8(16, 20)
    I(f"""
    v_cvt_pk_bf16_f32 v16, v16, v17
    v_cvt_pk_bf16_f32 v17, v18, v19
    v_lshlrev_b32 v20, 16, v16
    v_and_b32 v21, s43, v16
    v_lshlrev_b32 v22, 16, v17
    v_and_b32 v23, s43, v17
    v_add_f32 v20, v20, v48
    v_add_f32 v21, v21, v49
    v_add_f32 v22, v22, v50
    v_add_f32 v23, v23, v51
    v_cvt_pk_bf16_f32 v16, v20, v21
    v_cvt_pk_bf16_f32 v17, v22, v23
    s_mov_b64 exec, 0xff
    global_store_dwordx2 v3, v[16:17], s[22:23]
    s_mov_b64 exec, -1
    """)
    stamp(19)
    a.label("L_end")
    I("s_endpgm")
    a.raw('.section .rodata,"a"')
    a.raw(".p2align 6")
    a.raw(f".amdhsa_kernel {KN}_kernel")
    a.raw("  .amdhsa_next_free_vgpr 168")
    a.raw("  .amdhsa_next_free_sgpr 96")
    a.raw("  .amdhsa_accum_offset 168")
    a.raw("  .amdhsa_group_segment_fixed_size 0")
    a.raw("  .amdhsa_kernarg_size 96")
    a.raw("  .amdhsa_user_sgpr_count 2")
    a.raw("  .amdhsa_user_sgpr_kernarg_segment_ptr 1")
    a.raw("  .amdhsa_system_sgpr_workgroup_id_x 1")
    a.raw(".end_amdhsa_kernel")
    return a.text()

if __name__ == "__main__":
    out = sys.argv[1]
    kw = json.loads(sys.argv[2]) if len(sys.argv) > 2 else {}
    open(out, "w").write(gen(**kw))
    print("wrote", out)
```

```python
import sys, json
from asmlib import Asm

KN = "sequential_preLN__gqa_block_cached__glu_gated_bilinear__decode"

DEF = dict(D=18, R=8, S=112, C=2, stamps=False, dump=False, nt="nt", sleep_c=1, sleep_t=4, prio=True,
           skip_stage=False, segs=None, stage_nt="nt", qsleep=2, q_nt="nt")

def lds_map(R):
    ring = R * 16384
    m = {}
    m['RING'] = 0
    m['STAGE'] = ring
    f = ring + 16384
    m['FILLED'] = f
    m['NEXT'] = f + 16
    m['FINCNT'] = f + 32
    m['CLEARED'] = f + 36
    m['TAILGO'] = f + 40
    m['QREADY'] = f + 44
    m['NONCE'] = f + 48
    m['XXT'] = f + 256
    m['QB'] = m['XXT'] + 2048
    m['FINO'] = m['QB'] + 256
    m['FINML'] = m['FINO'] + 2048
    m['OALL'] = m['FINML'] + 64
    m['XN2'] = m['OALL'] + 1024
    m['HH'] = m['XN2'] + 4096
    m['YP'] = m['HH'] + 256
    m['END'] = m['YP'] + 1024
    return m

WS_PO = 0x0
WS_ML = 0x20000
WS_Y = 0x21000
WS_P = 0x28000
WS_QX = 0x40000
WS_TK = 0x80000
WS_CLR = 0x84000
WS_STAMP = 0x20000000
NF = 43

LOG2E = 0x3fb8aa3b
SCALE = 0x3db504f3
EPS = 0x3727c5ac

def gen(**kw):
    P = dict(DEF); P.update(kw)
    D = P['D']; R = P['R']; NT = P['nt']; S = P['S']; C = P['C']
    M = lds_map(R)
    ldsz = (M['END'] + 255) // 256 * 256
    assert ldsz <= 163840, ldsz
    a = Asm(); I = a.I
    stamps = P['stamps']

    def spin():
        I("s_sub_u32 s89, s89, 1")
        I("s_cbranch_scc1 L_end")

    def stamp(slot):
        if not stamps: return
        I("s_memrealtime s[90:91]")
        I("s_waitcnt lgkmcnt(0)")
        I("s_lshl_b32 s92, s2, 8")
        I(f"s_add_u32 s92, s92, {WS_STAMP + slot * 8}")
        I("s_add_u32 s92, s26, s92")
        I("s_addc_u32 s93, s27, 0")
        I("v_mov_b32 v164, s90")
        I("v_mov_b32 v165, s91")
        I("v_mov_b32 v166, 0")
        I("s_mov_b64 s[94:95], exec")
        I("s_mov_b64 exec, 1")
        I("global_store_dwordx2 v166, v[164:165], s[92:93]")
        I("s_mov_b64 exec, s[94:95]")

    def lds_wait(lbl, addr_reg, tmp, sleep):
        a.label(lbl)
        spin()
        I(f"ds_read_b32 v{tmp}, v{addr_reg}")
        I("s_waitcnt lgkmcnt(0)")
        I(f"v_readfirstlane_b32 s42, v{tmp}")
        I("s_cmp_lg_u32 s42, 0")
        I(f"s_cbranch_scc1 {lbl}_ok")
        I(f"s_sleep {sleep}")
        I(f"s_branch {lbl}")
        a.label(f"{lbl}_ok")

    a.raw(f"; @launch grid=(256,1,1) block=(576,1,1) lds={ldsz}")
    a.raw('.amdgcn_target "amdgcn-amd-amdhsa--gfx950"')
    a.raw(".text")
    a.raw(f".globl {KN}_kernel")
    a.raw(".p2align 8")
    a.raw(f".type {KN}_kernel,@function")
    a.raw(f"{KN}_kernel:")
    I("s_cmp_ge_u32 s2, 256")
    I("s_cbranch_scc1 L_end")
    I("s_load_dwordx16 s[4:19], s[0:1], 0")
    I("s_load_dwordx8 s[20:27], s[0:1], 64")
    I("v_lshrrev_b32 v2, 6, v0")
    I("v_and_b32 v1, 63, v0")
    I("v_readfirstlane_b32 s28, v2")
    I("s_lshr_b32 s29, s2, 3")
    I("s_and_b32 s30, s2, 7")
    I("s_sub_u32 s31, s30, s29")
    I("s_and_b32 s31, s31, 7")
    I("s_mov_b32 s89, 0x800000")
    I("s_waitcnt lgkmcnt(0)")
    I("s_cmp_eq_u32 s28, 0")
    I("s_cbranch_scc1 L_loader")
    I("s_cmp_lt_u32 s28, 5")
    I("s_cbranch_scc1 L_consumer")
    I("s_branch L_tail")

    a.label("L_loader")
    if P['prio']: I("s_setprio 3")
    stamp(0)
    I(f"""
    s_mov_b32 s32, s6
    s_and_b32 s33, s7, 0xffff
    s_mov_b32 s34, 0x10000000
    s_mov_b32 s35, 0x20000
    s_mov_b32 s36, s8
    s_and_b32 s37, s9, 0xffff
    s_mov_b32 s38, 0x10000000
    s_mov_b32 s39, 0x20000
    s_lshl_b32 s44, s29, 23
    v_lshrrev_b32 v8, 4, v1
    v_and_b32 v9, 15, v1
    v_lshlrev_b32 v10, 8, v8
    v_add_u32 v10, s44, v10
    """)
    for tt in range(4):
        I(f"v_add_u32 v11, {4*tt}, v8")
        I("v_xor_b32 v11, v11, v9")
        I("v_lshlrev_b32 v11, 4, v11")
        I(f"v_add_u32 v{2+tt}, v10, v11")
    for tp in range(2):
        I(f"v_add_u32 v11, {4*tp}, v8")
        I("v_lshlrev_b32 v11, 1, v11")
        I("v_xor_b32 v11, v11, v9")
        I("v_lshlrev_b32 v11, 4, v11")
        I(f"v_add_u32 v{6+tp}, v10, v11")
    u0 = (D - 1) % 8
    half0 = (u0 - D + 1) // 8 - 1
    I(f"""
    s_mul_i32 s46, s30, {S * 8192}
    s_mov_b32 s48, 0
    s_mov_b32 s49, {half0}
    s_mov_b32 s50, 0
    v_mov_b32 v12, {M['FILLED']}
    v_mov_b32 v13, {M['NEXT']}
    """)
    def loads_of_tile(first):
        for u in range(16):
            grp = u // 4
            if u % 4 == 0:
                I(f"s_add_u32 m0, s48, {grp * 4096}")
            I(f"s_waitcnt vmcnt({D-1})")
            if u % 8 == u0:
                I("s_add_u32 s49, s49, 1")
                I("v_mov_b32 v14, s49")
                if not first:
                    I("ds_write_b32 v12, v14")
            isv = u >= 8
            t = u % 8
            so = "s46" if t < 4 else "s47"
            if isv: I(f"buffer_load_dwordx4 v{6 + (t & 1)}, s[36:39], {so} offen offset:{(t % 4) * 1024} {NT} lds")
            else:   I(f"buffer_load_dwordx4 v{2 + (t & 3)}, s[32:35], {so} offen offset:{(t % 4) * 1024} {NT} lds")
    assert D >= 16
    I("s_add_u32 s47, s46, 4096")
    loads_of_tile(True)
    I(f"""
    v_mov_b32 v16, 0
    v_mov_b32 v17, 1
    v_mov_b32 v18, 2
    v_mov_b32 v19, 3
    v_mov_b32 v20, 0
    v_mov_b32 v21, 0
    v_mov_b32 v22, 0
    v_mov_b32 v23, 0
    v_mov_b32 v14, s49
    v_mov_b32 v15, 0x7fffffff
    ds_write_b64 v12, v[14:15]
    ds_write_b128 v13, v[16:19]
    ds_write_b128 v13, v[20:23] offset:16
    s_waitcnt lgkmcnt(0)
    s_barrier
    s_setprio 3
    """)
    I("ds_read_b128 v[16:19], v13")
    lab = [0]
    def next_tile(advance):
        k = lab[0]; lab[0] += 1
        I("s_add_u32 s50, s50, 1")
        if advance: I("s_add_u32 s46, s46, 8192")
        I(f"""
        s_add_u32 s47, s46, 4096
        s_add_u32 s48, s48, 16384
        s_cmp_ge_u32 s48, {R*16384}
        s_cselect_b32 s48, 0, s48
        s_sub_u32 s52, s50, {R-1}
        """)
        a.label(f"L_ld_free{k}")
        spin()
        I(f"""
        s_waitcnt lgkmcnt(0)
        v_min3_u32 v20, v16, v17, v18
        v_min_u32 v20, v20, v19
        v_readfirstlane_b32 s51, v20
        ds_read_b128 v[16:19], v13
        s_cmp_ge_i32 s51, s52
        s_cbranch_scc0 L_ld_free{k}
        """)
        loads_of_tile(False)
    nstatic = S - C
    bounds = [b for b in (P['segs'] or [16, 32, 48, 64, 80, 96]) if b < nstatic] + [nstatic] if stamps else [nstatic]
    for sg, b in enumerate(bounds):
        a.label(f"L_ld_tile{sg}")
        next_tile(True)
        I(f"s_cmp_lt_u32 s50, {b - 1}")
        I(f"s_cbranch_scc1 L_ld_tile{sg}")
        if stamps and sg < 7 and sg < len(bounds) - 1:
            I(f"s_memrealtime s[{60+2*sg}:{61+2*sg}]")
    I(f"""
    s_lshl_b32 s53, s29, 8
    s_add_u32 s53, s53, {WS_TK}
    v_mov_b32 v25, s53
    v_mov_b32 v26, 1
    s_add_u32 s46, s46, 8192
    """)
    a.label("L_ld_chunk")
    I("s_mov_b64 exec, 1")
    I("global_atomic_add v24, v25, v26, s[26:27] sc0 sc1")
    I("s_mov_b64 exec, -1")
    for c in range(C):
        next_tile(c > 0)
    I(f"""
    v_readfirstlane_b32 s53, v24
    s_mul_i32 s53, s53, {C}
    s_add_u32 s53, s53, {8 * S}
    s_lshl_b32 s46, s53, 13
    s_cmp_lt_u32 s53, 1024
    s_cbranch_scc1 L_ld_chunk
    """)
    assert 16 * C >= D, "ticket must have landed by the end of its chunk"
    I("s_add_u32 s53, s50, 1")
    I("v_mov_b32 v14, s53")
    I("ds_write_b32 v12, v14 offset:4")
    last_u = 8 + u0
    rem = 16 - last_u + D - 1
    while rem > 0:
        rem -= 8
        I(f"s_waitcnt vmcnt({rem})")
        I("s_add_u32 s49, s49, 1")
        I("v_mov_b32 v14, s49")
        I("ds_write_b32 v12, v14")
    assert rem == 0
    I("s_waitcnt lgkmcnt(0)")
    stamp(1)
    if stamps:
        I("s_lshl_b32 s92, s2, 8")
        I(f"s_add_u32 s92, s92, {WS_STAMP + 20 * 8}")
        I("s_add_u32 s92, s26, s92")
        I("s_addc_u32 s93, s27, 0")
        I("v_mov_b32 v166, 0")
        I("s_mov_b64 exec, 1")
        for k in range(7):
            I(f"v_mov_b32 v164, s{60+2*k}")
            I(f"v_mov_b32 v165, s{61+2*k}")
            I(f"global_store_dwordx2 v166, v[164:165], s[92:93] offset:{8*k}")
        I("v_mov_b32 v164, s50")
        I("v_mov_b32 v165, 0")
        I(f"global_store_dwordx2 v166, v[164:165], s[92:93] offset:{8*7}")
    I("s_endpgm")

    def wave_sum(v, t):
        for r in (8, 4, 2, 1):
            I(f"v_add_f32_dpp v{v}, v{v}, v{v} row_ror:{r} row_mask:0xf bank_mask:0xf")
        I(f"v_mov_b32 v{t}, v{v}")
        I(f"v_permlane16_swap_b32 v{v}, v{t}")
        I(f"v_add_f32 v{v}, v{v}, v{t}")
        I(f"v_mov_b32 v{t}, v{v}")
        I(f"v_permlane32_swap_b32 v{v}, v{t}")
        I(f"v_add_f32 v{v}, v{v}, v{t}")
    def unpack8(src, dst):
        for j in range(4):
            I(f"v_lshlrev_b32 v{dst+2*j}, 16, v{src+j}")
            I(f"v_and_b32 v{dst+2*j+1}, s43, v{src+j}")
    def layernorm8(x, tmp):
        s, t, mb, den = tmp, tmp+1, tmp+2, tmp+3
        I(f"v_add_f32 v{s}, v{x}, v{x+1}")
        for j in range(2, 8): I(f"v_add_f32 v{s}, v{s}, v{x+j}")
        wave_sum(s, t)
        I(f"v_mul_f32 v{s}, 0x3b000000, v{s}")
        I(f"v_cvt_pk_bf16_f32 v{mb}, v{s}, v{s}")
        I(f"v_and_b32 v{mb}, s43, v{mb}")
        I(f"v_sub_f32 v{t}, v{x}, v{s}")
        I(f"v_mul_f32 v{den}, v{t}, v{t}")
        for j in range(1, 8):
            I(f"v_sub_f32 v{t}, v{x+j}, v{s}")
            I(f"v_fmac_f32 v{den}, v{t}, v{t}")
        wave_sum(den, t)
        I(f"v_mul_f32 v{den}, 0x3b000000, v{den}")
        I(f"v_cvt_pk_bf16_f32 v{den}, v{den}, v{den}")
        I(f"v_and_b32 v{den}, s43, v{den}")
        I(f"v_add_f32 v{den}, {hex(EPS)}, v{den}")
        I(f"v_cvt_pk_bf16_f32 v{den}, v{den}, v{den}")
        I(f"v_and_b32 v{den}, s43, v{den}")
        I(f"v_sqrt_f32 v{den}, v{den}")
        I(f"v_cvt_pk_bf16_f32 v{den}, v{den}, v{den}")
        I(f"v_and_b32 v{den}, s43, v{den}")
        I(f"v_rcp_f32 v{den}, v{den}")
        for j in range(0, 8, 2):
            I(f"v_sub_f32 v{x+j}, v{x+j}, v{mb}")
            I(f"v_sub_f32 v{x+j+1}, v{x+j+1}, v{mb}")
            I(f"v_cvt_pk_bf16_f32 v{t}, v{x+j}, v{x+j+1}")
            I(f"v_lshlrev_b32 v{x+j}, 16, v{t}")
            I(f"v_and_b32 v{x+j+1}, s43, v{t}")
            I(f"v_mul_f32 v{x+j}, v{x+j}, v{den}")
            I(f"v_mul_f32 v{x+j+1}, v{x+j+1}, v{den}")

    a.label("L_consumer")
    I("s_sub_u32 s40, s28, 1")
    I("s_mov_b32 s43, 0xffff0000")
    I("v_lshrrev_b32 v8, 4, v1")
    I("v_and_b32 v9, 15, v1")
    I("s_cmp_eq_u32 s40, 0")
    I("s_cbranch_scc1 L_c_q")
    I("s_barrier")
    I("s_branch L_c_qwait")
    a.label("L_c_q")
    I("""
    s_cmp_eq_u32 s2, 0
    s_cbranch_scc0 L_q_notag
    s_memrealtime s[56:57]
    s_waitcnt lgkmcnt(0)
    s_or_b32 s56, s56, 1
    s_or_b32 s57, s57, 0x40000000
    s_and_b32 s57, s57, 0x7fffffff
    v_mov_b32 v34, s56
    v_mov_b32 v35, s57
    v_mov_b32 v2, 0
    s_mov_b64 exec, 1
    global_store_dwordx2 v2, v[34:35], s[24:25] sc1
    s_mov_b64 exec, -1
    """)
    a.label("L_q_notag")
    I(f"""
    v_mov_b32 v2, 0
    global_load_dwordx2 v[34:35], v2, s[24:25]
    s_mov_b32 s32, s10
    s_and_b32 s33, s11, 0xffff
    s_mov_b32 s34, 0x400000
    s_mov_b32 s35, 0x20000
    v_lshlrev_b32 v2, 4, v1
    global_load_dwordx4 v[30:33], v2, s[4:5]
    s_lshl_b32 s41, s30, 6
    v_add_u32 v3, s41, v8
    v_lshlrev_b32 v3, 13, v3
    v_lshlrev_b32 v4, 4, v9
    v_add_u32 v3, v3, v4
    s_lshl_b32 s41, s29, 8
    v_add_u32 v3, s41, v3
    """)
    for t in range(16):
        I(f"s_mov_b32 s42, {t * 32768}")
        I(f"buffer_load_dwordx4 v[{40+4*t}:{43+4*t}], v3, s[32:35], s42 offen {P['q_nt']}")
    I("s_barrier")
    I("s_waitcnt vmcnt(16)")
    unpack8(30, 10)
    layernorm8(10, 4)
    for e in range(8):
        I(f"v_cvt_pk_bf16_f32 v{18+e}, v{10+e}, v{10+e}")
    I(f"""
    v_lshrrev_b32 v4, 3, v1
    v_lshlrev_b32 v4, 8, v4
    v_and_b32 v5, 7, v1
    v_lshlrev_b32 v5, 3, v5
    v_add_u32 v4, v4, v5
    v_add_u32 v4, {M['XXT']}, v4
    """)
    for g in range(4):
        I(f"v_mov_b32 v26, v{18+g}")
        I(f"v_mov_b32 v27, v{18+g+4}")
        I(f"ds_write_b64 v4, v[26:27] offset:{g*64}")
    I(f"""
    v_and_b32 v5, 1, v9
    v_mov_b32 v6, 0xffff
    v_mov_b32 v7, s43
    v_cmp_eq_u32 vcc, 1, v5
    v_cndmask_b32 v5, v6, v7, vcc
    v_lshrrev_b32 v6, 1, v9
    """)
    for j in range(4):
        I(f"v_cmp_eq_u32 vcc, {j}, v6")
        I(f"v_cndmask_b32 v{10+j}, 0, v5, vcc")
    I(f"""
    s_lshl_b32 s41, s30, 8
    s_add_u32 s41, s41, {M['XXT']}
    v_lshlrev_b32 v4, 6, v8
    v_add_u32 v4, s41, v4
    s_waitcnt lgkmcnt(0)
    ds_read_b128 v[104:107], v4
    ds_read_b128 v[108:111], v4 offset:16
    ds_read_b128 v[112:115], v4 offset:32
    ds_read_b128 v[116:119], v4 offset:48
    s_waitcnt lgkmcnt(0)
    """)
    for t in range(16):
        bb = 18 + 4 * (t % 2)
        for j in range(4):
            I(f"v_and_b32 v{bb+j}, v{104+t}, v{10+j}")
        I(f"s_waitcnt vmcnt({15 - t})")
        c = "0" if t == 0 else "v[26:29]"
        I(f"v_mfma_f32_16x16x32_bf16 v[26:29], v[{40+4*t}:{43+4*t}], v[{bb}:{bb+3}], {c}")
    I("""
    v_readfirstlane_b32 s56, v34
    v_readfirstlane_b32 s57, v35
    s_cmp_lg_u32 s56, 0
    s_cbranch_scc1 L_q_havetag
    """)
    a.label("L_q_tagpoll")
    spin()
    I("""
    v_mov_b32 v2, 0
    global_load_dwordx2 v[34:35], v2, s[24:25] sc1
    s_waitcnt vmcnt(0)
    v_readfirstlane_b32 s56, v34
    v_readfirstlane_b32 s57, v35
    s_cmp_lg_u32 s56, 0
    s_cbranch_scc1 L_q_havetag
    s_sleep 2
    s_branch L_q_tagpoll
    """)
    a.label("L_q_havetag")
    I(f"v_mov_b32 v5, {M['CLEARED']}")
    lds_wait("L_q_clr", 5, 6, 1)
    I(f"""
    v_mov_b32 v10, v26
    v_mov_b32 v11, s56
    v_mov_b32 v12, v27
    v_mov_b32 v13, s57
    v_mov_b32 v14, v28
    v_mov_b32 v15, s56
    v_mov_b32 v16, v29
    v_mov_b32 v17, s57
    v_mov_b32 v18, s56
    v_mov_b32 v19, s57
    v_mov_b32 v6, {M['NONCE']}
    ds_write_b64 v6, v[18:19]
    s_lshl_b32 s41, s2, 10
    s_add_u32 s41, s41, {WS_QX}
    v_lshlrev_b32 v4, 8, v8
    v_lshlrev_b32 v5, 5, v9
    v_add_u32 v4, v4, v5
    v_add_u32 v4, s41, v4
    v_cmp_gt_u32 vcc, 8, v9
    s_and_saveexec_b64 s[44:45], vcc
    global_store_dwordx4 v4, v[10:13], s[26:27] sc1
    global_store_dwordx4 v4, v[14:17], s[26:27] offset:16 sc1
    s_mov_b64 exec, 1
    s_lshl_b32 s41, s2, 3
    s_add_u32 s41, s41, {WS_CLR}
    v_mov_b32 v4, s41
    global_store_dwordx2 v4, v[18:19], s[26:27] sc1
    s_mov_b64 exec, -1
    s_lshl_b32 s41, s29, 13
    s_add_u32 s41, s41, {WS_QX}
    v_lshlrev_b32 v4, 4, v1
    v_add_u32 v4, s41, v4
    v_add_u32 v5, 4096, v4
    """)
    stamp(5)
    a.label("L_q_poll")
    spin()
    for i in range(8):
        I(f"global_load_dwordx4 v[{40+4*i}:{43+4*i}], v{4 if i < 4 else 5}, s[26:27] offset:{1024*(i%4)} sc1")
    I("s_waitcnt vmcnt(0)")
    I("v_xor_b32 v6, s56, v41")
    I("v_xor_b32 v7, s57, v43")
    I("v_or_b32 v6, v6, v7")
    for i in range(1, 8):
        I(f"v_xor_b32 v7, s56, v{41+4*i}")
        I(f"v_or_b32 v6, v6, v7")
        I(f"v_xor_b32 v7, s57, v{43+4*i}")
        I(f"v_or_b32 v6, v6, v7")
    I("v_cmp_ne_u32 vcc, 0, v6")
    I("s_cbranch_vccz L_q_seen")
    if P['qsleep']: I(f"s_sleep {P['qsleep']}")
    I("s_branch L_q_poll")
    a.label("L_q_seen")
    stamp(6)
    for c in (0, 2):
        I(f"v_add_f32 v{40+c}, v{40+c}, v{44+c}")
        I(f"v_add_f32 v{48+c}, v{48+c}, v{52+c}")
        I(f"v_add_f32 v{56+c}, v{56+c}, v{60+c}")
        I(f"v_add_f32 v{64+c}, v{64+c}, v{68+c}")
    for c in (0, 2):
        I(f"v_add_f32 v{40+c}, v{40+c}, v{48+c}")
        I(f"v_add_f32 v{56+c}, v{56+c}, v{64+c}")
    for c in (0, 2):
        I(f"v_add_f32 v{40+c}, v{40+c}, v{56+c}")
    I(f"""
    v_cvt_pk_bf16_f32 v10, v40, v42
    v_lshrrev_b32 v11, 16, v10
    v_lshrrev_b32 v5, 1, v9
    v_and_b32 v6, 1, v1
    v_lshlrev_b32 v6, 4, v6
    v_add_u32 v5, v5, v6
    v_lshlrev_b32 v6, 5, v8
    v_add_u32 v5, v5, v6
    v_lshlrev_b32 v5, 1, v5
    v_add_u32 v5, {M['QB']}, v5
    ds_write_b16 v5, v10
    ds_write_b16 v5, v11 offset:16
    v_mov_b32 v6, {M['QREADY']}
    v_mov_b32 v7, 1
    s_waitcnt lgkmcnt(0)
    ds_write_b32 v6, v7
    """)
    if P['dump']:
        I(f"""
        v_lshlrev_b32 v4, 2, v1
        v_add_u32 v5, {M['QB']}, v4
        ds_read_b32 v10, v5
        s_lshl_b32 s41, s2, 8
        s_add_u32 s41, s41, 0x100000
        v_add_u32 v4, s41, v4
        s_waitcnt lgkmcnt(0)
        global_store_dword v4, v10, s[26:27]
        """)
    a.label("L_c_qwait")
    I(f"v_mov_b32 v5, {M['QREADY']}")
    lds_wait("L_c_qw", 5, 6, 1)
    I(f"""
    v_lshlrev_b32 v5, 4, v8
    v_add_u32 v5, {M['QB']}, v5
    ds_read_b128 v[40:43], v5
    ds_read_b128 v[44:47], v5 offset:64
    ds_read_b128 v[48:51], v5 offset:128
    ds_read_b128 v[52:55], v5 offset:192
    """)
    I(f"""
    v_xor_b32 v2, v8, v9
    v_lshlrev_b32 v2, 4, v2
    v_lshlrev_b32 v10, 8, v9
    v_add_u32 v2, v2, v10
    v_lshrrev_b32 v10, 2, v9
    v_and_b32 v11, 3, v9
    v_lshlrev_b32 v12, 2, v8
    v_add_u32 v12, v12, v10
    v_and_b32 v13, 7, v12
    v_lshlrev_b32 v13, 1, v13
    v_lshrrev_b32 v14, 1, v11
    v_xor_b32 v13, v13, v14
    v_lshlrev_b32 v13, 4, v13
    v_and_b32 v14, 1, v11
    v_lshlrev_b32 v14, 3, v14
    v_lshlrev_b32 v3, 8, v12
    v_add_u32 v3, v3, v13
    v_add_u32 v3, v3, v14
    v_add_u32 v3, 8192, v3
    v_mov_b32 v4, 0xff800000
    v_mov_b32 v5, 0
    v_mov_b32 v6, 0
    v_mov_b32 v7, {M['FILLED']}
    s_lshl_b32 s41, s40, 2
    s_add_u32 s41, s41, {M['NEXT']}
    v_mov_b32 v38, s41
    s_mov_b32 s44, {hex(LOG2E)}
    s_mov_b32 s45, {hex(SCALE)}
    s_mov_b32 s46, s40
    s_lshl_b32 s47, s40, 14
    s_mov_b32 s48, -100
    """)
    for r in range(56, 88): I(f"v_mov_b32 v{r}, 0")
    I("s_waitcnt lgkmcnt(0)")
    stamp(2)
    a.label("L_c_tile")
    def wait_half(lbl, k):
        I(f"s_lshl_b32 s49, s46, 1")
        I(f"s_add_u32 s49, s49, {k}")
        I(f"s_cmp_ge_i32 s48, s49")
        I(f"s_cbranch_scc1 {lbl}_ok")
        a.label(f"{lbl}_poll")
        spin()
        I("ds_read_b64 v[36:37], v7")
        I("s_waitcnt lgkmcnt(0)")
        I("v_readfirstlane_b32 s48, v36")
        if k == 1: I("v_readfirstlane_b32 s50, v37")
        I("s_cmp_ge_i32 s48, s49")
        I(f"s_cbranch_scc1 {lbl}_ok")
        if k == 1:
            I("s_cmp_ge_u32 s46, s50")
            I("s_cbranch_scc1 L_c_fin")
        I(f"s_sleep {P['sleep_c']}")
        I(f"s_branch {lbl}_poll")
        a.label(f"{lbl}_ok")
    wait_half("L_c_k", 1)
    I("v_add_u32 v10, s47, v2")
    for j in range(1, 4): I(f"v_xor_b32 v{10+j}, {j << 6}, v10")
    KF = 88
    for j in range(4):
        I(f"ds_read_b128 v[{KF+4*j}:{KF+4*j+3}], v{10+j}")
        I(f"ds_read_b128 v[{KF+16+4*j}:{KF+16+4*j+3}], v{10+j} offset:4096")
    for j in range(4):
        I(f"s_waitcnt lgkmcnt({6 - 2*j})")
        c0 = "0" if j == 0 else "v[18:21]"
        c1 = "0" if j == 0 else "v[22:25]"
        I(f"v_mfma_f32_16x16x32_bf16 v[18:21], v[{KF+4*j}:{KF+4*j+3}], v[{40+4*j}:{43+4*j}], {c0}")
        I(f"v_mfma_f32_16x16x32_bf16 v[22:25], v[{KF+16+4*j}:{KF+16+4*j+3}], v[{40+4*j}:{43+4*j}], {c1}")
    I("v_add_u32 v10, s47, v3")
    for nb in range(1, 8): I(f"v_xor_b32 v{10+nb}, {nb << 5}, v10")
    SS = 18
    for p in range(4): I(f"v_cvt_pk_bf16_f32 v{30+p}, v{SS+2*p}, v{SS+2*p+1}")
    for p in range(4):
        I(f"v_lshlrev_b32 v{SS+2*p}, 16, v{30+p}")
        I(f"v_and_b32 v{SS+2*p+1}, s43, v{30+p}")
    for i in range(8): I(f"v_mul_f32 v{SS+i}, s45, v{SS+i}")
    for p in range(4): I(f"v_cvt_pk_bf16_f32 v{30+p}, v{SS+2*p}, v{SS+2*p+1}")
    for p in range(4):
        I(f"v_lshlrev_b32 v{SS+2*p}, 16, v{30+p}")
        I(f"v_and_b32 v{SS+2*p+1}, s43, v{30+p}")
    I(f"""
    v_max3_f32 v34, v{SS}, v{SS+1}, v{SS+2}
    v_max3_f32 v35, v{SS+3}, v{SS+4}, v{SS+5}
    v_max3_f32 v34, v34, v{SS+6}, v{SS+7}
    v_max_f32 v34, v34, v35
    v_mov_b32 v35, v34
    v_permlane32_swap_b32 v34, v35
    v_max_f32 v34, v34, v35
    v_mov_b32 v35, v34
    v_permlane16_swap_b32 v34, v35
    v_max_f32 v34, v34, v35
    v_cmp_gt_f32 vcc, v34, v4
    s_cbranch_vccz L_c_norescale
    v_sub_f32 v35, v4, v34
    v_mul_f32 v35, s44, v35
    v_exp_f32 v35, v35
    v_mov_b32 v4, v34
    v_mul_f32 v6, s44, v34
    v_mul_f32 v5, v5, v35
    """)
    for r in range(56, 88): I(f"v_mul_f32 v{r}, v{r}, v35")
    a.label("L_c_norescale")
    for i in range(8): I(f"v_fma_f32 v{SS+i}, v{SS+i}, s44, -v6")
    for i in range(8): I(f"v_exp_f32 v{SS+i}, v{SS+i}")
    for p in range(4): I(f"v_cvt_pk_bf16_f32 v{26+p}, v{SS+2*p}, v{SS+2*p+1}")
    I(f"""
    v_add_f32 v30, v{SS}, v{SS+1}
    v_add_f32 v31, v{SS+2}, v{SS+3}
    v_add_f32 v32, v{SS+4}, v{SS+5}
    v_add_f32 v33, v{SS+6}, v{SS+7}
    v_add_f32 v30, v30, v31
    v_add_f32 v32, v32, v33
    v_add_f32 v30, v30, v32
    v_add_f32 v5, v5, v30
    """)
    wait_half("L_c_v", 2)
    def vread(nb):
        I(f"ds_read_b64_tr_b16 v[{KF+4*nb}:{KF+4*nb+1}], v{10+nb}")
        I(f"ds_read_b64_tr_b16 v[{KF+4*nb+2}:{KF+4*nb+3}], v{10+nb} offset:4096")
    def pv(nb):
        I(f"v_mfma_f32_16x16x32_bf16 v[{56+4*nb}:{59+4*nb}], v[26:29], v[{KF+4*nb}:{KF+4*nb+3}], v[{56+4*nb}:{59+4*nb}]")
    for nb in range(7): vread(nb)
    I("s_waitcnt lgkmcnt(6)")
    for nb in range(4): pv(nb)
    vread(7)
    I("s_waitcnt lgkmcnt(2)")
    for nb in range(4, 7): pv(nb)
    I("s_add_u32 s46, s46, 4")
    I("v_mov_b32 v30, s46")
    I("s_waitcnt lgkmcnt(0)")
    I("ds_write_b32 v38, v30")
    pv(7)
    I(f"""
    s_add_u32 s47, s47, {4*16384}
    s_cmp_ge_u32 s47, {R*16384}
    s_cselect_b32 s49, {R*16384}, 0
    s_sub_u32 s47, s47, s49
    s_branch L_c_tile
    """)
    a.label("L_c_fin")
    stamp(3)
    I(f"""
    v_mov_b32 v30, v5
    v_permlane32_swap_b32 v5, v30
    v_add_f32 v5, v5, v30
    v_mov_b32 v30, v5
    v_permlane16_swap_b32 v5, v30
    v_add_f32 v5, v5, v30
    s_lshl_b32 s41, s40, 9
    s_add_u32 s41, s41, {M['FINO']}
    v_and_b32 v9, 15, v1
    v_lshlrev_b32 v10, 2, v9
    v_add_u32 v10, s41, v10
    """)
    for nb in range(8): I(f"ds_write_b32 v10, v{56+4*nb} offset:{64*nb}")
    I(f"""
    s_lshl_b32 s41, s40, 3
    s_add_u32 s41, s41, {M['FINML']}
    v_mov_b32 v10, s41
    ds_write_b64 v10, v[4:5]
    v_mov_b32 v11, {M['FINCNT']}
    v_mov_b32 v12, 1
    s_waitcnt lgkmcnt(0)
    s_mov_b64 exec, 1
    ds_add_rtn_u32 v13, v11, v12
    s_waitcnt lgkmcnt(0)
    s_mov_b64 exec, -1
    v_readfirstlane_b32 s41, v13
    s_cmp_eq_u32 s41, 3
    s_cbranch_scc0 L_end
    """)
    I(f"""
    v_mov_b32 v11, {M['TAILGO']}
    ds_write_b32 v11, v12
    v_lshlrev_b32 v10, 3, v1
    v_add_u32 v10, {M['FINO']}, v10
    v_mov_b32 v11, {M['FINML']}
    ds_read_b128 v[20:23], v11
    ds_read_b128 v[24:27], v11 offset:16
    ds_read_b64 v[12:13], v10
    ds_read_b64 v[14:15], v10 offset:512
    ds_read_b64 v[16:17], v10 offset:1024
    ds_read_b64 v[18:19], v10 offset:1536
    s_waitcnt lgkmcnt(0)
    v_max3_f32 v28, v20, v22, v24
    v_max_f32 v28, v28, v26
    v_sub_f32 v20, v20, v28
    v_sub_f32 v22, v22, v28
    v_sub_f32 v24, v24, v28
    v_sub_f32 v26, v26, v28
    v_mul_f32 v20, s44, v20
    v_mul_f32 v22, s44, v22
    v_mul_f32 v24, s44, v24
    v_mul_f32 v26, s44, v26
    v_exp_f32 v20, v20
    v_exp_f32 v22, v22
    v_exp_f32 v24, v24
    v_exp_f32 v26, v26
    v_mul_f32 v12, v12, v20
    v_mul_f32 v13, v13, v20
    v_mul_f32 v29, v21, v20
    v_fmac_f32 v12, v14, v22
    v_fmac_f32 v13, v15, v22
    v_fmac_f32 v29, v23, v22
    v_fmac_f32 v12, v16, v24
    v_fmac_f32 v13, v17, v24
    v_fmac_f32 v29, v25, v24
    v_fmac_f32 v12, v18, v26
    v_fmac_f32 v13, v19, v26
    v_fmac_f32 v29, v27, v26
    s_mov_b32 s41, 0xfffffffe
    v_min_u32 v12, s41, v12
    v_min_u32 v13, s41, v13
    v_min_u32 v28, s41, v28
    v_min_u32 v29, s41, v29
    s_lshl_b32 s41, s2, 9
    v_lshlrev_b32 v10, 3, v1
    v_add_u32 v10, s41, v10
    global_store_dwordx2 v10, v[12:13], s[26:27] sc1
    s_lshl_b32 s41, s2, 3
    s_add_u32 s41, s41, {WS_ML}
    v_mov_b32 v10, s41
    s_mov_b64 exec, 1
    global_store_dwordx2 v10, v[28:29], s[26:27] sc1
    s_mov_b64 exec, -1
    """)
    stamp(4)
    I("s_endpgm")

    a.label("L_tail")
    I("s_sub_u32 s40, s28, 5")
    I("s_mov_b32 s43, 0xffff0000")
    I(f"""
    s_mov_b32 s54, 0
    s_mov_b32 s44, 0
    s_cmp_lt_u32 s31, 2
    s_cbranch_scc0 L_t_r1
    s_mov_b32 s54, 1
    s_lshl_b32 s44, s29, 1
    s_add_u32 s44, s44, s31
    s_branch L_t_rdone
    """)
    a.label("L_t_r1")
    I(f"""
    s_cmp_eq_u32 s31, 2
    s_cbranch_scc0 L_t_r2
    s_mov_b32 s54, 2
    s_mov_b32 s44, s29
    s_branch L_t_rdone
    """)
    a.label("L_t_r2")
    I(f"""
    s_cmp_eq_u32 s31, 3
    s_cbranch_scc0 L_t_rdone
    s_cmp_lt_u32 s29, 11
    s_cbranch_scc0 L_t_r3
    s_mov_b32 s54, 2
    s_add_u32 s44, s29, 32
    s_branch L_t_rdone
    """)
    a.label("L_t_r3")
    I(f"""
    s_cmp_lt_u32 s29, 27
    s_cbranch_scc0 L_t_rdone
    s_mov_b32 s54, 3
    s_sub_u32 s44, s29, 11
    """)
    a.label("L_t_rdone")
    I("s_barrier")
    I(f"""
    v_lshrrev_b32 v8, 4, v1
    v_and_b32 v9, 15, v1
    s_cmp_eq_u32 s40, 0
    s_cbranch_scc0 L_t_noclear
    """)
    I(f"""
    v_mov_b32 v10, -1
    v_mov_b32 v11, -1
    v_mov_b32 v12, -1
    v_mov_b32 v13, -1
    s_lshl_b32 s41, s2, 9
    v_lshlrev_b32 v4, 3, v1
    v_add_u32 v4, s41, v4
    global_store_dwordx2 v4, v[10:11], s[26:27] sc1
    s_lshl_b32 s41, s2, 3
    s_add_u32 s41, s41, {WS_ML}
    v_mov_b32 v4, s41
    global_store_dwordx2 v4, v[10:11], s[26:27] sc1
    s_cmp_eq_u32 s30, 0
    s_cbranch_scc0 L_t_clr_tk
    s_lshl_b32 s41, s29, 8
    s_add_u32 s41, s41, {WS_TK}
    v_mov_b32 v4, s41
    v_mov_b32 v5, 0
    global_store_dword v4, v5, s[26:27] sc1
    """)
    a.label("L_t_clr_tk")
    I(f"""
    s_cmp_eq_u32 s54, 1
    s_cbranch_scc0 L_t_clr_f
    s_lshl_b32 s41, s44, 8
    s_add_u32 s41, s41, {WS_Y}
    v_lshlrev_b32 v4, 2, v1
    v_add_u32 v4, s41, v4
    global_store_dword v4, v10, s[26:27] sc1
    s_branch L_t_clr_done
    """)
    a.label("L_t_clr_f")
    I(f"""
    s_cmp_eq_u32 s54, 2
    s_cbranch_scc0 L_t_clr_done
    s_lshl_b32 s41, s44, 11
    s_add_u32 s41, s41, {WS_P}
    v_lshlrev_b32 v4, 4, v1
    v_add_u32 v4, s41, v4
    global_store_dwordx4 v4, v[10:13], s[26:27] sc1
    global_store_dwordx4 v4, v[10:13], s[26:27] offset:1024 sc1
    """)
    a.label("L_t_clr_done")
    I(f"""
    s_waitcnt vmcnt(0)
    v_mov_b32 v4, {M['CLEARED']}
    v_mov_b32 v5, 1
    ds_write_b32 v4, v5
    """)
    a.label("L_t_noclear")
    I(f"""
    s_cmp_eq_u32 s54, 0
    s_cbranch_scc1 L_end
    s_cmp_eq_u32 s54, 3
    s_cbranch_scc0 L_t_wf
    s_cmp_eq_u32 s40, 0
    s_cbranch_scc1 L_t_o
    s_endpgm
    """)
    a.label("L_t_wf")
    I(f"v_mov_b32 v4, {M['QREADY']}")
    lds_wait("L_t_qw", 4, 5, 8)
    I("s_cmp_eq_u32 s54, 2")
    I("s_cbranch_scc1 L_t_f")

    STG = M['STAGE']
    SNT = P['stage_nt']
    def stage_setup():
        I(f"s_lshl_b32 s41, s40, 12")
        I(f"s_add_u32 s41, s41, {STG}")
    def dma(addr, u, step_bytes):
        if P['skip_stage']: return
        I(f"s_add_u32 m0, s41, {u*1024}")
        I(f"s_nop 0")
        I(f"global_load_lds_dwordx4 v[{addr}:{addr+1}], off {SNT}")
        if step_bytes:
            I(f"v_add_co_u32 v{addr}, vcc, {step_bytes}, v{addr}")
            I(f"v_addc_co_u32 v{addr+1}, vcc, 0, v{addr+1}, vcc")
    def tr_reads(trbase, offs, dst):
        I("s_waitcnt vmcnt(0)")
        d = dst
        for off in offs:
            I(f"ds_read_b64_tr_b16 v[{d}:{d+1}], v{trbase} offset:{off[0]}")
            I(f"ds_read_b64_tr_b16 v[{d+2}:{d+3}], v{trbase} offset:{off[1]}")
            d += 4
        I("s_waitcnt lgkmcnt(0)")
    def tr_addr(reg, rowstride):
        I(f"v_lshrrev_b32 v10, 2, v9")
        I(f"v_lshlrev_b32 v11, 3, v8")
        I(f"v_add_u32 v10, v10, v11")
        I(f"v_mul_u32_u24 v10, {rowstride}, v10")
        I(f"v_and_b32 v11, 3, v9")
        I(f"v_lshlrev_b32 v11, 3, v11")
        I(f"v_add_u32 v10, v10, v11")
        I(f"v_add_u32 v{reg}, s41, v10")
    def wait_flags_and_go(lbl):
        I(f"""
        v_mov_b32 v4, {M['NONCE']}
        ds_read_b64 v[16:17], v4
        v_lshlrev_b32 v4, 4, v1
        v_add_u32 v4, {WS_CLR}, v4
        s_waitcnt lgkmcnt(0)
        """)
        a.label(f"{lbl}_clr")
        spin()
        I(f"""
        global_load_dwordx4 v[20:23], v4, s[26:27] sc1
        global_load_dwordx4 v[24:27], v4, s[26:27] offset:1024 sc1
        s_waitcnt vmcnt(0)
        """)
        I("v_xor_b32 v5, v16, v20")
        for r in (22, 24, 26):
            I(f"v_xor_b32 v18, v16, v{r}")
            I("v_or_b32 v5, v5, v18")
        for r in (21, 23, 25, 27):
            I(f"v_xor_b32 v18, v17, v{r}")
            I("v_or_b32 v5, v5, v18")
        I(f"""
        v_cmp_ne_u32 vcc, 0, v5
        s_cbranch_vccz {lbl}_go0
        s_sleep 32
        s_branch {lbl}_clr
        """)
        a.label(f"{lbl}_go0")
        I(f"v_mov_b32 v4, {M['TAILGO']}")
        lds_wait(f"{lbl}_go", 4, 5, P['sleep_t'])
    def check_valid(regs, lbl, tmp):
        rs = list(regs)
        I(f"v_max3_u32 v{tmp}, v{rs[0]}, v{rs[1]}, v{rs[2]}")
        rs = rs[3:]
        while len(rs) >= 2:
            I(f"v_max3_u32 v{tmp}, v{tmp}, v{rs[0]}, v{rs[1]}"); rs = rs[2:]
        if rs: I(f"v_max_u32 v{tmp}, v{tmp}, v{rs[0]}")
        I(f"v_cmp_eq_u32 vcc, -1, v{tmp}")
        I(f"s_cbranch_vccnz {lbl}")
    def gemv_kslice(abase, wb, acc, tmp):
        for ks in range(4):
            I(f"ds_read_b128 v[{tmp+4*ks}:{tmp+4*ks+3}], v{abase} offset:{ks*64}")
        for ks in range(4):
            I(f"s_waitcnt lgkmcnt({3-ks})")
            for nb in range(4):
                c = "0" if ks == 0 else f"v[{acc+4*nb}:{acc+4*nb+3}]"
                I(f"v_mfma_f32_16x16x32_bf16 v[{acc+4*nb}:{acc+4*nb+3}], v[{tmp+4*ks}:{tmp+4*ks+3}], v[{wb+16*ks+4*nb}:{wb+16*ks+4*nb+3}], {c}")
    def part_to_lds(acc):
        I(f"""
        s_lshl_b32 s47, s40, 8
        s_add_u32 s47, s47, {M['YP']}
        v_lshlrev_b32 v11, 2, v9
        v_add_u32 v11, s47, v11
        """)
        for nb in range(4): I(f"ds_write_b32 v11, v{acc+4*nb} offset:{64*nb}")
        I(f"""
        v_lshlrev_b32 v11, 2, v1
        v_add_u32 v11, {M['YP']}, v11
        s_waitcnt lgkmcnt(0)
        s_barrier
        ds_read_b32 v12, v11
        ds_read_b32 v13, v11 offset:256
        ds_read_b32 v14, v11 offset:512
        ds_read_b32 v15, v11 offset:768
        s_waitcnt lgkmcnt(0)
        v_add_f32 v12, v12, v13
        v_add_f32 v14, v14, v15
        v_add_f32 v12, v12, v14
        """)

    WB = 64
    a.label("L_t_w")
    stage_setup()
    tr_addr(14, 128)
    I(f"""
    s_lshr_b32 s45, s44, 3
    s_and_b32 s46, s44, 7
    s_lshl_b32 s47, s45, 19
    s_lshl_b32 s48, s40, 17
    s_add_u32 s47, s47, s48
    s_lshl_b32 s48, s46, 7
    s_add_u32 s47, s47, s48
    v_lshrrev_b32 v10, 3, v1
    v_lshlrev_b32 v10, 10, v10
    v_and_b32 v11, 7, v1
    v_lshlrev_b32 v11, 4, v11
    v_add_u32 v10, v10, v11
    v_add_u32 v10, s47, v10
    v_mov_b32 v13, s13
    v_add_co_u32 v12, vcc, s12, v10
    v_addc_co_u32 v13, vcc, 0, v13, vcc
    """)
    for ks in range(4):
        for u in range(4): dma(12, u, 8 * 1024)
        tr_reads(14, [(nb * 32, 4 * 128 + nb * 32) for nb in range(4)], WB + 16 * ks)
    stamp(8)
    I(f"""
    s_lshl_b32 s47, s45, 2
    s_add_u32 s47, s47, s40
    s_lshl_b32 s48, s47, 12
    v_lshlrev_b32 v14, 4, v1
    v_add_u32 v14, s48, v14
    s_lshl_b32 s48, s47, 6
    s_add_u32 s48, s48, {WS_ML}
    v_mov_b32 v15, s48
    """)
    wait_flags_and_go("L_w")
    stamp(9)
    a.label("L_w_poll")
    spin()
    for i in range(4): I(f"global_load_dwordx4 v[{16+4*i}:{19+4*i}], v14, s[26:27] offset:{1024*i} sc1")
    for i in range(4): I(f"global_load_dwordx4 v[{32+4*i}:{35+4*i}], v15, s[26:27] offset:{16*i} sc1")
    I("s_waitcnt vmcnt(0)")
    check_valid(range(16, 48), "L_w_poll", 48)
    stamp(10)
    I("""
    v_max3_f32 v48, v32, v34, v36
    v_max3_f32 v49, v38, v40, v42
    v_max3_f32 v48, v48, v44, v46
    v_max_f32 v48, v48, v49
    s_mov_b32 s47, 0x3fb8aa3b
    """)
    for j in range(8): I(f"v_sub_f32 v{32+2*j}, v{32+2*j}, v48")
    for j in range(8): I(f"v_mul_f32 v{32+2*j}, s47, v{32+2*j}")
    for j in range(8): I(f"v_exp_f32 v{32+2*j}, v{32+2*j}")
    I("v_mul_f32 v49, v32, v33")
    for j in range(1, 8): I(f"v_fmac_f32 v49, v{32+2*j}, v{33+2*j}")
    I("v_cmp_lt_u32 vcc, 31, v1")
    for i in range(4): I(f"v_cndmask_b32 v{50+i}, v{32+4*i}, v{34+4*i}, vcc")
    I("v_rcp_f32 v49, v49")
    for c in range(4): I(f"v_mul_f32 v{16+c}, v{16+c}, v50")
    for i in range(1, 4):
        for c in range(4): I(f"v_fmac_f32 v{16+c}, v{16+4*i+c}, v{50+i}")
    for c in range(4): I(f"v_mov_b32 v{20+c}, v{16+c}")
    for c in range(4): I(f"v_permlane32_swap_b32 v{16+c}, v{20+c}")
    for c in range(4): I(f"v_add_f32 v{16+c}, v{16+c}, v{20+c}")
    for c in range(4): I(f"v_mul_f32 v{16+c}, v{16+c}, v49")
    I(f"""
    v_cvt_pk_bf16_f32 v16, v16, v17
    v_cvt_pk_bf16_f32 v17, v18, v19
    v_and_b32 v10, 31, v1
    v_lshlrev_b32 v10, 3, v10
    s_lshl_b32 s47, s40, 8
    s_add_u32 s47, s47, {M['OALL']}
    v_add_u32 v10, s47, v10
    ds_write_b64 v10, v[16:17]
    v_lshlrev_b32 v10, 4, v8
    v_add_u32 v10, s47, v10
    s_waitcnt lgkmcnt(0)
    """)
    gemv_kslice(10, WB, 32, 16)
    part_to_lds(32)
    I(f"""
    s_mov_b32 s47, 0xfffffffe
    v_min_u32 v12, s47, v12
    s_lshl_b32 s47, s44, 8
    s_add_u32 s47, s47, {WS_Y}
    v_lshlrev_b32 v11, 2, v1
    v_add_u32 v11, s47, v11
    s_cmp_eq_u32 s40, 0
    s_cbranch_scc0 L_end
    global_store_dword v11, v12, s[26:27] sc1
    """)
    stamp(11)
    I("s_endpgm")

    a.label("L_t_f")
    stage_setup()
    tr_addr(14, 64)
    I(f"""
    s_lshl_b32 s46, s44, 6
    s_mul_i32 s47, s40, {128 * 2752}
    s_add_u32 s46, s46, s47
    v_lshrrev_b32 v10, 2, v1
    v_mul_u32_u24 v10, 2752, v10
    v_and_b32 v11, 3, v1
    v_lshlrev_b32 v11, 4, v11
    v_add_u32 v10, v10, v11
    v_add_u32 v10, s46, v10
    v_mov_b32 v13, s17
    v_add_co_u32 v12, vcc, s16, v10
    v_addc_co_u32 v13, vcc, 0, v13, vcc
    v_mov_b32 v17, s19
    v_add_co_u32 v16, vcc, s18, v10
    v_addc_co_u32 v17, vcc, 0, v17, vcc
    """)
    for ks in range(4):
        dma(12, 0, 16 * 2752); dma(12, 1, 16 * 2752)
        dma(16, 2, 16 * 2752); dma(16, 3, 16 * 2752)
        tr_reads(14, [(0, 256), (32, 256 + 32), (2048, 2048 + 256), (2048 + 32, 2048 + 256 + 32)], WB + 16 * ks)
    tr_addr(14, 128)
    DB = WB + 64
    for rr in range(2):
        I(f"""
        s_lshl_b32 s46, s44, 15
        s_lshl_b32 s47, s40, 8
        s_add_u32 s46, s46, s47
        s_add_u32 s46, s46, {128*rr}
        v_lshrrev_b32 v10, 3, v1
        v_lshlrev_b32 v10, 10, v10
        v_and_b32 v11, 7, v1
        v_lshlrev_b32 v11, 4, v11
        v_add_u32 v10, v10, v11
        v_add_u32 v10, s46, v10
        v_mov_b32 v13, s21
        v_add_co_u32 v12, vcc, s20, v10
        v_addc_co_u32 v13, vcc, 0, v13, vcc
        """)
        for u in range(4): dma(12, u, 8 * 1024)
        tr_reads(14, [(nb * 32, 4 * 128 + nb * 32) for nb in range(4)], DB + 16 * rr)
    I(f"""
    v_and_b32 v10, 31, v1
    v_lshlrev_b32 v11, 3, v10
    s_lshl_b32 s46, s40, 8
    v_add_u32 v11, s46, v11
    global_load_dwordx2 v[6:7], v11, s[4:5]
    v_lshlrev_b32 v14, 4, v10
    v_lshrrev_b32 v11, 5, v1
    v_lshlrev_b32 v11, 11, v11
    v_add_u32 v14, v14, v11
    s_lshl_b32 s46, s40, 9
    s_add_u32 s46, s46, {WS_Y}
    v_add_u32 v14, s46, v14
    s_waitcnt vmcnt(0)
    """)
    stamp(12)
    wait_flags_and_go("L_f")
    stamp(13)
    a.label("L_f_poll")
    spin()
    I("global_load_dwordx4 v[16:19], v14, s[26:27] sc1")
    I("v_add_u32 v15, 4096, v14")
    I("global_load_dwordx4 v[20:23], v15, s[26:27] sc1")
    I("v_add_u32 v15, 8192, v14")
    I("global_load_dwordx4 v[24:27], v15, s[26:27] sc1")
    I("v_add_u32 v15, 12288, v14")
    I("global_load_dwordx4 v[28:31], v15, s[26:27] sc1")
    I("s_waitcnt vmcnt(0)")
    check_valid(range(16, 32), "L_f_poll", 32)
    stamp(14)
    for c in range(4):
        I(f"v_add_f32 v{16+c}, v{16+c}, v{20+c}")
        I(f"v_add_f32 v{24+c}, v{24+c}, v{28+c}")
    for c in range(4): I(f"v_add_f32 v{16+c}, v{16+c}, v{24+c}")
    for c in range(4): I(f"v_mov_b32 v{20+c}, v{16+c}")
    for c in range(4): I(f"v_permlane32_swap_b32 v{16+c}, v{20+c}")
    for c in range(4): I(f"v_add_f32 v{16+c}, v{16+c}, v{20+c}")
    def resid(xr, out):
        I(f"""
        v_cvt_pk_bf16_f32 v16, v16, v17
        v_cvt_pk_bf16_f32 v17, v18, v19
        v_lshlrev_b32 v20, 16, v16
        v_and_b32 v21, s43, v16
        v_lshlrev_b32 v22, 16, v17
        v_and_b32 v23, s43, v17
        v_lshlrev_b32 v24, 16, v{xr}
        v_and_b32 v25, s43, v{xr}
        v_lshlrev_b32 v26, 16, v{xr+1}
        v_and_b32 v27, s43, v{xr+1}
        v_add_f32 v20, v20, v24
        v_add_f32 v21, v21, v25
        v_add_f32 v22, v22, v26
        v_add_f32 v23, v23, v27
        v_cvt_pk_bf16_f32 v{out}, v20, v21
        v_cvt_pk_bf16_f32 v{out+1}, v22, v23
        """)
    resid(6, 16)
    I(f"""
    v_and_b32 v10, 31, v1
    v_lshlrev_b32 v10, 3, v10
    s_lshl_b32 s47, s40, 8
    s_add_u32 s47, s47, {M['OALL']}
    v_add_u32 v10, s47, v10
    ds_write_b64 v10, v[16:17]
    v_lshlrev_b32 v10, 4, v1
    v_add_u32 v10, {M['OALL']}, v10
    s_waitcnt lgkmcnt(0)
    s_barrier
    ds_read_b128 v[16:19], v10
    s_waitcnt lgkmcnt(0)
    """)
    unpack8(16, 20)
    layernorm8(20, 28)
    for p in range(4): I(f"v_cvt_pk_bf16_f32 v{16+p}, v{20+2*p}, v{21+2*p}")
    I(f"""
    s_lshl_b32 s47, s40, 10
    s_add_u32 s47, s47, {M['XN2']}
    v_lshlrev_b32 v10, 4, v1
    v_add_u32 v10, s47, v10
    ds_write_b128 v10, v[16:19]
    s_lshl_b32 s46, s40, 8
    s_add_u32 s47, s47, s46
    v_lshlrev_b32 v10, 4, v8
    v_add_u32 v10, s47, v10
    s_waitcnt lgkmcnt(0)
    """)
    gemv_kslice(10, WB, 32, 16)
    part_to_lds(32)
    I(f"""
    v_cvt_pk_bf16_f32 v12, v12, v12
    v_and_b32 v12, s43, v12
    v_mov_b32 v13, v12
    v_permlane32_swap_b32 v12, v13
    v_mul_f32 v12, v12, v13
    v_cvt_pk_bf16_f32 v12, v12, v12
    s_lshl_b32 s47, s40, 6
    s_add_u32 s47, s47, {M['HH']}
    v_and_b32 v10, 31, v1
    v_lshlrev_b32 v10, 1, v10
    v_add_u32 v10, s47, v10
    ds_write_b16 v10, v12
    v_lshlrev_b32 v10, 4, v8
    v_add_u32 v10, s47, v10
    s_lshl_b32 s47, s44, 11
    s_lshl_b32 s46, s40, 9
    s_add_u32 s47, s47, s46
    s_add_u32 s47, s47, {WS_P}
    v_lshlrev_b32 v11, 2, v9
    v_add_u32 v11, s47, v11
    s_waitcnt lgkmcnt(0)
    ds_read_b128 v[16:19], v10
    s_waitcnt lgkmcnt(0)
    """)
    for nb in range(8):
        I(f"v_mfma_f32_16x16x32_bf16 v[{20+4*nb}:{23+4*nb}], v[16:19], v[{DB+4*nb}:{DB+4*nb+3}], 0")
    I("s_mov_b32 s47, 0xfffffffe")
    for nb in range(8): I(f"v_min_u32 v{20+4*nb}, s47, v{20+4*nb}")
    I("s_mov_b64 exec, 0xffff")
    for nb in range(8): I(f"global_store_dword v11, v{20+4*nb}, s[26:27] offset:{64*nb} sc1")
    I("s_mov_b64 exec, -1")
    stamp(15)
    I("s_endpgm")

    a.label("L_t_o")
    I(f"""
    v_and_b32 v10, 7, v1
    v_lshlrev_b32 v11, 3, v10
    s_lshl_b32 s46, s44, 6
    v_add_u32 v11, s46, v11
    global_load_dwordx2 v[6:7], v11, s[4:5]
    v_mov_b32 v3, v11
    v_lshlrev_b32 v14, 4, v10
    v_lshrrev_b32 v12, 3, v1
    v_lshlrev_b32 v12, 11, v12
    v_add_u32 v14, v14, v12
    s_lshl_b32 s46, s44, 7
    v_add_u32 v14, s46, v14
    v_add_u32 v15, {WS_Y}, v14
    s_add_u32 s32, s26, {WS_P}
    s_addc_u32 s33, s27, 0
    s_and_b32 s33, s33, 0xffff
    s_mov_b32 s34, {NF * 2048}
    s_mov_b32 s35, 0x20000
    v_mov_b32 v4, {M['QREADY']}
    s_waitcnt vmcnt(0)
    """)
    lds_wait("L_o_qw", 4, 5, 8)
    wait_flags_and_go("L_o")
    stamp(16)
    def red_r8(base, tmp):
        for c in range(4): I(f"v_add_f32_dpp v{base+c}, v{base+c}, v{base+c} row_ror:8 row_mask:0xf bank_mask:0xf")
        for c in range(4): I(f"v_mov_b32 v{tmp+c}, v{base+c}")
        for c in range(4): I(f"v_permlane16_swap_b32 v{base+c}, v{tmp+c}")
        for c in range(4): I(f"v_add_f32 v{base+c}, v{base+c}, v{tmp+c}")
        for c in range(4): I(f"v_mov_b32 v{tmp+c}, v{base+c}")
        for c in range(4): I(f"v_permlane32_swap_b32 v{base+c}, v{tmp+c}")
        for c in range(4): I(f"v_add_f32 v{base+c}, v{base+c}, v{tmp+c}")
    a.label("L_o_polly")
    spin()
    I("global_load_dwordx4 v[16:19], v15, s[26:27] sc1")
    I("s_waitcnt vmcnt(0)")
    check_valid(range(16, 20), "L_o_polly", 20)
    red_r8(16, 20)
    resid(6, 16)
    I(f"""
    v_mov_b32 v48, v16
    v_mov_b32 v49, v17
    """)
    stamp(17)
    a.label("L_o_pollp")
    spin()
    for u in range(6):
        I(f"s_mov_b32 s46, {u * 8 * 2048}")
        I(f"buffer_load_dwordx4 v[{16+4*u}:{19+4*u}], v14, s[32:35], s46 offen sc1")
    I("s_waitcnt vmcnt(0)")
    check_valid(range(16, 40), "L_o_pollp", 40)
    stamp(18)
    for c in range(4):
        I(f"v_add_f32 v{16+c}, v{16+c}, v{20+c}")
        I(f"v_add_f32 v{24+c}, v{24+c}, v{28+c}")
        I(f"v_add_f32 v{32+c}, v{32+c}, v{36+c}")
    for c in range(4): I(f"v_add_f32 v{16+c}, v{16+c}, v{24+c}")
    for c in range(4): I(f"v_add_f32 v{16+c}, v{16+c}, v{32+c}")
    red_r8(16, 20)
    resid(48, 16)
    I(f"""
    s_mov_b64 exec, 0xff
    global_store_dwordx2 v3, v[16:17], s[22:23]
    s_mov_b64 exec, -1
    """)
    stamp(19)
    a.label("L_end")
    I("s_endpgm")
    a.raw('.section .rodata,"a"')
    a.raw(".p2align 6")
    a.raw(f".amdhsa_kernel {KN}_kernel")
    a.raw("  .amdhsa_next_free_vgpr 168")
    a.raw("  .amdhsa_next_free_sgpr 96")
    a.raw("  .amdhsa_accum_offset 168")
    a.raw("  .amdhsa_group_segment_fixed_size 0")
    a.raw("  .amdhsa_kernarg_size 96")
    a.raw("  .amdhsa_user_sgpr_count 2")
    a.raw("  .amdhsa_user_sgpr_kernarg_segment_ptr 1")
    a.raw("  .amdhsa_system_sgpr_workgroup_id_x 1")
    a.raw(".end_amdhsa_kernel")
    return a.text()

if __name__ == "__main__":
    out = sys.argv[1]
    kw = json.loads(sys.argv[2]) if len(sys.argv) > 2 else {}
    open(out, "w").write(gen(**kw))
    print("wrote", out)
```

```python
import sys, json
from asmlib import Asm

KN = "sequential_preLN__gqa_block_cached__glu_gated_bilinear__decode"

DEF = dict(D=18, R=8, S=112, C=2, stamps=False, dump=False, nt="nt", sleep_c=1, sleep_t=4, prio=True,
           skip_stage=False, segs=None, stage_nt="nt", qsleep=2, q_nt="nt", knt=None, vnt=None, tag_sc1=False, budget=0x40000)

def lds_map(R):
    ring = R * 16384
    m = {}
    m['RING'] = 0
    m['STAGE'] = ring
    f = ring + 16384
    m['FILLED'] = f
    m['NEXT'] = f + 16
    m['FINCNT'] = f + 32
    m['CLEARED'] = f + 36
    m['TAILGO'] = f + 40
    m['QREADY'] = f + 44
    m['NONCE'] = f + 48
    m['XXT'] = f + 256
    m['QB'] = m['XXT'] + 2048
    m['FINO'] = m['QB'] + 256
    m['FINML'] = m['FINO'] + 2048
    m['OALL'] = m['FINML'] + 64
    m['XN2'] = m['OALL'] + 1024
    m['HH'] = m['XN2'] + 4096
    m['YP'] = m['HH'] + 256
    m['END'] = m['YP'] + 1024
    return m

WS_PO = 0x0
WS_ML = 0x20000
WS_Y = 0x21000
WS_P = 0x28000
WS_QX = 0x40000
WS_TK = 0x80000
WS_CLR = 0x84000
WS_STAMP = 0x20000000
NF = 43

LOG2E = 0x3fb8aa3b
SCALE = 0x3db504f3
EPS = 0x3727c5ac

def gen(**kw):
    P = dict(DEF); P.update(kw)
    D = P['D']; R = P['R']; NT = P['nt']; S = P['S']; C = P['C']
    M = lds_map(R)
    ldsz = (M['END'] + 255) // 256 * 256
    assert ldsz <= 163840, ldsz
    a = Asm(); I = a.I
    stamps = P['stamps']

    def spin():
        I("s_sub_u32 s89, s89, 1")
        I("s_cbranch_scc1 L_end")

    def stamp(slot):
        if not stamps: return
        I("s_memrealtime s[90:91]")
        I("s_waitcnt lgkmcnt(0)")
        I("s_lshl_b32 s92, s2, 8")
        I(f"s_add_u32 s92, s92, {WS_STAMP + slot * 8}")
        I("s_add_u32 s92, s26, s92")
        I("s_addc_u32 s93, s27, 0")
        I("v_mov_b32 v164, s90")
        I("v_mov_b32 v165, s91")
        I("v_mov_b32 v166, 0")
        I("s_mov_b64 s[94:95], exec")
        I("s_mov_b64 exec, 1")
        I("global_store_dwordx2 v166, v[164:165], s[92:93]")
        I("s_mov_b64 exec, s[94:95]")

    def lds_wait(lbl, addr_reg, tmp, sleep):
        a.label(lbl)
        spin()
        I(f"ds_read_b32 v{tmp}, v{addr_reg}")
        I("s_waitcnt lgkmcnt(0)")
        I(f"v_readfirstlane_b32 s42, v{tmp}")
        I("s_cmp_lg_u32 s42, 0")
        I(f"s_cbranch_scc1 {lbl}_ok")
        I(f"s_sleep {sleep}")
        I(f"s_branch {lbl}")
        a.label(f"{lbl}_ok")

    a.raw(f"; @launch grid=(256,1,1) block=(576,1,1) lds={ldsz}")
    a.raw('.amdgcn_target "amdgcn-amd-amdhsa--gfx950"')
    a.raw(".text")
    a.raw(f".globl {KN}_kernel")
    a.raw(".p2align 8")
    a.raw(f".type {KN}_kernel,@function")
    a.raw(f"{KN}_kernel:")
    I("s_cmp_ge_u32 s2, 256")
    I("s_cbranch_scc1 L_end")
    I("s_load_dwordx16 s[4:19], s[0:1], 0")
    I("s_load_dwordx8 s[20:27], s[0:1], 64")
    I("v_lshrrev_b32 v2, 6, v0")
    I("v_and_b32 v1, 63, v0")
    I("v_readfirstlane_b32 s28, v2")
    I("s_lshr_b32 s29, s2, 3")
    I("s_and_b32 s30, s2, 7")
    I("s_sub_u32 s31, s30, s29")
    I("s_and_b32 s31, s31, 7")
    I(f"s_mov_b32 s89, {P['budget']}")
    I("s_waitcnt lgkmcnt(0)")
    I("s_cmp_eq_u32 s28, 0")
    I("s_cbranch_scc1 L_loader")
    I("s_cmp_lt_u32 s28, 5")
    I("s_cbranch_scc1 L_consumer")
    I("s_branch L_tail")

    a.label("L_loader")
    if P['prio']: I("s_setprio 3")
    stamp(0)
    I(f"""
    s_mov_b32 s32, s6
    s_and_b32 s33, s7, 0xffff
    s_mov_b32 s34, 0x10000000
    s_mov_b32 s35, 0x20000
    s_mov_b32 s36, s8
    s_and_b32 s37, s9, 0xffff
    s_mov_b32 s38, 0x10000000
    s_mov_b32 s39, 0x20000
    s_lshl_b32 s44, s29, 23
    v_lshrrev_b32 v8, 4, v1
    v_and_b32 v9, 15, v1
    v_lshlrev_b32 v10, 8, v8
    v_add_u32 v10, s44, v10
    """)
    for tt in range(4):
        I(f"v_add_u32 v11, {4*tt}, v8")
        I("v_xor_b32 v11, v11, v9")
        I("v_lshlrev_b32 v11, 4, v11")
        I(f"v_add_u32 v{2+tt}, v10, v11")
    for tp in range(2):
        I(f"v_add_u32 v11, {4*tp}, v8")
        I("v_lshlrev_b32 v11, 1, v11")
        I("v_xor_b32 v11, v11, v9")
        I("v_lshlrev_b32 v11, 4, v11")
        I(f"v_add_u32 v{6+tp}, v10, v11")
    u0 = (D - 1) % 8
    half0 = (u0 - D + 1) // 8 - 1
    I(f"""
    s_mul_i32 s46, s30, {S * 8192}
    s_mov_b32 s48, 0
    s_mov_b32 s49, {half0}
    s_mov_b32 s50, 0
    v_mov_b32 v12, {M['FILLED']}
    v_mov_b32 v13, {M['NEXT']}
    """)
    def loads_of_tile(first):
        for u in range(16):
            grp = u // 4
            if u % 4 == 0:
                I(f"s_add_u32 m0, s48, {grp * 4096}")
            I(f"s_waitcnt vmcnt({D-1})")
            if u % 8 == u0:
                I("s_add_u32 s49, s49, 1")
                I("v_mov_b32 v14, s49")
                if not first:
                    I("ds_write_b32 v12, v14")
            isv = u >= 8
            t = u % 8
            so = "s46" if t < 4 else "s47"
            KNT = NT if P['knt'] is None else P['knt']
            VNT = NT if P['vnt'] is None else P['vnt']
            if isv: I(f"buffer_load_dwordx4 v{6 + (t & 1)}, s[36:39], {so} offen offset:{(t % 4) * 1024} {VNT} lds")
            else:   I(f"buffer_load_dwordx4 v{2 + (t & 3)}, s[32:35], {so} offen offset:{(t % 4) * 1024} {KNT} lds")
    assert D >= 16
    I("s_add_u32 s47, s46, 4096")
    loads_of_tile(True)
    I(f"""
    v_mov_b32 v16, 0
    v_mov_b32 v17, 1
    v_mov_b32 v18, 2
    v_mov_b32 v19, 3
    v_mov_b32 v20, 0
    v_mov_b32 v21, 0
    v_mov_b32 v22, 0
    v_mov_b32 v23, 0
    v_mov_b32 v14, s49
    v_mov_b32 v15, 0x7fffffff
    ds_write_b64 v12, v[14:15]
    ds_write_b128 v13, v[16:19]
    ds_write_b128 v13, v[20:23] offset:16
    s_waitcnt lgkmcnt(0)
    s_barrier
    s_setprio 3
    """)
    I("ds_read_b128 v[16:19], v13")
    lab = [0]
    def next_tile(advance):
        k = lab[0]; lab[0] += 1
        I("s_add_u32 s50, s50, 1")
        if advance: I("s_add_u32 s46, s46, 8192")
        I(f"""
        s_add_u32 s47, s46, 4096
        s_add_u32 s48, s48, 16384
        s_cmp_ge_u32 s48, {R*16384}
        s_cselect_b32 s48, 0, s48
        s_sub_u32 s52, s50, {R-1}
        """)
        a.label(f"L_ld_free{k}")
        spin()
        I(f"""
        s_waitcnt lgkmcnt(0)
        v_min3_u32 v20, v16, v17, v18
        v_min_u32 v20, v20, v19
        v_readfirstlane_b32 s51, v20
        ds_read_b128 v[16:19], v13
        s_cmp_ge_i32 s51, s52
        s_cbranch_scc0 L_ld_free{k}
        """)
        loads_of_tile(False)
    nstatic = S - C
    bounds = [b for b in (P['segs'] or [16, 32, 48, 64, 80, 96]) if b < nstatic] + [nstatic] if stamps else [nstatic]
    for sg, b in enumerate(bounds):
        a.label(f"L_ld_tile{sg}")
        next_tile(True)
        I(f"s_cmp_lt_u32 s50, {b - 1}")
        I(f"s_cbranch_scc1 L_ld_tile{sg}")
        if stamps and sg < 7 and sg < len(bounds) - 1:
            I(f"s_memrealtime s[{60+2*sg}:{61+2*sg}]")
    I(f"""
    s_lshl_b32 s53, s29, 8
    s_add_u32 s53, s53, {WS_TK}
    v_mov_b32 v25, s53
    v_mov_b32 v26, 1
    s_add_u32 s46, s46, 8192
    """)
    a.label("L_ld_chunk")
    I("s_mov_b64 exec, 1")
    I("global_atomic_add v24, v25, v26, s[26:27] sc0 sc1")
    I("s_mov_b64 exec, -1")
    for c in range(C):
        next_tile(c > 0)
    I(f"""
    v_readfirstlane_b32 s53, v24
    s_mul_i32 s53, s53, {C}
    s_add_u32 s53, s53, {8 * S}
    s_lshl_b32 s46, s53, 13
    s_cmp_lt_u32 s53, 1024
    s_cbranch_scc1 L_ld_chunk
    """)
    assert 16 * C >= D, "ticket must have landed by the end of its chunk"
    I("s_add_u32 s53, s50, 1")
    I("v_mov_b32 v14, s53")
    I("ds_write_b32 v12, v14 offset:4")
    last_u = 8 + u0
    rem = 16 - last_u + D - 1
    while rem > 0:
        rem -= 8
        I(f"s_waitcnt vmcnt({rem})")
        I("s_add_u32 s49, s49, 1")
        I("v_mov_b32 v14, s49")
        I("ds_write_b32 v12, v14")
    assert rem == 0
    I("s_waitcnt lgkmcnt(0)")
    stamp(1)
    if stamps:
        I("s_lshl_b32 s92, s2, 8")
        I(f"s_add_u32 s92, s92, {WS_STAMP + 20 * 8}")
        I("s_add_u32 s92, s26, s92")
        I("s_addc_u32 s93, s27, 0")
        I("v_mov_b32 v166, 0")
        I("s_mov_b64 exec, 1")
        for k in range(7):
            I(f"v_mov_b32 v164, s{60+2*k}")
            I(f"v_mov_b32 v165, s{61+2*k}")
            I(f"global_store_dwordx2 v166, v[164:165], s[92:93] offset:{8*k}")
        I("v_mov_b32 v164, s50")
        I("v_mov_b32 v165, 0")
        I(f"global_store_dwordx2 v166, v[164:165], s[92:93] offset:{8*7}")
    I("s_endpgm")

    def wave_sum(v, t):
        for r in (8, 4, 2, 1):
            I(f"v_add_f32_dpp v{v}, v{v}, v{v} row_ror:{r} row_mask:0xf bank_mask:0xf")
        I(f"v_mov_b32 v{t}, v{v}")
        I(f"v_permlane16_swap_b32 v{v}, v{t}")
        I(f"v_add_f32 v{v}, v{v}, v{t}")
        I(f"v_mov_b32 v{t}, v{v}")
        I(f"v_permlane32_swap_b32 v{v}, v{t}")
        I(f"v_add_f32 v{v}, v{v}, v{t}")
    def unpack8(src, dst):
        for j in range(4):
            I(f"v_lshlrev_b32 v{dst+2*j}, 16, v{src+j}")
            I(f"v_and_b32 v{dst+2*j+1}, s43, v{src+j}")
    def layernorm8(x, tmp):
        s, t, mb, den = tmp, tmp+1, tmp+2, tmp+3
        I(f"v_add_f32 v{s}, v{x}, v{x+1}")
        for j in range(2, 8): I(f"v_add_f32 v{s}, v{s}, v{x+j}")
        wave_sum(s, t)
        I(f"v_mul_f32 v{s}, 0x3b000000, v{s}")
        I(f"v_cvt_pk_bf16_f32 v{mb}, v{s}, v{s}")
        I(f"v_and_b32 v{mb}, s43, v{mb}")
        I(f"v_sub_f32 v{t}, v{x}, v{s}")
        I(f"v_mul_f32 v{den}, v{t}, v{t}")
        for j in range(1, 8):
            I(f"v_sub_f32 v{t}, v{x+j}, v{s}")
            I(f"v_fmac_f32 v{den}, v{t}, v{t}")
        wave_sum(den, t)
        I(f"v_mul_f32 v{den}, 0x3b000000, v{den}")
        I(f"v_cvt_pk_bf16_f32 v{den}, v{den}, v{den}")
        I(f"v_and_b32 v{den}, s43, v{den}")
        I(f"v_add_f32 v{den}, {hex(EPS)}, v{den}")
        I(f"v_cvt_pk_bf16_f32 v{den}, v{den}, v{den}")
        I(f"v_and_b32 v{den}, s43, v{den}")
        I(f"v_sqrt_f32 v{den}, v{den}")
        I(f"v_cvt_pk_bf16_f32 v{den}, v{den}, v{den}")
        I(f"v_and_b32 v{den}, s43, v{den}")
        I(f"v_rcp_f32 v{den}, v{den}")
        for j in range(0, 8, 2):
            I(f"v_sub_f32 v{x+j}, v{x+j}, v{mb}")
            I(f"v_sub_f32 v{x+j+1}, v{x+j+1}, v{mb}")
            I(f"v_cvt_pk_bf16_f32 v{t}, v{x+j}, v{x+j+1}")
            I(f"v_lshlrev_b32 v{x+j}, 16, v{t}")
            I(f"v_and_b32 v{x+j+1}, s43, v{t}")
            I(f"v_mul_f32 v{x+j}, v{x+j}, v{den}")
            I(f"v_mul_f32 v{x+j+1}, v{x+j+1}, v{den}")

    a.label("L_consumer")
    I("s_sub_u32 s40, s28, 1")
    I("s_mov_b32 s43, 0xffff0000")
    I("v_lshrrev_b32 v8, 4, v1")
    I("v_and_b32 v9, 15, v1")
    I("s_cmp_eq_u32 s40, 0")
    I("s_cbranch_scc1 L_c_q")
    I("s_barrier")
    I("s_branch L_c_qwait")
    a.label("L_c_q")
    I("""
    s_cmp_eq_u32 s2, 0
    s_cbranch_scc0 L_q_notag
    s_memrealtime s[56:57]
    s_waitcnt lgkmcnt(0)
    s_or_b32 s56, s56, 1
    s_or_b32 s57, s57, 0x40000000
    s_and_b32 s57, s57, 0x7fffffff
    v_mov_b32 v34, s56
    v_mov_b32 v35, s57
    v_mov_b32 v2, 0
    s_mov_b64 exec, 1
    global_store_dwordx2 v2, v[34:35], s[24:25] sc1
    s_mov_b64 exec, -1
    """)
    a.label("L_q_notag")
    I(f"""
    v_mov_b32 v2, 0
    global_load_dwordx2 v[34:35], v2, s[24:25] {"sc1" if P['tag_sc1'] else ""}
    s_mov_b32 s32, s10
    s_and_b32 s33, s11, 0xffff
    s_mov_b32 s34, 0x400000
    s_mov_b32 s35, 0x20000
    v_lshlrev_b32 v2, 4, v1
    global_load_dwordx4 v[30:33], v2, s[4:5]
    s_lshl_b32 s41, s30, 6
    v_add_u32 v3, s41, v8
    v_lshlrev_b32 v3, 13, v3
    v_lshlrev_b32 v4, 4, v9
    v_add_u32 v3, v3, v4
    s_lshl_b32 s41, s29, 8
    v_add_u32 v3, s41, v3
    """)
    for t in range(16):
        I(f"s_mov_b32 s42, {t * 32768}")
        I(f"buffer_load_dwordx4 v[{40+4*t}:{43+4*t}], v3, s[32:35], s42 offen {P['q_nt']}")
    I("s_barrier")
    I("s_waitcnt vmcnt(16)")
    unpack8(30, 10)
    layernorm8(10, 4)
    for e in range(8):
        I(f"v_cvt_pk_bf16_f32 v{18+e}, v{10+e}, v{10+e}")
    I(f"""
    v_lshrrev_b32 v4, 3, v1
    v_lshlrev_b32 v4, 8, v4
    v_and_b32 v5, 7, v1
    v_lshlrev_b32 v5, 3, v5
    v_add_u32 v4, v4, v5
    v_add_u32 v4, {M['XXT']}, v4
    """)
    for g in range(4):
        I(f"v_mov_b32 v26, v{18+g}")
        I(f"v_mov_b32 v27, v{18+g+4}")
        I(f"ds_write_b64 v4, v[26:27] offset:{g*64}")
    I(f"""
    v_and_b32 v5, 1, v9
    v_mov_b32 v6, 0xffff
    v_mov_b32 v7, s43
    v_cmp_eq_u32 vcc, 1, v5
    v_cndmask_b32 v5, v6, v7, vcc
    v_lshrrev_b32 v6, 1, v9
    """)
    for j in range(4):
        I(f"v_cmp_eq_u32 vcc, {j}, v6")
        I(f"v_cndmask_b32 v{10+j}, 0, v5, vcc")
    I(f"""
    s_lshl_b32 s41, s30, 8
    s_add_u32 s41, s41, {M['XXT']}
    v_lshlrev_b32 v4, 6, v8
    v_add_u32 v4, s41, v4
    s_waitcnt lgkmcnt(0)
    ds_read_b128 v[104:107], v4
    ds_read_b128 v[108:111], v4 offset:16
    ds_read_b128 v[112:115], v4 offset:32
    ds_read_b128 v[116:119], v4 offset:48
    s_waitcnt lgkmcnt(0)
    """)
    for t in range(16):
        bb = 18 + 4 * (t % 2)
        for j in range(4):
            I(f"v_and_b32 v{bb+j}, v{104+t}, v{10+j}")
        I(f"s_waitcnt vmcnt({15 - t})")
        c = "0" if t == 0 else "v[26:29]"
        I(f"v_mfma_f32_16x16x32_bf16 v[26:29], v[{40+4*t}:{43+4*t}], v[{bb}:{bb+3}], {c}")
    I("""
    v_readfirstlane_b32 s56, v34
    v_readfirstlane_b32 s57, v35
    s_cmp_lg_u32 s56, 0
    s_cbranch_scc1 L_q_havetag
    """)
    a.label("L_q_tagpoll")
    spin()
    I("""
    v_mov_b32 v2, 0
    global_load_dwordx2 v[34:35], v2, s[24:25] sc1
    s_waitcnt vmcnt(0)
    v_readfirstlane_b32 s56, v34
    v_readfirstlane_b32 s57, v35
    s_cmp_lg_u32 s56, 0
    s_cbranch_scc1 L_q_havetag
    s_sleep 2
    s_branch L_q_tagpoll
    """)
    a.label("L_q_havetag")
    I(f"v_mov_b32 v5, {M['CLEARED']}")
    lds_wait("L_q_clr", 5, 6, 1)
    I(f"""
    v_mov_b32 v10, v26
    v_mov_b32 v11, s56
    v_mov_b32 v12, v27
    v_mov_b32 v13, s57
    v_mov_b32 v14, v28
    v_mov_b32 v15, s56
    v_mov_b32 v16, v29
    v_mov_b32 v17, s57
    v_mov_b32 v18, s56
    v_mov_b32 v19, s57
    v_mov_b32 v6, {M['NONCE']}
    ds_write_b64 v6, v[18:19]
    s_lshl_b32 s41, s2, 10
    s_add_u32 s41, s41, {WS_QX}
    v_lshlrev_b32 v4, 8, v8
    v_lshlrev_b32 v5, 5, v9
    v_add_u32 v4, v4, v5
    v_add_u32 v4, s41, v4
    v_cmp_gt_u32 vcc, 8, v9
    s_and_saveexec_b64 s[44:45], vcc
    global_store_dwordx4 v4, v[10:13], s[26:27] sc1
    global_store_dwordx4 v4, v[14:17], s[26:27] offset:16 sc1
    s_mov_b64 exec, 1
    s_lshl_b32 s41, s2, 3
    s_add_u32 s41, s41, {WS_CLR}
    v_mov_b32 v4, s41
    global_store_dwordx2 v4, v[18:19], s[26:27] sc1
    s_mov_b64 exec, -1
    s_lshl_b32 s41, s29, 13
    s_add_u32 s41, s41, {WS_QX}
    v_lshlrev_b32 v4, 4, v1
    v_add_u32 v4, s41, v4
    v_add_u32 v5, 4096, v4
    """)
    stamp(5)
    a.label("L_q_poll")
    spin()
    for i in range(8):
        I(f"global_load_dwordx4 v[{40+4*i}:{43+4*i}], v{4 if i < 4 else 5}, s[26:27] offset:{1024*(i%4)} sc1")
    I("s_waitcnt vmcnt(0)")
    I("v_xor_b32 v6, s56, v41")
    I("v_xor_b32 v7, s57, v43")
    I("v_or_b32 v6, v6, v7")
    for i in range(1, 8):
        I(f"v_xor_b32 v7, s56, v{41+4*i}")
        I(f"v_or_b32 v6, v6, v7")
        I(f"v_xor_b32 v7, s57, v{43+4*i}")
        I(f"v_or_b32 v6, v6, v7")
    I("v_cmp_ne_u32 vcc, 0, v6")
    I("s_cbranch_vccz L_q_seen")
    if P['qsleep']: I(f"s_sleep {P['qsleep']}")
    I("s_branch L_q_poll")
    a.label("L_q_seen")
    stamp(6)
    for c in (0, 2):
        I(f"v_add_f32 v{40+c}, v{40+c}, v{44+c}")
        I(f"v_add_f32 v{48+c}, v{48+c}, v{52+c}")
        I(f"v_add_f32 v{56+c}, v{56+c}, v{60+c}")
        I(f"v_add_f32 v{64+c}, v{64+c}, v{68+c}")
    for c in (0, 2):
        I(f"v_add_f32 v{40+c}, v{40+c}, v{48+c}")
        I(f"v_add_f32 v{56+c}, v{56+c}, v{64+c}")
    for c in (0, 2):
        I(f"v_add_f32 v{40+c}, v{40+c}, v{56+c}")
    I(f"""
    v_cvt_pk_bf16_f32 v10, v40, v42
    v_lshrrev_b32 v11, 16, v10
    v_lshrrev_b32 v5, 1, v9
    v_and_b32 v6, 1, v1
    v_lshlrev_b32 v6, 4, v6
    v_add_u32 v5, v5, v6
    v_lshlrev_b32 v6, 5, v8
    v_add_u32 v5, v5, v6
    v_lshlrev_b32 v5, 1, v5
    v_add_u32 v5, {M['QB']}, v5
    ds_write_b16 v5, v10
    ds_write_b16 v5, v11 offset:16
    v_mov_b32 v6, {M['QREADY']}
    v_mov_b32 v7, 1
    s_waitcnt lgkmcnt(0)
    ds_write_b32 v6, v7
    """)
    if P['dump']:
        I(f"""
        v_lshlrev_b32 v4, 2, v1
        v_add_u32 v5, {M['QB']}, v4
        ds_read_b32 v10, v5
        s_lshl_b32 s41, s2, 8
        s_add_u32 s41, s41, 0x100000
        v_add_u32 v4, s41, v4
        s_waitcnt lgkmcnt(0)
        global_store_dword v4, v10, s[26:27]
        """)
    a.label("L_c_qwait")
    I(f"v_mov_b32 v5, {M['QREADY']}")
    lds_wait("L_c_qw", 5, 6, 1)
    I(f"""
    v_lshlrev_b32 v5, 4, v8
    v_add_u32 v5, {M['QB']}, v5
    ds_read_b128 v[40:43], v5
    ds_read_b128 v[44:47], v5 offset:64
    ds_read_b128 v[48:51], v5 offset:128
    ds_read_b128 v[52:55], v5 offset:192
    """)
    I(f"""
    v_xor_b32 v2, v8, v9
    v_lshlrev_b32 v2, 4, v2
    v_lshlrev_b32 v10, 8, v9
    v_add_u32 v2, v2, v10
    v_lshrrev_b32 v10, 2, v9
    v_and_b32 v11, 3, v9
    v_lshlrev_b32 v12, 2, v8
    v_add_u32 v12, v12, v10
    v_and_b32 v13, 7, v12
    v_lshlrev_b32 v13, 1, v13
    v_lshrrev_b32 v14, 1, v11
    v_xor_b32 v13, v13, v14
    v_lshlrev_b32 v13, 4, v13
    v_and_b32 v14, 1, v11
    v_lshlrev_b32 v14, 3, v14
    v_lshlrev_b32 v3, 8, v12
    v_add_u32 v3, v3, v13
    v_add_u32 v3, v3, v14
    v_add_u32 v3, 8192, v3
    v_mov_b32 v4, 0xff800000
    v_mov_b32 v5, 0
    v_mov_b32 v6, 0
    v_mov_b32 v7, {M['FILLED']}
    s_lshl_b32 s41, s40, 2
    s_add_u32 s41, s41, {M['NEXT']}
    v_mov_b32 v38, s41
    s_mov_b32 s44, {hex(LOG2E)}
    s_mov_b32 s45, {hex(SCALE)}
    s_mov_b32 s46, s40
    s_lshl_b32 s47, s40, 14
    s_mov_b32 s48, -100
    """)
    for r in range(56, 88): I(f"v_mov_b32 v{r}, 0")
    I("s_waitcnt lgkmcnt(0)")
    stamp(2)
    a.label("L_c_tile")
    def wait_half(lbl, k):
        I(f"s_lshl_b32 s49, s46, 1")
        I(f"s_add_u32 s49, s49, {k}")
        I(f"s_cmp_ge_i32 s48, s49")
        I(f"s_cbranch_scc1 {lbl}_ok")
        a.label(f"{lbl}_poll")
        spin()
        I("ds_read_b64 v[36:37], v7")
        I("s_waitcnt lgkmcnt(0)")
        I("v_readfirstlane_b32 s48, v36")
        if k == 1: I("v_readfirstlane_b32 s50, v37")
        I("s_cmp_ge_i32 s48, s49")
        I(f"s_cbranch_scc1 {lbl}_ok")
        if k == 1:
            I("s_cmp_ge_u32 s46, s50")
            I("s_cbranch_scc1 L_c_fin")
        I(f"s_sleep {P['sleep_c']}")
        I(f"s_branch {lbl}_poll")
        a.label(f"{lbl}_ok")
    wait_half("L_c_k", 1)
    I("v_add_u32 v10, s47, v2")
    for j in range(1, 4): I(f"v_xor_b32 v{10+j}, {j << 6}, v10")
    KF = 88
    for j in range(4):
        I(f"ds_read_b128 v[{KF+4*j}:{KF+4*j+3}], v{10+j}")
        I(f"ds_read_b128 v[{KF+16+4*j}:{KF+16+4*j+3}], v{10+j} offset:4096")
    for j in range(4):
        I(f"s_waitcnt lgkmcnt({6 - 2*j})")
        c0 = "0" if j == 0 else "v[18:21]"
        c1 = "0" if j == 0 else "v[22:25]"
        I(f"v_mfma_f32_16x16x32_bf16 v[18:21], v[{KF+4*j}:{KF+4*j+3}], v[{40+4*j}:{43+4*j}], {c0}")
        I(f"v_mfma_f32_16x16x32_bf16 v[22:25], v[{KF+16+4*j}:{KF+16+4*j+3}], v[{40+4*j}:{43+4*j}], {c1}")
    I("v_add_u32 v10, s47, v3")
    for nb in range(1, 8): I(f"v_xor_b32 v{10+nb}, {nb << 5}, v10")
    SS = 18
    for p in range(4): I(f"v_cvt_pk_bf16_f32 v{30+p}, v{SS+2*p}, v{SS+2*p+1}")
    for p in range(4):
        I(f"v_lshlrev_b32 v{SS+2*p}, 16, v{30+p}")
        I(f"v_and_b32 v{SS+2*p+1}, s43, v{30+p}")
    for i in range(8): I(f"v_mul_f32 v{SS+i}, s45, v{SS+i}")
    for p in range(4): I(f"v_cvt_pk_bf16_f32 v{30+p}, v{SS+2*p}, v{SS+2*p+1}")
    for p in range(4):
        I(f"v_lshlrev_b32 v{SS+2*p}, 16, v{30+p}")
        I(f"v_and_b32 v{SS+2*p+1}, s43, v{30+p}")
    I(f"""
    v_max3_f32 v34, v{SS}, v{SS+1}, v{SS+2}
    v_max3_f32 v35, v{SS+3}, v{SS+4}, v{SS+5}
    v_max3_f32 v34, v34, v{SS+6}, v{SS+7}
    v_max_f32 v34, v34, v35
    v_mov_b32 v35, v34
    v_permlane32_swap_b32 v34, v35
    v_max_f32 v34, v34, v35
    v_mov_b32 v35, v34
    v_permlane16_swap_b32 v34, v35
    v_max_f32 v34, v34, v35
    v_cmp_gt_f32 vcc, v34, v4
    s_cbranch_vccz L_c_norescale
    v_sub_f32 v35, v4, v34
    v_mul_f32 v35, s44, v35
    v_exp_f32 v35, v35
    v_mov_b32 v4, v34
    v_mul_f32 v6, s44, v34
    v_mul_f32 v5, v5, v35
    """)
    for r in range(56, 88): I(f"v_mul_f32 v{r}, v{r}, v35")
    a.label("L_c_norescale")
    for i in range(8): I(f"v_fma_f32 v{SS+i}, v{SS+i}, s44, -v6")
    for i in range(8): I(f"v_exp_f32 v{SS+i}, v{SS+i}")
    for p in range(4): I(f"v_cvt_pk_bf16_f32 v{26+p}, v{SS+2*p}, v{SS+2*p+1}")
    I(f"""
    v_add_f32 v30, v{SS}, v{SS+1}
    v_add_f32 v31, v{SS+2}, v{SS+3}
    v_add_f32 v32, v{SS+4}, v{SS+5}
    v_add_f32 v33, v{SS+6}, v{SS+7}
    v_add_f32 v30, v30, v31
    v_add_f32 v32, v32, v33
    v_add_f32 v30, v30, v32
    v_add_f32 v5, v5, v30
    """)
    wait_half("L_c_v", 2)
    def vread(nb):
        I(f"ds_read_b64_tr_b16 v[{KF+4*nb}:{KF+4*nb+1}], v{10+nb}")
        I(f"ds_read_b64_tr_b16 v[{KF+4*nb+2}:{KF+4*nb+3}], v{10+nb} offset:4096")
    def pv(nb):
        I(f"v_mfma_f32_16x16x32_bf16 v[{56+4*nb}:{59+4*nb}], v[26:29], v[{KF+4*nb}:{KF+4*nb+3}], v[{56+4*nb}:{59+4*nb}]")
    for nb in range(7): vread(nb)
    I("s_waitcnt lgkmcnt(6)")
    for nb in range(4): pv(nb)
    vread(7)
    I("s_waitcnt lgkmcnt(2)")
    for nb in range(4, 7): pv(nb)
    I("s_add_u32 s46, s46, 4")
    I("v_mov_b32 v30, s46")
    I("s_waitcnt lgkmcnt(0)")
    I("ds_write_b32 v38, v30")
    pv(7)
    I(f"""
    s_add_u32 s47, s47, {4*16384}
    s_cmp_ge_u32 s47, {R*16384}
    s_cselect_b32 s49, {R*16384}, 0
    s_sub_u32 s47, s47, s49
    s_branch L_c_tile
    """)
    a.label("L_c_fin")
    stamp(3)
    I(f"""
    v_mov_b32 v30, v5
    v_permlane32_swap_b32 v5, v30
    v_add_f32 v5, v5, v30
    v_mov_b32 v30, v5
    v_permlane16_swap_b32 v5, v30
    v_add_f32 v5, v5, v30
    s_lshl_b32 s41, s40, 9
    s_add_u32 s41, s41, {M['FINO']}
    v_and_b32 v9, 15, v1
    v_lshlrev_b32 v10, 2, v9
    v_add_u32 v10, s41, v10
    """)
    for nb in range(8): I(f"ds_write_b32 v10, v{56+4*nb} offset:{64*nb}")
    I(f"""
    s_lshl_b32 s41, s40, 3
    s_add_u32 s41, s41, {M['FINML']}
    v_mov_b32 v10, s41
    ds_write_b64 v10, v[4:5]
    v_mov_b32 v11, {M['FINCNT']}
    v_mov_b32 v12, 1
    s_waitcnt lgkmcnt(0)
    s_mov_b64 exec, 1
    ds_add_rtn_u32 v13, v11, v12
    s_waitcnt lgkmcnt(0)
    s_mov_b64 exec, -1
    v_readfirstlane_b32 s41, v13
    s_cmp_eq_u32 s41, 3
    s_cbranch_scc0 L_end
    """)
    I(f"""
    v_mov_b32 v11, {M['TAILGO']}
    ds_write_b32 v11, v12
    v_lshlrev_b32 v10, 3, v1
    v_add_u32 v10, {M['FINO']}, v10
    v_mov_b32 v11, {M['FINML']}
    ds_read_b128 v[20:23], v11
    ds_read_b128 v[24:27], v11 offset:16
    ds_read_b64 v[12:13], v10
    ds_read_b64 v[14:15], v10 offset:512
    ds_read_b64 v[16:17], v10 offset:1024
    ds_read_b64 v[18:19], v10 offset:1536
    s_waitcnt lgkmcnt(0)
    v_max3_f32 v28, v20, v22, v24
    v_max_f32 v28, v28, v26
    v_sub_f32 v20, v20, v28
    v_sub_f32 v22, v22, v28
    v_sub_f32 v24, v24, v28
    v_sub_f32 v26, v26, v28
    v_mul_f32 v20, s44, v20
    v_mul_f32 v22, s44, v22
    v_mul_f32 v24, s44, v24
    v_mul_f32 v26, s44, v26
    v_exp_f32 v20, v20
    v_exp_f32 v22, v22
    v_exp_f32 v24, v24
    v_exp_f32 v26, v26
    v_mul_f32 v12, v12, v20
    v_mul_f32 v13, v13, v20
    v_mul_f32 v29, v21, v20
    v_fmac_f32 v12, v14, v22
    v_fmac_f32 v13, v15, v22
    v_fmac_f32 v29, v23, v22
    v_fmac_f32 v12, v16, v24
    v_fmac_f32 v13, v17, v24
    v_fmac_f32 v29, v25, v24
    v_fmac_f32 v12, v18, v26
    v_fmac_f32 v13, v19, v26
    v_fmac_f32 v29, v27, v26
    s_mov_b32 s41, 0xfffffffe
    v_min_u32 v12, s41, v12
    v_min_u32 v13, s41, v13
    v_min_u32 v28, s41, v28
    v_min_u32 v29, s41, v29
    s_lshl_b32 s41, s2, 9
    v_lshlrev_b32 v10, 3, v1
    v_add_u32 v10, s41, v10
    global_store_dwordx2 v10, v[12:13], s[26:27] sc1
    s_lshl_b32 s41, s2, 3
    s_add_u32 s41, s41, {WS_ML}
    v_mov_b32 v10, s41
    s_mov_b64 exec, 1
    global_store_dwordx2 v10, v[28:29], s[26:27] sc1
    s_mov_b64 exec, -1
    """)
    stamp(4)
    I("s_endpgm")

    a.label("L_tail")
    I("s_sub_u32 s40, s28, 5")
    I("s_mov_b32 s43, 0xffff0000")
    I(f"""
    s_mov_b32 s54, 0
    s_mov_b32 s44, 0
    s_cmp_lt_u32 s31, 2
    s_cbranch_scc0 L_t_r1
    s_mov_b32 s54, 1
    s_lshl_b32 s44, s29, 1
    s_add_u32 s44, s44, s31
    s_branch L_t_rdone
    """)
    a.label("L_t_r1")
    I(f"""
    s_cmp_eq_u32 s31, 2
    s_cbranch_scc0 L_t_r2
    s_mov_b32 s54, 2
    s_mov_b32 s44, s29
    s_branch L_t_rdone
    """)
    a.label("L_t_r2")
    I(f"""
    s_cmp_eq_u32 s31, 3
    s_cbranch_scc0 L_t_rdone
    s_cmp_lt_u32 s29, 11
    s_cbranch_scc0 L_t_r3
    s_mov_b32 s54, 2
    s_add_u32 s44, s29, 32
    s_branch L_t_rdone
    """)
    a.label("L_t_r3")
    I(f"""
    s_cmp_lt_u32 s29, 27
    s_cbranch_scc0 L_t_rdone
    s_mov_b32 s54, 3
    s_sub_u32 s44, s29, 11
    """)
    a.label("L_t_rdone")
    I("s_barrier")
    I(f"""
    v_lshrrev_b32 v8, 4, v1
    v_and_b32 v9, 15, v1
    s_cmp_eq_u32 s40, 0
    s_cbranch_scc0 L_t_noclear
    """)
    I(f"""
    v_mov_b32 v10, -1
    v_mov_b32 v11, -1
    v_mov_b32 v12, -1
    v_mov_b32 v13, -1
    s_lshl_b32 s41, s2, 9
    v_lshlrev_b32 v4, 3, v1
    v_add_u32 v4, s41, v4
    global_store_dwordx2 v4, v[10:11], s[26:27] sc1
    s_lshl_b32 s41, s2, 3
    s_add_u32 s41, s41, {WS_ML}
    v_mov_b32 v4, s41
    global_store_dwordx2 v4, v[10:11], s[26:27] sc1
    s_cmp_eq_u32 s30, 0
    s_cbranch_scc0 L_t_clr_tk
    s_lshl_b32 s41, s29, 8
    s_add_u32 s41, s41, {WS_TK}
    v_mov_b32 v4, s41
    v_mov_b32 v5, 0
    global_store_dword v4, v5, s[26:27] sc1
    """)
    a.label("L_t_clr_tk")
    I(f"""
    s_cmp_eq_u32 s54, 1
    s_cbranch_scc0 L_t_clr_f
    s_lshl_b32 s41, s44, 8
    s_add_u32 s41, s41, {WS_Y}
    v_lshlrev_b32 v4, 2, v1
    v_add_u32 v4, s41, v4
    global_store_dword v4, v10, s[26:27] sc1
    s_branch L_t_clr_done
    """)
    a.label("L_t_clr_f")
    I(f"""
    s_cmp_eq_u32 s54, 2
    s_cbranch_scc0 L_t_clr_done
    s_lshl_b32 s41, s44, 11
    s_add_u32 s41, s41, {WS_P}
    v_lshlrev_b32 v4, 4, v1
    v_add_u32 v4, s41, v4
    global_store_dwordx4 v4, v[10:13], s[26:27] sc1
    global_store_dwordx4 v4, v[10:13], s[26:27] offset:1024 sc1
    """)
    a.label("L_t_clr_done")
    I(f"""
    s_waitcnt vmcnt(0)
    v_mov_b32 v4, {M['CLEARED']}
    v_mov_b32 v5, 1
    ds_write_b32 v4, v5
    """)
    a.label("L_t_noclear")
    I(f"""
    s_cmp_eq_u32 s54, 0
    s_cbranch_scc1 L_end
    s_cmp_eq_u32 s54, 3
    s_cbranch_scc0 L_t_wf
    s_cmp_eq_u32 s40, 0
    s_cbranch_scc1 L_t_o
    s_endpgm
    """)
    a.label("L_t_wf")
    I(f"v_mov_b32 v4, {M['QREADY']}")
    lds_wait("L_t_qw", 4, 5, 8)
    I("s_cmp_eq_u32 s54, 2")
    I("s_cbranch_scc1 L_t_f")

    STG = M['STAGE']
    SNT = P['stage_nt']
    def stage_setup():
        I(f"s_lshl_b32 s41, s40, 12")
        I(f"s_add_u32 s41, s41, {STG}")
    def dma(addr, u, step_bytes):
        if P['skip_stage']: return
        I(f"s_add_u32 m0, s41, {u*1024}")
        I(f"s_nop 0")
        I(f"global_load_lds_dwordx4 v[{addr}:{addr+1}], off {SNT}")
        if step_bytes:
            I(f"v_add_co_u32 v{addr}, vcc, {step_bytes}, v{addr}")
            I(f"v_addc_co_u32 v{addr+1}, vcc, 0, v{addr+1}, vcc")
    def tr_reads(trbase, offs, dst):
        I("s_waitcnt vmcnt(0)")
        d = dst
        for off in offs:
            I(f"ds_read_b64_tr_b16 v[{d}:{d+1}], v{trbase} offset:{off[0]}")
            I(f"ds_read_b64_tr_b16 v[{d+2}:{d+3}], v{trbase} offset:{off[1]}")
            d += 4
        I("s_waitcnt lgkmcnt(0)")
    def tr_addr(reg, rowstride):
        I(f"v_lshrrev_b32 v10, 2, v9")
        I(f"v_lshlrev_b32 v11, 3, v8")
        I(f"v_add_u32 v10, v10, v11")
        I(f"v_mul_u32_u24 v10, {rowstride}, v10")
        I(f"v_and_b32 v11, 3, v9")
        I(f"v_lshlrev_b32 v11, 3, v11")
        I(f"v_add_u32 v10, v10, v11")
        I(f"v_add_u32 v{reg}, s41, v10")
    def wait_flags_and_go(lbl):
        I(f"""
        v_mov_b32 v4, {M['NONCE']}
        ds_read_b64 v[16:17], v4
        v_lshlrev_b32 v4, 4, v1
        v_add_u32 v4, {WS_CLR}, v4
        s_waitcnt lgkmcnt(0)
        """)
        a.label(f"{lbl}_clr")
        spin()
        I(f"""
        global_load_dwordx4 v[20:23], v4, s[26:27] sc1
        global_load_dwordx4 v[24:27], v4, s[26:27] offset:1024 sc1
        s_waitcnt vmcnt(0)
        """)
        I("v_xor_b32 v5, v16, v20")
        for r in (22, 24, 26):
            I(f"v_xor_b32 v18, v16, v{r}")
            I("v_or_b32 v5, v5, v18")
        for r in (21, 23, 25, 27):
            I(f"v_xor_b32 v18, v17, v{r}")
            I("v_or_b32 v5, v5, v18")
        I(f"""
        v_cmp_ne_u32 vcc, 0, v5
        s_cbranch_vccz {lbl}_go0
        s_sleep 32
        s_branch {lbl}_clr
        """)
        a.label(f"{lbl}_go0")
        I(f"v_mov_b32 v4, {M['TAILGO']}")
        lds_wait(f"{lbl}_go", 4, 5, P['sleep_t'])
    def check_valid(regs, lbl, tmp):
        rs = list(regs)
        I(f"v_max3_u32 v{tmp}, v{rs[0]}, v{rs[1]}, v{rs[2]}")
        rs = rs[3:]
        while len(rs) >= 2:
            I(f"v_max3_u32 v{tmp}, v{tmp}, v{rs[0]}, v{rs[1]}"); rs = rs[2:]
        if rs: I(f"v_max_u32 v{tmp}, v{tmp}, v{rs[0]}")
        I(f"v_cmp_eq_u32 vcc, -1, v{tmp}")
        I(f"s_cbranch_vccnz {lbl}")
    def gemv_kslice(abase, wb, acc, tmp):
        for ks in range(4):
            I(f"ds_read_b128 v[{tmp+4*ks}:{tmp+4*ks+3}], v{abase} offset:{ks*64}")
        for ks in range(4):
            I(f"s_waitcnt lgkmcnt({3-ks})")
            for nb in range(4):
                c = "0" if ks == 0 else f"v[{acc+4*nb}:{acc+4*nb+3}]"
                I(f"v_mfma_f32_16x16x32_bf16 v[{acc+4*nb}:{acc+4*nb+3}], v[{tmp+4*ks}:{tmp+4*ks+3}], v[{wb+16*ks+4*nb}:{wb+16*ks+4*nb+3}], {c}")
    def part_to_lds(acc):
        I(f"""
        s_lshl_b32 s47, s40, 8
        s_add_u32 s47, s47, {M['YP']}
        v_lshlrev_b32 v11, 2, v9
        v_add_u32 v11, s47, v11
        """)
        for nb in range(4): I(f"ds_write_b32 v11, v{acc+4*nb} offset:{64*nb}")
        I(f"""
        v_lshlrev_b32 v11, 2, v1
        v_add_u32 v11, {M['YP']}, v11
        s_waitcnt lgkmcnt(0)
        s_barrier
        ds_read_b32 v12, v11
        ds_read_b32 v13, v11 offset:256
        ds_read_b32 v14, v11 offset:512
        ds_read_b32 v15, v11 offset:768
        s_waitcnt lgkmcnt(0)
        v_add_f32 v12, v12, v13
        v_add_f32 v14, v14, v15
        v_add_f32 v12, v12, v14
        """)

    WB = 64
    a.label("L_t_w")
    stage_setup()
    tr_addr(14, 128)
    I(f"""
    s_lshr_b32 s45, s44, 3
    s_and_b32 s46, s44, 7
    s_lshl_b32 s47, s45, 19
    s_lshl_b32 s48, s40, 17
    s_add_u32 s47, s47, s48
    s_lshl_b32 s48, s46, 7
    s_add_u32 s47, s47, s48
    v_lshrrev_b32 v10, 3, v1
    v_lshlrev_b32 v10, 10, v10
    v_and_b32 v11, 7, v1
    v_lshlrev_b32 v11, 4, v11
    v_add_u32 v10, v10, v11
    v_add_u32 v10, s47, v10
    v_mov_b32 v13, s13
    v_add_co_u32 v12, vcc, s12, v10
    v_addc_co_u32 v13, vcc, 0, v13, vcc
    """)
    for ks in range(4):
        for u in range(4): dma(12, u, 8 * 1024)
        tr_reads(14, [(nb * 32, 4 * 128 + nb * 32) for nb in range(4)], WB + 16 * ks)
    stamp(8)
    I(f"""
    s_lshl_b32 s47, s45, 2
    s_add_u32 s47, s47, s40
    s_lshl_b32 s48, s47, 12
    v_lshlrev_b32 v14, 4, v1
    v_add_u32 v14, s48, v14
    s_lshl_b32 s48, s47, 6
    s_add_u32 s48, s48, {WS_ML}
    v_mov_b32 v15, s48
    """)
    wait_flags_and_go("L_w")
    stamp(9)
    a.label("L_w_poll")
    spin()
    for i in range(4): I(f"global_load_dwordx4 v[{16+4*i}:{19+4*i}], v14, s[26:27] offset:{1024*i} sc1")
    for i in range(4): I(f"global_load_dwordx4 v[{32+4*i}:{35+4*i}], v15, s[26:27] offset:{16*i} sc1")
    I("s_waitcnt vmcnt(0)")
    check_valid(range(16, 48), "L_w_poll", 48)
    stamp(10)
    I("""
    v_max3_f32 v48, v32, v34, v36
    v_max3_f32 v49, v38, v40, v42
    v_max3_f32 v48, v48, v44, v46
    v_max_f32 v48, v48, v49
    s_mov_b32 s47, 0x3fb8aa3b
    """)
    for j in range(8): I(f"v_sub_f32 v{32+2*j}, v{32+2*j}, v48")
    for j in range(8): I(f"v_mul_f32 v{32+2*j}, s47, v{32+2*j}")
    for j in range(8): I(f"v_exp_f32 v{32+2*j}, v{32+2*j}")
    I("v_mul_f32 v49, v32, v33")
    for j in range(1, 8): I(f"v_fmac_f32 v49, v{32+2*j}, v{33+2*j}")
    I("v_cmp_lt_u32 vcc, 31, v1")
    for i in range(4): I(f"v_cndmask_b32 v{50+i}, v{32+4*i}, v{34+4*i}, vcc")
    I("v_rcp_f32 v49, v49")
    for c in range(4): I(f"v_mul_f32 v{16+c}, v{16+c}, v50")
    for i in range(1, 4):
        for c in range(4): I(f"v_fmac_f32 v{16+c}, v{16+4*i+c}, v{50+i}")
    for c in range(4): I(f"v_mov_b32 v{20+c}, v{16+c}")
    for c in range(4): I(f"v_permlane32_swap_b32 v{16+c}, v{20+c}")
    for c in range(4): I(f"v_add_f32 v{16+c}, v{16+c}, v{20+c}")
    for c in range(4): I(f"v_mul_f32 v{16+c}, v{16+c}, v49")
    I(f"""
    v_cvt_pk_bf16_f32 v16, v16, v17
    v_cvt_pk_bf16_f32 v17, v18, v19
    v_and_b32 v10, 31, v1
    v_lshlrev_b32 v10, 3, v10
    s_lshl_b32 s47, s40, 8
    s_add_u32 s47, s47, {M['OALL']}
    v_add_u32 v10, s47, v10
    ds_write_b64 v10, v[16:17]
    v_lshlrev_b32 v10, 4, v8
    v_add_u32 v10, s47, v10
    s_waitcnt lgkmcnt(0)
    """)
    gemv_kslice(10, WB, 32, 16)
    part_to_lds(32)
    I(f"""
    s_mov_b32 s47, 0xfffffffe
    v_min_u32 v12, s47, v12
    s_lshl_b32 s47, s44, 8
    s_add_u32 s47, s47, {WS_Y}
    v_lshlrev_b32 v11, 2, v1
    v_add_u32 v11, s47, v11
    s_cmp_eq_u32 s40, 0
    s_cbranch_scc0 L_end
    global_store_dword v11, v12, s[26:27] sc1
    """)
    stamp(11)
    I("s_endpgm")

    a.label("L_t_f")
    stage_setup()
    tr_addr(14, 64)
    I(f"""
    s_lshl_b32 s46, s44, 6
    s_mul_i32 s47, s40, {128 * 2752}
    s_add_u32 s46, s46, s47
    v_lshrrev_b32 v10, 2, v1
    v_mul_u32_u24 v10, 2752, v10
    v_and_b32 v11, 3, v1
    v_lshlrev_b32 v11, 4, v11
    v_add_u32 v10, v10, v11
    v_add_u32 v10, s46, v10
    v_mov_b32 v13, s17
    v_add_co_u32 v12, vcc, s16, v10
    v_addc_co_u32 v13, vcc, 0, v13, vcc
    v_mov_b32 v17, s19
    v_add_co_u32 v16, vcc, s18, v10
    v_addc_co_u32 v17, vcc, 0, v17, vcc
    """)
    for ks in range(4):
        dma(12, 0, 16 * 2752); dma(12, 1, 16 * 2752)
        dma(16, 2, 16 * 2752); dma(16, 3, 16 * 2752)
        tr_reads(14, [(0, 256), (32, 256 + 32), (2048, 2048 + 256), (2048 + 32, 2048 + 256 + 32)], WB + 16 * ks)
    tr_addr(14, 128)
    DB = WB + 64
    for rr in range(2):
        I(f"""
        s_lshl_b32 s46, s44, 15
        s_lshl_b32 s47, s40, 8
        s_add_u32 s46, s46, s47
        s_add_u32 s46, s46, {128*rr}
        v_lshrrev_b32 v10, 3, v1
        v_lshlrev_b32 v10, 10, v10
        v_and_b32 v11, 7, v1
        v_lshlrev_b32 v11, 4, v11
        v_add_u32 v10, v10, v11
        v_add_u32 v10, s46, v10
        v_mov_b32 v13, s21
        v_add_co_u32 v12, vcc, s20, v10
        v_addc_co_u32 v13, vcc, 0, v13, vcc
        """)
        for u in range(4): dma(12, u, 8 * 1024)
        tr_reads(14, [(nb * 32, 4 * 128 + nb * 32) for nb in range(4)], DB + 16 * rr)
    I(f"""
    v_and_b32 v10, 31, v1
    v_lshlrev_b32 v11, 3, v10
    s_lshl_b32 s46, s40, 8
    v_add_u32 v11, s46, v11
    global_load_dwordx2 v[6:7], v11, s[4:5]
    v_lshlrev_b32 v14, 4, v10
    v_lshrrev_b32 v11, 5, v1
    v_lshlrev_b32 v11, 11, v11
    v_add_u32 v14, v14, v11
    s_lshl_b32 s46, s40, 9
    s_add_u32 s46, s46, {WS_Y}
    v_add_u32 v14, s46, v14
    s_waitcnt vmcnt(0)
    """)
    stamp(12)
    wait_flags_and_go("L_f")
    stamp(13)
    a.label("L_f_poll")
    spin()
    I("global_load_dwordx4 v[16:19], v14, s[26:27] sc1")
    I("v_add_u32 v15, 4096, v14")
    I("global_load_dwordx4 v[20:23], v15, s[26:27] sc1")
    I("v_add_u32 v15, 8192, v14")
    I("global_load_dwordx4 v[24:27], v15, s[26:27] sc1")
    I("v_add_u32 v15, 12288, v14")
    I("global_load_dwordx4 v[28:31], v15, s[26:27] sc1")
    I("s_waitcnt vmcnt(0)")
    check_valid(range(16, 32), "L_f_poll", 32)
    stamp(14)
    for c in range(4):
        I(f"v_add_f32 v{16+c}, v{16+c}, v{20+c}")
        I(f"v_add_f32 v{24+c}, v{24+c}, v{28+c}")
    for c in range(4): I(f"v_add_f32 v{16+c}, v{16+c}, v{24+c}")
    for c in range(4): I(f"v_mov_b32 v{20+c}, v{16+c}")
    for c in range(4): I(f"v_permlane32_swap_b32 v{16+c}, v{20+c}")
    for c in range(4): I(f"v_add_f32 v{16+c}, v{16+c}, v{20+c}")
    def resid(xr, out):
        I(f"""
        v_cvt_pk_bf16_f32 v16, v16, v17
        v_cvt_pk_bf16_f32 v17, v18, v19
        v_lshlrev_b32 v20, 16, v16
        v_and_b32 v21, s43, v16
        v_lshlrev_b32 v22, 16, v17
        v_and_b32 v23, s43, v17
        v_lshlrev_b32 v24, 16, v{xr}
        v_and_b32 v25, s43, v{xr}
        v_lshlrev_b32 v26, 16, v{xr+1}
        v_and_b32 v27, s43, v{xr+1}
        v_add_f32 v20, v20, v24
        v_add_f32 v21, v21, v25
        v_add_f32 v22, v22, v26
        v_add_f32 v23, v23, v27
        v_cvt_pk_bf16_f32 v{out}, v20, v21
        v_cvt_pk_bf16_f32 v{out+1}, v22, v23
        """)
    resid(6, 16)
    I(f"""
    v_and_b32 v10, 31, v1
    v_lshlrev_b32 v10, 3, v10
    s_lshl_b32 s47, s40, 8
    s_add_u32 s47, s47, {M['OALL']}
    v_add_u32 v10, s47, v10
    ds_write_b64 v10, v[16:17]
    v_lshlrev_b32 v10, 4, v1
    v_add_u32 v10, {M['OALL']}, v10
    s_waitcnt lgkmcnt(0)
    s_barrier
    ds_read_b128 v[16:19], v10
    s_waitcnt lgkmcnt(0)
    """)
    unpack8(16, 20)
    layernorm8(20, 28)
    for p in range(4): I(f"v_cvt_pk_bf16_f32 v{16+p}, v{20+2*p}, v{21+2*p}")
    I(f"""
    s_lshl_b32 s47, s40, 10
    s_add_u32 s47, s47, {M['XN2']}
    v_lshlrev_b32 v10, 4, v1
    v_add_u32 v10, s47, v10
    ds_write_b128 v10, v[16:19]
    s_lshl_b32 s46, s40, 8
    s_add_u32 s47, s47, s46
    v_lshlrev_b32 v10, 4, v8
    v_add_u32 v10, s47, v10
    s_waitcnt lgkmcnt(0)
    """)
    gemv_kslice(10, WB, 32, 16)
    part_to_lds(32)
    I(f"""
    v_cvt_pk_bf16_f32 v12, v12, v12
    v_and_b32 v12, s43, v12
    v_mov_b32 v13, v12
    v_permlane32_swap_b32 v12, v13
    v_mul_f32 v12, v12, v13
    v_cvt_pk_bf16_f32 v12, v12, v12
    s_lshl_b32 s47, s40, 6
    s_add_u32 s47, s47, {M['HH']}
    v_and_b32 v10, 31, v1
    v_lshlrev_b32 v10, 1, v10
    v_add_u32 v10, s47, v10
    ds_write_b16 v10, v12
    v_lshlrev_b32 v10, 4, v8
    v_add_u32 v10, s47, v10
    s_lshl_b32 s47, s44, 11
    s_lshl_b32 s46, s40, 9
    s_add_u32 s47, s47, s46
    s_add_u32 s47, s47, {WS_P}
    v_lshlrev_b32 v11, 2, v9
    v_add_u32 v11, s47, v11
    s_waitcnt lgkmcnt(0)
    ds_read_b128 v[16:19], v10
    s_waitcnt lgkmcnt(0)
    """)
    for nb in range(8):
        I(f"v_mfma_f32_16x16x32_bf16 v[{20+4*nb}:{23+4*nb}], v[16:19], v[{DB+4*nb}:{DB+4*nb+3}], 0")
    I("s_mov_b32 s47, 0xfffffffe")
    for nb in range(8): I(f"v_min_u32 v{20+4*nb}, s47, v{20+4*nb}")
    I("s_mov_b64 exec, 0xffff")
    for nb in range(8): I(f"global_store_dword v11, v{20+4*nb}, s[26:27] offset:{64*nb} sc1")
    I("s_mov_b64 exec, -1")
    stamp(15)
    I("s_endpgm")

    a.label("L_t_o")
    I(f"""
    v_and_b32 v10, 7, v1
    v_lshlrev_b32 v11, 3, v10
    s_lshl_b32 s46, s44, 6
    v_add_u32 v11, s46, v11
    global_load_dwordx2 v[6:7], v11, s[4:5]
    v_mov_b32 v3, v11
    v_lshlrev_b32 v14, 4, v10
    v_lshrrev_b32 v12, 3, v1
    v_lshlrev_b32 v12, 11, v12
    v_add_u32 v14, v14, v12
    s_lshl_b32 s46, s44, 7
    v_add_u32 v14, s46, v14
    v_add_u32 v15, {WS_Y}, v14
    s_add_u32 s32, s26, {WS_P}
    s_addc_u32 s33, s27, 0
    s_and_b32 s33, s33, 0xffff
    s_mov_b32 s34, {NF * 2048}
    s_mov_b32 s35, 0x20000
    v_mov_b32 v4, {M['QREADY']}
    s_waitcnt vmcnt(0)
    """)
    lds_wait("L_o_qw", 4, 5, 8)
    wait_flags_and_go("L_o")
    stamp(16)
    def red_r8(base, tmp):
        for c in range(4): I(f"v_add_f32_dpp v{base+c}, v{base+c}, v{base+c} row_ror:8 row_mask:0xf bank_mask:0xf")
        for c in range(4): I(f"v_mov_b32 v{tmp+c}, v{base+c}")
        for c in range(4): I(f"v_permlane16_swap_b32 v{base+c}, v{tmp+c}")
        for c in range(4): I(f"v_add_f32 v{base+c}, v{base+c}, v{tmp+c}")
        for c in range(4): I(f"v_mov_b32 v{tmp+c}, v{base+c}")
        for c in range(4): I(f"v_permlane32_swap_b32 v{base+c}, v{tmp+c}")
        for c in range(4): I(f"v_add_f32 v{base+c}, v{base+c}, v{tmp+c}")
    a.label("L_o_polly")
    spin()
    I("global_load_dwordx4 v[16:19], v15, s[26:27] sc1")
    I("s_waitcnt vmcnt(0)")
    check_valid(range(16, 20), "L_o_polly", 20)
    red_r8(16, 20)
    resid(6, 16)
    I(f"""
    v_mov_b32 v48, v16
    v_mov_b32 v49, v17
    """)
    stamp(17)
    a.label("L_o_pollp")
    spin()
    for u in range(6):
        I(f"s_mov_b32 s46, {u * 8 * 2048}")
        I(f"buffer_load_dwordx4 v[{16+4*u}:{19+4*u}], v14, s[32:35], s46 offen sc1")
    I("s_waitcnt vmcnt(0)")
    check_valid(range(16, 40), "L_o_pollp", 40)
    stamp(18)
    for c in range(4):
        I(f"v_add_f32 v{16+c}, v{16+c}, v{20+c}")
        I(f"v_add_f32 v{24+c}, v{24+c}, v{28+c}")
        I(f"v_add_f32 v{32+c}, v{32+c}, v{36+c}")
    for c in range(4): I(f"v_add_f32 v{16+c}, v{16+c}, v{24+c}")
    for c in range(4): I(f"v_add_f32 v{16+c}, v{16+c}, v{32+c}")
    red_r8(16, 20)
    resid(48, 16)
    I(f"""
    s_mov_b64 exec, 0xff
    global_store_dwordx2 v3, v[16:17], s[22:23]
    s_mov_b64 exec, -1
    """)
    stamp(19)
    a.label("L_end")
    I("s_endpgm")
    a.raw('.section .rodata,"a"')
    a.raw(".p2align 6")
    a.raw(f".amdhsa_kernel {KN}_kernel")
    a.raw("  .amdhsa_next_free_vgpr 168")
    a.raw("  .amdhsa_next_free_sgpr 96")
    a.raw("  .amdhsa_accum_offset 168")
    a.raw("  .amdhsa_group_segment_fixed_size 0")
    a.raw("  .amdhsa_kernarg_size 96")
    a.raw("  .amdhsa_user_sgpr_count 2")
    a.raw("  .amdhsa_user_sgpr_kernarg_segment_ptr 1")
    a.raw("  .amdhsa_system_sgpr_workgroup_id_x 1")
    a.raw(".end_amdhsa_kernel")
    return a.text()

if __name__ == "__main__":
    out = sys.argv[1]
    kw = json.loads(sys.argv[2]) if len(sys.argv) > 2 else {}
    open(out, "w").write(gen(**kw))
    print("wrote", out)
```

```python
import sys, json
from asmlib import Asm

KN = "sequential_preLN__gqa_block_cached__glu_gated_bilinear__decode"

DEF = dict(D=18, R=8, S=112, C=2, stamps=False, dump=False, nt="nt", sleep_c=1, sleep_t=4, prio=True,
           skip_stage=False, segs=None, stage_nt="nt", qsleep=2, q_nt="nt", knt=None, vnt=None, tag_sc1=False, budget=0x40000, map="mod32")

def lds_map(R):
    ring = R * 16384
    m = {}
    m['RING'] = 0
    m['STAGE'] = ring
    f = ring + 16384
    m['FILLED'] = f
    m['NEXT'] = f + 16
    m['FINCNT'] = f + 32
    m['CLEARED'] = f + 36
    m['TAILGO'] = f + 40
    m['QREADY'] = f + 44
    m['NONCE'] = f + 48
    m['XXT'] = f + 256
    m['QB'] = m['XXT'] + 2048
    m['FINO'] = m['QB'] + 256
    m['FINML'] = m['FINO'] + 2048
    m['OALL'] = m['FINML'] + 64
    m['XN2'] = m['OALL'] + 1024
    m['HH'] = m['XN2'] + 4096
    m['YP'] = m['HH'] + 256
    m['END'] = m['YP'] + 1024
    return m

WS_PO = 0x0
WS_ML = 0x20000
WS_Y = 0x21000
WS_P = 0x28000
WS_QX = 0x40000
WS_TK = 0x80000
WS_CLR = 0x84000
WS_STAMP = 0x20000000
NF = 43

LOG2E = 0x3fb8aa3b
SCALE = 0x3db504f3
EPS = 0x3727c5ac

def gen(**kw):
    P = dict(DEF); P.update(kw)
    D = P['D']; R = P['R']; NT = P['nt']; S = P['S']; C = P['C']
    M = lds_map(R)
    ldsz = (M['END'] + 255) // 256 * 256
    assert ldsz <= 163840, ldsz
    a = Asm(); I = a.I
    stamps = P['stamps']

    def spin():
        I("s_sub_u32 s89, s89, 1")
        I("s_cbranch_scc1 L_end")

    def stamp(slot):
        if not stamps: return
        I("s_memrealtime s[90:91]")
        I("s_waitcnt lgkmcnt(0)")
        I("s_lshl_b32 s92, s2, 8")
        I(f"s_add_u32 s92, s92, {WS_STAMP + slot * 8}")
        I("s_add_u32 s92, s26, s92")
        I("s_addc_u32 s93, s27, 0")
        I("v_mov_b32 v164, s90")
        I("v_mov_b32 v165, s91")
        I("v_mov_b32 v166, 0")
        I("s_mov_b64 s[94:95], exec")
        I("s_mov_b64 exec, 1")
        I("global_store_dwordx2 v166, v[164:165], s[92:93]")
        I("s_mov_b64 exec, s[94:95]")

    def lds_wait(lbl, addr_reg, tmp, sleep):
        a.label(lbl)
        spin()
        I(f"ds_read_b32 v{tmp}, v{addr_reg}")
        I("s_waitcnt lgkmcnt(0)")
        I(f"v_readfirstlane_b32 s42, v{tmp}")
        I("s_cmp_lg_u32 s42, 0")
        I(f"s_cbranch_scc1 {lbl}_ok")
        I(f"s_sleep {sleep}")
        I(f"s_branch {lbl}")
        a.label(f"{lbl}_ok")

    a.raw(f"; @launch grid=(256,1,1) block=(576,1,1) lds={ldsz}")
    a.raw('.amdgcn_target "amdgcn-amd-amdhsa--gfx950"')
    a.raw(".text")
    a.raw(f".globl {KN}_kernel")
    a.raw(".p2align 8")
    a.raw(f".type {KN}_kernel,@function")
    a.raw(f"{KN}_kernel:")
    I("s_cmp_ge_u32 s2, 256")
    I("s_cbranch_scc1 L_end")
    I("s_load_dwordx16 s[4:19], s[0:1], 0")
    I("s_load_dwordx8 s[20:27], s[0:1], 64")
    I("v_lshrrev_b32 v2, 6, v0")
    I("v_and_b32 v1, 63, v0")
    I("v_readfirstlane_b32 s28, v2")
    if P['map'] == "div":
        I("s_lshr_b32 s29, s2, 3")
        I("s_and_b32 s30, s2, 7")
    else:
        I("s_and_b32 s29, s2, 31")
        I("s_lshr_b32 s30, s2, 5")
    I("s_lshl_b32 s3, s29, 3")
    I("s_add_u32 s3, s3, s30")
    I("s_sub_u32 s31, s30, s29")
    I("s_and_b32 s31, s31, 7")
    I(f"s_mov_b32 s89, {P['budget']}")
    I("s_waitcnt lgkmcnt(0)")
    I("s_cmp_eq_u32 s28, 0")
    I("s_cbranch_scc1 L_loader")
    I("s_cmp_lt_u32 s28, 5")
    I("s_cbranch_scc1 L_consumer")
    I("s_branch L_tail")

    a.label("L_loader")
    if P['prio']: I("s_setprio 3")
    stamp(0)
    I(f"""
    s_mov_b32 s32, s6
    s_and_b32 s33, s7, 0xffff
    s_mov_b32 s34, 0x10000000
    s_mov_b32 s35, 0x20000
    s_mov_b32 s36, s8
    s_and_b32 s37, s9, 0xffff
    s_mov_b32 s38, 0x10000000
    s_mov_b32 s39, 0x20000
    s_lshl_b32 s44, s29, 23
    v_lshrrev_b32 v8, 4, v1
    v_and_b32 v9, 15, v1
    v_lshlrev_b32 v10, 8, v8
    v_add_u32 v10, s44, v10
    """)
    for tt in range(4):
        I(f"v_add_u32 v11, {4*tt}, v8")
        I("v_xor_b32 v11, v11, v9")
        I("v_lshlrev_b32 v11, 4, v11")
        I(f"v_add_u32 v{2+tt}, v10, v11")
    for tp in range(2):
        I(f"v_add_u32 v11, {4*tp}, v8")
        I("v_lshlrev_b32 v11, 1, v11")
        I("v_xor_b32 v11, v11, v9")
        I("v_lshlrev_b32 v11, 4, v11")
        I(f"v_add_u32 v{6+tp}, v10, v11")
    u0 = (D - 1) % 8
    half0 = (u0 - D + 1) // 8 - 1
    I(f"""
    s_mul_i32 s46, s30, {S * 8192}
    s_mov_b32 s48, 0
    s_mov_b32 s49, {half0}
    s_mov_b32 s50, 0
    v_mov_b32 v12, {M['FILLED']}
    v_mov_b32 v13, {M['NEXT']}
    """)
    def loads_of_tile(first):
        for u in range(16):
            grp = u // 4
            if u % 4 == 0:
                I(f"s_add_u32 m0, s48, {grp * 4096}")
            I(f"s_waitcnt vmcnt({D-1})")
            if u % 8 == u0:
                I("s_add_u32 s49, s49, 1")
                I("v_mov_b32 v14, s49")
                if not first:
                    I("ds_write_b32 v12, v14")
            isv = u >= 8
            t = u % 8
            so = "s46" if t < 4 else "s47"
            KNT = NT if P['knt'] is None else P['knt']
            VNT = NT if P['vnt'] is None else P['vnt']
            if isv: I(f"buffer_load_dwordx4 v{6 + (t & 1)}, s[36:39], {so} offen offset:{(t % 4) * 1024} {VNT} lds")
            else:   I(f"buffer_load_dwordx4 v{2 + (t & 3)}, s[32:35], {so} offen offset:{(t % 4) * 1024} {KNT} lds")
    assert D >= 16
    I("s_add_u32 s47, s46, 4096")
    loads_of_tile(True)
    I(f"""
    v_mov_b32 v16, 0
    v_mov_b32 v17, 1
    v_mov_b32 v18, 2
    v_mov_b32 v19, 3
    v_mov_b32 v20, 0
    v_mov_b32 v21, 0
    v_mov_b32 v22, 0
    v_mov_b32 v23, 0
    v_mov_b32 v14, s49
    v_mov_b32 v15, 0x7fffffff
    ds_write_b64 v12, v[14:15]
    ds_write_b128 v13, v[16:19]
    ds_write_b128 v13, v[20:23] offset:16
    s_waitcnt lgkmcnt(0)
    s_barrier
    s_setprio 3
    """)
    I("ds_read_b128 v[16:19], v13")
    lab = [0]
    def next_tile(advance):
        k = lab[0]; lab[0] += 1
        I("s_add_u32 s50, s50, 1")
        if advance: I("s_add_u32 s46, s46, 8192")
        I(f"""
        s_add_u32 s47, s46, 4096
        s_add_u32 s48, s48, 16384
        s_cmp_ge_u32 s48, {R*16384}
        s_cselect_b32 s48, 0, s48
        s_sub_u32 s52, s50, {R-1}
        """)
        a.label(f"L_ld_free{k}")
        spin()
        I(f"""
        s_waitcnt lgkmcnt(0)
        v_min3_u32 v20, v16, v17, v18
        v_min_u32 v20, v20, v19
        v_readfirstlane_b32 s51, v20
        ds_read_b128 v[16:19], v13
        s_cmp_ge_i32 s51, s52
        s_cbranch_scc0 L_ld_free{k}
        """)
        loads_of_tile(False)
    nstatic = S - C
    bounds = [b for b in (P['segs'] or [16, 32, 48, 64, 80, 96]) if b < nstatic] + [nstatic] if stamps else [nstatic]
    for sg, b in enumerate(bounds):
        a.label(f"L_ld_tile{sg}")
        next_tile(True)
        I(f"s_cmp_lt_u32 s50, {b - 1}")
        I(f"s_cbranch_scc1 L_ld_tile{sg}")
        if stamps and sg < 7 and sg < len(bounds) - 1:
            I(f"s_memrealtime s[{60+2*sg}:{61+2*sg}]")
    I(f"""
    s_lshl_b32 s53, s29, 8
    s_add_u32 s53, s53, {WS_TK}
    v_mov_b32 v25, s53
    v_mov_b32 v26, 1
    s_add_u32 s46, s46, 8192
    """)
    a.label("L_ld_chunk")
    I("s_mov_b64 exec, 1")
    I("global_atomic_add v24, v25, v26, s[26:27] sc0 sc1")
    I("s_mov_b64 exec, -1")
    for c in range(C):
        next_tile(c > 0)
    I(f"""
    v_readfirstlane_b32 s53, v24
    s_mul_i32 s53, s53, {C}
    s_add_u32 s53, s53, {8 * S}
    s_lshl_b32 s46, s53, 13
    s_cmp_lt_u32 s53, 1024
    s_cbranch_scc1 L_ld_chunk
    """)
    assert 16 * C >= D, "ticket must have landed by the end of its chunk"
    I("s_add_u32 s53, s50, 1")
    I("v_mov_b32 v14, s53")
    I("ds_write_b32 v12, v14 offset:4")
    last_u = 8 + u0
    rem = 16 - last_u + D - 1
    while rem > 0:
        rem -= 8
        I(f"s_waitcnt vmcnt({rem})")
        I("s_add_u32 s49, s49, 1")
        I("v_mov_b32 v14, s49")
        I("ds_write_b32 v12, v14")
    assert rem == 0
    I("s_waitcnt lgkmcnt(0)")
    stamp(1)
    if stamps:
        I("s_lshl_b32 s92, s2, 8")
        I(f"s_add_u32 s92, s92, {WS_STAMP + 20 * 8}")
        I("s_add_u32 s92, s26, s92")
        I("s_addc_u32 s93, s27, 0")
        I("v_mov_b32 v166, 0")
        I("s_mov_b64 exec, 1")
        for k in range(7):
            I(f"v_mov_b32 v164, s{60+2*k}")
            I(f"v_mov_b32 v165, s{61+2*k}")
            I(f"global_store_dwordx2 v166, v[164:165], s[92:93] offset:{8*k}")
        I("v_mov_b32 v164, s50")
        I("v_mov_b32 v165, 0")
        I(f"global_store_dwordx2 v166, v[164:165], s[92:93] offset:{8*7}")
    I("s_endpgm")

    def wave_sum(v, t):
        for r in (8, 4, 2, 1):
            I(f"v_add_f32_dpp v{v}, v{v}, v{v} row_ror:{r} row_mask:0xf bank_mask:0xf")
        I(f"v_mov_b32 v{t}, v{v}")
        I(f"v_permlane16_swap_b32 v{v}, v{t}")
        I(f"v_add_f32 v{v}, v{v}, v{t}")
        I(f"v_mov_b32 v{t}, v{v}")
        I(f"v_permlane32_swap_b32 v{v}, v{t}")
        I(f"v_add_f32 v{v}, v{v}, v{t}")
    def unpack8(src, dst):
        for j in range(4):
            I(f"v_lshlrev_b32 v{dst+2*j}, 16, v{src+j}")
            I(f"v_and_b32 v{dst+2*j+1}, s43, v{src+j}")
    def layernorm8(x, tmp):
        s, t, mb, den = tmp, tmp+1, tmp+2, tmp+3
        I(f"v_add_f32 v{s}, v{x}, v{x+1}")
        for j in range(2, 8): I(f"v_add_f32 v{s}, v{s}, v{x+j}")
        wave_sum(s, t)
        I(f"v_mul_f32 v{s}, 0x3b000000, v{s}")
        I(f"v_cvt_pk_bf16_f32 v{mb}, v{s}, v{s}")
        I(f"v_and_b32 v{mb}, s43, v{mb}")
        I(f"v_sub_f32 v{t}, v{x}, v{s}")
        I(f"v_mul_f32 v{den}, v{t}, v{t}")
        for j in range(1, 8):
            I(f"v_sub_f32 v{t}, v{x+j}, v{s}")
            I(f"v_fmac_f32 v{den}, v{t}, v{t}")
        wave_sum(den, t)
        I(f"v_mul_f32 v{den}, 0x3b000000, v{den}")
        I(f"v_cvt_pk_bf16_f32 v{den}, v{den}, v{den}")
        I(f"v_and_b32 v{den}, s43, v{den}")
        I(f"v_add_f32 v{den}, {hex(EPS)}, v{den}")
        I(f"v_cvt_pk_bf16_f32 v{den}, v{den}, v{den}")
        I(f"v_and_b32 v{den}, s43, v{den}")
        I(f"v_sqrt_f32 v{den}, v{den}")
        I(f"v_cvt_pk_bf16_f32 v{den}, v{den}, v{den}")
        I(f"v_and_b32 v{den}, s43, v{den}")
        I(f"v_rcp_f32 v{den}, v{den}")
        for j in range(0, 8, 2):
            I(f"v_sub_f32 v{x+j}, v{x+j}, v{mb}")
            I(f"v_sub_f32 v{x+j+1}, v{x+j+1}, v{mb}")
            I(f"v_cvt_pk_bf16_f32 v{t}, v{x+j}, v{x+j+1}")
            I(f"v_lshlrev_b32 v{x+j}, 16, v{t}")
            I(f"v_and_b32 v{x+j+1}, s43, v{t}")
            I(f"v_mul_f32 v{x+j}, v{x+j}, v{den}")
            I(f"v_mul_f32 v{x+j+1}, v{x+j+1}, v{den}")

    a.label("L_consumer")
    I("s_sub_u32 s40, s28, 1")
    I("s_mov_b32 s43, 0xffff0000")
    I("v_lshrrev_b32 v8, 4, v1")
    I("v_and_b32 v9, 15, v1")
    I("s_cmp_eq_u32 s40, 0")
    I("s_cbranch_scc1 L_c_q")
    I("s_barrier")
    I("s_branch L_c_qwait")
    a.label("L_c_q")
    I("""
    s_cmp_eq_u32 s2, 0
    s_cbranch_scc0 L_q_notag
    s_memrealtime s[56:57]
    s_waitcnt lgkmcnt(0)
    s_or_b32 s56, s56, 1
    s_or_b32 s57, s57, 0x40000000
    s_and_b32 s57, s57, 0x7fffffff
    v_mov_b32 v34, s56
    v_mov_b32 v35, s57
    v_mov_b32 v2, 0
    s_mov_b64 exec, 1
    global_store_dwordx2 v2, v[34:35], s[24:25] sc1
    s_mov_b64 exec, -1
    """)
    a.label("L_q_notag")
    I(f"""
    v_mov_b32 v2, 0
    global_load_dwordx2 v[34:35], v2, s[24:25] {"sc1" if P['tag_sc1'] else ""}
    s_mov_b32 s32, s10
    s_and_b32 s33, s11, 0xffff
    s_mov_b32 s34, 0x400000
    s_mov_b32 s35, 0x20000
    v_lshlrev_b32 v2, 4, v1
    global_load_dwordx4 v[30:33], v2, s[4:5]
    s_lshl_b32 s41, s30, 6
    v_add_u32 v3, s41, v8
    v_lshlrev_b32 v3, 13, v3
    v_lshlrev_b32 v4, 4, v9
    v_add_u32 v3, v3, v4
    s_lshl_b32 s41, s29, 8
    v_add_u32 v3, s41, v3
    """)
    for t in range(16):
        I(f"s_mov_b32 s42, {t * 32768}")
        I(f"buffer_load_dwordx4 v[{40+4*t}:{43+4*t}], v3, s[32:35], s42 offen {P['q_nt']}")
    I("s_barrier")
    I("s_waitcnt vmcnt(16)")
    unpack8(30, 10)
    layernorm8(10, 4)
    for e in range(8):
        I(f"v_cvt_pk_bf16_f32 v{18+e}, v{10+e}, v{10+e}")
    I(f"""
    v_lshrrev_b32 v4, 3, v1
    v_lshlrev_b32 v4, 8, v4
    v_and_b32 v5, 7, v1
    v_lshlrev_b32 v5, 3, v5
    v_add_u32 v4, v4, v5
    v_add_u32 v4, {M['XXT']}, v4
    """)
    for g in range(4):
        I(f"v_mov_b32 v26, v{18+g}")
        I(f"v_mov_b32 v27, v{18+g+4}")
        I(f"ds_write_b64 v4, v[26:27] offset:{g*64}")
    I(f"""
    v_and_b32 v5, 1, v9
    v_mov_b32 v6, 0xffff
    v_mov_b32 v7, s43
    v_cmp_eq_u32 vcc, 1, v5
    v_cndmask_b32 v5, v6, v7, vcc
    v_lshrrev_b32 v6, 1, v9
    """)
    for j in range(4):
        I(f"v_cmp_eq_u32 vcc, {j}, v6")
        I(f"v_cndmask_b32 v{10+j}, 0, v5, vcc")
    I(f"""
    s_lshl_b32 s41, s30, 8
    s_add_u32 s41, s41, {M['XXT']}
    v_lshlrev_b32 v4, 6, v8
    v_add_u32 v4, s41, v4
    s_waitcnt lgkmcnt(0)
    ds_read_b128 v[104:107], v4
    ds_read_b128 v[108:111], v4 offset:16
    ds_read_b128 v[112:115], v4 offset:32
    ds_read_b128 v[116:119], v4 offset:48
    s_waitcnt lgkmcnt(0)
    """)
    for t in range(16):
        bb = 18 + 4 * (t % 2)
        for j in range(4):
            I(f"v_and_b32 v{bb+j}, v{104+t}, v{10+j}")
        I(f"s_waitcnt vmcnt({15 - t})")
        c = "0" if t == 0 else "v[26:29]"
        I(f"v_mfma_f32_16x16x32_bf16 v[26:29], v[{40+4*t}:{43+4*t}], v[{bb}:{bb+3}], {c}")
    I("""
    v_readfirstlane_b32 s56, v34
    v_readfirstlane_b32 s57, v35
    s_cmp_lg_u32 s56, 0
    s_cbranch_scc1 L_q_havetag
    """)
    a.label("L_q_tagpoll")
    spin()
    I("""
    v_mov_b32 v2, 0
    global_load_dwordx2 v[34:35], v2, s[24:25] sc1
    s_waitcnt vmcnt(0)
    v_readfirstlane_b32 s56, v34
    v_readfirstlane_b32 s57, v35
    s_cmp_lg_u32 s56, 0
    s_cbranch_scc1 L_q_havetag
    s_sleep 2
    s_branch L_q_tagpoll
    """)
    a.label("L_q_havetag")
    I(f"v_mov_b32 v5, {M['CLEARED']}")
    lds_wait("L_q_clr", 5, 6, 1)
    I(f"""
    v_mov_b32 v10, v26
    v_mov_b32 v11, s56
    v_mov_b32 v12, v27
    v_mov_b32 v13, s57
    v_mov_b32 v14, v28
    v_mov_b32 v15, s56
    v_mov_b32 v16, v29
    v_mov_b32 v17, s57
    v_mov_b32 v18, s56
    v_mov_b32 v19, s57
    v_mov_b32 v6, {M['NONCE']}
    ds_write_b64 v6, v[18:19]
    s_lshl_b32 s41, s3, 10
    s_add_u32 s41, s41, {WS_QX}
    v_lshlrev_b32 v4, 8, v8
    v_lshlrev_b32 v5, 5, v9
    v_add_u32 v4, v4, v5
    v_add_u32 v4, s41, v4
    v_cmp_gt_u32 vcc, 8, v9
    s_and_saveexec_b64 s[44:45], vcc
    global_store_dwordx4 v4, v[10:13], s[26:27] sc1
    global_store_dwordx4 v4, v[14:17], s[26:27] offset:16 sc1
    s_mov_b64 exec, 1
    s_lshl_b32 s41, s3, 3
    s_add_u32 s41, s41, {WS_CLR}
    v_mov_b32 v4, s41
    global_store_dwordx2 v4, v[18:19], s[26:27] sc1
    s_mov_b64 exec, -1
    s_lshl_b32 s41, s29, 13
    s_add_u32 s41, s41, {WS_QX}
    v_lshlrev_b32 v4, 4, v1
    v_add_u32 v4, s41, v4
    v_add_u32 v5, 4096, v4
    """)
    stamp(5)
    a.label("L_q_poll")
    spin()
    for i in range(8):
        I(f"global_load_dwordx4 v[{40+4*i}:{43+4*i}], v{4 if i < 4 else 5}, s[26:27] offset:{1024*(i%4)} sc1")
    I("s_waitcnt vmcnt(0)")
    I("v_xor_b32 v6, s56, v41")
    I("v_xor_b32 v7, s57, v43")
    I("v_or_b32 v6, v6, v7")
    for i in range(1, 8):
        I(f"v_xor_b32 v7, s56, v{41+4*i}")
        I(f"v_or_b32 v6, v6, v7")
        I(f"v_xor_b32 v7, s57, v{43+4*i}")
        I(f"v_or_b32 v6, v6, v7")
    I("v_cmp_ne_u32 vcc, 0, v6")
    I("s_cbranch_vccz L_q_seen")
    if P['qsleep']: I(f"s_sleep {P['qsleep']}")
    I("s_branch L_q_poll")
    a.label("L_q_seen")
    stamp(6)
    for c in (0, 2):
        I(f"v_add_f32 v{40+c}, v{40+c}, v{44+c}")
        I(f"v_add_f32 v{48+c}, v{48+c}, v{52+c}")
        I(f"v_add_f32 v{56+c}, v{56+c}, v{60+c}")
        I(f"v_add_f32 v{64+c}, v{64+c}, v{68+c}")
    for c in (0, 2):
        I(f"v_add_f32 v{40+c}, v{40+c}, v{48+c}")
        I(f"v_add_f32 v{56+c}, v{56+c}, v{64+c}")
    for c in (0, 2):
        I(f"v_add_f32 v{40+c}, v{40+c}, v{56+c}")
    I(f"""
    v_cvt_pk_bf16_f32 v10, v40, v42
    v_lshrrev_b32 v11, 16, v10
    v_lshrrev_b32 v5, 1, v9
    v_and_b32 v6, 1, v1
    v_lshlrev_b32 v6, 4, v6
    v_add_u32 v5, v5, v6
    v_lshlrev_b32 v6, 5, v8
    v_add_u32 v5, v5, v6
    v_lshlrev_b32 v5, 1, v5
    v_add_u32 v5, {M['QB']}, v5
    ds_write_b16 v5, v10
    ds_write_b16 v5, v11 offset:16
    v_mov_b32 v6, {M['QREADY']}
    v_mov_b32 v7, 1
    s_waitcnt lgkmcnt(0)
    ds_write_b32 v6, v7
    """)
    if P['dump']:
        I(f"""
        v_lshlrev_b32 v4, 2, v1
        v_add_u32 v5, {M['QB']}, v4
        ds_read_b32 v10, v5
        s_lshl_b32 s41, s3, 8
        s_add_u32 s41, s41, 0x100000
        v_add_u32 v4, s41, v4
        s_waitcnt lgkmcnt(0)
        global_store_dword v4, v10, s[26:27]
        """)
    a.label("L_c_qwait")
    I(f"v_mov_b32 v5, {M['QREADY']}")
    lds_wait("L_c_qw", 5, 6, 1)
    I(f"""
    v_lshlrev_b32 v5, 4, v8
    v_add_u32 v5, {M['QB']}, v5
    ds_read_b128 v[40:43], v5
    ds_read_b128 v[44:47], v5 offset:64
    ds_read_b128 v[48:51], v5 offset:128
    ds_read_b128 v[52:55], v5 offset:192
    """)
    I(f"""
    v_xor_b32 v2, v8, v9
    v_lshlrev_b32 v2, 4, v2
    v_lshlrev_b32 v10, 8, v9
    v_add_u32 v2, v2, v10
    v_lshrrev_b32 v10, 2, v9
    v_and_b32 v11, 3, v9
    v_lshlrev_b32 v12, 2, v8
    v_add_u32 v12, v12, v10
    v_and_b32 v13, 7, v12
    v_lshlrev_b32 v13, 1, v13
    v_lshrrev_b32 v14, 1, v11
    v_xor_b32 v13, v13, v14
    v_lshlrev_b32 v13, 4, v13
    v_and_b32 v14, 1, v11
    v_lshlrev_b32 v14, 3, v14
    v_lshlrev_b32 v3, 8, v12
    v_add_u32 v3, v3, v13
    v_add_u32 v3, v3, v14
    v_add_u32 v3, 8192, v3
    v_mov_b32 v4, 0xff800000
    v_mov_b32 v5, 0
    v_mov_b32 v6, 0
    v_mov_b32 v7, {M['FILLED']}
    s_lshl_b32 s41, s40, 2
    s_add_u32 s41, s41, {M['NEXT']}
    v_mov_b32 v38, s41
    s_mov_b32 s44, {hex(LOG2E)}
    s_mov_b32 s45, {hex(SCALE)}
    s_mov_b32 s46, s40
    s_lshl_b32 s47, s40, 14
    s_mov_b32 s48, -100
    """)
    for r in range(56, 88): I(f"v_mov_b32 v{r}, 0")
    I("s_waitcnt lgkmcnt(0)")
    stamp(2)
    a.label("L_c_tile")
    def wait_half(lbl, k):
        I(f"s_lshl_b32 s49, s46, 1")
        I(f"s_add_u32 s49, s49, {k}")
        I(f"s_cmp_ge_i32 s48, s49")
        I(f"s_cbranch_scc1 {lbl}_ok")
        a.label(f"{lbl}_poll")
        spin()
        I("ds_read_b64 v[36:37], v7")
        I("s_waitcnt lgkmcnt(0)")
        I("v_readfirstlane_b32 s48, v36")
        if k == 1: I("v_readfirstlane_b32 s50, v37")
        I("s_cmp_ge_i32 s48, s49")
        I(f"s_cbranch_scc1 {lbl}_ok")
        if k == 1:
            I("s_cmp_ge_u32 s46, s50")
            I("s_cbranch_scc1 L_c_fin")
        I(f"s_sleep {P['sleep_c']}")
        I(f"s_branch {lbl}_poll")
        a.label(f"{lbl}_ok")
    wait_half("L_c_k", 1)
    I("v_add_u32 v10, s47, v2")
    for j in range(1, 4): I(f"v_xor_b32 v{10+j}, {j << 6}, v10")
    KF = 88
    for j in range(4):
        I(f"ds_read_b128 v[{KF+4*j}:{KF+4*j+3}], v{10+j}")
        I(f"ds_read_b128 v[{KF+16+4*j}:{KF+16+4*j+3}], v{10+j} offset:4096")
    for j in range(4):
        I(f"s_waitcnt lgkmcnt({6 - 2*j})")
        c0 = "0" if j == 0 else "v[18:21]"
        c1 = "0" if j == 0 else "v[22:25]"
        I(f"v_mfma_f32_16x16x32_bf16 v[18:21], v[{KF+4*j}:{KF+4*j+3}], v[{40+4*j}:{43+4*j}], {c0}")
        I(f"v_mfma_f32_16x16x32_bf16 v[22:25], v[{KF+16+4*j}:{KF+16+4*j+3}], v[{40+4*j}:{43+4*j}], {c1}")
    I("v_add_u32 v10, s47, v3")
    for nb in range(1, 8): I(f"v_xor_b32 v{10+nb}, {nb << 5}, v10")
    SS = 18
    for p in range(4): I(f"v_cvt_pk_bf16_f32 v{30+p}, v{SS+2*p}, v{SS+2*p+1}")
    for p in range(4):
        I(f"v_lshlrev_b32 v{SS+2*p}, 16, v{30+p}")
        I(f"v_and_b32 v{SS+2*p+1}, s43, v{30+p}")
    for i in range(8): I(f"v_mul_f32 v{SS+i}, s45, v{SS+i}")
    for p in range(4): I(f"v_cvt_pk_bf16_f32 v{30+p}, v{SS+2*p}, v{SS+2*p+1}")
    for p in range(4):
        I(f"v_lshlrev_b32 v{SS+2*p}, 16, v{30+p}")
        I(f"v_and_b32 v{SS+2*p+1}, s43, v{30+p}")
    I(f"""
    v_max3_f32 v34, v{SS}, v{SS+1}, v{SS+2}
    v_max3_f32 v35, v{SS+3}, v{SS+4}, v{SS+5}
    v_max3_f32 v34, v34, v{SS+6}, v{SS+7}
    v_max_f32 v34, v34, v35
    v_mov_b32 v35, v34
    v_permlane32_swap_b32 v34, v35
    v_max_f32 v34, v34, v35
    v_mov_b32 v35, v34
    v_permlane16_swap_b32 v34, v35
    v_max_f32 v34, v34, v35
    v_cmp_gt_f32 vcc, v34, v4
    s_cbranch_vccz L_c_norescale
    v_sub_f32 v35, v4, v34
    v_mul_f32 v35, s44, v35
    v_exp_f32 v35, v35
    v_mov_b32 v4, v34
    v_mul_f32 v6, s44, v34
    v_mul_f32 v5, v5, v35
    """)
    for r in range(56, 88): I(f"v_mul_f32 v{r}, v{r}, v35")
    a.label("L_c_norescale")
    for i in range(8): I(f"v_fma_f32 v{SS+i}, v{SS+i}, s44, -v6")
    for i in range(8): I(f"v_exp_f32 v{SS+i}, v{SS+i}")
    for p in range(4): I(f"v_cvt_pk_bf16_f32 v{26+p}, v{SS+2*p}, v{SS+2*p+1}")
    I(f"""
    v_add_f32 v30, v{SS}, v{SS+1}
    v_add_f32 v31, v{SS+2}, v{SS+3}
    v_add_f32 v32, v{SS+4}, v{SS+5}
    v_add_f32 v33, v{SS+6}, v{SS+7}
    v_add_f32 v30, v30, v31
    v_add_f32 v32, v32, v33
    v_add_f32 v30, v30, v32
    v_add_f32 v5, v5, v30
    """)
    wait_half("L_c_v", 2)
    def vread(nb):
        I(f"ds_read_b64_tr_b16 v[{KF+4*nb}:{KF+4*nb+1}], v{10+nb}")
        I(f"ds_read_b64_tr_b16 v[{KF+4*nb+2}:{KF+4*nb+3}], v{10+nb} offset:4096")
    def pv(nb):
        I(f"v_mfma_f32_16x16x32_bf16 v[{56+4*nb}:{59+4*nb}], v[26:29], v[{KF+4*nb}:{KF+4*nb+3}], v[{56+4*nb}:{59+4*nb}]")
    for nb in range(7): vread(nb)
    I("s_waitcnt lgkmcnt(6)")
    for nb in range(4): pv(nb)
    vread(7)
    I("s_waitcnt lgkmcnt(2)")
    for nb in range(4, 7): pv(nb)
    I("s_add_u32 s46, s46, 4")
    I("v_mov_b32 v30, s46")
    I("s_waitcnt lgkmcnt(0)")
    I("ds_write_b32 v38, v30")
    pv(7)
    I(f"""
    s_add_u32 s47, s47, {4*16384}
    s_cmp_ge_u32 s47, {R*16384}
    s_cselect_b32 s49, {R*16384}, 0
    s_sub_u32 s47, s47, s49
    s_branch L_c_tile
    """)
    a.label("L_c_fin")
    stamp(3)
    I(f"""
    v_mov_b32 v30, v5
    v_permlane32_swap_b32 v5, v30
    v_add_f32 v5, v5, v30
    v_mov_b32 v30, v5
    v_permlane16_swap_b32 v5, v30
    v_add_f32 v5, v5, v30
    s_lshl_b32 s41, s40, 9
    s_add_u32 s41, s41, {M['FINO']}
    v_and_b32 v9, 15, v1
    v_lshlrev_b32 v10, 2, v9
    v_add_u32 v10, s41, v10
    """)
    for nb in range(8): I(f"ds_write_b32 v10, v{56+4*nb} offset:{64*nb}")
    I(f"""
    s_lshl_b32 s41, s40, 3
    s_add_u32 s41, s41, {M['FINML']}
    v_mov_b32 v10, s41
    ds_write_b64 v10, v[4:5]
    v_mov_b32 v11, {M['FINCNT']}
    v_mov_b32 v12, 1
    s_waitcnt lgkmcnt(0)
    s_mov_b64 exec, 1
    ds_add_rtn_u32 v13, v11, v12
    s_waitcnt lgkmcnt(0)
    s_mov_b64 exec, -1
    v_readfirstlane_b32 s41, v13
    s_cmp_eq_u32 s41, 3
    s_cbranch_scc0 L_end
    """)
    I(f"""
    v_mov_b32 v11, {M['TAILGO']}
    ds_write_b32 v11, v12
    v_lshlrev_b32 v10, 3, v1
    v_add_u32 v10, {M['FINO']}, v10
    v_mov_b32 v11, {M['FINML']}
    ds_read_b128 v[20:23], v11
    ds_read_b128 v[24:27], v11 offset:16
    ds_read_b64 v[12:13], v10
    ds_read_b64 v[14:15], v10 offset:512
    ds_read_b64 v[16:17], v10 offset:1024
    ds_read_b64 v[18:19], v10 offset:1536
    s_waitcnt lgkmcnt(0)
    v_max3_f32 v28, v20, v22, v24
    v_max_f32 v28, v28, v26
    v_sub_f32 v20, v20, v28
    v_sub_f32 v22, v22, v28
    v_sub_f32 v24, v24, v28
    v_sub_f32 v26, v26, v28
    v_mul_f32 v20, s44, v20
    v_mul_f32 v22, s44, v22
    v_mul_f32 v24, s44, v24
    v_mul_f32 v26, s44, v26
    v_exp_f32 v20, v20
    v_exp_f32 v22, v22
    v_exp_f32 v24, v24
    v_exp_f32 v26, v26
    v_mul_f32 v12, v12, v20
    v_mul_f32 v13, v13, v20
    v_mul_f32 v29, v21, v20
    v_fmac_f32 v12, v14, v22
    v_fmac_f32 v13, v15, v22
    v_fmac_f32 v29, v23, v22
    v_fmac_f32 v12, v16, v24
    v_fmac_f32 v13, v17, v24
    v_fmac_f32 v29, v25, v24
    v_fmac_f32 v12, v18, v26
    v_fmac_f32 v13, v19, v26
    v_fmac_f32 v29, v27, v26
    s_mov_b32 s41, 0xfffffffe
    v_min_u32 v12, s41, v12
    v_min_u32 v13, s41, v13
    v_min_u32 v28, s41, v28
    v_min_u32 v29, s41, v29
    s_lshl_b32 s41, s3, 9
    v_lshlrev_b32 v10, 3, v1
    v_add_u32 v10, s41, v10
    global_store_dwordx2 v10, v[12:13], s[26:27] sc1
    s_lshl_b32 s41, s3, 3
    s_add_u32 s41, s41, {WS_ML}
    v_mov_b32 v10, s41
    s_mov_b64 exec, 1
    global_store_dwordx2 v10, v[28:29], s[26:27] sc1
    s_mov_b64 exec, -1
    """)
    stamp(4)
    I("s_endpgm")

    a.label("L_tail")
    I("s_sub_u32 s40, s28, 5")
    I("s_mov_b32 s43, 0xffff0000")
    I(f"""
    s_mov_b32 s54, 0
    s_mov_b32 s44, 0
    s_cmp_lt_u32 s31, 2
    s_cbranch_scc0 L_t_r1
    s_mov_b32 s54, 1
    s_lshl_b32 s44, s29, 1
    s_add_u32 s44, s44, s31
    s_branch L_t_rdone
    """)
    a.label("L_t_r1")
    I(f"""
    s_cmp_eq_u32 s31, 2
    s_cbranch_scc0 L_t_r2
    s_mov_b32 s54, 2
    s_mov_b32 s44, s29
    s_branch L_t_rdone
    """)
    a.label("L_t_r2")
    I(f"""
    s_cmp_eq_u32 s31, 3
    s_cbranch_scc0 L_t_rdone
    s_cmp_lt_u32 s29, 11
    s_cbranch_scc0 L_t_r3
    s_mov_b32 s54, 2
    s_add_u32 s44, s29, 32
    s_branch L_t_rdone
    """)
    a.label("L_t_r3")
    I(f"""
    s_cmp_lt_u32 s29, 27
    s_cbranch_scc0 L_t_rdone
    s_mov_b32 s54, 3
    s_sub_u32 s44, s29, 11
    """)
    a.label("L_t_rdone")
    I("s_barrier")
    I(f"""
    v_lshrrev_b32 v8, 4, v1
    v_and_b32 v9, 15, v1
    s_cmp_eq_u32 s40, 0
    s_cbranch_scc0 L_t_noclear
    """)
    I(f"""
    v_mov_b32 v10, -1
    v_mov_b32 v11, -1
    v_mov_b32 v12, -1
    v_mov_b32 v13, -1
    s_lshl_b32 s41, s3, 9
    v_lshlrev_b32 v4, 3, v1
    v_add_u32 v4, s41, v4
    global_store_dwordx2 v4, v[10:11], s[26:27] sc1
    s_lshl_b32 s41, s3, 3
    s_add_u32 s41, s41, {WS_ML}
    v_mov_b32 v4, s41
    global_store_dwordx2 v4, v[10:11], s[26:27] sc1
    s_cmp_eq_u32 s30, 0
    s_cbranch_scc0 L_t_clr_tk
    s_lshl_b32 s41, s29, 8
    s_add_u32 s41, s41, {WS_TK}
    v_mov_b32 v4, s41
    v_mov_b32 v5, 0
    global_store_dword v4, v5, s[26:27] sc1
    """)
    a.label("L_t_clr_tk")
    I(f"""
    s_cmp_eq_u32 s54, 1
    s_cbranch_scc0 L_t_clr_f
    s_lshl_b32 s41, s44, 8
    s_add_u32 s41, s41, {WS_Y}
    v_lshlrev_b32 v4, 2, v1
    v_add_u32 v4, s41, v4
    global_store_dword v4, v10, s[26:27] sc1
    s_branch L_t_clr_done
    """)
    a.label("L_t_clr_f")
    I(f"""
    s_cmp_eq_u32 s54, 2
    s_cbranch_scc0 L_t_clr_done
    s_lshl_b32 s41, s44, 11
    s_add_u32 s41, s41, {WS_P}
    v_lshlrev_b32 v4, 4, v1
    v_add_u32 v4, s41, v4
    global_store_dwordx4 v4, v[10:13], s[26:27] sc1
    global_store_dwordx4 v4, v[10:13], s[26:27] offset:1024 sc1
    """)
    a.label("L_t_clr_done")
    I(f"""
    s_waitcnt vmcnt(0)
    v_mov_b32 v4, {M['CLEARED']}
    v_mov_b32 v5, 1
    ds_write_b32 v4, v5
    """)
    a.label("L_t_noclear")
    I(f"""
    s_cmp_eq_u32 s54, 0
    s_cbranch_scc1 L_end
    s_cmp_eq_u32 s54, 3
    s_cbranch_scc0 L_t_wf
    s_cmp_eq_u32 s40, 0
    s_cbranch_scc1 L_t_o
    s_endpgm
    """)
    a.label("L_t_wf")
    I(f"v_mov_b32 v4, {M['QREADY']}")
    lds_wait("L_t_qw", 4, 5, 8)
    I("s_cmp_eq_u32 s54, 2")
    I("s_cbranch_scc1 L_t_f")

    STG = M['STAGE']
    SNT = P['stage_nt']
    def stage_setup():
        I(f"s_lshl_b32 s41, s40, 12")
        I(f"s_add_u32 s41, s41, {STG}")
    def dma(addr, u, step_bytes):
        if P['skip_stage']: return
        I(f"s_add_u32 m0, s41, {u*1024}")
        I(f"s_nop 0")
        I(f"global_load_lds_dwordx4 v[{addr}:{addr+1}], off {SNT}")
        if step_bytes:
            I(f"v_add_co_u32 v{addr}, vcc, {step_bytes}, v{addr}")
            I(f"v_addc_co_u32 v{addr+1}, vcc, 0, v{addr+1}, vcc")
    def tr_reads(trbase, offs, dst):
        I("s_waitcnt vmcnt(0)")
        d = dst
        for off in offs:
            I(f"ds_read_b64_tr_b16 v[{d}:{d+1}], v{trbase} offset:{off[0]}")
            I(f"ds_read_b64_tr_b16 v[{d+2}:{d+3}], v{trbase} offset:{off[1]}")
            d += 4
        I("s_waitcnt lgkmcnt(0)")
    def tr_addr(reg, rowstride):
        I(f"v_lshrrev_b32 v10, 2, v9")
        I(f"v_lshlrev_b32 v11, 3, v8")
        I(f"v_add_u32 v10, v10, v11")
        I(f"v_mul_u32_u24 v10, {rowstride}, v10")
        I(f"v_and_b32 v11, 3, v9")
        I(f"v_lshlrev_b32 v11, 3, v11")
        I(f"v_add_u32 v10, v10, v11")
        I(f"v_add_u32 v{reg}, s41, v10")
    def wait_flags_and_go(lbl):
        I(f"""
        v_mov_b32 v4, {M['NONCE']}
        ds_read_b64 v[16:17], v4
        v_lshlrev_b32 v4, 4, v1
        v_add_u32 v4, {WS_CLR}, v4
        s_waitcnt lgkmcnt(0)
        """)
        a.label(f"{lbl}_clr")
        spin()
        I(f"""
        global_load_dwordx4 v[20:23], v4, s[26:27] sc1
        global_load_dwordx4 v[24:27], v4, s[26:27] offset:1024 sc1
        s_waitcnt vmcnt(0)
        """)
        I("v_xor_b32 v5, v16, v20")
        for r in (22, 24, 26):
            I(f"v_xor_b32 v18, v16, v{r}")
            I("v_or_b32 v5, v5, v18")
        for r in (21, 23, 25, 27):
            I(f"v_xor_b32 v18, v17, v{r}")
            I("v_or_b32 v5, v5, v18")
        I(f"""
        v_cmp_ne_u32 vcc, 0, v5
        s_cbranch_vccz {lbl}_go0
        s_sleep 32
        s_branch {lbl}_clr
        """)
        a.label(f"{lbl}_go0")
        I(f"v_mov_b32 v4, {M['TAILGO']}")
        lds_wait(f"{lbl}_go", 4, 5, P['sleep_t'])
    def check_valid(regs, lbl, tmp):
        rs = list(regs)
        I(f"v_max3_u32 v{tmp}, v{rs[0]}, v{rs[1]}, v{rs[2]}")
        rs = rs[3:]
        while len(rs) >= 2:
            I(f"v_max3_u32 v{tmp}, v{tmp}, v{rs[0]}, v{rs[1]}"); rs = rs[2:]
        if rs: I(f"v_max_u32 v{tmp}, v{tmp}, v{rs[0]}")
        I(f"v_cmp_eq_u32 vcc, -1, v{tmp}")
        I(f"s_cbranch_vccnz {lbl}")
    def gemv_kslice(abase, wb, acc, tmp):
        for ks in range(4):
            I(f"ds_read_b128 v[{tmp+4*ks}:{tmp+4*ks+3}], v{abase} offset:{ks*64}")
        for ks in range(4):
            I(f"s_waitcnt lgkmcnt({3-ks})")
            for nb in range(4):
                c = "0" if ks == 0 else f"v[{acc+4*nb}:{acc+4*nb+3}]"
                I(f"v_mfma_f32_16x16x32_bf16 v[{acc+4*nb}:{acc+4*nb+3}], v[{tmp+4*ks}:{tmp+4*ks+3}], v[{wb+16*ks+4*nb}:{wb+16*ks+4*nb+3}], {c}")
    def part_to_lds(acc):
        I(f"""
        s_lshl_b32 s47, s40, 8
        s_add_u32 s47, s47, {M['YP']}
        v_lshlrev_b32 v11, 2, v9
        v_add_u32 v11, s47, v11
        """)
        for nb in range(4): I(f"ds_write_b32 v11, v{acc+4*nb} offset:{64*nb}")
        I(f"""
        v_lshlrev_b32 v11, 2, v1
        v_add_u32 v11, {M['YP']}, v11
        s_waitcnt lgkmcnt(0)
        s_barrier
        ds_read_b32 v12, v11
        ds_read_b32 v13, v11 offset:256
        ds_read_b32 v14, v11 offset:512
        ds_read_b32 v15, v11 offset:768
        s_waitcnt lgkmcnt(0)
        v_add_f32 v12, v12, v13
        v_add_f32 v14, v14, v15
        v_add_f32 v12, v12, v14
        """)

    WB = 64
    a.label("L_t_w")
    stage_setup()
    tr_addr(14, 128)
    I(f"""
    s_lshr_b32 s45, s44, 3
    s_and_b32 s46, s44, 7
    s_lshl_b32 s47, s45, 19
    s_lshl_b32 s48, s40, 17
    s_add_u32 s47, s47, s48
    s_lshl_b32 s48, s46, 7
    s_add_u32 s47, s47, s48
    v_lshrrev_b32 v10, 3, v1
    v_lshlrev_b32 v10, 10, v10
    v_and_b32 v11, 7, v1
    v_lshlrev_b32 v11, 4, v11
    v_add_u32 v10, v10, v11
    v_add_u32 v10, s47, v10
    v_mov_b32 v13, s13
    v_add_co_u32 v12, vcc, s12, v10
    v_addc_co_u32 v13, vcc, 0, v13, vcc
    """)
    for ks in range(4):
        for u in range(4): dma(12, u, 8 * 1024)
        tr_reads(14, [(nb * 32, 4 * 128 + nb * 32) for nb in range(4)], WB + 16 * ks)
    stamp(8)
    I(f"""
    s_lshl_b32 s47, s45, 2
    s_add_u32 s47, s47, s40
    s_lshl_b32 s48, s47, 12
    v_lshlrev_b32 v14, 4, v1
    v_add_u32 v14, s48, v14
    s_lshl_b32 s48, s47, 6
    s_add_u32 s48, s48, {WS_ML}
    v_mov_b32 v15, s48
    """)
    wait_flags_and_go("L_w")
    stamp(9)
    a.label("L_w_poll")
    spin()
    for i in range(4): I(f"global_load_dwordx4 v[{16+4*i}:{19+4*i}], v14, s[26:27] offset:{1024*i} sc1")
    for i in range(4): I(f"global_load_dwordx4 v[{32+4*i}:{35+4*i}], v15, s[26:27] offset:{16*i} sc1")
    I("s_waitcnt vmcnt(0)")
    check_valid(range(16, 48), "L_w_poll", 48)
    stamp(10)
    I("""
    v_max3_f32 v48, v32, v34, v36
    v_max3_f32 v49, v38, v40, v42
    v_max3_f32 v48, v48, v44, v46
    v_max_f32 v48, v48, v49
    s_mov_b32 s47, 0x3fb8aa3b
    """)
    for j in range(8): I(f"v_sub_f32 v{32+2*j}, v{32+2*j}, v48")
    for j in range(8): I(f"v_mul_f32 v{32+2*j}, s47, v{32+2*j}")
    for j in range(8): I(f"v_exp_f32 v{32+2*j}, v{32+2*j}")
    I("v_mul_f32 v49, v32, v33")
    for j in range(1, 8): I(f"v_fmac_f32 v49, v{32+2*j}, v{33+2*j}")
    I("v_cmp_lt_u32 vcc, 31, v1")
    for i in range(4): I(f"v_cndmask_b32 v{50+i}, v{32+4*i}, v{34+4*i}, vcc")
    I("v_rcp_f32 v49, v49")
    for c in range(4): I(f"v_mul_f32 v{16+c}, v{16+c}, v50")
    for i in range(1, 4):
        for c in range(4): I(f"v_fmac_f32 v{16+c}, v{16+4*i+c}, v{50+i}")
    for c in range(4): I(f"v_mov_b32 v{20+c}, v{16+c}")
    for c in range(4): I(f"v_permlane32_swap_b32 v{16+c}, v{20+c}")
    for c in range(4): I(f"v_add_f32 v{16+c}, v{16+c}, v{20+c}")
    for c in range(4): I(f"v_mul_f32 v{16+c}, v{16+c}, v49")
    I(f"""
    v_cvt_pk_bf16_f32 v16, v16, v17
    v_cvt_pk_bf16_f32 v17, v18, v19
    v_and_b32 v10, 31, v1
    v_lshlrev_b32 v10, 3, v10
    s_lshl_b32 s47, s40, 8
    s_add_u32 s47, s47, {M['OALL']}
    v_add_u32 v10, s47, v10
    ds_write_b64 v10, v[16:17]
    v_lshlrev_b32 v10, 4, v8
    v_add_u32 v10, s47, v10
    s_waitcnt lgkmcnt(0)
    """)
    gemv_kslice(10, WB, 32, 16)
    part_to_lds(32)
    I(f"""
    s_mov_b32 s47, 0xfffffffe
    v_min_u32 v12, s47, v12
    s_lshl_b32 s47, s44, 8
    s_add_u32 s47, s47, {WS_Y}
    v_lshlrev_b32 v11, 2, v1
    v_add_u32 v11, s47, v11
    s_cmp_eq_u32 s40, 0
    s_cbranch_scc0 L_end
    global_store_dword v11, v12, s[26:27] sc1
    """)
    stamp(11)
    I("s_endpgm")

    a.label("L_t_f")
    stage_setup()
    tr_addr(14, 64)
    I(f"""
    s_lshl_b32 s46, s44, 6
    s_mul_i32 s47, s40, {128 * 2752}
    s_add_u32 s46, s46, s47
    v_lshrrev_b32 v10, 2, v1
    v_mul_u32_u24 v10, 2752, v10
    v_and_b32 v11, 3, v1
    v_lshlrev_b32 v11, 4, v11
    v_add_u32 v10, v10, v11
    v_add_u32 v10, s46, v10
    v_mov_b32 v13, s17
    v_add_co_u32 v12, vcc, s16, v10
    v_addc_co_u32 v13, vcc, 0, v13, vcc
    v_mov_b32 v17, s19
    v_add_co_u32 v16, vcc, s18, v10
    v_addc_co_u32 v17, vcc, 0, v17, vcc
    """)
    for ks in range(4):
        dma(12, 0, 16 * 2752); dma(12, 1, 16 * 2752)
        dma(16, 2, 16 * 2752); dma(16, 3, 16 * 2752)
        tr_reads(14, [(0, 256), (32, 256 + 32), (2048, 2048 + 256), (2048 + 32, 2048 + 256 + 32)], WB + 16 * ks)
    tr_addr(14, 128)
    DB = WB + 64
    for rr in range(2):
        I(f"""
        s_lshl_b32 s46, s44, 15
        s_lshl_b32 s47, s40, 8
        s_add_u32 s46, s46, s47
        s_add_u32 s46, s46, {128*rr}
        v_lshrrev_b32 v10, 3, v1
        v_lshlrev_b32 v10, 10, v10
        v_and_b32 v11, 7, v1
        v_lshlrev_b32 v11, 4, v11
        v_add_u32 v10, v10, v11
        v_add_u32 v10, s46, v10
        v_mov_b32 v13, s21
        v_add_co_u32 v12, vcc, s20, v10
        v_addc_co_u32 v13, vcc, 0, v13, vcc
        """)
        for u in range(4): dma(12, u, 8 * 1024)
        tr_reads(14, [(nb * 32, 4 * 128 + nb * 32) for nb in range(4)], DB + 16 * rr)
    I(f"""
    v_and_b32 v10, 31, v1
    v_lshlrev_b32 v11, 3, v10
    s_lshl_b32 s46, s40, 8
    v_add_u32 v11, s46, v11
    global_load_dwordx2 v[6:7], v11, s[4:5]
    v_lshlrev_b32 v14, 4, v10
    v_lshrrev_b32 v11, 5, v1
    v_lshlrev_b32 v11, 11, v11
    v_add_u32 v14, v14, v11
    s_lshl_b32 s46, s40, 9
    s_add_u32 s46, s46, {WS_Y}
    v_add_u32 v14, s46, v14
    s_waitcnt vmcnt(0)
    """)
    stamp(12)
    wait_flags_and_go("L_f")
    stamp(13)
    a.label("L_f_poll")
    spin()
    I("global_load_dwordx4 v[16:19], v14, s[26:27] sc1")
    I("v_add_u32 v15, 4096, v14")
    I("global_load_dwordx4 v[20:23], v15, s[26:27] sc1")
    I("v_add_u32 v15, 8192, v14")
    I("global_load_dwordx4 v[24:27], v15, s[26:27] sc1")
    I("v_add_u32 v15, 12288, v14")
    I("global_load_dwordx4 v[28:31], v15, s[26:27] sc1")
    I("s_waitcnt vmcnt(0)")
    check_valid(range(16, 32), "L_f_poll", 32)
    stamp(14)
    for c in range(4):
        I(f"v_add_f32 v{16+c}, v{16+c}, v{20+c}")
        I(f"v_add_f32 v{24+c}, v{24+c}, v{28+c}")
    for c in range(4): I(f"v_add_f32 v{16+c}, v{16+c}, v{24+c}")
    for c in range(4): I(f"v_mov_b32 v{20+c}, v{16+c}")
    for c in range(4): I(f"v_permlane32_swap_b32 v{16+c}, v{20+c}")
    for c in range(4): I(f"v_add_f32 v{16+c}, v{16+c}, v{20+c}")
    def resid(xr, out):
        I(f"""
        v_cvt_pk_bf16_f32 v16, v16, v17
        v_cvt_pk_bf16_f32 v17, v18, v19
        v_lshlrev_b32 v20, 16, v16
        v_and_b32 v21, s43, v16
        v_lshlrev_b32 v22, 16, v17
        v_and_b32 v23, s43, v17
        v_lshlrev_b32 v24, 16, v{xr}
        v_and_b32 v25, s43, v{xr}
        v_lshlrev_b32 v26, 16, v{xr+1}
        v_and_b32 v27, s43, v{xr+1}
        v_add_f32 v20, v20, v24
        v_add_f32 v21, v21, v25
        v_add_f32 v22, v22, v26
        v_add_f32 v23, v23, v27
        v_cvt_pk_bf16_f32 v{out}, v20, v21
        v_cvt_pk_bf16_f32 v{out+1}, v22, v23
        """)
    resid(6, 16)
    I(f"""
    v_and_b32 v10, 31, v1
    v_lshlrev_b32 v10, 3, v10
    s_lshl_b32 s47, s40, 8
    s_add_u32 s47, s47, {M['OALL']}
    v_add_u32 v10, s47, v10
    ds_write_b64 v10, v[16:17]
    v_lshlrev_b32 v10, 4, v1
    v_add_u32 v10, {M['OALL']}, v10
    s_waitcnt lgkmcnt(0)
    s_barrier
    ds_read_b128 v[16:19], v10
    s_waitcnt lgkmcnt(0)
    """)
    unpack8(16, 20)
    layernorm8(20, 28)
    for p in range(4): I(f"v_cvt_pk_bf16_f32 v{16+p}, v{20+2*p}, v{21+2*p}")
    I(f"""
    s_lshl_b32 s47, s40, 10
    s_add_u32 s47, s47, {M['XN2']}
    v_lshlrev_b32 v10, 4, v1
    v_add_u32 v10, s47, v10
    ds_write_b128 v10, v[16:19]
    s_lshl_b32 s46, s40, 8
    s_add_u32 s47, s47, s46
    v_lshlrev_b32 v10, 4, v8
    v_add_u32 v10, s47, v10
    s_waitcnt lgkmcnt(0)
    """)
    gemv_kslice(10, WB, 32, 16)
    part_to_lds(32)
    I(f"""
    v_cvt_pk_bf16_f32 v12, v12, v12
    v_and_b32 v12, s43, v12
    v_mov_b32 v13, v12
    v_permlane32_swap_b32 v12, v13
    v_mul_f32 v12, v12, v13
    v_cvt_pk_bf16_f32 v12, v12, v12
    s_lshl_b32 s47, s40, 6
    s_add_u32 s47, s47, {M['HH']}
    v_and_b32 v10, 31, v1
    v_lshlrev_b32 v10, 1, v10
    v_add_u32 v10, s47, v10
    ds_write_b16 v10, v12
    v_lshlrev_b32 v10, 4, v8
    v_add_u32 v10, s47, v10
    s_lshl_b32 s47, s44, 11
    s_lshl_b32 s46, s40, 9
    s_add_u32 s47, s47, s46
    s_add_u32 s47, s47, {WS_P}
    v_lshlrev_b32 v11, 2, v9
    v_add_u32 v11, s47, v11
    s_waitcnt lgkmcnt(0)
    ds_read_b128 v[16:19], v10
    s_waitcnt lgkmcnt(0)
    """)
    for nb in range(8):
        I(f"v_mfma_f32_16x16x32_bf16 v[{20+4*nb}:{23+4*nb}], v[16:19], v[{DB+4*nb}:{DB+4*nb+3}], 0")
    I("s_mov_b32 s47, 0xfffffffe")
    for nb in range(8): I(f"v_min_u32 v{20+4*nb}, s47, v{20+4*nb}")
    I("s_mov_b64 exec, 0xffff")
    for nb in range(8): I(f"global_store_dword v11, v{20+4*nb}, s[26:27] offset:{64*nb} sc1")
    I("s_mov_b64 exec, -1")
    stamp(15)
    I("s_endpgm")

    a.label("L_t_o")
    I(f"""
    v_and_b32 v10, 7, v1
    v_lshlrev_b32 v11, 3, v10
    s_lshl_b32 s46, s44, 6
    v_add_u32 v11, s46, v11
    global_load_dwordx2 v[6:7], v11, s[4:5]
    v_mov_b32 v3, v11
    v_lshlrev_b32 v14, 4, v10
    v_lshrrev_b32 v12, 3, v1
    v_lshlrev_b32 v12, 11, v12
    v_add_u32 v14, v14, v12
    s_lshl_b32 s46, s44, 7
    v_add_u32 v14, s46, v14
    v_add_u32 v15, {WS_Y}, v14
    s_add_u32 s32, s26, {WS_P}
    s_addc_u32 s33, s27, 0
    s_and_b32 s33, s33, 0xffff
    s_mov_b32 s34, {NF * 2048}
    s_mov_b32 s35, 0x20000
    v_mov_b32 v4, {M['QREADY']}
    s_waitcnt vmcnt(0)
    """)
    lds_wait("L_o_qw", 4, 5, 8)
    wait_flags_and_go("L_o")
    stamp(16)
    def red_r8(base, tmp):
        for c in range(4): I(f"v_add_f32_dpp v{base+c}, v{base+c}, v{base+c} row_ror:8 row_mask:0xf bank_mask:0xf")
        for c in range(4): I(f"v_mov_b32 v{tmp+c}, v{base+c}")
        for c in range(4): I(f"v_permlane16_swap_b32 v{base+c}, v{tmp+c}")
        for c in range(4): I(f"v_add_f32 v{base+c}, v{base+c}, v{tmp+c}")
        for c in range(4): I(f"v_mov_b32 v{tmp+c}, v{base+c}")
        for c in range(4): I(f"v_permlane32_swap_b32 v{base+c}, v{tmp+c}")
        for c in range(4): I(f"v_add_f32 v{base+c}, v{base+c}, v{tmp+c}")
    a.label("L_o_polly")
    spin()
    I("global_load_dwordx4 v[16:19], v15, s[26:27] sc1")
    I("s_waitcnt vmcnt(0)")
    check_valid(range(16, 20), "L_o_polly", 20)
    red_r8(16, 20)
    resid(6, 16)
    I(f"""
    v_mov_b32 v48, v16
    v_mov_b32 v49, v17
    """)
    stamp(17)
    a.label("L_o_pollp")
    spin()
    for u in range(6):
        I(f"s_mov_b32 s46, {u * 8 * 2048}")
        I(f"buffer_load_dwordx4 v[{16+4*u}:{19+4*u}], v14, s[32:35], s46 offen sc1")
    I("s_waitcnt vmcnt(0)")
    check_valid(range(16, 40), "L_o_pollp", 40)
    stamp(18)
    for c in range(4):
        I(f"v_add_f32 v{16+c}, v{16+c}, v{20+c}")
        I(f"v_add_f32 v{24+c}, v{24+c}, v{28+c}")
        I(f"v_add_f32 v{32+c}, v{32+c}, v{36+c}")
    for c in range(4): I(f"v_add_f32 v{16+c}, v{16+c}, v{24+c}")
    for c in range(4): I(f"v_add_f32 v{16+c}, v{16+c}, v{32+c}")
    red_r8(16, 20)
    resid(48, 16)
    I(f"""
    s_mov_b64 exec, 0xff
    global_store_dwordx2 v3, v[16:17], s[22:23]
    s_mov_b64 exec, -1
    """)
    stamp(19)
    a.label("L_end")
    I("s_endpgm")
    a.raw('.section .rodata,"a"')
    a.raw(".p2align 6")
    a.raw(f".amdhsa_kernel {KN}_kernel")
    a.raw("  .amdhsa_next_free_vgpr 168")
    a.raw("  .amdhsa_next_free_sgpr 96")
    a.raw("  .amdhsa_accum_offset 168")
    a.raw("  .amdhsa_group_segment_fixed_size 0")
    a.raw("  .amdhsa_kernarg_size 96")
    a.raw("  .amdhsa_user_sgpr_count 2")
    a.raw("  .amdhsa_user_sgpr_kernarg_segment_ptr 1")
    a.raw("  .amdhsa_system_sgpr_workgroup_id_x 1")
    a.raw(".end_amdhsa_kernel")
    return a.text()

if __name__ == "__main__":
    out = sys.argv[1]
    kw = json.loads(sys.argv[2]) if len(sys.argv) > 2 else {}
    open(out, "w").write(gen(**kw))
    print("wrote", out)
```

```python
import sys, json
from asmlib import Asm

KN = "sequential_preLN__gqa_block_cached__glu_gated_bilinear__decode"

DEF = dict(D=18, R=8, S=112, C=2, stamps=False, dump=False, nt="nt", sleep_c=1, sleep_t=1, prio=True,
           skip_stage=False, segs=None, stage_nt="nt", qsleep=2, q_nt="nt", knt=None, vnt=None, tag_sc1=False, budget=0x40000, map="rot", out_sc="", aligned=True, stag=5, dbl="", wsleep=0)

def lds_map(R):
    ring = R * 16384
    m = {}
    m['RING'] = 0
    m['STAGE'] = ring
    f = ring + 16384
    m['FILLED'] = f
    m['NEXT'] = f + 16
    m['FINCNT'] = f + 32
    m['CLEARED'] = f + 36
    m['TAILGO'] = f + 40
    m['QREADY'] = f + 44
    m['NONCE'] = f + 48
    m['XXT'] = f + 256
    m['QB'] = m['XXT'] + 2048
    m['FINO'] = m['QB'] + 256
    m['FINML'] = m['FINO'] + 2048
    m['OALL'] = m['FINML'] + 64
    m['XN2'] = m['OALL'] + 1024
    m['HH'] = m['XN2'] + 4096
    m['YP'] = m['HH'] + 256
    m['END'] = m['YP'] + 1024
    return m

WS_PO = 0x0
PREC = 640
WS_Y = 0x29000
WS_P = 0x30000
WS_QX = 0x48000
WS_TK = 0x88000
WS_CLR = 0x8C000
WS_STAMP = 0x20000000
NF = 43

LOG2E = 0x3fb8aa3b
SCALE = 0x3db504f3
EPS = 0x3727c5ac

def gen(**kw):
    P = dict(DEF); P.update(kw)
    D = P['D']; R = P['R']; NT = P['nt']; S = P['S']; C = P['C']
    M = lds_map(R)
    ldsz = (M['END'] + 255) // 256 * 256
    assert ldsz <= 163840, ldsz
    a = Asm(); I = a.I
    stamps = P['stamps']

    def spin():
        I("s_sub_u32 s89, s89, 1")
        I("s_cbranch_scc1 L_end")

    pend = []
    def stamp(slot):
        if not stamps: return
        k = len(pend); assert k < 6
        pend.append(slot)
        I(f"s_memrealtime s[{76+2*k}:{77+2*k}]")
    def flush_stamps(keep=0):
        if not stamps: return
        I("s_waitcnt lgkmcnt(0)")
        I("s_lshl_b32 s92, s2, 8")
        I(f"s_add_u32 s92, s92, {WS_STAMP}")
        I("s_add_u32 s92, s26, s92")
        I("s_addc_u32 s93, s27, 0")
        I("v_mov_b32 v166, 0")
        I("s_mov_b64 s[94:95], exec")
        I("s_mov_b64 exec, 1")
        for k, slot in enumerate(pend):
            I(f"v_mov_b32 v164, s{76+2*k}")
            I(f"v_mov_b32 v165, s{77+2*k}")
            I(f"global_store_dwordx2 v166, v[164:165], s[92:93] offset:{8*slot}")
        I("s_mov_b64 exec, s[94:95]")
        del pend[keep:]

    def lds_wait(lbl, addr_reg, tmp, sleep):
        a.label(lbl)
        spin()
        I(f"ds_read_b32 v{tmp}, v{addr_reg}")
        I("s_waitcnt lgkmcnt(0)")
        I(f"v_readfirstlane_b32 s42, v{tmp}")
        I("s_cmp_lg_u32 s42, 0")
        I(f"s_cbranch_scc1 {lbl}_ok")
        I(f"s_sleep {sleep}")
        I(f"s_branch {lbl}")
        a.label(f"{lbl}_ok")

    a.raw(f"; @launch grid=(256,1,1) block=(576,1,1) lds={ldsz}")
    a.raw('.amdgcn_target "amdgcn-amd-amdhsa--gfx950"')
    a.raw(".text")
    a.raw(f".globl {KN}_kernel")
    a.raw(".p2align 8")
    a.raw(f".type {KN}_kernel,@function")
    a.raw(f"{KN}_kernel:")
    I("s_cmp_ge_u32 s2, 256")
    I("s_cbranch_scc1 L_end")
    I("s_load_dwordx16 s[4:19], s[0:1], 0")
    I("s_load_dwordx8 s[20:27], s[0:1], 64")
    I("v_lshrrev_b32 v2, 6, v0")
    I("v_and_b32 v1, 63, v0")
    I("v_readfirstlane_b32 s28, v2")
    if P['map'] == "rot":
        I("s_lshr_b32 s29, s2, 3")
        I("s_add_u32 s30, s2, s29")
        I("s_and_b32 s30, s30, 7")
    elif P['map'] == "div":
        I("s_lshr_b32 s29, s2, 3")
        I("s_and_b32 s30, s2, 7")
    else:
        I("s_and_b32 s29, s2, 31")
        I("s_lshr_b32 s30, s2, 5")
    I("s_lshl_b32 s3, s29, 3")
    I("s_add_u32 s3, s3, s30")
    if P['map'] == "rot":
        I("s_mov_b32 s31, s30")
    else:
        I("s_sub_u32 s31, s30, s29")
        I("s_and_b32 s31, s31, 7")
    I(f"s_mov_b32 s89, {P['budget']}")
    I("s_waitcnt lgkmcnt(0)")
    I("s_cmp_eq_u32 s28, 0")
    I("s_cbranch_scc1 L_loader")
    I("s_cmp_lt_u32 s28, 5")
    I("s_cbranch_scc1 L_consumer")
    I("s_branch L_tail")

    a.label("L_loader")
    if P['prio']: I("s_setprio 3")
    stamp(0)
    I(f"""
    s_mov_b32 s32, s6
    s_and_b32 s33, s7, 0xffff
    s_mov_b32 s34, 0x10000000
    s_mov_b32 s35, 0x20000
    s_mov_b32 s36, s8
    s_and_b32 s37, s9, 0xffff
    s_mov_b32 s38, 0x10000000
    s_mov_b32 s39, 0x20000
    s_lshl_b32 s44, s29, 23
    v_lshrrev_b32 v8, 4, v1
    v_and_b32 v9, 15, v1
    v_lshlrev_b32 v10, 8, v8
    v_add_u32 v10, s44, v10
    """)
    for tt in range(4):
        I(f"v_add_u32 v11, {4*tt}, v8")
        I("v_xor_b32 v11, v11, v9")
        I("v_lshlrev_b32 v11, 4, v11")
        I(f"v_add_u32 v{2+tt}, v10, v11")
    for tp in range(2):
        I(f"v_add_u32 v11, {4*tp}, v8")
        I("v_lshlrev_b32 v11, 1, v11")
        I("v_xor_b32 v11, v11, v9")
        I("v_lshlrev_b32 v11, 4, v11")
        I(f"v_add_u32 v{6+tp}, v10, v11")
    u0 = (D - 1) % 8
    half0 = (u0 - D + 1) // 8 - 1
    I(f"""
    s_mul_i32 s46, s30, {(128 if P['aligned'] else S) * 8192}
    s_mov_b32 s48, 0
    s_mov_b32 s49, {half0}
    s_mov_b32 s50, 0
    v_mov_b32 v12, {M['FILLED']}
    v_mov_b32 v13, {M['NEXT']}
    """)
    def loads_of_tile(first):
        for u in range(16):
            grp = u // 4
            if u % 4 == 0:
                I(f"s_add_u32 m0, s48, {grp * 4096}")
            I(f"s_waitcnt vmcnt({D-1})")
            if u % 8 == u0:
                I("s_add_u32 s49, s49, 1")
                I("v_mov_b32 v14, s49")
                if not first:
                    I("ds_write_b32 v12, v14")
            isv = u >= 8
            t = u % 8
            so = "s46" if t < 4 else "s47"
            KNT = NT if P['knt'] is None else P['knt']
            VNT = NT if P['vnt'] is None else P['vnt']
            if isv: I(f"buffer_load_dwordx4 v{6 + (t & 1)}, s[36:39], {so} offen offset:{(t % 4) * 1024} {VNT} lds")
            else:   I(f"buffer_load_dwordx4 v{2 + (t & 3)}, s[32:35], {so} offen offset:{(t % 4) * 1024} {KNT} lds")
    assert D >= 16
    I("s_add_u32 s47, s46, 4096")
    loads_of_tile(True)
    I(f"""
    v_mov_b32 v16, 0
    v_mov_b32 v17, 1
    v_mov_b32 v18, 2
    v_mov_b32 v19, 3
    v_mov_b32 v20, 0
    v_mov_b32 v21, 0
    v_mov_b32 v22, 0
    v_mov_b32 v23, 0
    v_mov_b32 v14, s49
    v_mov_b32 v15, 0x7fffffff
    ds_write_b64 v12, v[14:15]
    ds_write_b128 v13, v[16:19]
    ds_write_b128 v13, v[20:23] offset:16
    s_waitcnt lgkmcnt(0)
    s_barrier
    s_setprio 3
    """)
    I("ds_read_b128 v[16:19], v13")
    lab = [0]
    def next_tile(advance):
        k = lab[0]; lab[0] += 1
        I("s_add_u32 s50, s50, 1")
        if advance: I("s_add_u32 s46, s46, 8192")
        I(f"""
        s_add_u32 s47, s46, 4096
        s_add_u32 s48, s48, 16384
        s_cmp_ge_u32 s48, {R*16384}
        s_cselect_b32 s48, 0, s48
        s_sub_u32 s52, s50, {R-1}
        """)
        a.label(f"L_ld_free{k}")
        spin()
        I(f"""
        s_waitcnt lgkmcnt(0)
        v_min3_u32 v20, v16, v17, v18
        v_min_u32 v20, v20, v19
        v_readfirstlane_b32 s51, v20
        ds_read_b128 v[16:19], v13
        s_cmp_ge_i32 s51, s52
        s_cbranch_scc0 L_ld_free{k}
        """)
        loads_of_tile(False)
    nstatic = S - 2
    bounds = [b for b in (P['segs'] or [16, 32, 48, 64, 80, 96]) if b < nstatic] + [nstatic] if stamps else [nstatic]
    for sg, b in enumerate(bounds):
        a.label(f"L_ld_tile{sg}")
        next_tile(True)
        I(f"s_cmp_lt_u32 s50, {b - 1}")
        I(f"s_cbranch_scc1 L_ld_tile{sg}")
        if stamps and sg < 7 and sg < len(bounds) - 1:
            I(f"s_memrealtime s[{60+2*sg}:{61+2*sg}]")
    def ticket(reg):
        I("s_mov_b64 exec, 1")
        I(f"global_atomic_add v{reg}, v25, v26, s[26:27] sc0 sc1")
        I("s_mov_b64 exec, -1")
    I(f"""
    s_lshl_b32 s53, s29, 8
    s_add_u32 s53, s53, {WS_TK}
    v_mov_b32 v25, s53
    v_mov_b32 v26, 1
    """)
    ticket(24)
    next_tile(True)
    ticket(27)
    next_tile(True)
    a.label("L_ld_dyn")
    for reg in (24, 27):
        if P['aligned']:
            I(f"""
            v_readfirstlane_b32 s53, v{reg}
            s_and_b32 s46, s53, 7
            s_lshl_b32 s46, s46, 7
            s_lshr_b32 s55, s53, 3
            s_add_u32 s46, s46, s55
            s_add_u32 s46, s46, {S}
            s_lshl_b32 s46, s46, 13
            s_cmp_lt_u32 s53, {8 * (128 - S)}
            s_cbranch_scc0 L_ld_over
            """)
        else:
            I(f"""
            v_readfirstlane_b32 s53, v{reg}
            s_add_u32 s53, s53, {8 * S}
            s_lshl_b32 s46, s53, 13
            s_cmp_lt_u32 s53, 1024
            s_cbranch_scc0 L_ld_over
            """)
        ticket(reg)
        next_tile(False)
    I("s_branch L_ld_dyn")
    a.label("L_ld_over")
    assert 32 >= D + 1, "a ticket must have landed two tiles later"
    I("s_add_u32 s53, s50, 1")
    I("v_mov_b32 v14, s53")
    I("ds_write_b32 v12, v14 offset:4")
    last_u = 8 + u0
    rem = 16 - last_u + D - 1
    while rem > 0:
        rem -= 8
        I(f"s_waitcnt vmcnt({rem})")
        I("s_add_u32 s49, s49, 1")
        I("v_mov_b32 v14, s49")
        I("ds_write_b32 v12, v14")
    assert rem == 0
    I("s_waitcnt lgkmcnt(0)")
    stamp(1)
    flush_stamps()
    if stamps:
        I("s_lshl_b32 s92, s2, 8")
        I(f"s_add_u32 s92, s92, {WS_STAMP + 20 * 8}")
        I("s_add_u32 s92, s26, s92")
        I("s_addc_u32 s93, s27, 0")
        I("v_mov_b32 v166, 0")
        I("s_mov_b64 exec, 1")
        for k in range(7):
            I(f"v_mov_b32 v164, s{60+2*k}")
            I(f"v_mov_b32 v165, s{61+2*k}")
            I(f"global_store_dwordx2 v166, v[164:165], s[92:93] offset:{8*k}")
        I("v_mov_b32 v164, s50")
        I("v_mov_b32 v165, 0")
        I(f"global_store_dwordx2 v166, v[164:165], s[92:93] offset:{8*7}")
    I("s_endpgm")

    def wave_sum(v, t):
        for r in (8, 4, 2, 1):
            I(f"v_add_f32_dpp v{v}, v{v}, v{v} row_ror:{r} row_mask:0xf bank_mask:0xf")
        I(f"v_mov_b32 v{t}, v{v}")
        I(f"v_permlane16_swap_b32 v{v}, v{t}")
        I(f"v_add_f32 v{v}, v{v}, v{t}")
        I(f"v_mov_b32 v{t}, v{v}")
        I(f"v_permlane32_swap_b32 v{v}, v{t}")
        I(f"v_add_f32 v{v}, v{v}, v{t}")
    def unpack8(src, dst):
        for j in range(4):
            I(f"v_lshlrev_b32 v{dst+2*j}, 16, v{src+j}")
            I(f"v_and_b32 v{dst+2*j+1}, s43, v{src+j}")
    def layernorm8(x, tmp):
        s, t, mb, den = tmp, tmp+1, tmp+2, tmp+3
        I(f"v_add_f32 v{s}, v{x}, v{x+1}")
        for j in range(2, 8): I(f"v_add_f32 v{s}, v{s}, v{x+j}")
        wave_sum(s, t)
        I(f"v_mul_f32 v{s}, 0x3b000000, v{s}")
        I(f"v_cvt_pk_bf16_f32 v{mb}, v{s}, v{s}")
        I(f"v_and_b32 v{mb}, s43, v{mb}")
        I(f"v_sub_f32 v{t}, v{x}, v{s}")
        I(f"v_mul_f32 v{den}, v{t}, v{t}")
        for j in range(1, 8):
            I(f"v_sub_f32 v{t}, v{x+j}, v{s}")
            I(f"v_fmac_f32 v{den}, v{t}, v{t}")
        wave_sum(den, t)
        I(f"v_mul_f32 v{den}, 0x3b000000, v{den}")
        I(f"v_cvt_pk_bf16_f32 v{den}, v{den}, v{den}")
        I(f"v_and_b32 v{den}, s43, v{den}")
        I(f"v_add_f32 v{den}, {hex(EPS)}, v{den}")
        I(f"v_cvt_pk_bf16_f32 v{den}, v{den}, v{den}")
        I(f"v_and_b32 v{den}, s43, v{den}")
        I(f"v_sqrt_f32 v{den}, v{den}")
        I(f"v_cvt_pk_bf16_f32 v{den}, v{den}, v{den}")
        I(f"v_and_b32 v{den}, s43, v{den}")
        I(f"v_rcp_f32 v{den}, v{den}")
        for j in range(0, 8, 2):
            I(f"v_sub_f32 v{x+j}, v{x+j}, v{mb}")
            I(f"v_sub_f32 v{x+j+1}, v{x+j+1}, v{mb}")
            I(f"v_cvt_pk_bf16_f32 v{t}, v{x+j}, v{x+j+1}")
            I(f"v_lshlrev_b32 v{x+j}, 16, v{t}")
            I(f"v_and_b32 v{x+j+1}, s43, v{t}")
            I(f"v_mul_f32 v{x+j}, v{x+j}, v{den}")
            I(f"v_mul_f32 v{x+j+1}, v{x+j+1}, v{den}")

    a.label("L_consumer")
    I("s_sub_u32 s40, s28, 1")
    I("s_mov_b32 s43, 0xffff0000")
    I("v_lshrrev_b32 v8, 4, v1")
    I("v_and_b32 v9, 15, v1")
    I("s_cmp_eq_u32 s40, 0")
    I("s_cbranch_scc1 L_c_q")
    I("s_barrier")
    I("s_branch L_c_qwait")
    a.label("L_c_q")
    I("""
    s_cmp_eq_u32 s2, 0
    s_cbranch_scc0 L_q_notag
    s_memrealtime s[56:57]
    s_waitcnt lgkmcnt(0)
    s_or_b32 s56, s56, 1
    s_or_b32 s57, s57, 0x40000000
    s_and_b32 s57, s57, 0x7fffffff
    v_mov_b32 v34, s56
    v_mov_b32 v35, s57
    v_mov_b32 v2, 0
    s_mov_b64 exec, 1
    global_store_dwordx2 v2, v[34:35], s[24:25] sc1
    s_mov_b64 exec, -1
    """)
    a.label("L_q_notag")
    I(f"""
    v_mov_b32 v2, 0
    global_load_dwordx2 v[34:35], v2, s[24:25] {"sc1" if P['tag_sc1'] else ""}
    s_mov_b32 s32, s10
    s_and_b32 s33, s11, 0xffff
    s_mov_b32 s34, 0x400000
    s_mov_b32 s35, 0x20000
    v_lshlrev_b32 v2, 4, v1
    global_load_dwordx4 v[30:33], v2, s[4:5]
    s_lshl_b32 s41, s30, 6
    v_add_u32 v3, s41, v8
    v_lshlrev_b32 v3, 13, v3
    v_lshlrev_b32 v4, 4, v9
    v_add_u32 v3, v3, v4
    s_lshl_b32 s41, s29, 8
    v_add_u32 v3, s41, v3
    """)
    for t in range(16):
        I(f"s_mov_b32 s42, {t * 32768}")
        I(f"buffer_load_dwordx4 v[{40+4*t}:{43+4*t}], v3, s[32:35], s42 offen {P['q_nt']}")
    I("s_barrier")
    I("s_waitcnt vmcnt(16)")
    unpack8(30, 10)
    layernorm8(10, 4)
    for e in range(8):
        I(f"v_cvt_pk_bf16_f32 v{18+e}, v{10+e}, v{10+e}")
    I(f"""
    v_lshrrev_b32 v4, 3, v1
    v_lshlrev_b32 v4, 8, v4
    v_and_b32 v5, 7, v1
    v_lshlrev_b32 v5, 3, v5
    v_add_u32 v4, v4, v5
    v_add_u32 v4, {M['XXT']}, v4
    """)
    for g in range(4):
        I(f"v_mov_b32 v26, v{18+g}")
        I(f"v_mov_b32 v27, v{18+g+4}")
        I(f"ds_write_b64 v4, v[26:27] offset:{g*64}")
    I(f"""
    v_and_b32 v5, 1, v9
    v_mov_b32 v6, 0xffff
    v_mov_b32 v7, s43
    v_cmp_eq_u32 vcc, 1, v5
    v_cndmask_b32 v5, v6, v7, vcc
    v_lshrrev_b32 v6, 1, v9
    """)
    for j in range(4):
        I(f"v_cmp_eq_u32 vcc, {j}, v6")
        I(f"v_cndmask_b32 v{10+j}, 0, v5, vcc")
    I(f"""
    s_lshl_b32 s41, s30, 8
    s_add_u32 s41, s41, {M['XXT']}
    v_lshlrev_b32 v4, 6, v8
    v_add_u32 v4, s41, v4
    s_waitcnt lgkmcnt(0)
    ds_read_b128 v[104:107], v4
    ds_read_b128 v[108:111], v4 offset:16
    ds_read_b128 v[112:115], v4 offset:32
    ds_read_b128 v[116:119], v4 offset:48
    s_waitcnt lgkmcnt(0)
    """)
    for t in range(16):
        bb = 18 + 4 * (t % 2)
        for j in range(4):
            I(f"v_and_b32 v{bb+j}, v{104+t}, v{10+j}")
        I(f"s_waitcnt vmcnt({15 - t})")
        c = "0" if t == 0 else "v[26:29]"
        I(f"v_mfma_f32_16x16x32_bf16 v[26:29], v[{40+4*t}:{43+4*t}], v[{bb}:{bb+3}], {c}")
    I("""
    v_readfirstlane_b32 s56, v34
    v_readfirstlane_b32 s57, v35
    s_cmp_lg_u32 s56, 0
    s_cbranch_scc1 L_q_havetag
    """)
    a.label("L_q_tagpoll")
    spin()
    I("""
    v_mov_b32 v2, 0
    global_load_dwordx2 v[34:35], v2, s[24:25] sc1
    s_waitcnt vmcnt(0)
    v_readfirstlane_b32 s56, v34
    v_readfirstlane_b32 s57, v35
    s_cmp_lg_u32 s56, 0
    s_cbranch_scc1 L_q_havetag
    s_sleep 2
    s_branch L_q_tagpoll
    """)
    a.label("L_q_havetag")
    I(f"v_mov_b32 v5, {M['CLEARED']}")
    lds_wait("L_q_clr", 5, 6, 1)
    I(f"""
    v_mov_b32_dpp v14, v28 row_ror:8 row_mask:0xf bank_mask:0xf
    v_mov_b32_dpp v16, v29 row_ror:8 row_mask:0xf bank_mask:0xf
    v_cmp_gt_u32 vcc, 8, v9
    v_mov_b32 v11, s56
    v_mov_b32 v13, s57
    v_cndmask_b32 v10, v14, v26, vcc
    v_cndmask_b32 v12, v16, v27, vcc
    v_mov_b32 v18, s56
    v_mov_b32 v19, s57
    v_mov_b32 v6, {M['NONCE']}
    ds_write_b64 v6, v[18:19]
    s_lshl_b32 s41, s3, 10
    s_add_u32 s41, s41, {WS_QX}
    v_and_b32 v4, 7, v9
    v_lshlrev_b32 v4, 1, v4
    v_lshrrev_b32 v5, 3, v9
    v_add_u32 v4, v4, v5
    v_lshlrev_b32 v5, 4, v8
    v_add_u32 v4, v4, v5
    v_lshlrev_b32 v4, 4, v4
    v_add_u32 v4, s41, v4
    global_store_dwordx4 v4, v[10:13], s[26:27] sc1
    s_mov_b64 exec, 1
    s_lshl_b32 s41, s3, 3
    s_add_u32 s41, s41, {WS_CLR}
    v_mov_b32 v4, s41
    global_store_dwordx2 v4, v[18:19], s[26:27] sc1
    s_mov_b64 exec, -1
    s_lshl_b32 s41, s29, 13
    s_add_u32 s41, s41, {WS_QX}
    v_lshlrev_b32 v4, 4, v1
    v_add_u32 v4, s41, v4
    v_add_u32 v5, 4096, v4
    """)
    stamp(5)
    a.label("L_q_poll")
    spin()
    for i in range(8):
        I(f"global_load_dwordx4 v[{40+4*i}:{43+4*i}], v{4 if i < 4 else 5}, s[26:27] offset:{1024*(i%4)} sc1")
    I("s_waitcnt vmcnt(0)")
    I("v_xor_b32 v6, s56, v41")
    I("v_xor_b32 v7, s57, v43")
    I("v_or_b32 v6, v6, v7")
    for i in range(1, 8):
        I(f"v_xor_b32 v7, s56, v{41+4*i}")
        I(f"v_or_b32 v6, v6, v7")
        I(f"v_xor_b32 v7, s57, v{43+4*i}")
        I(f"v_or_b32 v6, v6, v7")
    I("v_cmp_ne_u32 vcc, 0, v6")
    I("s_cbranch_vccz L_q_seen")
    if P['qsleep']: I(f"s_sleep {P['qsleep']}")
    I("s_branch L_q_poll")
    a.label("L_q_seen")
    stamp(6)
    for c in (0, 2):
        I(f"v_add_f32 v{40+c}, v{40+c}, v{44+c}")
        I(f"v_add_f32 v{48+c}, v{48+c}, v{52+c}")
        I(f"v_add_f32 v{56+c}, v{56+c}, v{60+c}")
        I(f"v_add_f32 v{64+c}, v{64+c}, v{68+c}")
    for c in (0, 2):
        I(f"v_add_f32 v{40+c}, v{40+c}, v{48+c}")
        I(f"v_add_f32 v{56+c}, v{56+c}, v{64+c}")
    for c in (0, 2):
        I(f"v_add_f32 v{40+c}, v{40+c}, v{56+c}")
    I(f"""
    v_cvt_pk_bf16_f32 v10, v40, v42
    v_lshrrev_b32 v11, 16, v10
    v_lshrrev_b32 v5, 1, v9
    v_and_b32 v6, 1, v1
    v_lshlrev_b32 v6, 4, v6
    v_add_u32 v5, v5, v6
    v_lshlrev_b32 v6, 5, v8
    v_add_u32 v5, v5, v6
    v_lshlrev_b32 v5, 1, v5
    v_add_u32 v5, {M['QB']}, v5
    ds_write_b16 v5, v10
    ds_write_b16 v5, v11 offset:16
    v_mov_b32 v6, {M['QREADY']}
    v_mov_b32 v7, 1
    s_waitcnt lgkmcnt(0)
    ds_write_b32 v6, v7
    """)
    flush_stamps()
    if P['dump']:
        I(f"""
        v_lshlrev_b32 v4, 2, v1
        v_add_u32 v5, {M['QB']}, v4
        ds_read_b32 v10, v5
        s_lshl_b32 s41, s3, 8
        s_add_u32 s41, s41, 0x100000
        v_add_u32 v4, s41, v4
        s_waitcnt lgkmcnt(0)
        global_store_dword v4, v10, s[26:27]
        """)
    a.label("L_c_qwait")
    I(f"v_mov_b32 v5, {M['QREADY']}")
    lds_wait("L_c_qw", 5, 6, 1)
    I(f"""
    v_lshlrev_b32 v5, 4, v8
    v_add_u32 v5, {M['QB']}, v5
    ds_read_b128 v[40:43], v5
    ds_read_b128 v[44:47], v5 offset:64
    ds_read_b128 v[48:51], v5 offset:128
    ds_read_b128 v[52:55], v5 offset:192
    """)
    I(f"""
    v_xor_b32 v2, v8, v9
    v_lshlrev_b32 v2, 4, v2
    v_lshlrev_b32 v10, 8, v9
    v_add_u32 v2, v2, v10
    v_lshrrev_b32 v10, 2, v9
    v_and_b32 v11, 3, v9
    v_lshlrev_b32 v12, 2, v8
    v_add_u32 v12, v12, v10
    v_and_b32 v13, 7, v12
    v_lshlrev_b32 v13, 1, v13
    v_lshrrev_b32 v14, 1, v11
    v_xor_b32 v13, v13, v14
    v_lshlrev_b32 v13, 4, v13
    v_and_b32 v14, 1, v11
    v_lshlrev_b32 v14, 3, v14
    v_lshlrev_b32 v3, 8, v12
    v_add_u32 v3, v3, v13
    v_add_u32 v3, v3, v14
    v_add_u32 v3, 8192, v3
    v_mov_b32 v4, 0xff800000
    v_mov_b32 v5, 0
    v_mov_b32 v6, 0
    v_mov_b32 v7, {M['FILLED']}
    s_lshl_b32 s41, s40, 2
    s_add_u32 s41, s41, {M['NEXT']}
    v_mov_b32 v38, s41
    s_mov_b32 s44, {hex(LOG2E)}
    s_mov_b32 s45, {hex(SCALE)}
    s_mov_b32 s46, s40
    s_lshl_b32 s47, s40, 14
    s_mov_b32 s48, -100
    s_mov_b32 s50, 0x7fffffff
    """)
    for r in range(56, 88): I(f"v_mov_b32 v{r}, 0")
    I("s_waitcnt lgkmcnt(0)")
    stamp(2)
    a.label("L_c_tile")
    def wait_half(lbl, k):
        I(f"s_lshl_b32 s49, s46, 1")
        I(f"s_add_u32 s49, s49, {k}")
        I(f"s_cmp_ge_i32 s48, s49")
        I(f"s_cbranch_scc1 {lbl}_ok")
        a.label(f"{lbl}_poll")
        spin()
        I("ds_read_b64 v[36:37], v7")
        I("s_waitcnt lgkmcnt(0)")
        I("v_readfirstlane_b32 s48, v36")
        I("v_readfirstlane_b32 s50, v37")
        I("s_cmp_ge_i32 s48, s49")
        I(f"s_cbranch_scc1 {lbl}_ok")
        if k == 1:
            I("s_cmp_ge_u32 s46, s50")
            I("s_cbranch_scc1 L_c_fin")
            I(f"s_sleep {P['sleep_c']}")
        I(f"s_branch {lbl}_poll")
        a.label(f"{lbl}_ok")
    wait_half("L_c_k", 1)
    I("v_add_u32 v10, s47, v2")
    for j in range(1, 4): I(f"v_xor_b32 v{10+j}, {j << 6}, v10")
    KF = 88
    for j in range(4):
        I(f"ds_read_b128 v[{KF+4*j}:{KF+4*j+3}], v{10+j}")
        I(f"ds_read_b128 v[{KF+16+4*j}:{KF+16+4*j+3}], v{10+j} offset:4096")
    for j in range(4):
        I(f"s_waitcnt lgkmcnt({6 - 2*j})")
        c0 = "0" if j == 0 else "v[18:21]"
        c1 = "0" if j == 0 else "v[22:25]"
        I(f"v_mfma_f32_16x16x32_bf16 v[18:21], v[{KF+4*j}:{KF+4*j+3}], v[{40+4*j}:{43+4*j}], {c0}")
        I(f"v_mfma_f32_16x16x32_bf16 v[22:25], v[{KF+16+4*j}:{KF+16+4*j+3}], v[{40+4*j}:{43+4*j}], {c1}")
    I("v_add_u32 v10, s47, v3")
    for nb in range(1, 8): I(f"v_xor_b32 v{10+nb}, {nb << 5}, v10")
    SS = 18
    for p in range(4): I(f"v_cvt_pk_bf16_f32 v{30+p}, v{SS+2*p}, v{SS+2*p+1}")
    for p in range(4):
        I(f"v_lshlrev_b32 v{SS+2*p}, 16, v{30+p}")
        I(f"v_and_b32 v{SS+2*p+1}, s43, v{30+p}")
    for i in range(8): I(f"v_mul_f32 v{SS+i}, s45, v{SS+i}")
    for p in range(4): I(f"v_cvt_pk_bf16_f32 v{30+p}, v{SS+2*p}, v{SS+2*p+1}")
    for p in range(4):
        I(f"v_lshlrev_b32 v{SS+2*p}, 16, v{30+p}")
        I(f"v_and_b32 v{SS+2*p+1}, s43, v{30+p}")
    I(f"""
    v_max3_f32 v34, v{SS}, v{SS+1}, v{SS+2}
    v_max3_f32 v35, v{SS+3}, v{SS+4}, v{SS+5}
    v_max3_f32 v34, v34, v{SS+6}, v{SS+7}
    v_max_f32 v34, v34, v35
    v_mov_b32 v35, v34
    v_permlane32_swap_b32 v34, v35
    v_max_f32 v34, v34, v35
    v_mov_b32 v35, v34
    v_permlane16_swap_b32 v34, v35
    v_max_f32 v34, v34, v35
    v_cmp_gt_f32 vcc, v34, v4
    s_cbranch_vccz L_c_norescale
    v_sub_f32 v35, v4, v34
    v_mul_f32 v35, s44, v35
    v_exp_f32 v35, v35
    v_mov_b32 v4, v34
    v_mul_f32 v6, s44, v34
    v_mul_f32 v5, v5, v35
    """)
    for r in range(56, 88): I(f"v_mul_f32 v{r}, v{r}, v35")
    a.label("L_c_norescale")
    for i in range(8): I(f"v_fma_f32 v{SS+i}, v{SS+i}, s44, -v6")
    for i in range(8): I(f"v_exp_f32 v{SS+i}, v{SS+i}")
    for p in range(4): I(f"v_cvt_pk_bf16_f32 v{26+p}, v{SS+2*p}, v{SS+2*p+1}")
    I(f"""
    v_add_f32 v30, v{SS}, v{SS+1}
    v_add_f32 v31, v{SS+2}, v{SS+3}
    v_add_f32 v32, v{SS+4}, v{SS+5}
    v_add_f32 v33, v{SS+6}, v{SS+7}
    v_add_f32 v30, v30, v31
    v_add_f32 v32, v32, v33
    v_add_f32 v30, v30, v32
    v_add_f32 v5, v5, v30
    """)
    wait_half("L_c_v", 2)
    def vread(nb):
        I(f"ds_read_b64_tr_b16 v[{KF+4*nb}:{KF+4*nb+1}], v{10+nb}")
        I(f"ds_read_b64_tr_b16 v[{KF+4*nb+2}:{KF+4*nb+3}], v{10+nb} offset:4096")
    def pv(nb):
        I(f"v_mfma_f32_16x16x32_bf16 v[{56+4*nb}:{59+4*nb}], v[26:29], v[{KF+4*nb}:{KF+4*nb+3}], v[{56+4*nb}:{59+4*nb}]")
    for nb in range(7): vread(nb)
    I("s_waitcnt lgkmcnt(6)")
    for nb in range(4): pv(nb)
    vread(7)
    I("s_waitcnt lgkmcnt(2)")
    for nb in range(4, 7): pv(nb)
    I("s_add_u32 s46, s46, 4")
    I("v_mov_b32 v30, s46")
    I("s_waitcnt lgkmcnt(0)")
    I("ds_write_b32 v38, v30")
    pv(7)
    I(f"""
    s_add_u32 s47, s47, {4*16384}
    s_cmp_ge_u32 s47, {R*16384}
    s_cselect_b32 s49, {R*16384}, 0
    s_sub_u32 s47, s47, s49
    s_cmp_ge_u32 s46, s50
    s_cbranch_scc0 L_c_tile
    """)
    a.label("L_c_fin")
    stamp(3)
    I(f"""
    v_mov_b32 v30, v5
    v_mov_b32 v4, v6
    v_permlane32_swap_b32 v5, v30
    s_lshl_b32 s41, s40, 9
    s_add_u32 s41, s41, {M['FINO']}
    v_add_f32 v5, v5, v30
    v_and_b32 v9, 15, v1
    v_lshlrev_b32 v10, 2, v9
    v_mov_b32 v30, v5
    v_add_u32 v10, s41, v10
    s_lshl_b32 s41, s40, 3
    v_permlane16_swap_b32 v5, v30
    s_add_u32 s41, s41, {M['FINML']}
    v_mov_b32 v11, s41
    v_add_f32 v5, v5, v30
    """)
    for nb in range(8): I(f"ds_write_b32 v10, v{56+4*nb} offset:{64*nb}")
    I(f"""
    ds_write_b64 v11, v[4:5]
    v_mov_b32 v11, {M['FINCNT']}
    v_mov_b32 v30, 1
    v_lshlrev_b32 v10, 3, v1
    v_add_u32 v10, {M['FINO']}, v10
    v_mov_b32 v31, {M['FINML']}
    s_mov_b64 exec, 1
    ds_add_rtn_u32 v32, v11, v30
    s_mov_b64 exec, -1
    ds_read_b128 v[20:23], v31
    ds_read_b128 v[24:27], v31 offset:16
    ds_read_b64 v[12:13], v10
    ds_read_b64 v[14:15], v10 offset:512
    ds_read_b64 v[16:17], v10 offset:1024
    ds_read_b64 v[18:19], v10 offset:1536
    v_mov_b32 v11, {M['TAILGO']}
    s_mul_i32 s41, s3, {PREC}
    v_lshlrev_b32 v10, 3, v1
    v_add_u32 v10, s41, v10
    s_waitcnt lgkmcnt(0)
    v_readfirstlane_b32 s41, v32
    s_cmp_eq_u32 s41, 3
    s_cbranch_scc0 L_end
    ds_write_b32 v11, v30
    v_max3_f32 v28, v20, v22, v24
    v_max_f32 v28, v28, v26
    v_sub_f32 v20, v20, v28
    v_sub_f32 v22, v22, v28
    v_sub_f32 v24, v24, v28
    v_sub_f32 v26, v26, v28
    v_exp_f32 v20, v20
    v_exp_f32 v22, v22
    v_exp_f32 v24, v24
    v_exp_f32 v26, v26
    v_pk_mul_f32 v[12:13], v[12:13], v[20:21] op_sel_hi:[1,0]
    v_mul_f32 v29, v21, v20
    v_pk_fma_f32 v[12:13], v[14:15], v[22:23], v[12:13] op_sel_hi:[1,0,1]
    v_fmac_f32 v29, v23, v22
    v_pk_fma_f32 v[12:13], v[16:17], v[24:25], v[12:13] op_sel_hi:[1,0,1]
    v_fmac_f32 v29, v25, v24
    v_pk_fma_f32 v[12:13], v[18:19], v[26:27], v[12:13] op_sel_hi:[1,0,1]
    v_fmac_f32 v29, v27, v26
    global_store_dwordx2 v10, v[12:13], s[26:27] sc1
    s_mov_b64 exec, 0xffff
    global_store_dwordx2 v10, v[28:29], s[26:27] offset:512 sc1
    s_mov_b64 exec, -1
    """)
    stamp(4)
    flush_stamps()
    I("s_endpgm")

    a.label("L_tail")
    I("s_sub_u32 s40, s28, 5")
    I("s_mov_b32 s43, 0xffff0000")
    I(f"""
    s_mov_b32 s54, 0
    s_mov_b32 s44, 0
    s_cmp_eq_u32 s31, 4
    s_cbranch_scc0 L_t_r0
    s_cmp_lt_u32 s29, 16
    s_cbranch_scc0 L_t_rdone
    s_mov_b32 s54, 3
    s_mov_b32 s44, s29
    s_branch L_t_rdone
    """)
    a.label("L_t_r0")
    I(f"""
    s_cmp_lt_u32 s29, 11
    s_cbranch_scc0 L_t_r1
    s_cmp_lt_u32 s31, 3
    s_cbranch_scc0 L_t_rdone
    s_mov_b32 s54, 1
    s_mov_b32 s44, s29
    s_cmp_eq_u32 s31, 0
    s_cbranch_scc1 L_t_rdone
    s_mov_b32 s54, 2
    s_lshl_b32 s44, s29, 1
    s_add_u32 s44, s44, s31
    s_sub_u32 s44, s44, 1
    s_branch L_t_rdone
    """)
    a.label("L_t_r1")
    I(f"""
    s_cmp_lt_u32 s29, 22
    s_cbranch_scc0 L_t_r2
    s_cmp_lt_u32 s31, 4
    s_cbranch_scc0 L_t_rdone
    s_mov_b32 s54, 2
    s_add_u32 s44, s29, 11
    s_cmp_eq_u32 s31, 3
    s_cbranch_scc1 L_t_rdone
    s_mov_b32 s54, 1
    s_mul_i32 s44, s29, 3
    s_add_u32 s44, s44, s31
    s_sub_u32 s44, s44, 22
    s_branch L_t_rdone
    """)
    a.label("L_t_r2")
    I(f"""
    s_cmp_lt_u32 s31, 3
    s_cbranch_scc0 L_t_rdone
    s_mov_b32 s54, 2
    s_add_u32 s44, s29, 11
    s_cmp_eq_u32 s31, 2
    s_cbranch_scc1 L_t_rdone
    s_mov_b32 s54, 1
    s_lshl_b32 s44, s29, 1
    s_add_u32 s44, s44, s31
    """)
    a.label("L_t_rdone")
    I("s_barrier")
    I(f"""
    v_lshrrev_b32 v8, 4, v1
    v_and_b32 v9, 15, v1
    s_cmp_eq_u32 s40, 0
    s_cbranch_scc0 L_t_noclear
    """)
    I(f"""
    v_mov_b32 v10, -1
    v_mov_b32 v11, -1
    v_mov_b32 v12, -1
    v_mov_b32 v13, -1
    s_mul_i32 s41, s3, {PREC}
    v_lshlrev_b32 v4, 3, v1
    v_add_u32 v4, s41, v4
    global_store_dwordx2 v4, v[10:11], s[26:27] sc1
    s_mov_b64 exec, 0xffff
    global_store_dwordx2 v4, v[10:11], s[26:27] offset:512 sc1
    s_mov_b64 exec, -1
    s_cmp_eq_u32 s30, 0
    s_cbranch_scc0 L_t_clr_tk
    s_lshl_b32 s41, s29, 8
    s_add_u32 s41, s41, {WS_TK}
    v_mov_b32 v4, s41
    v_mov_b32 v5, 0
    global_store_dword v4, v5, s[26:27] sc1
    """)
    a.label("L_t_clr_tk")
    I(f"""
    s_cmp_eq_u32 s54, 1
    s_cbranch_scc0 L_t_clr_f
    s_lshl_b32 s41, s44, 8
    s_add_u32 s41, s41, {WS_Y}
    v_lshlrev_b32 v4, 2, v1
    v_add_u32 v4, s41, v4
    global_store_dword v4, v10, s[26:27] sc1
    s_branch L_t_clr_done
    """)
    a.label("L_t_clr_f")
    I(f"""
    s_cmp_eq_u32 s54, 2
    s_cbranch_scc0 L_t_clr_done
    s_lshl_b32 s41, s44, 11
    s_add_u32 s41, s41, {WS_P}
    v_lshlrev_b32 v4, 4, v1
    v_add_u32 v4, s41, v4
    global_store_dwordx4 v4, v[10:13], s[26:27] sc1
    global_store_dwordx4 v4, v[10:13], s[26:27] offset:1024 sc1
    """)
    a.label("L_t_clr_done")
    I(f"""
    s_waitcnt vmcnt(0)
    v_mov_b32 v4, {M['CLEARED']}
    v_mov_b32 v5, 1
    ds_write_b32 v4, v5
    """)
    a.label("L_t_noclear")
    I(f"""
    s_cmp_eq_u32 s54, 0
    s_cbranch_scc1 L_end
    s_cmp_eq_u32 s54, 3
    s_cbranch_scc0 L_t_wf
    s_cmp_eq_u32 s40, 0
    s_cbranch_scc1 L_t_o
    s_endpgm
    """)
    a.label("L_t_wf")
    I(f"v_mov_b32 v4, {M['QREADY']}")
    lds_wait("L_t_qw", 4, 5, 8)
    I("s_cmp_eq_u32 s54, 2")
    I("s_cbranch_scc1 L_t_f")

    STG = M['STAGE']
    SNT = P['stage_nt']
    def stage_setup():
        I(f"s_lshl_b32 s41, s40, 12")
        I(f"s_add_u32 s41, s41, {STG}")
    def dma(addr, u, step_bytes):
        if P['skip_stage']: return
        I(f"s_add_u32 m0, s41, {u*1024}")
        I(f"s_nop 0")
        I(f"global_load_lds_dwordx4 v[{addr}:{addr+1}], off {SNT}")
        if step_bytes:
            I(f"v_add_co_u32 v{addr}, vcc, {step_bytes}, v{addr}")
            I(f"v_addc_co_u32 v{addr+1}, vcc, 0, v{addr+1}, vcc")
    def tr_reads(trbase, offs, dst):
        I("s_waitcnt vmcnt(0)")
        d = dst
        for off in offs:
            I(f"ds_read_b64_tr_b16 v[{d}:{d+1}], v{trbase} offset:{off[0]}")
            I(f"ds_read_b64_tr_b16 v[{d+2}:{d+3}], v{trbase} offset:{off[1]}")
            d += 4
        I("s_waitcnt lgkmcnt(0)")
    def tr_addr(reg, rowstride):
        I(f"v_lshrrev_b32 v10, 2, v9")
        I(f"v_lshlrev_b32 v11, 3, v8")
        I(f"v_add_u32 v10, v10, v11")
        I(f"v_mul_u32_u24 v10, {rowstride}, v10")
        I(f"v_and_b32 v11, 3, v9")
        I(f"v_lshlrev_b32 v11, 3, v11")
        I(f"v_add_u32 v10, v10, v11")
        I(f"v_add_u32 v{reg}, s41, v10")
    def wait_flags_and_go(lbl):
        I(f"""
        v_mov_b32 v4, {M['NONCE']}
        ds_read_b64 v[16:17], v4
        v_lshlrev_b32 v4, 4, v1
        v_add_u32 v4, {WS_CLR}, v4
        s_waitcnt lgkmcnt(0)
        """)
        a.label(f"{lbl}_clr")
        spin()
        I(f"""
        global_load_dwordx4 v[20:23], v4, s[26:27] sc1
        global_load_dwordx4 v[24:27], v4, s[26:27] offset:1024 sc1
        s_waitcnt vmcnt(0)
        """)
        I("v_xor_b32 v5, v16, v20")
        for r in (22, 24, 26):
            I(f"v_xor_b32 v18, v16, v{r}")
            I("v_or_b32 v5, v5, v18")
        for r in (21, 23, 25, 27):
            I(f"v_xor_b32 v18, v17, v{r}")
            I("v_or_b32 v5, v5, v18")
        I(f"""
        v_cmp_ne_u32 vcc, 0, v5
        s_cbranch_vccz {lbl}_go0
        s_sleep 32
        s_branch {lbl}_clr
        """)
        a.label(f"{lbl}_go0")
        I(f"v_mov_b32 v4, {M['TAILGO']}")
        lds_wait(f"{lbl}_go", 4, 5, P['sleep_t'])
    def any_reset(regs, tmp):
        rs = list(regs)
        I(f"v_max3_u32 v{tmp}, v{rs[0]}, v{rs[1]}, v{rs[2]}")
        rs = rs[3:]
        while len(rs) >= 2:
            I(f"v_max3_u32 v{tmp}, v{tmp}, v{rs[0]}, v{rs[1]}"); rs = rs[2:]
        if rs: I(f"v_max_u32 v{tmp}, v{tmp}, v{rs[0]}")
        I(f"v_cmp_eq_u32 vcc, -1, v{tmp}")
    def poll2(lbl, issue, nloads, regsA, regsB, tmp, first, key):
        if key not in P['dbl']:
            a.label(f"{lbl}")
            spin()
            issue(regsA[0])
            I("s_waitcnt vmcnt(0)")
            any_reset(regsA, tmp)
            if key == 'W' and P['wsleep']:
                I(f"s_cbranch_vccz {lbl}_ok")
                I(f"s_sleep {P['wsleep']}")
                I(f"s_branch {lbl}")
                a.label(f"{lbl}_ok")
            else:
                I(f"s_cbranch_vccnz {lbl}")
            first(regsA[0])
            return
        issue(regsA[0])
        if P['stag']: I(f"s_sleep {P['stag']}")
        a.label(f"{lbl}")
        spin()
        issue(regsB[0])
        I(f"s_waitcnt vmcnt({nloads})")
        any_reset(regsA, tmp)
        I(f"s_cbranch_vccz {lbl}_a")
        issue(regsA[0])
        I(f"s_waitcnt vmcnt({nloads})")
        any_reset(regsB, tmp)
        I(f"s_cbranch_vccnz {lbl}")
        first(regsB[0])
        I(f"s_branch {lbl}_join")
        a.label(f"{lbl}_a")
        first(regsA[0])
        a.label(f"{lbl}_join")
    def gemv_kslice(abase, wb, acc, tmp):
        for ks in range(4):
            I(f"ds_read_b128 v[{tmp+4*ks}:{tmp+4*ks+3}], v{abase} offset:{ks*64}")
        for ks in range(4):
            I(f"s_waitcnt lgkmcnt({3-ks})")
            for nb in range(4):
                c = "0" if ks == 0 else f"v[{acc+4*nb}:{acc+4*nb+3}]"
                I(f"v_mfma_f32_16x16x32_bf16 v[{acc+4*nb}:{acc+4*nb+3}], v[{tmp+4*ks}:{tmp+4*ks+3}], v[{wb+16*ks+4*nb}:{wb+16*ks+4*nb+3}], {c}")
    def part_to_lds(acc, waddr, raddr):
        for nb in range(4): I(f"ds_write_b32 v{waddr}, v{acc+4*nb} offset:{64*nb}")
        I(f"""
        s_waitcnt lgkmcnt(0)
        s_barrier
        ds_read_b32 v12, v{raddr}
        ds_read_b32 v13, v{raddr} offset:256
        ds_read_b32 v14, v{raddr} offset:512
        ds_read_b32 v15, v{raddr} offset:768
        s_waitcnt lgkmcnt(0)
        v_add_f32 v12, v12, v13
        v_add_f32 v14, v14, v15
        v_add_f32 v12, v12, v14
        """)
    def yp_addrs(waddr, raddr):
        I(f"""
        s_lshl_b32 s47, s40, 8
        s_add_u32 s47, s47, {M['YP']}
        v_lshlrev_b32 v{waddr}, 2, v9
        v_add_u32 v{waddr}, s47, v{waddr}
        v_lshlrev_b32 v{raddr}, 2, v1
        v_add_u32 v{raddr}, {M['YP']}, v{raddr}
        """)

    WB = 64
    a.label("L_t_w")
    stage_setup()
    tr_addr(14, 128)
    I(f"""
    s_lshr_b32 s45, s44, 3
    s_and_b32 s46, s44, 7
    s_lshl_b32 s47, s45, 19
    s_lshl_b32 s48, s40, 17
    s_add_u32 s47, s47, s48
    s_lshl_b32 s48, s46, 7
    s_add_u32 s47, s47, s48
    v_lshrrev_b32 v10, 3, v1
    v_lshlrev_b32 v10, 10, v10
    v_and_b32 v11, 7, v1
    v_lshlrev_b32 v11, 4, v11
    v_add_u32 v10, v10, v11
    v_add_u32 v10, s47, v10
    v_mov_b32 v13, s13
    v_add_co_u32 v12, vcc, s12, v10
    v_addc_co_u32 v13, vcc, 0, v13, vcc
    """)
    for ks in range(4):
        for u in range(4): dma(12, u, 8 * 1024)
        tr_reads(14, [(nb * 32, 4 * 128 + nb * 32) for nb in range(4)], WB + 16 * ks)
    stamp(8)
    I(f"""
    s_lshl_b32 s47, s45, 2
    s_add_u32 s47, s47, s40
    s_mul_i32 s48, s47, {8 * PREC}
    """)
    wait_flags_and_go("L_w")
    I(f"""
    v_lshrrev_b32 v15, 5, v1
    v_mul_u32_u24 v15, {PREC}, v15
    v_add_u32 v15, s48, v15
    v_and_b32 v10, 31, v1
    v_lshlrev_b32 v14, 4, v10
    v_add_u32 v14, v15, v14
    v_add_u32 v15, 512, v15
    v_lshlrev_b32 v10, 3, v10
    s_lshl_b32 s47, s40, 8
    s_add_u32 s47, s47, {M['OALL']}
    v_add_u32 v7, s47, v10
    v_lshlrev_b32 v10, 4, v8
    v_add_u32 v10, s47, v10
    s_lshl_b32 s47, s44, 8
    s_add_u32 s47, s47, {WS_Y}
    v_lshlrev_b32 v6, 2, v1
    v_add_u32 v6, s47, v6
    """)
    yp_addrs(11, 5)
    stamp(9)
    def w_issue(b):
        for i in range(4): I(f"global_load_dwordx4 v[{b+4*i}:{b+4*i+3}], v14, s[26:27] offset:{2*PREC*i} sc1")
        for i in range(4): I(f"global_load_dwordx2 v[{b+16+2*i}:{b+17+2*i}], v15, s[26:27] offset:{2*PREC*i} sc1")
    def w_first(b):
        m = b + 16
        I(f"""
        v_max3_f32 v2, v{m}, v{m+2}, v{m+4}
        v_max_f32 v2, v2, v{m+6}
        v_mov_b32 v3, v2
        v_permlane32_swap_b32 v2, v3
        v_max_f32 v2, v2, v3
        v_sub_f32 v{m}, v{m}, v2
        v_sub_f32 v{m+2}, v{m+2}, v2
        v_sub_f32 v{m+4}, v{m+4}, v2
        v_sub_f32 v{m+6}, v{m+6}, v2
        v_exp_f32 v{m}, v{m}
        v_exp_f32 v{m+2}, v{m+2}
        v_exp_f32 v{m+4}, v{m+4}
        v_exp_f32 v{m+6}, v{m+6}
        v_pk_mul_f32 v[12:13], v[{b}:{b+1}], v[{m}:{m+1}] op_sel_hi:[1,0]
        v_pk_mul_f32 v[2:3], v[{b+2}:{b+3}], v[{m}:{m+1}] op_sel_hi:[1,0]
        v_mul_f32 v4, v{m}, v{m+1}
        """)
        for i in range(1, 4):
            I(f"v_pk_fma_f32 v[12:13], v[{b+4*i}:{b+4*i+1}], v[{m+2*i}:{m+2*i+1}], v[12:13] op_sel_hi:[1,0,1]")
            I(f"v_pk_fma_f32 v[2:3], v[{b+4*i+2}:{b+4*i+3}], v[{m+2*i}:{m+2*i+1}], v[2:3] op_sel_hi:[1,0,1]")
            I(f"v_fmac_f32 v4, v{m+2*i}, v{m+2*i+1}")
    poll2("L_w_poll", w_issue, 8, list(range(16, 40)), list(range(40, 64)), 13, w_first, 'W')
    stamp(10)
    I("""
    v_mov_b32 v128, v12
    v_mov_b32 v129, v13
    v_mov_b32 v130, v2
    v_mov_b32 v131, v3
    v_mov_b32 v132, v4
    v_permlane32_swap_b32 v12, v128
    v_permlane32_swap_b32 v13, v129
    v_permlane32_swap_b32 v2, v130
    v_permlane32_swap_b32 v3, v131
    v_permlane32_swap_b32 v4, v132
    v_add_f32 v4, v4, v132
    v_pk_add_f32 v[12:13], v[12:13], v[128:129]
    v_rcp_f32 v132, v4
    v_pk_add_f32 v[2:3], v[2:3], v[130:131]
    v_pk_mul_f32 v[12:13], v[12:13], v[132:133] op_sel_hi:[1,0]
    v_pk_mul_f32 v[2:3], v[2:3], v[132:133] op_sel_hi:[1,0]
    v_cvt_pk_bf16_f32 v12, v12, v13
    v_cvt_pk_bf16_f32 v13, v2, v3
    ds_write_b64 v7, v[12:13]
    s_waitcnt lgkmcnt(0)
    """)
    gemv_kslice(10, WB, 144, 128)
    part_to_lds(144, 11, 5)
    I(f"""
    s_cmp_eq_u32 s40, 0
    s_cbranch_scc0 L_end
    global_store_dword v6, v12, s[26:27] sc1
    """)
    stamp(11)
    flush_stamps()
    I("s_endpgm")

    a.label("L_t_f")
    stage_setup()
    tr_addr(14, 64)
    I(f"""
    s_lshl_b32 s46, s44, 6
    s_mul_i32 s47, s40, {128 * 2752}
    s_add_u32 s46, s46, s47
    v_lshrrev_b32 v10, 2, v1
    v_mul_u32_u24 v10, 2752, v10
    v_and_b32 v11, 3, v1
    v_lshlrev_b32 v11, 4, v11
    v_add_u32 v10, v10, v11
    v_add_u32 v10, s46, v10
    v_mov_b32 v13, s17
    v_add_co_u32 v12, vcc, s16, v10
    v_addc_co_u32 v13, vcc, 0, v13, vcc
    v_mov_b32 v17, s19
    v_add_co_u32 v16, vcc, s18, v10
    v_addc_co_u32 v17, vcc, 0, v17, vcc
    """)
    for ks in range(4):
        dma(12, 0, 16 * 2752); dma(12, 1, 16 * 2752)
        dma(16, 2, 16 * 2752); dma(16, 3, 16 * 2752)
        tr_reads(14, [(0, 256), (32, 256 + 32), (2048, 2048 + 256), (2048 + 32, 2048 + 256 + 32)], WB + 16 * ks)
    tr_addr(14, 128)
    DB = WB + 64
    for rr in range(2):
        I(f"""
        s_lshl_b32 s46, s44, 15
        s_lshl_b32 s47, s40, 8
        s_add_u32 s46, s46, s47
        s_add_u32 s46, s46, {128*rr}
        v_lshrrev_b32 v10, 3, v1
        v_lshlrev_b32 v10, 10, v10
        v_and_b32 v11, 7, v1
        v_lshlrev_b32 v11, 4, v11
        v_add_u32 v10, v10, v11
        v_add_u32 v10, s46, v10
        v_mov_b32 v13, s21
        v_add_co_u32 v12, vcc, s20, v10
        v_addc_co_u32 v13, vcc, 0, v13, vcc
        """)
        for u in range(4): dma(12, u, 8 * 1024)
        tr_reads(14, [(nb * 32, 4 * 128 + nb * 32) for nb in range(4)], DB + 16 * rr)
    I(f"""
    v_and_b32 v10, 31, v1
    v_lshlrev_b32 v11, 3, v10
    s_lshl_b32 s46, s40, 8
    v_add_u32 v11, s46, v11
    global_load_dwordx2 v[6:7], v11, s[4:5]
    s_waitcnt vmcnt(0)
    """)
    stamp(12)
    wait_flags_and_go("L_f")
    I(f"""
    v_lshlrev_b32 v48, 16, v6
    v_and_b32 v49, s43, v6
    v_lshlrev_b32 v50, 16, v7
    v_and_b32 v51, s43, v7
    v_and_b32 v10, 31, v1
    v_lshlrev_b32 v14, 4, v10
    v_lshrrev_b32 v11, 5, v1
    v_lshlrev_b32 v11, 11, v11
    v_add_u32 v14, v14, v11
    s_lshl_b32 s46, s40, 9
    s_add_u32 s46, s46, {WS_Y}
    v_add_u32 v14, s46, v14
    v_add_u32 v15, 4096, v14
    v_add_u32 v2, 8192, v14
    v_add_u32 v3, 12288, v14
    s_lshl_b32 s47, s40, 3
    s_add_u32 s47, s47, {M['OALL']}
    v_mov_b32 v52, s47
    v_mov_b32 v53, {M['OALL']}
    s_lshl_b32 s47, s40, 8
    s_add_u32 s47, s47, {M['XN2']}
    v_lshlrev_b32 v54, 3, v10
    v_add_u32 v54, s47, v54
    v_lshlrev_b32 v55, 4, v8
    v_add_u32 v55, s47, v55
    s_lshl_b32 s47, s40, 6
    s_add_u32 s47, s47, {M['HH']}
    v_lshlrev_b32 v58, 1, v10
    v_add_u32 v58, s47, v58
    v_lshlrev_b32 v59, 4, v8
    v_add_u32 v59, s47, v59
    s_lshl_b32 s47, s44, 11
    s_lshl_b32 s46, s40, 9
    s_add_u32 s47, s47, s46
    s_add_u32 s47, s47, {WS_P}
    v_lshlrev_b32 v60, 2, v1
    v_add_u32 v60, s47, v60
    s_mov_b32 s60, 0xffff0000
    s_mov_b32 s61, 0xffff0000
    s_mov_b32 s62, 0
    s_mov_b32 s63, -1
    """)
    yp_addrs(56, 57)
    stamp(13)
    def f_issue(b):
        for i, ad in enumerate((14, 15, 2, 3)):
            I(f"global_load_dwordx4 v[{b+4*i}:{b+4*i+3}], v{ad}, s[26:27] sc1")
    def f_first(b):
        I(f"""
        v_pk_add_f32 v[4:5], v[{b}:{b+1}], v[{b+4}:{b+5}]
        v_pk_add_f32 v[6:7], v[{b+2}:{b+3}], v[{b+6}:{b+7}]
        v_pk_add_f32 v[10:11], v[{b+8}:{b+9}], v[{b+12}:{b+13}]
        v_pk_add_f32 v[12:13], v[{b+10}:{b+11}], v[{b+14}:{b+15}]
        v_pk_add_f32 v[4:5], v[4:5], v[10:11]
        v_pk_add_f32 v[6:7], v[6:7], v[12:13]
        """)
    poll2("L_f_poll", f_issue, 4, list(range(16, 32)), list(range(32, 48)), 61, f_first, 'F')
    stamp(14)
    I(f"""
    v_mov_b32 v160, v4
    v_mov_b32 v161, v5
    v_mov_b32 v162, v6
    v_mov_b32 v163, v7
    v_permlane32_swap_b32 v4, v160
    v_permlane32_swap_b32 v5, v161
    v_permlane32_swap_b32 v6, v162
    v_permlane32_swap_b32 v7, v163
    v_pk_add_f32 v[4:5], v[4:5], v[160:161]
    v_pk_add_f32 v[6:7], v[6:7], v[162:163]
    v_cvt_pk_bf16_f32 v160, v4, v5
    v_cvt_pk_bf16_f32 v161, v6, v7
    v_lshlrev_b32 v4, 16, v160
    v_and_b32 v5, s43, v160
    v_lshlrev_b32 v6, 16, v161
    v_and_b32 v7, s43, v161
    v_pk_add_f32 v[4:5], v[4:5], v[48:49]
    v_pk_add_f32 v[6:7], v[6:7], v[50:51]
    v_cvt_pk_bf16_f32 v160, v4, v5
    v_cvt_pk_bf16_f32 v161, v6, v7
    v_lshlrev_b32 v4, 16, v160
    v_and_b32 v5, s43, v160
    v_lshlrev_b32 v6, 16, v161
    v_and_b32 v7, s43, v161
    v_add_f32 v8, v4, v5
    v_mul_f32 v9, v4, v4
    v_add_f32 v10, v6, v7
    v_fmac_f32 v9, v5, v5
    v_add_f32 v8, v8, v10
    v_fmac_f32 v9, v6, v6
    v_fmac_f32 v9, v7, v7
    """)
    for r in (8, 4, 2, 1):
        I(f"v_add_f32_dpp v8, v8, v8 row_ror:{r} row_mask:0xf bank_mask:0xf")
        I(f"v_add_f32_dpp v9, v9, v9 row_ror:{r} row_mask:0xf bank_mask:0xf")
    I(f"""
    v_mov_b32 v10, v8
    v_mov_b32 v11, v9
    s_nop 0
    v_permlane16_swap_b32 v8, v10
    v_permlane16_swap_b32 v9, v11
    v_add_f32 v8, v8, v10
    v_add_f32 v9, v9, v11
    ds_write_b64 v52, v[8:9]
    s_waitcnt lgkmcnt(0)
    s_barrier
    ds_read_b128 v[8:11], v53
    ds_read_b128 v[12:15], v53 offset:16
    s_waitcnt lgkmcnt(0)
    v_pk_add_f32 v[8:9], v[8:9], v[10:11]
    v_pk_add_f32 v[12:13], v[12:13], v[14:15]
    v_pk_add_f32 v[8:9], v[8:9], v[12:13]
    v_mul_f32 v8, 0x3b000000, v8
    v_mul_f32 v9, 0x3b000000, v9
    v_cvt_pk_bf16_f32 v10, v8, v8
    v_fma_f32 v9, -v8, v8, v9
    v_and_b32 v10, s43, v10
    v_max_f32 v9, 0, v9
    v_cvt_pk_bf16_f32 v9, v9, v9
    v_sub_f32 v4, v4, v10
    v_and_b32 v9, s43, v9
    v_sub_f32 v5, v5, v10
    v_add_f32 v9, {hex(EPS)}, v9
    v_sub_f32 v6, v6, v10
    v_cvt_pk_bf16_f32 v9, v9, v9
    v_sub_f32 v7, v7, v10
    v_and_b32 v9, s43, v9
    v_cvt_pk_bf16_f32 v160, v4, v5
    v_sqrt_f32 v9, v9
    v_cvt_pk_bf16_f32 v161, v6, v7
    v_lshlrev_b32 v4, 16, v160
    v_cvt_pk_bf16_f32 v9, v9, v9
    v_and_b32 v5, s43, v160
    v_and_b32 v12, s43, v9
    v_lshlrev_b32 v6, 16, v161
    v_rcp_f32 v12, v12
    v_and_b32 v7, s43, v161
    v_pk_mul_f32 v[4:5], v[4:5], v[12:13] op_sel_hi:[1,0]
    v_pk_mul_f32 v[6:7], v[6:7], v[12:13] op_sel_hi:[1,0]
    v_cvt_pk_bf16_f32 v160, v4, v5
    v_cvt_pk_bf16_f32 v161, v6, v7
    ds_write_b64 v54, v[160:161]
    s_waitcnt vmcnt(0) lgkmcnt(0)
    """)
    gemv_kslice(55, WB, 32, 16)
    part_to_lds(32, 56, 57)
    I(f"""
    v_cvt_pk_bf16_f32 v12, v12, v12
    v_and_b32 v12, s43, v12
    v_mov_b32 v13, v12
    v_permlane32_swap_b32 v12, v13
    v_mul_f32 v12, v12, v13
    v_cvt_pk_bf16_f32 v12, v12, v12
    ds_write_b16 v58, v12
    s_waitcnt lgkmcnt(0)
    ds_read_b128 v[16:19], v59
    s_waitcnt lgkmcnt(0)
    """)
    for nb in range(8):
        I(f"v_mfma_f32_16x16x32_bf16 v[{20+4*nb}:{23+4*nb}], v[16:19], v[{DB+4*nb}:{DB+4*nb+3}], 0")
    for j in range(2):
        b = 20 + 16 * j
        I(f"v_cndmask_b32 v{12+2*j}, v{b}, v{b+4}, s[60:61]")
        I(f"v_cndmask_b32 v{13+2*j}, v{b+8}, v{b+12}, s[60:61]")
        I(f"v_cndmask_b32 v{12+2*j}, v{12+2*j}, v{13+2*j}, s[62:63]")
        I(f"global_store_dword v60, v{12+2*j}, s[26:27] offset:{256*j} sc1")
    stamp(15)
    flush_stamps()
    I("s_endpgm")

    def resid(xr, out):
        I(f"""
        v_cvt_pk_bf16_f32 v16, v16, v17
        v_cvt_pk_bf16_f32 v17, v18, v19
        v_lshlrev_b32 v20, 16, v16
        v_and_b32 v21, s43, v16
        v_lshlrev_b32 v22, 16, v17
        v_and_b32 v23, s43, v17
        v_lshlrev_b32 v24, 16, v{xr}
        v_and_b32 v25, s43, v{xr}
        v_lshlrev_b32 v26, 16, v{xr+1}
        v_and_b32 v27, s43, v{xr+1}
        v_pk_add_f32 v[20:21], v[20:21], v[24:25]
        v_pk_add_f32 v[22:23], v[22:23], v[26:27]
        v_cvt_pk_bf16_f32 v{out}, v20, v21
        v_cvt_pk_bf16_f32 v{out+1}, v22, v23
        """)
    a.label("L_t_o")
    I(f"""
    v_and_b32 v10, 7, v1
    v_lshlrev_b32 v11, 3, v10
    s_lshl_b32 s46, s44, 6
    v_add_u32 v11, s46, v11
    global_load_dwordx2 v[6:7], v11, s[4:5]
    v_mov_b32 v3, v11
    v_lshlrev_b32 v14, 4, v10
    v_lshrrev_b32 v12, 3, v1
    v_lshlrev_b32 v12, 11, v12
    v_add_u32 v14, v14, v12
    s_lshl_b32 s46, s44, 7
    v_add_u32 v14, s46, v14
    v_add_u32 v15, {WS_Y}, v14
    s_add_u32 s32, s26, {WS_P}
    s_addc_u32 s33, s27, 0
    s_and_b32 s33, s33, 0xffff
    s_mov_b32 s34, {NF * 2048}
    s_mov_b32 s35, 0x20000
    v_mov_b32 v4, {M['QREADY']}
    s_waitcnt vmcnt(0)
    """)
    lds_wait("L_o_qw", 4, 5, 8)
    wait_flags_and_go("L_o")
    stamp(16)
    def red_r8(base, tmp):
        for c in range(4): I(f"v_add_f32_dpp v{base+c}, v{base+c}, v{base+c} row_ror:8 row_mask:0xf bank_mask:0xf")
        for c in range(4): I(f"v_mov_b32 v{tmp+c}, v{base+c}")
        for c in range(4): I(f"v_permlane16_swap_b32 v{base+c}, v{tmp+c}")
        for c in range(4): I(f"v_add_f32 v{base+c}, v{base+c}, v{tmp+c}")
        for c in range(4): I(f"v_mov_b32 v{tmp+c}, v{base+c}")
        for c in range(4): I(f"v_permlane32_swap_b32 v{base+c}, v{tmp+c}")
        for c in range(4): I(f"v_add_f32 v{base+c}, v{base+c}, v{tmp+c}")
    I("v_mov_b32 v70, v3")
    def oy_issue(b): I(f"global_load_dwordx4 v[{b}:{b+3}], v15, s[26:27] sc1")
    def oy_first(b):
        for c in range(4): I(f"v_mov_b32 v{72+c}, v{b+c}")
    poll2("L_o_polly", oy_issue, 1, list(range(16, 20)), list(range(24, 28)), 28, oy_first, 'y')
    red_r8(72, 76)
    I(f"""
    v_cvt_pk_bf16_f32 v72, v72, v73
    v_cvt_pk_bf16_f32 v73, v74, v75
    v_lshlrev_b32 v76, 16, v72
    v_and_b32 v77, s43, v72
    v_lshlrev_b32 v78, 16, v73
    v_and_b32 v79, s43, v73
    v_lshlrev_b32 v80, 16, v6
    v_and_b32 v81, s43, v6
    v_lshlrev_b32 v82, 16, v7
    v_and_b32 v83, s43, v7
    v_pk_add_f32 v[76:77], v[76:77], v[80:81]
    v_pk_add_f32 v[78:79], v[78:79], v[82:83]
    v_cvt_pk_bf16_f32 v72, v76, v77
    v_cvt_pk_bf16_f32 v73, v78, v79
    v_lshlrev_b32 v66, 16, v72
    v_and_b32 v67, s43, v72
    v_lshlrev_b32 v68, 16, v73
    v_and_b32 v69, s43, v73
    s_waitcnt vmcnt(0)
    """)
    stamp(17)
    def op_issue(b):
        for u in range(6):
            I(f"s_mov_b32 s46, {u * 8 * 2048}")
            I(f"buffer_load_dwordx4 v[{b+4*u}:{b+4*u+3}], v14, s[32:35], s46 offen sc1")
    def op_first(b):
        I(f"""
        v_pk_add_f32 v[72:73], v[{b}:{b+1}], v[{b+4}:{b+5}]
        v_pk_add_f32 v[74:75], v[{b+2}:{b+3}], v[{b+6}:{b+7}]
        v_pk_add_f32 v[76:77], v[{b+8}:{b+9}], v[{b+12}:{b+13}]
        v_pk_add_f32 v[78:79], v[{b+10}:{b+11}], v[{b+14}:{b+15}]
        v_pk_add_f32 v[80:81], v[{b+16}:{b+17}], v[{b+20}:{b+21}]
        v_pk_add_f32 v[82:83], v[{b+18}:{b+19}], v[{b+22}:{b+23}]
        v_pk_add_f32 v[72:73], v[72:73], v[76:77]
        v_pk_add_f32 v[74:75], v[74:75], v[78:79]
        v_pk_add_f32 v[72:73], v[72:73], v[80:81]
        v_pk_add_f32 v[74:75], v[74:75], v[82:83]
        """)
    poll2("L_o_pollp", op_issue, 6, list(range(16, 40)), list(range(40, 64)), 71, op_first, 'O')
    stamp(18)
    red_r8(72, 76)
    I(f"""
    v_cvt_pk_bf16_f32 v72, v72, v73
    v_cvt_pk_bf16_f32 v73, v74, v75
    v_lshlrev_b32 v76, 16, v72
    v_and_b32 v77, s43, v72
    v_lshlrev_b32 v78, 16, v73
    v_and_b32 v79, s43, v73
    v_pk_add_f32 v[76:77], v[76:77], v[66:67]
    v_pk_add_f32 v[78:79], v[78:79], v[68:69]
    v_cvt_pk_bf16_f32 v72, v76, v77
    v_cvt_pk_bf16_f32 v73, v78, v79
    s_mov_b64 exec, 0xff
    global_store_dwordx2 v70, v[72:73], s[22:23] {P['out_sc']}
    s_mov_b64 exec, -1
    """)
    stamp(19)
    flush_stamps()
    a.label("L_end")
    I("s_endpgm")
    a.raw('.section .rodata,"a"')
    a.raw(".p2align 6")
    a.raw(f".amdhsa_kernel {KN}_kernel")
    a.raw("  .amdhsa_next_free_vgpr 168")
    a.raw("  .amdhsa_next_free_sgpr 96")
    a.raw("  .amdhsa_accum_offset 168")
    a.raw("  .amdhsa_group_segment_fixed_size 0")
    a.raw("  .amdhsa_kernarg_size 96")
    a.raw("  .amdhsa_user_sgpr_count 2")
    a.raw("  .amdhsa_user_sgpr_kernarg_segment_ptr 1")
    a.raw("  .amdhsa_system_sgpr_workgroup_id_x 1")
    a.raw(".end_amdhsa_kernel")
    return a.text()

if __name__ == "__main__":
    out = sys.argv[1]
    kw = json.loads(sys.argv[2]) if len(sys.argv) > 2 else {}
    open(out, "w").write(gen(**kw))
    print("wrote", out)
```

```python
import sys, json
from asmlib import Asm

KN = "sequential_preLN__gqa_block_cached__glu_gated_bilinear__decode"

DEF = dict(D=18, R=8, S=112, C=2, stamps=False, dump=False, nt="nt", sleep_c=1, sleep_t=1, prio=True,
           skip_stage=False, segs=None, stage_nt="nt", qsleep=2, q_nt="nt", knt=None, vnt=None, tag_sc1=False, budget=0x40000, map="rot", out_sc="", aligned=True, stag=5, dbl="", wsleep=0, qdelay=0, De=None, Te=8, stage_at="ready", Dd=21)

def lds_map(R):
    ring = R * 16384
    m = {}
    m['RING'] = 0
    m['STAGE'] = ring
    f = ring + 16384
    m['FILLED'] = f
    m['NEXT'] = f + 16
    m['FINCNT'] = f + 32
    m['CLEARED'] = f + 36
    m['TAILGO'] = f + 40
    m['QREADY'] = f + 44
    m['NONCE'] = f + 48
    m['QPUB'] = f + 8
    m['XXT'] = f + 256
    m['QB'] = m['XXT'] + 2048
    m['FINO'] = m['QB'] + 256
    m['FINML'] = m['FINO'] + 2048
    m['OALL'] = m['FINML'] + 64
    m['XN2'] = m['OALL'] + 1024
    m['HH'] = m['XN2'] + 4096
    m['YP'] = m['HH'] + 256
    m['END'] = m['YP'] + 1024
    return m

WS_PO = 0x0
PREC = 640
WS_Y = 0x29000
WS_P = 0x30000
WS_QX = 0x48000
WS_TK = 0x88000
WS_CLR = 0x8C000
WS_STAMP = 0x20000000
NF = 43

LOG2E = 0x3fb8aa3b
SCALE = 0x3db504f3
EPS = 0x3727c5ac

def gen(**kw):
    P = dict(DEF); P.update(kw)
    D = P['D']; R = P['R']; NT = P['nt']; S = P['S']; C = P['C']
    M = lds_map(R)
    ldsz = (M['END'] + 255) // 256 * 256
    assert ldsz <= 163840, ldsz
    a = Asm(); I = a.I
    stamps = P['stamps']

    def spin():
        I("s_sub_u32 s89, s89, 1")
        I("s_cbranch_scc1 L_end")

    pend = []
    def stamp(slot):
        if not stamps: return
        k = len(pend); assert k < 6
        pend.append(slot)
        I(f"s_memrealtime s[{76+2*k}:{77+2*k}]")
    def flush_stamps(keep=0):
        if not stamps: return
        I("s_waitcnt lgkmcnt(0)")
        I("s_lshl_b32 s92, s2, 8")
        I(f"s_add_u32 s92, s92, {WS_STAMP}")
        I("s_add_u32 s92, s26, s92")
        I("s_addc_u32 s93, s27, 0")
        I("v_mov_b32 v166, 0")
        I("s_mov_b64 s[94:95], exec")
        I("s_mov_b64 exec, 1")
        for k, slot in enumerate(pend):
            I(f"v_mov_b32 v164, s{76+2*k}")
            I(f"v_mov_b32 v165, s{77+2*k}")
            I(f"global_store_dwordx2 v166, v[164:165], s[92:93] offset:{8*slot}")
        I("s_mov_b64 exec, s[94:95]")
        del pend[keep:]

    def lds_wait(lbl, addr_reg, tmp, sleep):
        a.label(lbl)
        spin()
        I(f"ds_read_b32 v{tmp}, v{addr_reg}")
        I("s_waitcnt lgkmcnt(0)")
        I(f"v_readfirstlane_b32 s42, v{tmp}")
        I("s_cmp_lg_u32 s42, 0")
        I(f"s_cbranch_scc1 {lbl}_ok")
        I(f"s_sleep {sleep}")
        I(f"s_branch {lbl}")
        a.label(f"{lbl}_ok")

    a.raw(f"; @launch grid=(256,1,1) block=(576,1,1) lds={ldsz}")
    a.raw("; Workgroups hand data to each other through d_ws (write-through stores, polled); d_debug holds one ready byte per workgroup.")
    a.raw('.amdgcn_target "amdgcn-amd-amdhsa--gfx950"')
    a.raw(".text")
    a.raw(f".globl {KN}_kernel")
    a.raw(".p2align 8")
    a.raw(f".type {KN}_kernel,@function")
    a.raw(f"{KN}_kernel:")
    I("s_cmp_ge_u32 s2, 256")
    I("s_cbranch_scc1 L_end")
    I("s_load_dwordx16 s[4:19], s[0:1], 0")
    I("s_load_dwordx8 s[20:27], s[0:1], 64")
    I("v_lshrrev_b32 v2, 6, v0")
    I("v_and_b32 v1, 63, v0")
    I("v_readfirstlane_b32 s28, v2")
    if P['map'] == "rot":
        I("s_lshr_b32 s29, s2, 3")
        I("s_add_u32 s30, s2, s29")
        I("s_and_b32 s30, s30, 7")
    elif P['map'] == "div":
        I("s_lshr_b32 s29, s2, 3")
        I("s_and_b32 s30, s2, 7")
    else:
        I("s_and_b32 s29, s2, 31")
        I("s_lshr_b32 s30, s2, 5")
    I("s_lshl_b32 s3, s29, 3")
    I("s_add_u32 s3, s3, s30")
    if P['map'] == "rot":
        I("s_mov_b32 s31, s30")
    else:
        I("s_sub_u32 s31, s30, s29")
        I("s_and_b32 s31, s31, 7")
    I(f"s_mov_b32 s89, {P['budget']}")
    I("s_waitcnt lgkmcnt(0)")
    I("s_cmp_eq_u32 s28, 0")
    I("s_cbranch_scc1 L_loader")
    I("s_cmp_lt_u32 s28, 5")
    I("s_cbranch_scc1 L_consumer")
    I("s_branch L_tail")

    a.label("L_loader")
    if P['prio']: I("s_setprio 3")
    stamp(0)
    I(f"""
    s_mov_b32 s32, s6
    s_and_b32 s33, s7, 0xffff
    s_mov_b32 s34, 0x10000000
    s_mov_b32 s35, 0x20000
    s_mov_b32 s36, s8
    s_and_b32 s37, s9, 0xffff
    s_mov_b32 s38, 0x10000000
    s_mov_b32 s39, 0x20000
    s_lshl_b32 s44, s29, 23
    v_lshrrev_b32 v8, 4, v1
    v_and_b32 v9, 15, v1
    v_lshlrev_b32 v10, 8, v8
    v_add_u32 v10, s44, v10
    """)
    for tt in range(4):
        I(f"v_add_u32 v11, {4*tt}, v8")
        I("v_xor_b32 v11, v11, v9")
        I("v_lshlrev_b32 v11, 4, v11")
        I(f"v_add_u32 v{2+tt}, v10, v11")
    for tp in range(2):
        I(f"v_add_u32 v11, {4*tp}, v8")
        I("v_lshlrev_b32 v11, 1, v11")
        I("v_xor_b32 v11, v11, v9")
        I("v_lshlrev_b32 v11, 4, v11")
        I(f"v_add_u32 v{6+tp}, v10, v11")
    Dd = P['Dd'] or D
    Dp = max(D, Dd)
    u0 = (Dp - 1) % 8
    half0 = (u0 - Dp + 1) // 8 - 1
    I(f"""
    s_mul_i32 s46, s30, {(128 if P['aligned'] else S) * 8192}
    s_mov_b32 s48, 0
    s_mov_b32 s49, {half0}
    s_mov_b32 s50, 0
    v_mov_b32 v12, {M['FILLED']}
    v_mov_b32 v13, {M['NEXT']}
    """)
    def loads_of_tile(first, Dw=None):
        Dw = Dw or D
        uw = u0
        for u in range(16):
            grp = u // 4
            if u % 4 == 0:
                I(f"s_add_u32 m0, s48, {grp * 4096}")
            I(f"s_waitcnt vmcnt({Dw-1})")
            if u % 8 == uw:
                I("s_add_u32 s49, s49, 1")
                I("v_mov_b32 v14, s49")
                if not first:
                    I("ds_write_b32 v12, v14")
            isv = u >= 8
            t = u % 8
            so = "s46" if t < 4 else "s47"
            KNT = NT if P['knt'] is None else P['knt']
            VNT = NT if P['vnt'] is None else P['vnt']
            if isv: I(f"buffer_load_dwordx4 v{6 + (t & 1)}, s[36:39], {so} offen offset:{(t % 4) * 1024} {VNT} lds")
            else:   I(f"buffer_load_dwordx4 v{2 + (t & 3)}, s[32:35], {so} offen offset:{(t % 4) * 1024} {KNT} lds")
    assert D >= 16
    I("s_add_u32 s47, s46, 4096")
    loads_of_tile(True)
    I(f"""
    v_mov_b32 v16, 0
    v_mov_b32 v17, 1
    v_mov_b32 v18, 2
    v_mov_b32 v19, 3
    v_mov_b32 v20, 0
    v_mov_b32 v21, 0
    v_mov_b32 v22, 0
    v_mov_b32 v23, 0
    v_mov_b32 v14, s49
    v_mov_b32 v15, 0x7fffffff
    ds_write_b64 v12, v[14:15]
    ds_write_b64 v12, v[20:21] offset:8
    ds_write_b128 v13, v[16:19]
    ds_write_b128 v13, v[20:23] offset:16
    s_waitcnt lgkmcnt(0)
    s_barrier
    s_setprio 3
    """)
    I("ds_read_b128 v[16:19], v13")
    lab = [0]
    def next_tile(advance, Dw=None):
        k = lab[0]; lab[0] += 1
        I("s_add_u32 s50, s50, 1")
        if advance: I("s_add_u32 s46, s46, 8192")
        I(f"""
        s_add_u32 s47, s46, 4096
        s_add_u32 s48, s48, 16384
        s_cmp_ge_u32 s48, {R*16384}
        s_cselect_b32 s48, 0, s48
        s_sub_u32 s52, s50, {R-1}
        """)
        a.label(f"L_ld_free{k}")
        spin()
        I(f"""
        s_waitcnt lgkmcnt(0)
        v_min3_u32 v20, v16, v17, v18
        v_min_u32 v20, v20, v19
        v_readfirstlane_b32 s51, v20
        ds_read_b128 v[16:19], v13
        s_cmp_ge_i32 s51, s52
        s_cbranch_scc0 L_ld_free{k}
        """)
        loads_of_tile(False, Dw)
    nstatic = S - 2
    bounds = [b for b in (P['segs'] or [16, 32, 48, 64, 80, 96]) if b < nstatic] + [nstatic] if stamps else [nstatic]
    for sg, b in enumerate(bounds):
        a.label(f"L_ld_tile{sg}")
        next_tile(True)
        I(f"s_cmp_lt_u32 s50, {b - 1}")
        I(f"s_cbranch_scc1 L_ld_tile{sg}")
        if stamps and sg < 7 and sg < len(bounds) - 1:
            I(f"s_memrealtime s[{60+2*sg}:{61+2*sg}]")
    def ticket(reg):
        I("s_mov_b64 exec, 1")
        I(f"global_atomic_add v{reg}, v25, v26, s[26:27] sc0 sc1")
        I("s_mov_b64 exec, -1")
    I(f"""
    s_lshl_b32 s53, s29, 8
    s_add_u32 s53, s53, {WS_TK}
    v_mov_b32 v25, s53
    v_mov_b32 v26, 1
    """)
    ticket(24)
    next_tile(True)
    ticket(27)
    next_tile(True)
    a.label("L_ld_dyn")
    for reg in (24, 27):
        if P['aligned']:
            I(f"""
            v_readfirstlane_b32 s53, v{reg}
            s_and_b32 s46, s53, 7
            s_lshl_b32 s46, s46, 7
            s_lshr_b32 s55, s53, 3
            s_add_u32 s46, s46, s55
            s_add_u32 s46, s46, {S}
            s_lshl_b32 s46, s46, 13
            s_cmp_lt_u32 s53, {8 * (128 - S)}
            s_cbranch_scc0 L_ld_over
            """)
        else:
            I(f"""
            v_readfirstlane_b32 s53, v{reg}
            s_add_u32 s53, s53, {8 * S}
            s_lshl_b32 s46, s53, 13
            s_cmp_lt_u32 s53, 1024
            s_cbranch_scc0 L_ld_over
            """)
        ticket(reg)
        next_tile(False, Dd)
    I("s_branch L_ld_dyn")
    a.label("L_ld_over")
    assert 32 >= Dp + 1, "a ticket must have landed two tiles later"
    I("s_add_u32 s53, s50, 1")
    I("v_mov_b32 v14, s53")
    I("ds_write_b32 v12, v14 offset:4")
    last_u = 8 + u0
    rem = 16 - last_u + Dp - 1
    while rem > 0:
        rem -= 8
        I(f"s_waitcnt vmcnt({rem})")
        I("s_add_u32 s49, s49, 1")
        I("v_mov_b32 v14, s49")
        I("ds_write_b32 v12, v14")
    assert rem == 0
    I("s_waitcnt lgkmcnt(0)")
    stamp(1)
    flush_stamps()
    if stamps:
        I("s_lshl_b32 s92, s2, 8")
        I(f"s_add_u32 s92, s92, {WS_STAMP + 20 * 8}")
        I("s_add_u32 s92, s26, s92")
        I("s_addc_u32 s93, s27, 0")
        I("v_mov_b32 v166, 0")
        I("s_mov_b64 exec, 1")
        for k in range(7):
            I(f"v_mov_b32 v164, s{60+2*k}")
            I(f"v_mov_b32 v165, s{61+2*k}")
            I(f"global_store_dwordx2 v166, v[164:165], s[92:93] offset:{8*k}")
        I("v_mov_b32 v164, s50")
        I("v_mov_b32 v165, 0")
        I(f"global_store_dwordx2 v166, v[164:165], s[92:93] offset:{8*7}")
    I("s_endpgm")

    def wave_sum(v, t):
        for r in (8, 4, 2, 1):
            I(f"v_add_f32_dpp v{v}, v{v}, v{v} row_ror:{r} row_mask:0xf bank_mask:0xf")
        I(f"v_mov_b32 v{t}, v{v}")
        I(f"v_permlane16_swap_b32 v{v}, v{t}")
        I(f"v_add_f32 v{v}, v{v}, v{t}")
        I(f"v_mov_b32 v{t}, v{v}")
        I(f"v_permlane32_swap_b32 v{v}, v{t}")
        I(f"v_add_f32 v{v}, v{v}, v{t}")
    def unpack8(src, dst):
        for j in range(4):
            I(f"v_lshlrev_b32 v{dst+2*j}, 16, v{src+j}")
            I(f"v_and_b32 v{dst+2*j+1}, s43, v{src+j}")
    def layernorm8(x, tmp):
        s, t, mb, den = tmp, tmp+1, tmp+2, tmp+3
        I(f"v_add_f32 v{s}, v{x}, v{x+1}")
        for j in range(2, 8): I(f"v_add_f32 v{s}, v{s}, v{x+j}")
        wave_sum(s, t)
        I(f"v_mul_f32 v{s}, 0x3b000000, v{s}")
        I(f"v_cvt_pk_bf16_f32 v{mb}, v{s}, v{s}")
        I(f"v_and_b32 v{mb}, s43, v{mb}")
        I(f"v_sub_f32 v{t}, v{x}, v{s}")
        I(f"v_mul_f32 v{den}, v{t}, v{t}")
        for j in range(1, 8):
            I(f"v_sub_f32 v{t}, v{x+j}, v{s}")
            I(f"v_fmac_f32 v{den}, v{t}, v{t}")
        wave_sum(den, t)
        I(f"v_mul_f32 v{den}, 0x3b000000, v{den}")
        I(f"v_cvt_pk_bf16_f32 v{den}, v{den}, v{den}")
        I(f"v_and_b32 v{den}, s43, v{den}")
        I(f"v_add_f32 v{den}, {hex(EPS)}, v{den}")
        I(f"v_cvt_pk_bf16_f32 v{den}, v{den}, v{den}")
        I(f"v_and_b32 v{den}, s43, v{den}")
        I(f"v_sqrt_f32 v{den}, v{den}")
        I(f"v_cvt_pk_bf16_f32 v{den}, v{den}, v{den}")
        I(f"v_and_b32 v{den}, s43, v{den}")
        I(f"v_rcp_f32 v{den}, v{den}")
        for j in range(0, 8, 2):
            I(f"v_sub_f32 v{x+j}, v{x+j}, v{mb}")
            I(f"v_sub_f32 v{x+j+1}, v{x+j+1}, v{mb}")
            I(f"v_cvt_pk_bf16_f32 v{t}, v{x+j}, v{x+j+1}")
            I(f"v_lshlrev_b32 v{x+j}, 16, v{t}")
            I(f"v_and_b32 v{x+j+1}, s43, v{t}")
            I(f"v_mul_f32 v{x+j}, v{x+j}, v{den}")
            I(f"v_mul_f32 v{x+j+1}, v{x+j+1}, v{den}")

    a.label("L_consumer")
    I("s_sub_u32 s40, s28, 1")
    I("s_mov_b32 s43, 0xffff0000")
    I("v_lshrrev_b32 v8, 4, v1")
    I("v_and_b32 v9, 15, v1")
    I("s_cmp_eq_u32 s40, 0")
    I("s_cbranch_scc1 L_c_q")
    I("s_barrier")
    I("s_branch L_c_qwait")
    a.label("L_c_q")
    I("""
    s_cmp_eq_u32 s2, 0
    s_cbranch_scc0 L_q_notag
    s_memrealtime s[56:57]
    s_waitcnt lgkmcnt(0)
    s_or_b32 s56, s56, 1
    s_or_b32 s57, s57, 0x40000000
    s_and_b32 s57, s57, 0x7fffffff
    v_mov_b32 v34, s56
    v_mov_b32 v35, s57
    v_mov_b32 v2, 0
    s_mov_b64 exec, 1
    global_store_dwordx2 v2, v[34:35], s[24:25] sc1
    s_mov_b64 exec, -1
    """)
    a.label("L_q_notag")
    I(f"""
    v_mov_b32 v2, 0
    global_load_dwordx2 v[34:35], v2, s[24:25] {"sc1" if P['tag_sc1'] else ""}
    s_mov_b32 s32, s10
    s_and_b32 s33, s11, 0xffff
    s_mov_b32 s34, 0x400000
    s_mov_b32 s35, 0x20000
    v_lshlrev_b32 v2, 4, v1
    global_load_dwordx4 v[30:33], v2, s[4:5]
    s_lshl_b32 s41, s30, 6
    v_add_u32 v3, s41, v8
    v_lshlrev_b32 v3, 13, v3
    v_lshlrev_b32 v4, 4, v9
    v_add_u32 v3, v3, v4
    s_lshl_b32 s41, s29, 8
    v_add_u32 v3, s41, v3
    """)
    for t in range(16):
        I(f"s_mov_b32 s42, {t * 32768}")
        I(f"buffer_load_dwordx4 v[{40+4*t}:{43+4*t}], v3, s[32:35], s42 offen {P['q_nt']}")
    I("s_barrier")
    I("s_waitcnt vmcnt(16)")
    unpack8(30, 10)
    layernorm8(10, 4)
    for e in range(8):
        I(f"v_cvt_pk_bf16_f32 v{18+e}, v{10+e}, v{10+e}")
    I(f"""
    v_lshrrev_b32 v4, 3, v1
    v_lshlrev_b32 v4, 8, v4
    v_and_b32 v5, 7, v1
    v_lshlrev_b32 v5, 3, v5
    v_add_u32 v4, v4, v5
    v_add_u32 v4, {M['XXT']}, v4
    """)
    for g in range(4):
        I(f"v_mov_b32 v26, v{18+g}")
        I(f"v_mov_b32 v27, v{18+g+4}")
        I(f"ds_write_b64 v4, v[26:27] offset:{g*64}")
    I(f"""
    v_and_b32 v5, 1, v9
    v_mov_b32 v6, 0xffff
    v_mov_b32 v7, s43
    v_cmp_eq_u32 vcc, 1, v5
    v_cndmask_b32 v5, v6, v7, vcc
    v_lshrrev_b32 v6, 1, v9
    """)
    for j in range(4):
        I(f"v_cmp_eq_u32 vcc, {j}, v6")
        I(f"v_cndmask_b32 v{10+j}, 0, v5, vcc")
    I(f"""
    s_lshl_b32 s41, s30, 8
    s_add_u32 s41, s41, {M['XXT']}
    v_lshlrev_b32 v4, 6, v8
    v_add_u32 v4, s41, v4
    s_waitcnt lgkmcnt(0)
    ds_read_b128 v[104:107], v4
    ds_read_b128 v[108:111], v4 offset:16
    ds_read_b128 v[112:115], v4 offset:32
    ds_read_b128 v[116:119], v4 offset:48
    s_waitcnt lgkmcnt(0)
    """)
    for t in range(16):
        bb = 18 + 4 * (t % 2)
        for j in range(4):
            I(f"v_and_b32 v{bb+j}, v{104+t}, v{10+j}")
        I(f"s_waitcnt vmcnt({15 - t})")
        c = "0" if t == 0 else "v[26:29]"
        I(f"v_mfma_f32_16x16x32_bf16 v[26:29], v[{40+4*t}:{43+4*t}], v[{bb}:{bb+3}], {c}")
    I("""
    v_readfirstlane_b32 s56, v34
    v_readfirstlane_b32 s57, v35
    s_cmp_lg_u32 s56, 0
    s_cbranch_scc1 L_q_havetag
    """)
    a.label("L_q_tagpoll")
    spin()
    I("""
    v_mov_b32 v2, 0
    global_load_dwordx2 v[34:35], v2, s[24:25] sc1
    s_waitcnt vmcnt(0)
    v_readfirstlane_b32 s56, v34
    v_readfirstlane_b32 s57, v35
    s_cmp_lg_u32 s56, 0
    s_cbranch_scc1 L_q_havetag
    s_sleep 2
    s_branch L_q_tagpoll
    """)
    a.label("L_q_havetag")
    I(f"v_mov_b32 v5, {M['CLEARED']}")
    lds_wait("L_q_clr", 5, 6, 1)
    I(f"""
    v_mov_b32_dpp v14, v28 row_ror:8 row_mask:0xf bank_mask:0xf
    v_mov_b32_dpp v16, v29 row_ror:8 row_mask:0xf bank_mask:0xf
    v_cmp_gt_u32 vcc, 8, v9
    v_mov_b32 v11, s56
    v_mov_b32 v13, s57
    v_cndmask_b32 v10, v14, v26, vcc
    v_cndmask_b32 v12, v16, v27, vcc
    v_mov_b32 v18, s56
    v_mov_b32 v19, s57
    v_mov_b32 v6, {M['NONCE']}
    ds_write_b64 v6, v[18:19]
    s_lshl_b32 s41, s3, 10
    s_add_u32 s41, s41, {WS_QX}
    v_and_b32 v4, 7, v9
    v_lshlrev_b32 v4, 1, v4
    v_lshrrev_b32 v5, 3, v9
    v_add_u32 v4, v4, v5
    v_lshlrev_b32 v5, 4, v8
    v_add_u32 v4, v4, v5
    v_lshlrev_b32 v4, 4, v4
    v_add_u32 v4, s41, v4
    global_store_dwordx4 v4, v[10:13], s[26:27] sc1
    v_mov_b32 v6, {M['QPUB']}
    v_mov_b32 v7, 1
    ds_write_b32 v6, v7
    s_mov_b64 exec, 1
    s_lshl_b32 s41, s3, 3
    s_add_u32 s41, s41, {WS_CLR}
    v_mov_b32 v4, s41
    global_store_dwordx2 v4, v[18:19], s[26:27] sc1
    s_mov_b64 exec, -1
    s_lshl_b32 s41, s29, 13
    s_add_u32 s41, s41, {WS_QX}
    v_lshlrev_b32 v4, 4, v1
    v_add_u32 v4, s41, v4
    v_add_u32 v5, 4096, v4
    """)
    stamp(5)
    if P['qdelay']: I(f"s_sleep {P['qdelay']}")
    a.label("L_q_poll")
    spin()
    for i in range(8):
        I(f"global_load_dwordx4 v[{40+4*i}:{43+4*i}], v{4 if i < 4 else 5}, s[26:27] offset:{1024*(i%4)} sc1")
    I("s_waitcnt vmcnt(0)")
    I("v_xor_b32 v6, s56, v41")
    I("v_xor_b32 v7, s57, v43")
    I("v_or_b32 v6, v6, v7")
    for i in range(1, 8):
        I(f"v_xor_b32 v7, s56, v{41+4*i}")
        I(f"v_or_b32 v6, v6, v7")
        I(f"v_xor_b32 v7, s57, v{43+4*i}")
        I(f"v_or_b32 v6, v6, v7")
    I("v_cmp_ne_u32 vcc, 0, v6")
    I("s_cbranch_vccz L_q_seen")
    if P['qsleep']: I(f"s_sleep {P['qsleep']}")
    I("s_branch L_q_poll")
    a.label("L_q_seen")
    stamp(6)
    for c in (0, 2):
        I(f"v_add_f32 v{40+c}, v{40+c}, v{44+c}")
        I(f"v_add_f32 v{48+c}, v{48+c}, v{52+c}")
        I(f"v_add_f32 v{56+c}, v{56+c}, v{60+c}")
        I(f"v_add_f32 v{64+c}, v{64+c}, v{68+c}")
    for c in (0, 2):
        I(f"v_add_f32 v{40+c}, v{40+c}, v{48+c}")
        I(f"v_add_f32 v{56+c}, v{56+c}, v{64+c}")
    for c in (0, 2):
        I(f"v_add_f32 v{40+c}, v{40+c}, v{56+c}")
    I(f"""
    v_cvt_pk_bf16_f32 v10, v40, v42
    v_lshrrev_b32 v11, 16, v10
    v_lshrrev_b32 v5, 1, v9
    v_and_b32 v6, 1, v1
    v_lshlrev_b32 v6, 4, v6
    v_add_u32 v5, v5, v6
    v_lshlrev_b32 v6, 5, v8
    v_add_u32 v5, v5, v6
    v_lshlrev_b32 v5, 1, v5
    v_add_u32 v5, {M['QB']}, v5
    ds_write_b16 v5, v10
    ds_write_b16 v5, v11 offset:16
    v_mov_b32 v6, {M['QREADY']}
    v_mov_b32 v7, 1
    s_waitcnt lgkmcnt(0)
    ds_write_b32 v6, v7
    """)
    flush_stamps()
    if P['dump']:
        I(f"""
        v_lshlrev_b32 v4, 2, v1
        v_add_u32 v5, {M['QB']}, v4
        ds_read_b32 v10, v5
        s_lshl_b32 s41, s3, 8
        s_add_u32 s41, s41, 0x100000
        v_add_u32 v4, s41, v4
        s_waitcnt lgkmcnt(0)
        global_store_dword v4, v10, s[26:27]
        """)
    a.label("L_c_qwait")
    I(f"v_mov_b32 v5, {M['QREADY']}")
    lds_wait("L_c_qw", 5, 6, 1)
    I(f"""
    v_lshlrev_b32 v5, 4, v8
    v_add_u32 v5, {M['QB']}, v5
    ds_read_b128 v[40:43], v5
    ds_read_b128 v[44:47], v5 offset:64
    ds_read_b128 v[48:51], v5 offset:128
    ds_read_b128 v[52:55], v5 offset:192
    """)
    I(f"""
    v_xor_b32 v2, v8, v9
    v_lshlrev_b32 v2, 4, v2
    v_lshlrev_b32 v10, 8, v9
    v_add_u32 v2, v2, v10
    v_lshrrev_b32 v10, 2, v9
    v_and_b32 v11, 3, v9
    v_lshlrev_b32 v12, 2, v8
    v_add_u32 v12, v12, v10
    v_and_b32 v13, 7, v12
    v_lshlrev_b32 v13, 1, v13
    v_lshrrev_b32 v14, 1, v11
    v_xor_b32 v13, v13, v14
    v_lshlrev_b32 v13, 4, v13
    v_and_b32 v14, 1, v11
    v_lshlrev_b32 v14, 3, v14
    v_lshlrev_b32 v3, 8, v12
    v_add_u32 v3, v3, v13
    v_add_u32 v3, v3, v14
    v_add_u32 v3, 8192, v3
    v_mov_b32 v4, 0xff800000
    v_mov_b32 v5, 0
    v_mov_b32 v6, 0
    v_mov_b32 v7, {M['FILLED']}
    s_lshl_b32 s41, s40, 2
    s_add_u32 s41, s41, {M['NEXT']}
    v_mov_b32 v38, s41
    s_mov_b32 s44, {hex(LOG2E)}
    s_mov_b32 s45, {hex(SCALE)}
    s_mov_b32 s46, s40
    s_lshl_b32 s47, s40, 14
    s_mov_b32 s48, -100
    s_mov_b32 s50, 0x7fffffff
    """)
    for r in range(56, 88): I(f"v_mov_b32 v{r}, 0")
    I("s_waitcnt lgkmcnt(0)")
    stamp(2)
    a.label("L_c_tile")
    def wait_half(lbl, k):
        I(f"s_lshl_b32 s49, s46, 1")
        I(f"s_add_u32 s49, s49, {k}")
        I(f"s_cmp_ge_i32 s48, s49")
        I(f"s_cbranch_scc1 {lbl}_ok")
        a.label(f"{lbl}_poll")
        spin()
        I("ds_read_b64 v[36:37], v7")
        I("s_waitcnt lgkmcnt(0)")
        I("v_readfirstlane_b32 s48, v36")
        I("v_readfirstlane_b32 s50, v37")
        I("s_cmp_ge_i32 s48, s49")
        I(f"s_cbranch_scc1 {lbl}_ok")
        if k == 1:
            I("s_cmp_ge_u32 s46, s50")
            I("s_cbranch_scc1 L_c_fin")
            I(f"s_sleep {P['sleep_c']}")
        I(f"s_branch {lbl}_poll")
        a.label(f"{lbl}_ok")
    wait_half("L_c_k", 1)
    I("v_add_u32 v10, s47, v2")
    for j in range(1, 4): I(f"v_xor_b32 v{10+j}, {j << 6}, v10")
    KF = 88
    for j in range(4):
        I(f"ds_read_b128 v[{KF+4*j}:{KF+4*j+3}], v{10+j}")
        I(f"ds_read_b128 v[{KF+16+4*j}:{KF+16+4*j+3}], v{10+j} offset:4096")
    for j in range(4):
        I(f"s_waitcnt lgkmcnt({6 - 2*j})")
        c0 = "0" if j == 0 else "v[18:21]"
        c1 = "0" if j == 0 else "v[22:25]"
        I(f"v_mfma_f32_16x16x32_bf16 v[18:21], v[{KF+4*j}:{KF+4*j+3}], v[{40+4*j}:{43+4*j}], {c0}")
        I(f"v_mfma_f32_16x16x32_bf16 v[22:25], v[{KF+16+4*j}:{KF+16+4*j+3}], v[{40+4*j}:{43+4*j}], {c1}")
    I("v_add_u32 v10, s47, v3")
    for nb in range(1, 8): I(f"v_xor_b32 v{10+nb}, {nb << 5}, v10")
    SS = 18
    for p in range(4): I(f"v_cvt_pk_bf16_f32 v{30+p}, v{SS+2*p}, v{SS+2*p+1}")
    for p in range(4):
        I(f"v_lshlrev_b32 v{SS+2*p}, 16, v{30+p}")
        I(f"v_and_b32 v{SS+2*p+1}, s43, v{30+p}")
    for i in range(8): I(f"v_mul_f32 v{SS+i}, s45, v{SS+i}")
    for p in range(4): I(f"v_cvt_pk_bf16_f32 v{30+p}, v{SS+2*p}, v{SS+2*p+1}")
    for p in range(4):
        I(f"v_lshlrev_b32 v{SS+2*p}, 16, v{30+p}")
        I(f"v_and_b32 v{SS+2*p+1}, s43, v{30+p}")
    I(f"""
    v_max3_f32 v34, v{SS}, v{SS+1}, v{SS+2}
    v_max3_f32 v35, v{SS+3}, v{SS+4}, v{SS+5}
    v_max3_f32 v34, v34, v{SS+6}, v{SS+7}
    v_max_f32 v34, v34, v35
    v_mov_b32 v35, v34
    v_permlane32_swap_b32 v34, v35
    v_max_f32 v34, v34, v35
    v_mov_b32 v35, v34
    v_permlane16_swap_b32 v34, v35
    v_max_f32 v34, v34, v35
    v_cmp_gt_f32 vcc, v34, v4
    s_cbranch_vccz L_c_norescale
    v_sub_f32 v35, v4, v34
    v_mul_f32 v35, s44, v35
    v_exp_f32 v35, v35
    v_mov_b32 v4, v34
    v_mul_f32 v6, s44, v34
    v_mul_f32 v5, v5, v35
    """)
    for r in range(56, 88): I(f"v_mul_f32 v{r}, v{r}, v35")
    a.label("L_c_norescale")
    for i in range(8): I(f"v_fma_f32 v{SS+i}, v{SS+i}, s44, -v6")
    for i in range(8): I(f"v_exp_f32 v{SS+i}, v{SS+i}")
    for p in range(4): I(f"v_cvt_pk_bf16_f32 v{26+p}, v{SS+2*p}, v{SS+2*p+1}")
    I(f"""
    v_add_f32 v30, v{SS}, v{SS+1}
    v_add_f32 v31, v{SS+2}, v{SS+3}
    v_add_f32 v32, v{SS+4}, v{SS+5}
    v_add_f32 v33, v{SS+6}, v{SS+7}
    v_add_f32 v30, v30, v31
    v_add_f32 v32, v32, v33
    v_add_f32 v30, v30, v32
    v_add_f32 v5, v5, v30
    """)
    wait_half("L_c_v", 2)
    def vread(nb):
        I(f"ds_read_b64_tr_b16 v[{KF+4*nb}:{KF+4*nb+1}], v{10+nb}")
        I(f"ds_read_b64_tr_b16 v[{KF+4*nb+2}:{KF+4*nb+3}], v{10+nb} offset:4096")
    def pv(nb):
        I(f"v_mfma_f32_16x16x32_bf16 v[{56+4*nb}:{59+4*nb}], v[26:29], v[{KF+4*nb}:{KF+4*nb+3}], v[{56+4*nb}:{59+4*nb}]")
    for nb in range(7): vread(nb)
    I("s_waitcnt lgkmcnt(6)")
    for nb in range(4): pv(nb)
    vread(7)
    I("s_waitcnt lgkmcnt(2)")
    for nb in range(4, 7): pv(nb)
    I("s_add_u32 s46, s46, 4")
    I("v_mov_b32 v30, s46")
    I("s_waitcnt lgkmcnt(0)")
    I("ds_write_b32 v38, v30")
    pv(7)
    I(f"""
    s_add_u32 s47, s47, {4*16384}
    s_cmp_ge_u32 s47, {R*16384}
    s_cselect_b32 s49, {R*16384}, 0
    s_sub_u32 s47, s47, s49
    s_cmp_ge_u32 s46, s50
    s_cbranch_scc0 L_c_tile
    """)
    a.label("L_c_fin")
    stamp(3)
    I(f"""
    v_mov_b32 v30, v5
    v_mov_b32 v4, v6
    v_permlane32_swap_b32 v5, v30
    s_lshl_b32 s41, s40, 9
    s_add_u32 s41, s41, {M['FINO']}
    v_add_f32 v5, v5, v30
    v_and_b32 v9, 15, v1
    v_lshlrev_b32 v10, 2, v9
    v_mov_b32 v30, v5
    v_add_u32 v10, s41, v10
    s_lshl_b32 s41, s40, 3
    v_permlane16_swap_b32 v5, v30
    s_add_u32 s41, s41, {M['FINML']}
    v_mov_b32 v11, s41
    v_add_f32 v5, v5, v30
    """)
    for nb in range(8): I(f"ds_write_b32 v10, v{56+4*nb} offset:{64*nb}")
    I(f"""
    ds_write_b64 v11, v[4:5]
    v_mov_b32 v11, {M['FINCNT']}
    v_mov_b32 v30, 1
    v_lshlrev_b32 v10, 3, v1
    v_add_u32 v10, {M['FINO']}, v10
    v_mov_b32 v31, {M['FINML']}
    s_mov_b64 exec, 1
    ds_add_rtn_u32 v32, v11, v30
    s_mov_b64 exec, -1
    ds_read_b128 v[20:23], v31
    ds_read_b128 v[24:27], v31 offset:16
    ds_read_b64 v[12:13], v10
    ds_read_b64 v[14:15], v10 offset:512
    ds_read_b64 v[16:17], v10 offset:1024
    ds_read_b64 v[18:19], v10 offset:1536
    v_mov_b32 v11, {M['TAILGO']}
    s_mul_i32 s41, s3, {PREC}
    v_lshlrev_b32 v10, 3, v1
    v_add_u32 v10, s41, v10
    s_waitcnt lgkmcnt(0)
    v_readfirstlane_b32 s41, v32
    s_cmp_eq_u32 s41, 3
    s_cbranch_scc0 L_end
    ds_write_b32 v11, v30
    v_max3_f32 v28, v20, v22, v24
    v_max_f32 v28, v28, v26
    v_sub_f32 v20, v20, v28
    v_sub_f32 v22, v22, v28
    v_sub_f32 v24, v24, v28
    v_sub_f32 v26, v26, v28
    v_exp_f32 v20, v20
    v_exp_f32 v22, v22
    v_exp_f32 v24, v24
    v_exp_f32 v26, v26
    v_pk_mul_f32 v[12:13], v[12:13], v[20:21] op_sel_hi:[1,0]
    v_mul_f32 v29, v21, v20
    v_pk_fma_f32 v[12:13], v[14:15], v[22:23], v[12:13] op_sel_hi:[1,0,1]
    v_fmac_f32 v29, v23, v22
    v_pk_fma_f32 v[12:13], v[16:17], v[24:25], v[12:13] op_sel_hi:[1,0,1]
    v_fmac_f32 v29, v25, v24
    v_pk_fma_f32 v[12:13], v[18:19], v[26:27], v[12:13] op_sel_hi:[1,0,1]
    v_fmac_f32 v29, v27, v26
    global_store_dwordx2 v10, v[12:13], s[26:27] sc1
    s_mov_b64 exec, 0xffff
    global_store_dwordx2 v10, v[28:29], s[26:27] offset:512 sc1
    s_mov_b64 exec, -1
    """)
    stamp(4)
    flush_stamps()
    I("s_endpgm")

    a.label("L_tail")
    I("s_sub_u32 s40, s28, 5")
    I("s_mov_b32 s43, 0xffff0000")
    I(f"""
    s_mov_b32 s54, 0
    s_mov_b32 s44, 0
    s_cmp_eq_u32 s31, 4
    s_cbranch_scc0 L_t_r0
    s_cmp_lt_u32 s29, 16
    s_cbranch_scc0 L_t_rdone
    s_mov_b32 s54, 3
    s_mov_b32 s44, s29
    s_branch L_t_rdone
    """)
    a.label("L_t_r0")
    I(f"""
    s_cmp_lt_u32 s29, 11
    s_cbranch_scc0 L_t_r1
    s_cmp_lt_u32 s31, 3
    s_cbranch_scc0 L_t_rdone
    s_mov_b32 s54, 1
    s_mov_b32 s44, s29
    s_cmp_eq_u32 s31, 0
    s_cbranch_scc1 L_t_rdone
    s_mov_b32 s54, 2
    s_lshl_b32 s44, s29, 1
    s_add_u32 s44, s44, s31
    s_sub_u32 s44, s44, 1
    s_branch L_t_rdone
    """)
    a.label("L_t_r1")
    I(f"""
    s_cmp_lt_u32 s29, 22
    s_cbranch_scc0 L_t_r2
    s_cmp_lt_u32 s31, 4
    s_cbranch_scc0 L_t_rdone
    s_mov_b32 s54, 2
    s_add_u32 s44, s29, 11
    s_cmp_eq_u32 s31, 3
    s_cbranch_scc1 L_t_rdone
    s_mov_b32 s54, 1
    s_mul_i32 s44, s29, 3
    s_add_u32 s44, s44, s31
    s_sub_u32 s44, s44, 22
    s_branch L_t_rdone
    """)
    a.label("L_t_r2")
    I(f"""
    s_cmp_lt_u32 s31, 3
    s_cbranch_scc0 L_t_rdone
    s_mov_b32 s54, 2
    s_add_u32 s44, s29, 11
    s_cmp_eq_u32 s31, 2
    s_cbranch_scc1 L_t_rdone
    s_mov_b32 s54, 1
    s_lshl_b32 s44, s29, 1
    s_add_u32 s44, s44, s31
    """)
    a.label("L_t_rdone")
    I("s_barrier")
    I(f"""
    v_lshrrev_b32 v8, 4, v1
    v_and_b32 v9, 15, v1
    s_cmp_eq_u32 s40, 0
    s_cbranch_scc0 L_t_noclear
    """)
    I(f"""
    v_mov_b32 v10, -1
    v_mov_b32 v11, -1
    v_mov_b32 v12, -1
    v_mov_b32 v13, -1
    s_mul_i32 s41, s3, {PREC}
    v_lshlrev_b32 v4, 3, v1
    v_add_u32 v4, s41, v4
    global_store_dwordx2 v4, v[10:11], s[26:27] sc1
    s_mov_b64 exec, 0xffff
    global_store_dwordx2 v4, v[10:11], s[26:27] offset:512 sc1
    s_mov_b64 exec, -1
    s_cmp_eq_u32 s30, 0
    s_cbranch_scc0 L_t_clr_tk
    s_lshl_b32 s41, s29, 8
    s_add_u32 s41, s41, {WS_TK}
    v_mov_b32 v4, s41
    v_mov_b32 v5, 0
    global_store_dword v4, v5, s[26:27] sc1
    """)
    a.label("L_t_clr_tk")
    I(f"""
    s_cmp_eq_u32 s54, 1
    s_cbranch_scc0 L_t_clr_f
    s_lshl_b32 s41, s44, 8
    s_add_u32 s41, s41, {WS_Y}
    v_lshlrev_b32 v4, 2, v1
    v_add_u32 v4, s41, v4
    global_store_dword v4, v10, s[26:27] sc1
    s_branch L_t_clr_done
    """)
    a.label("L_t_clr_f")
    I(f"""
    s_cmp_eq_u32 s54, 2
    s_cbranch_scc0 L_t_clr_done
    s_lshl_b32 s41, s44, 11
    s_add_u32 s41, s41, {WS_P}
    v_lshlrev_b32 v4, 4, v1
    v_add_u32 v4, s41, v4
    global_store_dwordx4 v4, v[10:13], s[26:27] sc1
    global_store_dwordx4 v4, v[10:13], s[26:27] offset:1024 sc1
    """)
    a.label("L_t_clr_done")
    I(f"""
    s_waitcnt vmcnt(0)
    v_mov_b32 v4, {M['CLEARED']}
    v_mov_b32 v5, 1
    ds_write_b32 v4, v5
    """)
    a.label("L_t_noclear")
    I(f"""
    s_cmp_eq_u32 s54, 0
    s_cbranch_scc1 L_end
    s_cmp_eq_u32 s54, 3
    s_cbranch_scc0 L_t_wf
    s_cmp_eq_u32 s40, 0
    s_cbranch_scc1 L_t_o
    s_endpgm
    """)
    a.label("L_t_wf")
    if P['stage_at'] != "start":
        I(f"v_mov_b32 v4, {M['QREADY'] if P['stage_at'] == 'ready' else M['QPUB']}")
        lds_wait("L_t_qw", 4, 5, 8)
    I("s_cmp_eq_u32 s54, 2")
    I("s_cbranch_scc1 L_t_f")

    STG = M['STAGE']
    SNT = P['stage_nt']
    def stage_setup():
        I(f"s_lshl_b32 s41, s40, 12")
        I(f"s_add_u32 s41, s41, {STG}")
    def dma(addr, u, step_bytes):
        if P['skip_stage']: return
        I(f"s_add_u32 m0, s41, {u*1024}")
        I(f"s_nop 0")
        I(f"global_load_lds_dwordx4 v[{addr}:{addr+1}], off {SNT}")
        if step_bytes:
            I(f"v_add_co_u32 v{addr}, vcc, {step_bytes}, v{addr}")
            I(f"v_addc_co_u32 v{addr+1}, vcc, 0, v{addr+1}, vcc")
    def tr_reads(trbase, offs, dst):
        I("s_waitcnt vmcnt(0)")
        d = dst
        for off in offs:
            I(f"ds_read_b64_tr_b16 v[{d}:{d+1}], v{trbase} offset:{off[0]}")
            I(f"ds_read_b64_tr_b16 v[{d+2}:{d+3}], v{trbase} offset:{off[1]}")
            d += 4
        I("s_waitcnt lgkmcnt(0)")
    def tr_addr(reg, rowstride):
        I(f"v_lshrrev_b32 v10, 2, v9")
        I(f"v_lshlrev_b32 v11, 3, v8")
        I(f"v_add_u32 v10, v10, v11")
        I(f"v_mul_u32_u24 v10, {rowstride}, v10")
        I(f"v_and_b32 v11, 3, v9")
        I(f"v_lshlrev_b32 v11, 3, v11")
        I(f"v_add_u32 v10, v10, v11")
        I(f"v_add_u32 v{reg}, s41, v10")
    def wait_flags_and_go(lbl):
        if P['stage_at'] != "ready" and lbl != "L_o":
            I(f"v_mov_b32 v4, {M['QREADY']}")
            lds_wait(f"{lbl}_qr", 4, 5, 8)
        I(f"""
        v_mov_b32 v4, {M['NONCE']}
        ds_read_b64 v[16:17], v4
        v_lshlrev_b32 v4, 4, v1
        v_add_u32 v4, {WS_CLR}, v4
        s_waitcnt lgkmcnt(0)
        """)
        a.label(f"{lbl}_clr")
        spin()
        I(f"""
        global_load_dwordx4 v[20:23], v4, s[26:27] sc1
        global_load_dwordx4 v[24:27], v4, s[26:27] offset:1024 sc1
        s_waitcnt vmcnt(0)
        """)
        I("v_xor_b32 v5, v16, v20")
        for r in (22, 24, 26):
            I(f"v_xor_b32 v18, v16, v{r}")
            I("v_or_b32 v5, v5, v18")
        for r in (21, 23, 25, 27):
            I(f"v_xor_b32 v18, v17, v{r}")
            I("v_or_b32 v5, v5, v18")
        I(f"""
        v_cmp_ne_u32 vcc, 0, v5
        s_cbranch_vccz {lbl}_go0
        s_sleep 32
        s_branch {lbl}_clr
        """)
        a.label(f"{lbl}_go0")
        I(f"v_mov_b32 v4, {M['TAILGO']}")
        lds_wait(f"{lbl}_go", 4, 5, P['sleep_t'])
    def any_reset(regs, tmp):
        rs = list(regs)
        I(f"v_max3_u32 v{tmp}, v{rs[0]}, v{rs[1]}, v{rs[2]}")
        rs = rs[3:]
        while len(rs) >= 2:
            I(f"v_max3_u32 v{tmp}, v{tmp}, v{rs[0]}, v{rs[1]}"); rs = rs[2:]
        if rs: I(f"v_max_u32 v{tmp}, v{tmp}, v{rs[0]}")
        I(f"v_cmp_eq_u32 vcc, -1, v{tmp}")
    def poll2(lbl, issue, nloads, regsA, regsB, tmp, first, key):
        if key not in P['dbl']:
            a.label(f"{lbl}")
            spin()
            issue(regsA[0])
            I("s_waitcnt vmcnt(0)")
            any_reset(regsA, tmp)
            if key == 'W' and P['wsleep']:
                I(f"s_cbranch_vccz {lbl}_ok")
                I(f"s_sleep {P['wsleep']}")
                I(f"s_branch {lbl}")
                a.label(f"{lbl}_ok")
            else:
                I(f"s_cbranch_vccnz {lbl}")
            first(regsA[0])
            return
        issue(regsA[0])
        if P['stag']: I(f"s_sleep {P['stag']}")
        a.label(f"{lbl}")
        spin()
        issue(regsB[0])
        I(f"s_waitcnt vmcnt({nloads})")
        any_reset(regsA, tmp)
        I(f"s_cbranch_vccz {lbl}_a")
        issue(regsA[0])
        I(f"s_waitcnt vmcnt({nloads})")
        any_reset(regsB, tmp)
        I(f"s_cbranch_vccnz {lbl}")
        first(regsB[0])
        I(f"s_branch {lbl}_join")
        a.label(f"{lbl}_a")
        first(regsA[0])
        a.label(f"{lbl}_join")
    def gemv_kslice(abase, wb, acc, tmp):
        for ks in range(4):
            I(f"ds_read_b128 v[{tmp+4*ks}:{tmp+4*ks+3}], v{abase} offset:{ks*64}")
        for ks in range(4):
            I(f"s_waitcnt lgkmcnt({3-ks})")
            for nb in range(4):
                c = "0" if ks == 0 else f"v[{acc+4*nb}:{acc+4*nb+3}]"
                I(f"v_mfma_f32_16x16x32_bf16 v[{acc+4*nb}:{acc+4*nb+3}], v[{tmp+4*ks}:{tmp+4*ks+3}], v[{wb+16*ks+4*nb}:{wb+16*ks+4*nb+3}], {c}")
    def part_to_lds(acc, waddr, raddr):
        for nb in range(4): I(f"ds_write_b32 v{waddr}, v{acc+4*nb} offset:{64*nb}")
        I(f"""
        s_waitcnt lgkmcnt(0)
        s_barrier
        ds_read_b32 v12, v{raddr}
        ds_read_b32 v13, v{raddr} offset:256
        ds_read_b32 v14, v{raddr} offset:512
        ds_read_b32 v15, v{raddr} offset:768
        s_waitcnt lgkmcnt(0)
        v_add_f32 v12, v12, v13
        v_add_f32 v14, v14, v15
        v_add_f32 v12, v12, v14
        """)
    def yp_addrs(waddr, raddr):
        I(f"""
        s_lshl_b32 s47, s40, 8
        s_add_u32 s47, s47, {M['YP']}
        v_lshlrev_b32 v{waddr}, 2, v9
        v_add_u32 v{waddr}, s47, v{waddr}
        v_lshlrev_b32 v{raddr}, 2, v1
        v_add_u32 v{raddr}, {M['YP']}, v{raddr}
        """)

    WB = 64
    a.label("L_t_w")
    stage_setup()
    tr_addr(14, 128)
    I(f"""
    s_lshr_b32 s45, s44, 3
    s_and_b32 s46, s44, 7
    s_lshl_b32 s47, s45, 19
    s_lshl_b32 s48, s40, 17
    s_add_u32 s47, s47, s48
    s_lshl_b32 s48, s46, 7
    s_add_u32 s47, s47, s48
    v_lshrrev_b32 v10, 3, v1
    v_lshlrev_b32 v10, 10, v10
    v_and_b32 v11, 7, v1
    v_lshlrev_b32 v11, 4, v11
    v_add_u32 v10, v10, v11
    v_add_u32 v10, s47, v10
    v_mov_b32 v13, s13
    v_add_co_u32 v12, vcc, s12, v10
    v_addc_co_u32 v13, vcc, 0, v13, vcc
    """)
    for ks in range(4):
        for u in range(4): dma(12, u, 8 * 1024)
        tr_reads(14, [(nb * 32, 4 * 128 + nb * 32) for nb in range(4)], WB + 16 * ks)
    stamp(8)
    I(f"""
    s_lshl_b32 s47, s45, 2
    s_add_u32 s47, s47, s40
    s_mul_i32 s48, s47, {8 * PREC}
    """)
    wait_flags_and_go("L_w")
    I(f"""
    v_lshrrev_b32 v15, 5, v1
    v_mul_u32_u24 v15, {PREC}, v15
    v_add_u32 v15, s48, v15
    v_and_b32 v10, 31, v1
    v_lshlrev_b32 v14, 4, v10
    v_add_u32 v14, v15, v14
    v_add_u32 v15, 512, v15
    v_lshlrev_b32 v10, 3, v10
    s_lshl_b32 s47, s40, 8
    s_add_u32 s47, s47, {M['OALL']}
    v_add_u32 v7, s47, v10
    v_lshlrev_b32 v10, 4, v8
    v_add_u32 v10, s47, v10
    s_lshl_b32 s47, s44, 8
    s_add_u32 s47, s47, {WS_Y}
    v_lshlrev_b32 v6, 2, v1
    v_add_u32 v6, s47, v6
    """)
    yp_addrs(11, 5)
    stamp(9)
    def w_issue(b):
        for i in range(4): I(f"global_load_dwordx4 v[{b+4*i}:{b+4*i+3}], v14, s[26:27] offset:{2*PREC*i} sc1")
        for i in range(4): I(f"global_load_dwordx2 v[{b+16+2*i}:{b+17+2*i}], v15, s[26:27] offset:{2*PREC*i} sc1")
    def w_first(b):
        m = b + 16
        I(f"""
        v_max3_f32 v2, v{m}, v{m+2}, v{m+4}
        v_max_f32 v2, v2, v{m+6}
        v_mov_b32 v3, v2
        v_permlane32_swap_b32 v2, v3
        v_max_f32 v2, v2, v3
        v_sub_f32 v{m}, v{m}, v2
        v_sub_f32 v{m+2}, v{m+2}, v2
        v_sub_f32 v{m+4}, v{m+4}, v2
        v_sub_f32 v{m+6}, v{m+6}, v2
        v_exp_f32 v{m}, v{m}
        v_exp_f32 v{m+2}, v{m+2}
        v_exp_f32 v{m+4}, v{m+4}
        v_exp_f32 v{m+6}, v{m+6}
        v_pk_mul_f32 v[12:13], v[{b}:{b+1}], v[{m}:{m+1}] op_sel_hi:[1,0]
        v_pk_mul_f32 v[2:3], v[{b+2}:{b+3}], v[{m}:{m+1}] op_sel_hi:[1,0]
        v_mul_f32 v4, v{m}, v{m+1}
        """)
        for i in range(1, 4):
            I(f"v_pk_fma_f32 v[12:13], v[{b+4*i}:{b+4*i+1}], v[{m+2*i}:{m+2*i+1}], v[12:13] op_sel_hi:[1,0,1]")
            I(f"v_pk_fma_f32 v[2:3], v[{b+4*i+2}:{b+4*i+3}], v[{m+2*i}:{m+2*i+1}], v[2:3] op_sel_hi:[1,0,1]")
            I(f"v_fmac_f32 v4, v{m+2*i}, v{m+2*i+1}")
    poll2("L_w_poll", w_issue, 8, list(range(16, 40)), list(range(40, 64)), 13, w_first, 'W')
    stamp(10)
    I("""
    v_mov_b32 v128, v12
    v_mov_b32 v129, v13
    v_mov_b32 v130, v2
    v_mov_b32 v131, v3
    v_mov_b32 v132, v4
    v_permlane32_swap_b32 v12, v128
    v_permlane32_swap_b32 v13, v129
    v_permlane32_swap_b32 v2, v130
    v_permlane32_swap_b32 v3, v131
    v_permlane32_swap_b32 v4, v132
    v_add_f32 v4, v4, v132
    v_pk_add_f32 v[12:13], v[12:13], v[128:129]
    v_rcp_f32 v132, v4
    v_pk_add_f32 v[2:3], v[2:3], v[130:131]
    v_pk_mul_f32 v[12:13], v[12:13], v[132:133] op_sel_hi:[1,0]
    v_pk_mul_f32 v[2:3], v[2:3], v[132:133] op_sel_hi:[1,0]
    v_cvt_pk_bf16_f32 v12, v12, v13
    v_cvt_pk_bf16_f32 v13, v2, v3
    ds_write_b64 v7, v[12:13]
    s_waitcnt lgkmcnt(0)
    """)
    gemv_kslice(10, WB, 144, 128)
    part_to_lds(144, 11, 5)
    I(f"""
    s_cmp_eq_u32 s40, 0
    s_cbranch_scc0 L_end
    global_store_dword v6, v12, s[26:27] sc1
    """)
    stamp(11)
    flush_stamps()
    I("s_endpgm")

    a.label("L_t_f")
    stage_setup()
    tr_addr(14, 64)
    I(f"""
    s_lshl_b32 s46, s44, 6
    s_mul_i32 s47, s40, {128 * 2752}
    s_add_u32 s46, s46, s47
    v_lshrrev_b32 v10, 2, v1
    v_mul_u32_u24 v10, 2752, v10
    v_and_b32 v11, 3, v1
    v_lshlrev_b32 v11, 4, v11
    v_add_u32 v10, v10, v11
    v_add_u32 v10, s46, v10
    v_mov_b32 v13, s17
    v_add_co_u32 v12, vcc, s16, v10
    v_addc_co_u32 v13, vcc, 0, v13, vcc
    v_mov_b32 v17, s19
    v_add_co_u32 v16, vcc, s18, v10
    v_addc_co_u32 v17, vcc, 0, v17, vcc
    """)
    for ks in range(4):
        dma(12, 0, 16 * 2752); dma(12, 1, 16 * 2752)
        dma(16, 2, 16 * 2752); dma(16, 3, 16 * 2752)
        tr_reads(14, [(0, 256), (32, 256 + 32), (2048, 2048 + 256), (2048 + 32, 2048 + 256 + 32)], WB + 16 * ks)
    tr_addr(14, 128)
    DB = WB + 64
    for rr in range(2):
        I(f"""
        s_lshl_b32 s46, s44, 15
        s_lshl_b32 s47, s40, 8
        s_add_u32 s46, s46, s47
        s_add_u32 s46, s46, {128*rr}
        v_lshrrev_b32 v10, 3, v1
        v_lshlrev_b32 v10, 10, v10
        v_and_b32 v11, 7, v1
        v_lshlrev_b32 v11, 4, v11
        v_add_u32 v10, v10, v11
        v_add_u32 v10, s46, v10
        v_mov_b32 v13, s21
        v_add_co_u32 v12, vcc, s20, v10
        v_addc_co_u32 v13, vcc, 0, v13, vcc
        """)
        for u in range(4): dma(12, u, 8 * 1024)
        tr_reads(14, [(nb * 32, 4 * 128 + nb * 32) for nb in range(4)], DB + 16 * rr)
    I(f"""
    v_and_b32 v10, 31, v1
    v_lshlrev_b32 v11, 3, v10
    s_lshl_b32 s46, s40, 8
    v_add_u32 v11, s46, v11
    global_load_dwordx2 v[6:7], v11, s[4:5]
    s_waitcnt vmcnt(0)
    """)
    stamp(12)
    wait_flags_and_go("L_f")
    I(f"""
    v_lshlrev_b32 v48, 16, v6
    v_and_b32 v49, s43, v6
    v_lshlrev_b32 v50, 16, v7
    v_and_b32 v51, s43, v7
    v_and_b32 v10, 31, v1
    v_lshlrev_b32 v14, 4, v10
    v_lshrrev_b32 v11, 5, v1
    v_lshlrev_b32 v11, 11, v11
    v_add_u32 v14, v14, v11
    s_lshl_b32 s46, s40, 9
    s_add_u32 s46, s46, {WS_Y}
    v_add_u32 v14, s46, v14
    v_add_u32 v15, 4096, v14
    v_add_u32 v2, 8192, v14
    v_add_u32 v3, 12288, v14
    s_lshl_b32 s47, s40, 3
    s_add_u32 s47, s47, {M['OALL']}
    v_mov_b32 v52, s47
    v_mov_b32 v53, {M['OALL']}
    s_lshl_b32 s47, s40, 8
    s_add_u32 s47, s47, {M['XN2']}
    v_lshlrev_b32 v54, 3, v10
    v_add_u32 v54, s47, v54
    v_lshlrev_b32 v55, 4, v8
    v_add_u32 v55, s47, v55
    s_lshl_b32 s47, s40, 6
    s_add_u32 s47, s47, {M['HH']}
    v_lshlrev_b32 v58, 1, v10
    v_add_u32 v58, s47, v58
    v_lshlrev_b32 v59, 4, v8
    v_add_u32 v59, s47, v59
    s_lshl_b32 s47, s44, 11
    s_lshl_b32 s46, s40, 9
    s_add_u32 s47, s47, s46
    s_add_u32 s47, s47, {WS_P}
    v_lshlrev_b32 v60, 2, v1
    v_add_u32 v60, s47, v60
    s_mov_b32 s60, 0xffff0000
    s_mov_b32 s61, 0xffff0000
    s_mov_b32 s62, 0
    s_mov_b32 s63, -1
    """)
    yp_addrs(56, 57)
    stamp(13)
    def f_issue(b):
        for i, ad in enumerate((14, 15, 2, 3)):
            I(f"global_load_dwordx4 v[{b+4*i}:{b+4*i+3}], v{ad}, s[26:27] sc1")
    def f_first(b):
        I(f"""
        v_pk_add_f32 v[4:5], v[{b}:{b+1}], v[{b+4}:{b+5}]
        v_pk_add_f32 v[6:7], v[{b+2}:{b+3}], v[{b+6}:{b+7}]
        v_pk_add_f32 v[10:11], v[{b+8}:{b+9}], v[{b+12}:{b+13}]
        v_pk_add_f32 v[12:13], v[{b+10}:{b+11}], v[{b+14}:{b+15}]
        v_pk_add_f32 v[4:5], v[4:5], v[10:11]
        v_pk_add_f32 v[6:7], v[6:7], v[12:13]
        """)
    poll2("L_f_poll", f_issue, 4, list(range(16, 32)), list(range(32, 48)), 61, f_first, 'F')
    stamp(14)
    I(f"""
    v_mov_b32 v160, v4
    v_mov_b32 v161, v5
    v_mov_b32 v162, v6
    v_mov_b32 v163, v7
    v_permlane32_swap_b32 v4, v160
    v_permlane32_swap_b32 v5, v161
    v_permlane32_swap_b32 v6, v162
    v_permlane32_swap_b32 v7, v163
    v_pk_add_f32 v[4:5], v[4:5], v[160:161]
    v_pk_add_f32 v[6:7], v[6:7], v[162:163]
    v_cvt_pk_bf16_f32 v160, v4, v5
    v_cvt_pk_bf16_f32 v161, v6, v7
    v_lshlrev_b32 v4, 16, v160
    v_and_b32 v5, s43, v160
    v_lshlrev_b32 v6, 16, v161
    v_and_b32 v7, s43, v161
    v_pk_add_f32 v[4:5], v[4:5], v[48:49]
    v_pk_add_f32 v[6:7], v[6:7], v[50:51]
    v_cvt_pk_bf16_f32 v160, v4, v5
    v_cvt_pk_bf16_f32 v161, v6, v7
    v_lshlrev_b32 v4, 16, v160
    v_and_b32 v5, s43, v160
    v_lshlrev_b32 v6, 16, v161
    v_and_b32 v7, s43, v161
    v_add_f32 v8, v4, v5
    v_mul_f32 v9, v4, v4
    v_add_f32 v10, v6, v7
    v_fmac_f32 v9, v5, v5
    v_add_f32 v8, v8, v10
    v_fmac_f32 v9, v6, v6
    v_fmac_f32 v9, v7, v7
    """)
    for r in (8, 4, 2, 1):
        I(f"v_add_f32_dpp v8, v8, v8 row_ror:{r} row_mask:0xf bank_mask:0xf")
        I(f"v_add_f32_dpp v9, v9, v9 row_ror:{r} row_mask:0xf bank_mask:0xf")
    I(f"""
    v_mov_b32 v10, v8
    v_mov_b32 v11, v9
    s_nop 0
    v_permlane16_swap_b32 v8, v10
    v_permlane16_swap_b32 v9, v11
    v_add_f32 v8, v8, v10
    v_add_f32 v9, v9, v11
    ds_write_b64 v52, v[8:9]
    s_waitcnt lgkmcnt(0)
    s_barrier
    ds_read_b128 v[8:11], v53
    ds_read_b128 v[12:15], v53 offset:16
    s_waitcnt lgkmcnt(0)
    v_pk_add_f32 v[8:9], v[8:9], v[10:11]
    v_pk_add_f32 v[12:13], v[12:13], v[14:15]
    v_pk_add_f32 v[8:9], v[8:9], v[12:13]
    v_mul_f32 v8, 0x3b000000, v8
    v_mul_f32 v9, 0x3b000000, v9
    v_cvt_pk_bf16_f32 v10, v8, v8
    v_fma_f32 v9, -v8, v8, v9
    v_and_b32 v10, s43, v10
    v_max_f32 v9, 0, v9
    v_cvt_pk_bf16_f32 v9, v9, v9
    v_sub_f32 v4, v4, v10
    v_and_b32 v9, s43, v9
    v_sub_f32 v5, v5, v10
    v_add_f32 v9, {hex(EPS)}, v9
    v_sub_f32 v6, v6, v10
    v_cvt_pk_bf16_f32 v9, v9, v9
    v_sub_f32 v7, v7, v10
    v_and_b32 v9, s43, v9
    v_cvt_pk_bf16_f32 v160, v4, v5
    v_sqrt_f32 v9, v9
    v_cvt_pk_bf16_f32 v161, v6, v7
    v_lshlrev_b32 v4, 16, v160
    v_cvt_pk_bf16_f32 v9, v9, v9
    v_and_b32 v5, s43, v160
    v_and_b32 v12, s43, v9
    v_lshlrev_b32 v6, 16, v161
    v_rcp_f32 v12, v12
    v_and_b32 v7, s43, v161
    v_pk_mul_f32 v[4:5], v[4:5], v[12:13] op_sel_hi:[1,0]
    v_pk_mul_f32 v[6:7], v[6:7], v[12:13] op_sel_hi:[1,0]
    v_cvt_pk_bf16_f32 v160, v4, v5
    v_cvt_pk_bf16_f32 v161, v6, v7
    ds_write_b64 v54, v[160:161]
    s_waitcnt vmcnt(0) lgkmcnt(0)
    """)
    gemv_kslice(55, WB, 32, 16)
    part_to_lds(32, 56, 57)
    I(f"""
    v_cvt_pk_bf16_f32 v12, v12, v12
    v_and_b32 v12, s43, v12
    v_mov_b32 v13, v12
    v_permlane32_swap_b32 v12, v13
    v_mul_f32 v12, v12, v13
    v_cvt_pk_bf16_f32 v12, v12, v12
    ds_write_b16 v58, v12
    s_waitcnt lgkmcnt(0)
    ds_read_b128 v[16:19], v59
    s_waitcnt lgkmcnt(0)
    """)
    for nb in range(8):
        I(f"v_mfma_f32_16x16x32_bf16 v[{20+4*nb}:{23+4*nb}], v[16:19], v[{DB+4*nb}:{DB+4*nb+3}], 0")
    for j in range(2):
        b = 20 + 16 * j
        I(f"v_cndmask_b32 v{12+2*j}, v{b}, v{b+4}, s[60:61]")
        I(f"v_cndmask_b32 v{13+2*j}, v{b+8}, v{b+12}, s[60:61]")
        I(f"v_cndmask_b32 v{12+2*j}, v{12+2*j}, v{13+2*j}, s[62:63]")
        I(f"global_store_dword v60, v{12+2*j}, s[26:27] offset:{256*j} sc1")
    stamp(15)
    flush_stamps()
    I("s_endpgm")

    def resid(xr, out):
        I(f"""
        v_cvt_pk_bf16_f32 v16, v16, v17
        v_cvt_pk_bf16_f32 v17, v18, v19
        v_lshlrev_b32 v20, 16, v16
        v_and_b32 v21, s43, v16
        v_lshlrev_b32 v22, 16, v17
        v_and_b32 v23, s43, v17
        v_lshlrev_b32 v24, 16, v{xr}
        v_and_b32 v25, s43, v{xr}
        v_lshlrev_b32 v26, 16, v{xr+1}
        v_and_b32 v27, s43, v{xr+1}
        v_pk_add_f32 v[20:21], v[20:21], v[24:25]
        v_pk_add_f32 v[22:23], v[22:23], v[26:27]
        v_cvt_pk_bf16_f32 v{out}, v20, v21
        v_cvt_pk_bf16_f32 v{out+1}, v22, v23
        """)
    a.label("L_t_o")
    I(f"""
    v_and_b32 v10, 7, v1
    v_lshlrev_b32 v11, 3, v10
    s_lshl_b32 s46, s44, 6
    v_add_u32 v11, s46, v11
    global_load_dwordx2 v[6:7], v11, s[4:5]
    v_mov_b32 v3, v11
    v_lshlrev_b32 v14, 4, v10
    v_lshrrev_b32 v12, 3, v1
    v_lshlrev_b32 v12, 11, v12
    v_add_u32 v14, v14, v12
    s_lshl_b32 s46, s44, 7
    v_add_u32 v14, s46, v14
    v_add_u32 v15, {WS_Y}, v14
    s_add_u32 s32, s26, {WS_P}
    s_addc_u32 s33, s27, 0
    s_and_b32 s33, s33, 0xffff
    s_mov_b32 s34, {NF * 2048}
    s_mov_b32 s35, 0x20000
    v_mov_b32 v4, {M['QREADY']}
    s_waitcnt vmcnt(0)
    """)
    lds_wait("L_o_qw", 4, 5, 8)
    wait_flags_and_go("L_o")
    stamp(16)
    def red_r8(base, tmp):
        for c in range(4): I(f"v_add_f32_dpp v{base+c}, v{base+c}, v{base+c} row_ror:8 row_mask:0xf bank_mask:0xf")
        for c in range(4): I(f"v_mov_b32 v{tmp+c}, v{base+c}")
        for c in range(4): I(f"v_permlane16_swap_b32 v{base+c}, v{tmp+c}")
        for c in range(4): I(f"v_add_f32 v{base+c}, v{base+c}, v{tmp+c}")
        for c in range(4): I(f"v_mov_b32 v{tmp+c}, v{base+c}")
        for c in range(4): I(f"v_permlane32_swap_b32 v{base+c}, v{tmp+c}")
        for c in range(4): I(f"v_add_f32 v{base+c}, v{base+c}, v{tmp+c}")
    I("v_mov_b32 v70, v3")
    def oy_issue(b): I(f"global_load_dwordx4 v[{b}:{b+3}], v15, s[26:27] sc1")
    def oy_first(b):
        for c in range(4): I(f"v_mov_b32 v{72+c}, v{b+c}")
    poll2("L_o_polly", oy_issue, 1, list(range(16, 20)), list(range(24, 28)), 28, oy_first, 'y')
    red_r8(72, 76)
    I(f"""
    v_cvt_pk_bf16_f32 v72, v72, v73
    v_cvt_pk_bf16_f32 v73, v74, v75
    v_lshlrev_b32 v76, 16, v72
    v_and_b32 v77, s43, v72
    v_lshlrev_b32 v78, 16, v73
    v_and_b32 v79, s43, v73
    v_lshlrev_b32 v80, 16, v6
    v_and_b32 v81, s43, v6
    v_lshlrev_b32 v82, 16, v7
    v_and_b32 v83, s43, v7
    v_pk_add_f32 v[76:77], v[76:77], v[80:81]
    v_pk_add_f32 v[78:79], v[78:79], v[82:83]
    v_cvt_pk_bf16_f32 v72, v76, v77
    v_cvt_pk_bf16_f32 v73, v78, v79
    v_lshlrev_b32 v66, 16, v72
    v_and_b32 v67, s43, v72
    v_lshlrev_b32 v68, 16, v73
    v_and_b32 v69, s43, v73
    s_waitcnt vmcnt(0)
    """)
    stamp(17)
    def op_issue(b):
        for u in range(6):
            I(f"s_mov_b32 s46, {u * 8 * 2048}")
            I(f"buffer_load_dwordx4 v[{b+4*u}:{b+4*u+3}], v14, s[32:35], s46 offen sc1")
    def op_first(b):
        I(f"""
        v_pk_add_f32 v[72:73], v[{b}:{b+1}], v[{b+4}:{b+5}]
        v_pk_add_f32 v[74:75], v[{b+2}:{b+3}], v[{b+6}:{b+7}]
        v_pk_add_f32 v[76:77], v[{b+8}:{b+9}], v[{b+12}:{b+13}]
        v_pk_add_f32 v[78:79], v[{b+10}:{b+11}], v[{b+14}:{b+15}]
        v_pk_add_f32 v[80:81], v[{b+16}:{b+17}], v[{b+20}:{b+21}]
        v_pk_add_f32 v[82:83], v[{b+18}:{b+19}], v[{b+22}:{b+23}]
        v_pk_add_f32 v[72:73], v[72:73], v[76:77]
        v_pk_add_f32 v[74:75], v[74:75], v[78:79]
        v_pk_add_f32 v[72:73], v[72:73], v[80:81]
        v_pk_add_f32 v[74:75], v[74:75], v[82:83]
        """)
    poll2("L_o_pollp", op_issue, 6, list(range(16, 40)), list(range(40, 64)), 71, op_first, 'O')
    stamp(18)
    red_r8(72, 76)
    I(f"""
    v_cvt_pk_bf16_f32 v72, v72, v73
    v_cvt_pk_bf16_f32 v73, v74, v75
    v_lshlrev_b32 v76, 16, v72
    v_and_b32 v77, s43, v72
    v_lshlrev_b32 v78, 16, v73
    v_and_b32 v79, s43, v73
    v_pk_add_f32 v[76:77], v[76:77], v[66:67]
    v_pk_add_f32 v[78:79], v[78:79], v[68:69]
    v_cvt_pk_bf16_f32 v72, v76, v77
    v_cvt_pk_bf16_f32 v73, v78, v79
    s_mov_b64 exec, 0xff
    global_store_dwordx2 v70, v[72:73], s[22:23] {P['out_sc']}
    s_mov_b64 exec, -1
    """)
    stamp(19)
    flush_stamps()
    a.label("L_end")
    I("s_endpgm")
    a.raw('.section .rodata,"a"')
    a.raw(".p2align 6")
    a.raw(f".amdhsa_kernel {KN}_kernel")
    a.raw("  .amdhsa_next_free_vgpr 168")
    a.raw("  .amdhsa_next_free_sgpr 96")
    a.raw("  .amdhsa_accum_offset 168")
    a.raw("  .amdhsa_group_segment_fixed_size 0")
    a.raw("  .amdhsa_kernarg_size 96")
    a.raw("  .amdhsa_user_sgpr_count 2")
    a.raw("  .amdhsa_user_sgpr_kernarg_segment_ptr 1")
    a.raw("  .amdhsa_system_sgpr_workgroup_id_x 1")
    a.raw(".end_amdhsa_kernel")
    return a.text()

if __name__ == "__main__":
    out = sys.argv[1]
    kw = json.loads(sys.argv[2]) if len(sys.argv) > 2 else {}
    open(out, "w").write(gen(**kw))
    print("wrote", out)
```

```python
import sys, json
from asmlib import Asm

KN = "sequential_preLN__gqa_block_cached__glu_gated_bilinear__decode"

DEF = dict(D=18, R=8, S=112, C=2, stamps=False, dump=False, nt="nt", sleep_c=1, sleep_t=1, prio=True,
           skip_stage=False, segs=None, stage_nt="nt", qsleep=2, q_nt="nt", knt=None, vnt=None, tag_sc1=True, budget=0x40000, map="rot", out_sc="", aligned=True, stag=5, dbl="", wsleep=0, qdelay=0, De=None, Te=8, stage_at="ready", Dd=21, qst=False, touch_out=False, hoist=True)

def lds_map(R):
    ring = R * 16384
    m = {}
    m['RING'] = 0
    m['STAGE'] = ring
    f = ring + 16384
    m['FILLED'] = f
    m['NEXT'] = f + 16
    m['FINCNT'] = f + 32
    m['CLEARED'] = f + 36
    m['TAILGO'] = f + 40
    m['QREADY'] = f + 44
    m['NONCE'] = f + 48
    m['QPUB'] = f + 8
    m['XXT'] = f + 256
    m['QB'] = m['XXT'] + 2048
    m['FINO'] = m['QB'] + 256
    m['FINML'] = m['FINO'] + 2048
    m['OALL'] = m['FINML'] + 64
    m['XN2'] = m['OALL'] + 1024
    m['HH'] = m['XN2'] + 4096
    m['YP'] = m['HH'] + 256
    m['END'] = m['YP'] + 1024
    return m

WS_PO = 0x0
PREC = 640
WS_Y = 0x29000
WS_P = 0x30000
WS_QX = 0x48000
WS_TK = 0x88000
WS_CLR = 0x8C000
WS_STAMP = 0x20000000
NF = 43

LOG2E = 0x3fb8aa3b
SCALE = 0x3db504f3
EPS = 0x3727c5ac

def gen(**kw):
    P = dict(DEF); P.update(kw)
    D = P['D']; R = P['R']; NT = P['nt']; S = P['S']; C = P['C']
    M = lds_map(R)
    ldsz = (M['END'] + 255) // 256 * 256
    assert ldsz <= 163840, ldsz
    a = Asm(); I = a.I
    stamps = P['stamps']

    def spin():
        I("s_sub_u32 s89, s89, 1")
        I("s_cbranch_scc1 L_end")

    pend = []
    def stamp(slot):
        if not stamps: return
        k = len(pend); assert k < 6
        pend.append(slot)
        I(f"s_memrealtime s[{76+2*k}:{77+2*k}]")
    def flush_stamps(keep=0):
        if not stamps: return
        I("s_waitcnt lgkmcnt(0)")
        I("s_lshl_b32 s92, s2, 8")
        I(f"s_add_u32 s92, s92, {WS_STAMP}")
        I("s_add_u32 s92, s26, s92")
        I("s_addc_u32 s93, s27, 0")
        I("v_mov_b32 v166, 0")
        I("s_mov_b64 s[94:95], exec")
        I("s_mov_b64 exec, 1")
        for k, slot in enumerate(pend):
            I(f"v_mov_b32 v164, s{76+2*k}")
            I(f"v_mov_b32 v165, s{77+2*k}")
            I(f"global_store_dwordx2 v166, v[164:165], s[92:93] offset:{8*slot}")
        I("s_mov_b64 exec, s[94:95]")
        del pend[keep:]

    def lds_wait(lbl, addr_reg, tmp, sleep):
        a.label(lbl)
        spin()
        I(f"ds_read_b32 v{tmp}, v{addr_reg}")
        I("s_waitcnt lgkmcnt(0)")
        I(f"v_readfirstlane_b32 s42, v{tmp}")
        I("s_cmp_lg_u32 s42, 0")
        I(f"s_cbranch_scc1 {lbl}_ok")
        I(f"s_sleep {sleep}")
        I(f"s_branch {lbl}")
        a.label(f"{lbl}_ok")

    a.raw(f"; @launch grid=(256,1,1) block=(576,1,1) lds={ldsz}")
    for ln in """
Fused single-launch decode layer: h = x + Attn(LN(x)) ; out = h + Wd((LN(h) Wg) * (LN(h) Wu)).  One workgroup per CU, 9 waves.
Workgroup id -> head = id>>3, member = (id + head) & 7 : the 8 members of a head split its 32768 keys into tiles of 32 keys.
  wave 0      streams K/V tiles HBM -> LDS ring (LDS-DMA, a fixed window of loads in flight). Most tiles are assigned statically;
              the last ones of a head are handed out one by one through an atomic ticket, so that all members finish together.
  waves 1-4   QK^T, online softmax (true running max, scores rounded to bf16 as the reference does), PV, all with MFMA.
              Wave 1 first computes the workgroup's share of q = LN(x) Wq (64 of the 512 rows); the members exchange the shares.
  waves 5-8   fetch their slice of Wo / Wg,Wu,Wd into registers while the stream runs, then run the tail:
              W (64 workgroups): combine the 32 partials of 4 heads, times a 512x64 tile of Wo ;
              F (43 workgroups): h, LayerNorm, 32 gate/up columns, their 32 rows of Wd ;  O (16 workgroups): sum, residual, store.
Hand-offs between workgroups go through d_ws with write-through (sc1) stores and sc1 polling loads. Words are either reset to all-ones by
their producer early in the launch (and validated word by word), or carry the launch tag that workgroup 0 puts into d_debug at its start.
Every polling loop is bounded.""".strip().split("\n"):
        a.raw("; " + ln)
    a.raw('.amdgcn_target "amdgcn-amd-amdhsa--gfx950"')
    a.raw(".text")
    a.raw(f".globl {KN}_kernel")
    a.raw(".p2align 8")
    a.raw(f".type {KN}_kernel,@function")
    a.raw(f"{KN}_kernel:")
    I("s_cmp_ge_u32 s2, 256")
    I("s_cbranch_scc1 L_end")
    I("s_load_dwordx16 s[4:19], s[0:1], 0")
    I("s_load_dwordx8 s[20:27], s[0:1], 64")
    I("v_lshrrev_b32 v2, 6, v0")
    I("v_and_b32 v1, 63, v0")
    I("v_readfirstlane_b32 s28, v2")
    if P['map'] == "rot":
        I("s_lshr_b32 s29, s2, 3")
        I("s_add_u32 s30, s2, s29")
        I("s_and_b32 s30, s30, 7")
    elif P['map'] == "div":
        I("s_lshr_b32 s29, s2, 3")
        I("s_and_b32 s30, s2, 7")
    else:
        I("s_and_b32 s29, s2, 31")
        I("s_lshr_b32 s30, s2, 5")
    I("s_lshl_b32 s3, s29, 3")
    I("s_add_u32 s3, s3, s30")
    if P['map'] == "rot":
        I("s_mov_b32 s31, s30")
    else:
        I("s_sub_u32 s31, s30, s29")
        I("s_and_b32 s31, s31, 7")
    I(f"s_mov_b32 s89, {P['budget']}")
    I("s_waitcnt lgkmcnt(0)")
    I("s_cmp_eq_u32 s28, 0")
    I("s_cbranch_scc1 L_loader")
    I("s_cmp_lt_u32 s28, 5")
    I("s_cbranch_scc1 L_consumer")
    I("s_branch L_tail")

    a.label("L_loader")
    if P['prio']: I("s_setprio 3")
    stamp(0)
    I(f"""
    s_mov_b32 s32, s6
    s_and_b32 s33, s7, 0xffff
    s_mov_b32 s34, 0x10000000
    s_mov_b32 s35, 0x20000
    s_mov_b32 s36, s8
    s_and_b32 s37, s9, 0xffff
    s_mov_b32 s38, 0x10000000
    s_mov_b32 s39, 0x20000
    s_lshl_b32 s44, s29, 23
    v_lshrrev_b32 v8, 4, v1
    v_and_b32 v9, 15, v1
    v_lshlrev_b32 v10, 8, v8
    v_add_u32 v10, s44, v10
    """)
    for tt in range(4):
        I(f"v_add_u32 v11, {4*tt}, v8")
        I("v_xor_b32 v11, v11, v9")
        I("v_lshlrev_b32 v11, 4, v11")
        I(f"v_add_u32 v{2+tt}, v10, v11")
    for tp in range(2):
        I(f"v_add_u32 v11, {4*tp}, v8")
        I("v_lshlrev_b32 v11, 1, v11")
        I("v_xor_b32 v11, v11, v9")
        I("v_lshlrev_b32 v11, 4, v11")
        I(f"v_add_u32 v{6+tp}, v10, v11")
    Dd = P['Dd'] or D
    Dp = max(D, Dd)
    u0 = (Dp - 1) % 8
    half0 = (u0 - Dp + 1) // 8 - 1
    I(f"""
    s_mul_i32 s46, s30, {(128 if P['aligned'] else S) * 8192}
    s_mov_b32 s48, 0
    s_mov_b32 s49, {half0}
    s_mov_b32 s50, 0
    v_mov_b32 v12, {M['FILLED']}
    v_mov_b32 v13, {M['NEXT']}
    """)
    def loads_of_tile(first, Dw=None):
        Dw = Dw or D
        uw = u0
        for u in range(16):
            grp = u // 4
            if u % 4 == 0:
                I(f"s_add_u32 m0, s48, {grp * 4096}")
            I(f"s_waitcnt vmcnt({Dw-1})")
            if u % 8 == uw:
                I("s_add_u32 s49, s49, 1")
                I("v_mov_b32 v14, s49")
                if not first:
                    I("ds_write_b32 v12, v14")
            isv = u >= 8
            t = u % 8
            so = "s46" if t < 4 else "s47"
            KNT = NT if P['knt'] is None else P['knt']
            VNT = NT if P['vnt'] is None else P['vnt']
            if isv: I(f"buffer_load_dwordx4 v{6 + (t & 1)}, s[36:39], {so} offen offset:{(t % 4) * 1024} {VNT} lds")
            else:   I(f"buffer_load_dwordx4 v{2 + (t & 3)}, s[32:35], {so} offen offset:{(t % 4) * 1024} {KNT} lds")
    assert D >= 16
    I("s_add_u32 s47, s46, 4096")
    loads_of_tile(True)
    I(f"""
    v_mov_b32 v16, 0
    v_mov_b32 v17, 1
    v_mov_b32 v18, 2
    v_mov_b32 v19, 3
    v_mov_b32 v20, 0
    v_mov_b32 v21, 0
    v_mov_b32 v22, 0
    v_mov_b32 v23, 0
    v_mov_b32 v14, s49
    v_mov_b32 v15, 0x7fffffff
    ds_write_b64 v12, v[14:15]
    ds_write_b64 v12, v[20:21] offset:8
    ds_write_b128 v13, v[16:19]
    ds_write_b128 v13, v[20:23] offset:16
    s_waitcnt lgkmcnt(0)
    s_barrier
    s_setprio 3
    """)
    I("ds_read_b128 v[16:19], v13")
    lab = [0]
    def next_tile(advance, Dw=None):
        k = lab[0]; lab[0] += 1
        I("s_add_u32 s50, s50, 1")
        if advance: I("s_add_u32 s46, s46, 8192")
        I(f"""
        s_add_u32 s47, s46, 4096
        s_add_u32 s48, s48, 16384
        s_cmp_ge_u32 s48, {R*16384}
        s_cselect_b32 s48, 0, s48
        s_sub_u32 s52, s50, {R-1}
        """)
        a.label(f"L_ld_free{k}")
        spin()
        I(f"""
        s_waitcnt lgkmcnt(0)
        v_min3_u32 v20, v16, v17, v18
        v_min_u32 v20, v20, v19
        v_readfirstlane_b32 s51, v20
        ds_read_b128 v[16:19], v13
        s_cmp_ge_i32 s51, s52
        s_cbranch_scc0 L_ld_free{k}
        """)
        loads_of_tile(False, Dw)
    nstatic = S - 2
    bounds = [b for b in (P['segs'] or [16, 32, 48, 64, 80, 96]) if b < nstatic] + [nstatic] if stamps else [nstatic]
    for sg, b in enumerate(bounds):
        a.label(f"L_ld_tile{sg}")
        next_tile(True)
        I(f"s_cmp_lt_u32 s50, {b - 1}")
        I(f"s_cbranch_scc1 L_ld_tile{sg}")
        if stamps and sg < 7 and sg < len(bounds) - 1:
            I(f"s_memrealtime s[{60+2*sg}:{61+2*sg}]")
    def ticket(reg):
        I("s_mov_b64 exec, 1")
        I(f"global_atomic_add v{reg}, v25, v26, s[26:27] sc0 sc1")
        I("s_mov_b64 exec, -1")
    I(f"""
    s_lshl_b32 s53, s29, 8
    s_add_u32 s53, s53, {WS_TK}
    v_mov_b32 v25, s53
    v_mov_b32 v26, 1
    """)
    ticket(24)
    next_tile(True)
    ticket(27)
    next_tile(True)
    a.label("L_ld_dyn")
    for reg in (24, 27):
        if P['aligned']:
            I(f"""
            v_readfirstlane_b32 s53, v{reg}
            s_and_b32 s46, s53, 7
            s_lshl_b32 s46, s46, 7
            s_lshr_b32 s55, s53, 3
            s_add_u32 s46, s46, s55
            s_add_u32 s46, s46, {S}
            s_lshl_b32 s46, s46, 13
            s_cmp_lt_u32 s53, {8 * (128 - S)}
            s_cbranch_scc0 L_ld_over
            """)
        else:
            I(f"""
            v_readfirstlane_b32 s53, v{reg}
            s_add_u32 s53, s53, {8 * S}
            s_lshl_b32 s46, s53, 13
            s_cmp_lt_u32 s53, 1024
            s_cbranch_scc0 L_ld_over
            """)
        ticket(reg)
        next_tile(False, Dd)
    I("s_branch L_ld_dyn")
    a.label("L_ld_over")
    assert 32 >= Dp + 1, "a ticket must have landed two tiles later"
    I("s_add_u32 s53, s50, 1")
    I("v_mov_b32 v14, s53")
    I("ds_write_b32 v12, v14 offset:4")
    last_u = 8 + u0
    rem = 16 - last_u + Dp - 1
    while rem > 0:
        rem -= 8
        I(f"s_waitcnt vmcnt({rem})")
        I("s_add_u32 s49, s49, 1")
        I("v_mov_b32 v14, s49")
        I("ds_write_b32 v12, v14")
    assert rem == 0
    I("s_waitcnt lgkmcnt(0)")
    stamp(1)
    flush_stamps()
    if stamps:
        I("s_lshl_b32 s92, s2, 8")
        I(f"s_add_u32 s92, s92, {WS_STAMP + 20 * 8}")
        I("s_add_u32 s92, s26, s92")
        I("s_addc_u32 s93, s27, 0")
        I("v_mov_b32 v166, 0")
        I("s_mov_b64 exec, 1")
        for k in range(7):
            I(f"v_mov_b32 v164, s{60+2*k}")
            I(f"v_mov_b32 v165, s{61+2*k}")
            I(f"global_store_dwordx2 v166, v[164:165], s[92:93] offset:{8*k}")
        I("v_mov_b32 v164, s50")
        I("v_mov_b32 v165, 0")
        I(f"global_store_dwordx2 v166, v[164:165], s[92:93] offset:{8*7}")
    I("s_endpgm")

    def wave_sum(v, t):
        for r in (8, 4, 2, 1):
            I(f"v_add_f32_dpp v{v}, v{v}, v{v} row_ror:{r} row_mask:0xf bank_mask:0xf")
        I(f"v_mov_b32 v{t}, v{v}")
        I(f"v_permlane16_swap_b32 v{v}, v{t}")
        I(f"v_add_f32 v{v}, v{v}, v{t}")
        I(f"v_mov_b32 v{t}, v{v}")
        I(f"v_permlane32_swap_b32 v{v}, v{t}")
        I(f"v_add_f32 v{v}, v{v}, v{t}")
    def unpack8(src, dst):
        for j in range(4):
            I(f"v_lshlrev_b32 v{dst+2*j}, 16, v{src+j}")
            I(f"v_and_b32 v{dst+2*j+1}, s43, v{src+j}")
    def layernorm8(x, tmp):
        s, t, mb, den = tmp, tmp+1, tmp+2, tmp+3
        I(f"v_add_f32 v{s}, v{x}, v{x+1}")
        for j in range(2, 8): I(f"v_add_f32 v{s}, v{s}, v{x+j}")
        wave_sum(s, t)
        I(f"v_mul_f32 v{s}, 0x3b000000, v{s}")
        I(f"v_cvt_pk_bf16_f32 v{mb}, v{s}, v{s}")
        I(f"v_and_b32 v{mb}, s43, v{mb}")
        I(f"v_sub_f32 v{t}, v{x}, v{s}")
        I(f"v_mul_f32 v{den}, v{t}, v{t}")
        for j in range(1, 8):
            I(f"v_sub_f32 v{t}, v{x+j}, v{s}")
            I(f"v_fmac_f32 v{den}, v{t}, v{t}")
        wave_sum(den, t)
        I(f"v_mul_f32 v{den}, 0x3b000000, v{den}")
        I(f"v_cvt_pk_bf16_f32 v{den}, v{den}, v{den}")
        I(f"v_and_b32 v{den}, s43, v{den}")
        I(f"v_add_f32 v{den}, {hex(EPS)}, v{den}")
        I(f"v_cvt_pk_bf16_f32 v{den}, v{den}, v{den}")
        I(f"v_and_b32 v{den}, s43, v{den}")
        I(f"v_sqrt_f32 v{den}, v{den}")
        I(f"v_cvt_pk_bf16_f32 v{den}, v{den}, v{den}")
        I(f"v_and_b32 v{den}, s43, v{den}")
        I(f"v_rcp_f32 v{den}, v{den}")
        for j in range(0, 8, 2):
            I(f"v_sub_f32 v{x+j}, v{x+j}, v{mb}")
            I(f"v_sub_f32 v{x+j+1}, v{x+j+1}, v{mb}")
            I(f"v_cvt_pk_bf16_f32 v{t}, v{x+j}, v{x+j+1}")
            I(f"v_lshlrev_b32 v{x+j}, 16, v{t}")
            I(f"v_and_b32 v{x+j+1}, s43, v{t}")
            I(f"v_mul_f32 v{x+j}, v{x+j}, v{den}")
            I(f"v_mul_f32 v{x+j+1}, v{x+j+1}, v{den}")

    a.label("L_consumer")
    I("s_sub_u32 s40, s28, 1")
    I("s_mov_b32 s43, 0xffff0000")
    I("v_lshrrev_b32 v8, 4, v1")
    I("v_and_b32 v9, 15, v1")
    I("s_cmp_eq_u32 s40, 0")
    I("s_cbranch_scc1 L_c_q")
    I("s_barrier")
    I("s_branch L_c_qwait")
    a.label("L_c_q")
    I("""
    s_cmp_eq_u32 s2, 0
    s_cbranch_scc0 L_q_notag
    s_memrealtime s[56:57]
    s_waitcnt lgkmcnt(0)
    s_or_b32 s56, s56, 1
    s_or_b32 s57, s57, 0x40000000
    s_and_b32 s57, s57, 0x7fffffff
    v_mov_b32 v34, s56
    v_mov_b32 v35, s57
    v_mov_b32 v2, 0
    s_mov_b64 exec, 1
    global_store_dwordx2 v2, v[34:35], s[24:25] sc1
    s_mov_b64 exec, -1
    """)
    a.label("L_q_notag")
    I(f"""
    v_mov_b32 v2, 0
    global_load_dwordx2 v[34:35], v2, s[24:25] {"sc1" if P['tag_sc1'] else ""}
    s_mov_b32 s32, s10
    s_and_b32 s33, s11, 0xffff
    s_mov_b32 s34, 0x400000
    s_mov_b32 s35, 0x20000
    v_lshlrev_b32 v2, 4, v1
    global_load_dwordx4 v[30:33], v2, s[4:5]
    s_lshl_b32 s41, s30, 6
    v_add_u32 v3, s41, v8
    v_lshlrev_b32 v3, 13, v3
    v_lshlrev_b32 v4, 4, v9
    v_add_u32 v3, v3, v4
    s_lshl_b32 s41, s29, 8
    v_add_u32 v3, s41, v3
    """)
    for t in range(16):
        I(f"s_mov_b32 s42, {t * 32768}")
        I(f"buffer_load_dwordx4 v[{40+4*t}:{43+4*t}], v3, s[32:35], s42 offen {P['q_nt']}")
    if P['qst']: stamp(28)
    I("s_barrier")
    I("s_waitcnt vmcnt(16)")
    if P['qst']: stamp(29)
    unpack8(30, 10)
    layernorm8(10, 4)
    for e in range(8):
        I(f"v_cvt_pk_bf16_f32 v{18+e}, v{10+e}, v{10+e}")
    I(f"""
    v_lshrrev_b32 v4, 3, v1
    v_lshlrev_b32 v4, 8, v4
    v_and_b32 v5, 7, v1
    v_lshlrev_b32 v5, 3, v5
    v_add_u32 v4, v4, v5
    v_add_u32 v4, {M['XXT']}, v4
    """)
    for g in range(4):
        I(f"v_mov_b32 v26, v{18+g}")
        I(f"v_mov_b32 v27, v{18+g+4}")
        I(f"ds_write_b64 v4, v[26:27] offset:{g*64}")
    I(f"""
    v_and_b32 v5, 1, v9
    v_mov_b32 v6, 0xffff
    v_mov_b32 v7, s43
    v_cmp_eq_u32 vcc, 1, v5
    v_cndmask_b32 v5, v6, v7, vcc
    v_lshrrev_b32 v6, 1, v9
    """)
    for j in range(4):
        I(f"v_cmp_eq_u32 vcc, {j}, v6")
        I(f"v_cndmask_b32 v{10+j}, 0, v5, vcc")
    I(f"""
    s_lshl_b32 s41, s30, 8
    s_add_u32 s41, s41, {M['XXT']}
    v_lshlrev_b32 v4, 6, v8
    v_add_u32 v4, s41, v4
    s_waitcnt lgkmcnt(0)
    ds_read_b128 v[104:107], v4
    ds_read_b128 v[108:111], v4 offset:16
    ds_read_b128 v[112:115], v4 offset:32
    ds_read_b128 v[116:119], v4 offset:48
    s_waitcnt lgkmcnt(0)
    """)
    if P['qst']: stamp(31)
    for t in range(16):
        bb = 18 + 4 * (t % 2)
        for j in range(4):
            I(f"v_and_b32 v{bb+j}, v{104+t}, v{10+j}")
        I(f"s_waitcnt vmcnt({15 - t})")
        c = "0" if t == 0 else "v[26:29]"
        I(f"v_mfma_f32_16x16x32_bf16 v[26:29], v[{40+4*t}:{43+4*t}], v[{bb}:{bb+3}], {c}")
    if P['qst']: stamp(30)
    I("""
    v_readfirstlane_b32 s56, v34
    v_readfirstlane_b32 s57, v35
    s_cmp_lg_u32 s56, 0
    s_cbranch_scc1 L_q_havetag
    """)
    a.label("L_q_tagpoll")
    spin()
    I("""
    v_mov_b32 v2, 0
    global_load_dwordx2 v[34:35], v2, s[24:25] sc1
    s_waitcnt vmcnt(0)
    v_readfirstlane_b32 s56, v34
    v_readfirstlane_b32 s57, v35
    s_cmp_lg_u32 s56, 0
    s_cbranch_scc1 L_q_havetag
    s_sleep 2
    s_branch L_q_tagpoll
    """)
    a.label("L_q_havetag")
    I(f"v_mov_b32 v5, {M['CLEARED']}")
    lds_wait("L_q_clr", 5, 6, 1)
    I(f"""
    v_mov_b32_dpp v14, v28 row_ror:8 row_mask:0xf bank_mask:0xf
    v_mov_b32_dpp v16, v29 row_ror:8 row_mask:0xf bank_mask:0xf
    v_cmp_gt_u32 vcc, 8, v9
    v_mov_b32 v11, s56
    v_mov_b32 v13, s57
    v_cndmask_b32 v10, v14, v26, vcc
    v_cndmask_b32 v12, v16, v27, vcc
    v_mov_b32 v18, s56
    v_mov_b32 v19, s57
    v_mov_b32 v6, {M['NONCE']}
    ds_write_b64 v6, v[18:19]
    s_lshl_b32 s41, s3, 10
    s_add_u32 s41, s41, {WS_QX}
    v_and_b32 v4, 7, v9
    v_lshlrev_b32 v4, 1, v4
    v_lshrrev_b32 v5, 3, v9
    v_add_u32 v4, v4, v5
    v_lshlrev_b32 v5, 4, v8
    v_add_u32 v4, v4, v5
    v_lshlrev_b32 v4, 4, v4
    v_add_u32 v4, s41, v4
    global_store_dwordx4 v4, v[10:13], s[26:27] sc1
    v_mov_b32 v6, {M['QPUB']}
    v_mov_b32 v7, 1
    ds_write_b32 v6, v7
    s_mov_b64 exec, 1
    s_lshl_b32 s41, s3, 3
    s_add_u32 s41, s41, {WS_CLR}
    v_mov_b32 v4, s41
    global_store_dwordx2 v4, v[18:19], s[26:27] sc1
    s_mov_b64 exec, -1
    s_lshl_b32 s41, s29, 13
    s_add_u32 s41, s41, {WS_QX}
    v_lshlrev_b32 v4, 4, v1
    v_add_u32 v4, s41, v4
    v_add_u32 v5, 4096, v4
    """)
    stamp(5)
    if P['qdelay']: I(f"s_sleep {P['qdelay']}")
    a.label("L_q_poll")
    spin()
    for i in range(8):
        I(f"global_load_dwordx4 v[{40+4*i}:{43+4*i}], v{4 if i < 4 else 5}, s[26:27] offset:{1024*(i%4)} sc1")
    I("s_waitcnt vmcnt(0)")
    I("v_xor_b32 v6, s56, v41")
    I("v_xor_b32 v7, s57, v43")
    I("v_or_b32 v6, v6, v7")
    for i in range(1, 8):
        I(f"v_xor_b32 v7, s56, v{41+4*i}")
        I(f"v_or_b32 v6, v6, v7")
        I(f"v_xor_b32 v7, s57, v{43+4*i}")
        I(f"v_or_b32 v6, v6, v7")
    I("v_cmp_ne_u32 vcc, 0, v6")
    I("s_cbranch_vccz L_q_seen")
    if P['qsleep']: I(f"s_sleep {P['qsleep']}")
    I("s_branch L_q_poll")
    a.label("L_q_seen")
    stamp(6)
    for c in (0, 2):
        I(f"v_add_f32 v{40+c}, v{40+c}, v{44+c}")
        I(f"v_add_f32 v{48+c}, v{48+c}, v{52+c}")
        I(f"v_add_f32 v{56+c}, v{56+c}, v{60+c}")
        I(f"v_add_f32 v{64+c}, v{64+c}, v{68+c}")
    for c in (0, 2):
        I(f"v_add_f32 v{40+c}, v{40+c}, v{48+c}")
        I(f"v_add_f32 v{56+c}, v{56+c}, v{64+c}")
    for c in (0, 2):
        I(f"v_add_f32 v{40+c}, v{40+c}, v{56+c}")
    I(f"""
    v_cvt_pk_bf16_f32 v10, v40, v42
    v_lshrrev_b32 v11, 16, v10
    v_lshrrev_b32 v5, 1, v9
    v_and_b32 v6, 1, v1
    v_lshlrev_b32 v6, 4, v6
    v_add_u32 v5, v5, v6
    v_lshlrev_b32 v6, 5, v8
    v_add_u32 v5, v5, v6
    v_lshlrev_b32 v5, 1, v5
    v_add_u32 v5, {M['QB']}, v5
    ds_write_b16 v5, v10
    ds_write_b16 v5, v11 offset:16
    v_mov_b32 v6, {M['QREADY']}
    v_mov_b32 v7, 1
    s_waitcnt lgkmcnt(0)
    ds_write_b32 v6, v7
    """)
    flush_stamps()
    if P['dump']:
        I(f"""
        v_lshlrev_b32 v4, 2, v1
        v_add_u32 v5, {M['QB']}, v4
        ds_read_b32 v10, v5
        s_lshl_b32 s41, s3, 8
        s_add_u32 s41, s41, 0x100000
        v_add_u32 v4, s41, v4
        s_waitcnt lgkmcnt(0)
        global_store_dword v4, v10, s[26:27]
        """)
    a.label("L_c_qwait")
    I(f"v_mov_b32 v5, {M['QREADY']}")
    lds_wait("L_c_qw", 5, 6, 1)
    I(f"""
    v_lshlrev_b32 v5, 4, v8
    v_add_u32 v5, {M['QB']}, v5
    ds_read_b128 v[40:43], v5
    ds_read_b128 v[44:47], v5 offset:64
    ds_read_b128 v[48:51], v5 offset:128
    ds_read_b128 v[52:55], v5 offset:192
    """)
    I(f"""
    v_xor_b32 v2, v8, v9
    v_lshlrev_b32 v2, 4, v2
    v_lshlrev_b32 v10, 8, v9
    v_add_u32 v2, v2, v10
    v_lshrrev_b32 v10, 2, v9
    v_and_b32 v11, 3, v9
    v_lshlrev_b32 v12, 2, v8
    v_add_u32 v12, v12, v10
    v_and_b32 v13, 7, v12
    v_lshlrev_b32 v13, 1, v13
    v_lshrrev_b32 v14, 1, v11
    v_xor_b32 v13, v13, v14
    v_lshlrev_b32 v13, 4, v13
    v_and_b32 v14, 1, v11
    v_lshlrev_b32 v14, 3, v14
    v_lshlrev_b32 v3, 8, v12
    v_add_u32 v3, v3, v13
    v_add_u32 v3, v3, v14
    v_add_u32 v3, 8192, v3
    v_mov_b32 v4, 0xff800000
    v_mov_b32 v5, 0
    v_mov_b32 v6, 0
    v_mov_b32 v7, {M['FILLED']}
    s_lshl_b32 s41, s40, 2
    s_add_u32 s41, s41, {M['NEXT']}
    v_mov_b32 v38, s41
    s_mov_b32 s44, {hex(LOG2E)}
    s_mov_b32 s45, {hex(SCALE)}
    s_mov_b32 s46, s40
    s_lshl_b32 s47, s40, 14
    s_mov_b32 s48, -100
    s_mov_b32 s50, 0x7fffffff
    """)
    for r in range(56, 88): I(f"v_mov_b32 v{r}, 0")
    I(f"""
    s_lshl_b32 s41, s40, 9
    s_add_u32 s41, s41, {M['FINO']}
    v_lshlrev_b32 v120, 2, v9
    v_add_u32 v120, s41, v120
    s_lshl_b32 s41, s40, 3
    s_add_u32 s41, s41, {M['FINML']}
    v_mov_b32 v121, s41
    v_mov_b32 v122, {M['FINCNT']}
    v_mov_b32 v123, 1
    v_lshlrev_b32 v124, 3, v1
    s_mul_i32 s41, s3, {PREC}
    v_add_u32 v125, s41, v124
    v_add_u32 v124, {M['FINO']}, v124
    v_mov_b32 v126, {M['FINML']}
    v_mov_b32 v127, {M['TAILGO']}
    """)
    I("s_waitcnt lgkmcnt(0)")
    stamp(2)
    a.label("L_c_tile")
    def wait_half(lbl, k):
        I(f"s_lshl_b32 s49, s46, 1")
        I(f"s_add_u32 s49, s49, {k}")
        I(f"s_cmp_ge_i32 s48, s49")
        I(f"s_cbranch_scc1 {lbl}_ok")
        a.label(f"{lbl}_poll")
        spin()
        I("ds_read_b64 v[36:37], v7")
        I("s_waitcnt lgkmcnt(0)")
        I("v_readfirstlane_b32 s48, v36")
        I("v_readfirstlane_b32 s50, v37")
        I("s_cmp_ge_i32 s48, s49")
        I(f"s_cbranch_scc1 {lbl}_ok")
        if k == 1:
            I("s_cmp_ge_u32 s46, s50")
            I("s_cbranch_scc1 L_c_fin")
            I(f"s_sleep {P['sleep_c']}")
        I(f"s_branch {lbl}_poll")
        a.label(f"{lbl}_ok")
    wait_half("L_c_k", 1)
    I("v_add_u32 v10, s47, v2")
    for j in range(1, 4): I(f"v_xor_b32 v{10+j}, {j << 6}, v10")
    KF = 88
    for j in range(4):
        I(f"ds_read_b128 v[{KF+4*j}:{KF+4*j+3}], v{10+j}")
        I(f"ds_read_b128 v[{KF+16+4*j}:{KF+16+4*j+3}], v{10+j} offset:4096")
    for j in range(4):
        I(f"s_waitcnt lgkmcnt({6 - 2*j})")
        c0 = "0" if j == 0 else "v[18:21]"
        c1 = "0" if j == 0 else "v[22:25]"
        I(f"v_mfma_f32_16x16x32_bf16 v[18:21], v[{KF+4*j}:{KF+4*j+3}], v[{40+4*j}:{43+4*j}], {c0}")
        I(f"v_mfma_f32_16x16x32_bf16 v[22:25], v[{KF+16+4*j}:{KF+16+4*j+3}], v[{40+4*j}:{43+4*j}], {c1}")
    I("v_add_u32 v10, s47, v3")
    for nb in range(1, 8): I(f"v_xor_b32 v{10+nb}, {nb << 5}, v10")
    SS = 18
    for p in range(4): I(f"v_cvt_pk_bf16_f32 v{30+p}, v{SS+2*p}, v{SS+2*p+1}")
    for p in range(4):
        I(f"v_lshlrev_b32 v{SS+2*p}, 16, v{30+p}")
        I(f"v_and_b32 v{SS+2*p+1}, s43, v{30+p}")
    for i in range(8): I(f"v_mul_f32 v{SS+i}, s45, v{SS+i}")
    for p in range(4): I(f"v_cvt_pk_bf16_f32 v{30+p}, v{SS+2*p}, v{SS+2*p+1}")
    for p in range(4):
        I(f"v_lshlrev_b32 v{SS+2*p}, 16, v{30+p}")
        I(f"v_and_b32 v{SS+2*p+1}, s43, v{30+p}")
    I(f"""
    v_max3_f32 v34, v{SS}, v{SS+1}, v{SS+2}
    v_max3_f32 v35, v{SS+3}, v{SS+4}, v{SS+5}
    v_max3_f32 v34, v34, v{SS+6}, v{SS+7}
    v_max_f32 v34, v34, v35
    v_mov_b32 v35, v34
    v_permlane32_swap_b32 v34, v35
    v_max_f32 v34, v34, v35
    v_mov_b32 v35, v34
    v_permlane16_swap_b32 v34, v35
    v_max_f32 v34, v34, v35
    v_cmp_gt_f32 vcc, v34, v4
    s_cbranch_vccz L_c_norescale
    v_sub_f32 v35, v4, v34
    v_mul_f32 v35, s44, v35
    v_exp_f32 v35, v35
    v_mov_b32 v4, v34
    v_mul_f32 v6, s44, v34
    v_mul_f32 v5, v5, v35
    """)
    for r in range(56, 88): I(f"v_mul_f32 v{r}, v{r}, v35")
    a.label("L_c_norescale")
    for i in range(8): I(f"v_fma_f32 v{SS+i}, v{SS+i}, s44, -v6")
    for i in range(8): I(f"v_exp_f32 v{SS+i}, v{SS+i}")
    for p in range(4): I(f"v_cvt_pk_bf16_f32 v{26+p}, v{SS+2*p}, v{SS+2*p+1}")
    I(f"""
    v_add_f32 v30, v{SS}, v{SS+1}
    v_add_f32 v31, v{SS+2}, v{SS+3}
    v_add_f32 v32, v{SS+4}, v{SS+5}
    v_add_f32 v33, v{SS+6}, v{SS+7}
    v_add_f32 v30, v30, v31
    v_add_f32 v32, v32, v33
    v_add_f32 v30, v30, v32
    v_add_f32 v5, v5, v30
    """)
    wait_half("L_c_v", 2)
    def vread(nb):
        I(f"ds_read_b64_tr_b16 v[{KF+4*nb}:{KF+4*nb+1}], v{10+nb}")
        I(f"ds_read_b64_tr_b16 v[{KF+4*nb+2}:{KF+4*nb+3}], v{10+nb} offset:4096")
    def pv(nb):
        I(f"v_mfma_f32_16x16x32_bf16 v[{56+4*nb}:{59+4*nb}], v[26:29], v[{KF+4*nb}:{KF+4*nb+3}], v[{56+4*nb}:{59+4*nb}]")
    for nb in range(7): vread(nb)
    I("s_waitcnt lgkmcnt(6)")
    for nb in range(4): pv(nb)
    vread(7)
    I("s_waitcnt lgkmcnt(2)")
    for nb in range(4, 7): pv(nb)
    I("s_add_u32 s46, s46, 4")
    I("v_mov_b32 v30, s46")
    I("s_waitcnt lgkmcnt(0)")
    I("ds_write_b32 v38, v30")
    pv(7)
    I(f"""
    s_add_u32 s47, s47, {4*16384}
    s_cmp_ge_u32 s47, {R*16384}
    s_cselect_b32 s49, {R*16384}, 0
    s_sub_u32 s47, s47, s49
    s_cmp_ge_u32 s46, s50
    s_cbranch_scc0 L_c_tile
    """)
    a.label("L_c_fin")
    stamp(3)
    I(f"""
    v_mov_b32 v30, v5
    v_mov_b32 v4, v6
    ds_write_b32 v120, v56 offset:0
    v_permlane32_swap_b32 v5, v30
    ds_write_b32 v120, v60 offset:64
    ds_write_b32 v120, v64 offset:128
    v_add_f32 v5, v5, v30
    ds_write_b32 v120, v68 offset:192
    v_mov_b32 v30, v5
    ds_write_b32 v120, v72 offset:256
    ds_write_b32 v120, v76 offset:320
    v_permlane16_swap_b32 v5, v30
    ds_write_b32 v120, v80 offset:384
    ds_write_b32 v120, v84 offset:448
    v_add_f32 v5, v5, v30
    ds_write_b64 v121, v[4:5]
    s_mov_b64 exec, 1
    ds_add_rtn_u32 v32, v122, v123
    s_mov_b64 exec, -1
    ds_read_b128 v[20:23], v126
    ds_read_b128 v[24:27], v126 offset:16
    ds_read_b64 v[12:13], v124
    ds_read_b64 v[14:15], v124 offset:512
    ds_read_b64 v[16:17], v124 offset:1024
    ds_read_b64 v[18:19], v124 offset:1536
    s_waitcnt lgkmcnt(0)
    v_readfirstlane_b32 s41, v32
    v_max3_f32 v28, v20, v22, v24
    s_cmp_eq_u32 s41, 3
    s_cbranch_scc0 L_end
    ds_write_b32 v127, v123
    v_max_f32 v28, v28, v26
    v_sub_f32 v20, v20, v28
    v_sub_f32 v22, v22, v28
    v_sub_f32 v24, v24, v28
    v_sub_f32 v26, v26, v28
    v_exp_f32 v20, v20
    v_exp_f32 v22, v22
    v_exp_f32 v24, v24
    v_exp_f32 v26, v26
    v_pk_mul_f32 v[12:13], v[12:13], v[20:21] op_sel_hi:[1,0]
    v_mul_f32 v29, v21, v20
    v_pk_fma_f32 v[12:13], v[14:15], v[22:23], v[12:13] op_sel_hi:[1,0,1]
    v_fmac_f32 v29, v23, v22
    v_pk_fma_f32 v[12:13], v[16:17], v[24:25], v[12:13] op_sel_hi:[1,0,1]
    v_fmac_f32 v29, v25, v24
    v_pk_fma_f32 v[12:13], v[18:19], v[26:27], v[12:13] op_sel_hi:[1,0,1]
    v_fmac_f32 v29, v27, v26
    global_store_dwordx2 v125, v[12:13], s[26:27] sc1
    s_mov_b64 exec, 0xffff
    global_store_dwordx2 v125, v[28:29], s[26:27] offset:512 sc1
    s_mov_b64 exec, -1
    """)
    stamp(4)
    flush_stamps()
    I("s_endpgm")

    a.label("L_tail")
    I("s_sub_u32 s40, s28, 5")
    I("s_mov_b32 s43, 0xffff0000")
    I(f"""
    s_mov_b32 s54, 0
    s_mov_b32 s44, 0
    s_cmp_eq_u32 s31, 4
    s_cbranch_scc0 L_t_r0
    s_cmp_lt_u32 s29, 16
    s_cbranch_scc0 L_t_rdone
    s_mov_b32 s54, 3
    s_mov_b32 s44, s29
    s_branch L_t_rdone
    """)
    a.label("L_t_r0")
    I(f"""
    s_cmp_lt_u32 s29, 11
    s_cbranch_scc0 L_t_r1
    s_cmp_lt_u32 s31, 3
    s_cbranch_scc0 L_t_rdone
    s_mov_b32 s54, 1
    s_mov_b32 s44, s29
    s_cmp_eq_u32 s31, 0
    s_cbranch_scc1 L_t_rdone
    s_mov_b32 s54, 2
    s_lshl_b32 s44, s29, 1
    s_add_u32 s44, s44, s31
    s_sub_u32 s44, s44, 1
    s_branch L_t_rdone
    """)
    a.label("L_t_r1")
    I(f"""
    s_cmp_lt_u32 s29, 22
    s_cbranch_scc0 L_t_r2
    s_cmp_lt_u32 s31, 4
    s_cbranch_scc0 L_t_rdone
    s_mov_b32 s54, 2
    s_add_u32 s44, s29, 11
    s_cmp_eq_u32 s31, 3
    s_cbranch_scc1 L_t_rdone
    s_mov_b32 s54, 1
    s_mul_i32 s44, s29, 3
    s_add_u32 s44, s44, s31
    s_sub_u32 s44, s44, 22
    s_branch L_t_rdone
    """)
    a.label("L_t_r2")
    I(f"""
    s_cmp_lt_u32 s31, 3
    s_cbranch_scc0 L_t_rdone
    s_mov_b32 s54, 2
    s_add_u32 s44, s29, 11
    s_cmp_eq_u32 s31, 2
    s_cbranch_scc1 L_t_rdone
    s_mov_b32 s54, 1
    s_lshl_b32 s44, s29, 1
    s_add_u32 s44, s44, s31
    """)
    a.label("L_t_rdone")
    I("s_barrier")
    I(f"""
    v_lshrrev_b32 v8, 4, v1
    v_and_b32 v9, 15, v1
    s_cmp_eq_u32 s40, 0
    s_cbranch_scc0 L_t_noclear
    """)
    I(f"""
    v_mov_b32 v10, -1
    v_mov_b32 v11, -1
    v_mov_b32 v12, -1
    v_mov_b32 v13, -1
    s_mul_i32 s41, s3, {PREC}
    v_lshlrev_b32 v4, 3, v1
    v_add_u32 v4, s41, v4
    global_store_dwordx2 v4, v[10:11], s[26:27] sc1
    s_mov_b64 exec, 0xffff
    global_store_dwordx2 v4, v[10:11], s[26:27] offset:512 sc1
    s_mov_b64 exec, -1
    s_cmp_eq_u32 s30, 0
    s_cbranch_scc0 L_t_clr_tk
    s_lshl_b32 s41, s29, 8
    s_add_u32 s41, s41, {WS_TK}
    v_mov_b32 v4, s41
    v_mov_b32 v5, 0
    global_store_dword v4, v5, s[26:27] sc1
    """)
    a.label("L_t_clr_tk")
    I(f"""
    s_cmp_eq_u32 s54, 1
    s_cbranch_scc0 L_t_clr_f
    s_lshl_b32 s41, s44, 8
    s_add_u32 s41, s41, {WS_Y}
    v_lshlrev_b32 v4, 2, v1
    v_add_u32 v4, s41, v4
    global_store_dword v4, v10, s[26:27] sc1
    s_branch L_t_clr_done
    """)
    a.label("L_t_clr_f")
    I(f"""
    s_cmp_eq_u32 s54, 2
    s_cbranch_scc0 L_t_clr_done
    s_lshl_b32 s41, s44, 11
    s_add_u32 s41, s41, {WS_P}
    v_lshlrev_b32 v4, 4, v1
    v_add_u32 v4, s41, v4
    global_store_dwordx4 v4, v[10:13], s[26:27] sc1
    global_store_dwordx4 v4, v[10:13], s[26:27] offset:1024 sc1
    """)
    a.label("L_t_clr_done")
    I(f"""
    s_waitcnt vmcnt(0)
    v_mov_b32 v4, {M['CLEARED']}
    v_mov_b32 v5, 1
    ds_write_b32 v4, v5
    """)
    a.label("L_t_noclear")
    I(f"""
    s_cmp_eq_u32 s54, 0
    s_cbranch_scc1 L_end
    s_cmp_eq_u32 s54, 3
    s_cbranch_scc0 L_t_wf
    s_cmp_eq_u32 s40, 0
    s_cbranch_scc1 L_t_o
    s_endpgm
    """)
    a.label("L_t_wf")
    if P['stage_at'] != "start":
        I(f"v_mov_b32 v4, {M['QREADY'] if P['stage_at'] == 'ready' else M['QPUB']}")
        lds_wait("L_t_qw", 4, 5, 8)
    I("s_cmp_eq_u32 s54, 2")
    I("s_cbranch_scc1 L_t_f")

    STG = M['STAGE']
    SNT = P['stage_nt']
    def stage_setup():
        I(f"s_lshl_b32 s41, s40, 12")
        I(f"s_add_u32 s41, s41, {STG}")
    def dma(addr, u, step_bytes):
        if P['skip_stage']: return
        I(f"s_add_u32 m0, s41, {u*1024}")
        I(f"s_nop 0")
        I(f"global_load_lds_dwordx4 v[{addr}:{addr+1}], off {SNT}")
        if step_bytes:
            I(f"v_add_co_u32 v{addr}, vcc, {step_bytes}, v{addr}")
            I(f"v_addc_co_u32 v{addr+1}, vcc, 0, v{addr+1}, vcc")
    def tr_reads(trbase, offs, dst):
        I("s_waitcnt vmcnt(0)")
        d = dst
        for off in offs:
            I(f"ds_read_b64_tr_b16 v[{d}:{d+1}], v{trbase} offset:{off[0]}")
            I(f"ds_read_b64_tr_b16 v[{d+2}:{d+3}], v{trbase} offset:{off[1]}")
            d += 4
        I("s_waitcnt lgkmcnt(0)")
    def tr_addr(reg, rowstride):
        I(f"v_lshrrev_b32 v10, 2, v9")
        I(f"v_lshlrev_b32 v11, 3, v8")
        I(f"v_add_u32 v10, v10, v11")
        I(f"v_mul_u32_u24 v10, {rowstride}, v10")
        I(f"v_and_b32 v11, 3, v9")
        I(f"v_lshlrev_b32 v11, 3, v11")
        I(f"v_add_u32 v10, v10, v11")
        I(f"v_add_u32 v{reg}, s41, v10")
    def wait_flags_and_go(lbl):
        if P['stage_at'] != "ready" and lbl != "L_o":
            I(f"v_mov_b32 v4, {M['QREADY']}")
            lds_wait(f"{lbl}_qr", 4, 5, 8)
        I(f"""
        v_mov_b32 v4, {M['NONCE']}
        ds_read_b64 v[16:17], v4
        v_lshlrev_b32 v4, 4, v1
        v_add_u32 v4, {WS_CLR}, v4
        s_waitcnt lgkmcnt(0)
        """)
        a.label(f"{lbl}_clr")
        spin()
        I(f"""
        global_load_dwordx4 v[20:23], v4, s[26:27] sc1
        global_load_dwordx4 v[24:27], v4, s[26:27] offset:1024 sc1
        s_waitcnt vmcnt(0)
        """)
        I("v_xor_b32 v5, v16, v20")
        for r in (22, 24, 26):
            I(f"v_xor_b32 v18, v16, v{r}")
            I("v_or_b32 v5, v5, v18")
        for r in (21, 23, 25, 27):
            I(f"v_xor_b32 v18, v17, v{r}")
            I("v_or_b32 v5, v5, v18")
        I(f"""
        v_cmp_ne_u32 vcc, 0, v5
        s_cbranch_vccz {lbl}_go0
        s_sleep 32
        s_branch {lbl}_clr
        """)
        a.label(f"{lbl}_go0")
        I(f"v_mov_b32 v4, {M['TAILGO']}")
        lds_wait(f"{lbl}_go", 4, 5, P['sleep_t'])
    def any_reset(regs, tmp):
        rs = list(regs)
        I(f"v_max3_u32 v{tmp}, v{rs[0]}, v{rs[1]}, v{rs[2]}")
        rs = rs[3:]
        while len(rs) >= 2:
            I(f"v_max3_u32 v{tmp}, v{tmp}, v{rs[0]}, v{rs[1]}"); rs = rs[2:]
        if rs: I(f"v_max_u32 v{tmp}, v{tmp}, v{rs[0]}")
        I(f"v_cmp_eq_u32 vcc, -1, v{tmp}")
    def poll2(lbl, issue, nloads, regsA, regsB, tmp, first, key):
        if key not in P['dbl']:
            a.label(f"{lbl}")
            spin()
            issue(regsA[0])
            I("s_waitcnt vmcnt(0)")
            any_reset(regsA, tmp)
            if key == 'W' and P['wsleep']:
                I(f"s_cbranch_vccz {lbl}_ok")
                I(f"s_sleep {P['wsleep']}")
                I(f"s_branch {lbl}")
                a.label(f"{lbl}_ok")
            else:
                I(f"s_cbranch_vccnz {lbl}")
            first(regsA[0])
            return
        issue(regsA[0])
        if P['stag']: I(f"s_sleep {P['stag']}")
        a.label(f"{lbl}")
        spin()
        issue(regsB[0])
        I(f"s_waitcnt vmcnt({nloads})")
        any_reset(regsA, tmp)
        I(f"s_cbranch_vccz {lbl}_a")
        issue(regsA[0])
        I(f"s_waitcnt vmcnt({nloads})")
        any_reset(regsB, tmp)
        I(f"s_cbranch_vccnz {lbl}")
        first(regsB[0])
        I(f"s_branch {lbl}_join")
        a.label(f"{lbl}_a")
        first(regsA[0])
        a.label(f"{lbl}_join")
    def gemv_kslice(abase, wb, acc, tmp):
        for ks in range(4):
            I(f"ds_read_b128 v[{tmp+4*ks}:{tmp+4*ks+3}], v{abase} offset:{ks*64}")
        for ks in range(4):
            I(f"s_waitcnt lgkmcnt({3-ks})")
            for nb in range(4):
                c = "0" if ks == 0 else f"v[{acc+4*nb}:{acc+4*nb+3}]"
                I(f"v_mfma_f32_16x16x32_bf16 v[{acc+4*nb}:{acc+4*nb+3}], v[{tmp+4*ks}:{tmp+4*ks+3}], v[{wb+16*ks+4*nb}:{wb+16*ks+4*nb+3}], {c}")
    def part_to_lds(acc, waddr, raddr):
        for nb in range(4): I(f"ds_write_b32 v{waddr}, v{acc+4*nb} offset:{64*nb}")
        I(f"""
        s_waitcnt lgkmcnt(0)
        s_barrier
        ds_read_b32 v12, v{raddr}
        ds_read_b32 v13, v{raddr} offset:256
        ds_read_b32 v14, v{raddr} offset:512
        ds_read_b32 v15, v{raddr} offset:768
        s_waitcnt lgkmcnt(0)
        v_add_f32 v12, v12, v13
        v_add_f32 v14, v14, v15
        v_add_f32 v12, v12, v14
        """)
    def yp_addrs(waddr, raddr):
        I(f"""
        s_lshl_b32 s47, s40, 8
        s_add_u32 s47, s47, {M['YP']}
        v_lshlrev_b32 v{waddr}, 2, v9
        v_add_u32 v{waddr}, s47, v{waddr}
        v_lshlrev_b32 v{raddr}, 2, v1
        v_add_u32 v{raddr}, {M['YP']}, v{raddr}
        """)

    WB = 64
    a.label("L_t_w")
    stage_setup()
    tr_addr(14, 128)
    I(f"""
    s_lshr_b32 s45, s44, 3
    s_and_b32 s46, s44, 7
    s_lshl_b32 s47, s45, 19
    s_lshl_b32 s48, s40, 17
    s_add_u32 s47, s47, s48
    s_lshl_b32 s48, s46, 7
    s_add_u32 s47, s47, s48
    v_lshrrev_b32 v10, 3, v1
    v_lshlrev_b32 v10, 10, v10
    v_and_b32 v11, 7, v1
    v_lshlrev_b32 v11, 4, v11
    v_add_u32 v10, v10, v11
    v_add_u32 v10, s47, v10
    v_mov_b32 v13, s13
    v_add_co_u32 v12, vcc, s12, v10
    v_addc_co_u32 v13, vcc, 0, v13, vcc
    """)
    for ks in range(4):
        for u in range(4): dma(12, u, 8 * 1024)
        tr_reads(14, [(nb * 32, 4 * 128 + nb * 32) for nb in range(4)], WB + 16 * ks)
    stamp(8)
    I(f"""
    s_lshl_b32 s47, s45, 2
    s_add_u32 s47, s47, s40
    s_mul_i32 s48, s47, {8 * PREC}
    """)
    wait_flags_and_go("L_w")
    I(f"""
    v_lshrrev_b32 v15, 5, v1
    v_mul_u32_u24 v15, {PREC}, v15
    v_add_u32 v15, s48, v15
    v_and_b32 v10, 31, v1
    v_lshlrev_b32 v14, 4, v10
    v_add_u32 v14, v15, v14
    v_add_u32 v15, 512, v15
    v_lshlrev_b32 v10, 3, v10
    s_lshl_b32 s47, s40, 8
    s_add_u32 s47, s47, {M['OALL']}
    v_add_u32 v7, s47, v10
    v_lshlrev_b32 v10, 4, v8
    v_add_u32 v10, s47, v10
    s_lshl_b32 s47, s44, 8
    s_add_u32 s47, s47, {WS_Y}
    v_lshlrev_b32 v6, 2, v1
    v_add_u32 v6, s47, v6
    """)
    yp_addrs(11, 5)
    stamp(9)
    def w_issue(b):
        for i in range(4): I(f"global_load_dwordx4 v[{b+4*i}:{b+4*i+3}], v14, s[26:27] offset:{2*PREC*i} sc1")
        for i in range(4): I(f"global_load_dwordx2 v[{b+16+2*i}:{b+17+2*i}], v15, s[26:27] offset:{2*PREC*i} sc1")
    def w_first(b):
        m = b + 16
        I(f"""
        v_max3_f32 v2, v{m}, v{m+2}, v{m+4}
        v_max_f32 v2, v2, v{m+6}
        v_mov_b32 v3, v2
        v_permlane32_swap_b32 v2, v3
        v_max_f32 v2, v2, v3
        v_sub_f32 v{m}, v{m}, v2
        v_sub_f32 v{m+2}, v{m+2}, v2
        v_sub_f32 v{m+4}, v{m+4}, v2
        v_sub_f32 v{m+6}, v{m+6}, v2
        v_exp_f32 v{m}, v{m}
        v_exp_f32 v{m+2}, v{m+2}
        v_exp_f32 v{m+4}, v{m+4}
        v_exp_f32 v{m+6}, v{m+6}
        v_pk_mul_f32 v[12:13], v[{b}:{b+1}], v[{m}:{m+1}] op_sel_hi:[1,0]
        v_pk_mul_f32 v[2:3], v[{b+2}:{b+3}], v[{m}:{m+1}] op_sel_hi:[1,0]
        v_mul_f32 v4, v{m}, v{m+1}
        """)
        for i in range(1, 4):
            I(f"v_pk_fma_f32 v[12:13], v[{b+4*i}:{b+4*i+1}], v[{m+2*i}:{m+2*i+1}], v[12:13] op_sel_hi:[1,0,1]")
            I(f"v_pk_fma_f32 v[2:3], v[{b+4*i+2}:{b+4*i+3}], v[{m+2*i}:{m+2*i+1}], v[2:3] op_sel_hi:[1,0,1]")
            I(f"v_fmac_f32 v4, v{m+2*i}, v{m+2*i+1}")
    poll2("L_w_poll", w_issue, 8, list(range(16, 40)), list(range(40, 64)), 13, w_first, 'W')
    stamp(10)
    I("""
    v_mov_b32 v128, v12
    v_mov_b32 v129, v13
    v_mov_b32 v130, v2
    v_mov_b32 v131, v3
    v_mov_b32 v132, v4
    v_permlane32_swap_b32 v12, v128
    v_permlane32_swap_b32 v13, v129
    v_permlane32_swap_b32 v2, v130
    v_permlane32_swap_b32 v3, v131
    v_permlane32_swap_b32 v4, v132
    v_add_f32 v4, v4, v132
    v_pk_add_f32 v[12:13], v[12:13], v[128:129]
    v_rcp_f32 v132, v4
    v_pk_add_f32 v[2:3], v[2:3], v[130:131]
    v_pk_mul_f32 v[12:13], v[12:13], v[132:133] op_sel_hi:[1,0]
    v_pk_mul_f32 v[2:3], v[2:3], v[132:133] op_sel_hi:[1,0]
    v_cvt_pk_bf16_f32 v12, v12, v13
    v_cvt_pk_bf16_f32 v13, v2, v3
    ds_write_b64 v7, v[12:13]
    s_waitcnt lgkmcnt(0)
    """)
    gemv_kslice(10, WB, 144, 128)
    part_to_lds(144, 11, 5)
    I(f"""
    s_cmp_eq_u32 s40, 0
    s_cbranch_scc0 L_end
    global_store_dword v6, v12, s[26:27] sc1
    """)
    stamp(11)
    flush_stamps()
    I("s_endpgm")

    a.label("L_t_f")
    stage_setup()
    tr_addr(14, 64)
    I(f"""
    s_lshl_b32 s46, s44, 6
    s_mul_i32 s47, s40, {128 * 2752}
    s_add_u32 s46, s46, s47
    v_lshrrev_b32 v10, 2, v1
    v_mul_u32_u24 v10, 2752, v10
    v_and_b32 v11, 3, v1
    v_lshlrev_b32 v11, 4, v11
    v_add_u32 v10, v10, v11
    v_add_u32 v10, s46, v10
    v_mov_b32 v13, s17
    v_add_co_u32 v12, vcc, s16, v10
    v_addc_co_u32 v13, vcc, 0, v13, vcc
    v_mov_b32 v17, s19
    v_add_co_u32 v16, vcc, s18, v10
    v_addc_co_u32 v17, vcc, 0, v17, vcc
    """)
    for ks in range(4):
        dma(12, 0, 16 * 2752); dma(12, 1, 16 * 2752)
        dma(16, 2, 16 * 2752); dma(16, 3, 16 * 2752)
        tr_reads(14, [(0, 256), (32, 256 + 32), (2048, 2048 + 256), (2048 + 32, 2048 + 256 + 32)], WB + 16 * ks)
    tr_addr(14, 128)
    DB = WB + 64
    for rr in range(2):
        I(f"""
        s_lshl_b32 s46, s44, 15
        s_lshl_b32 s47, s40, 8
        s_add_u32 s46, s46, s47
        s_add_u32 s46, s46, {128*rr}
        v_lshrrev_b32 v10, 3, v1
        v_lshlrev_b32 v10, 10, v10
        v_and_b32 v11, 7, v1
        v_lshlrev_b32 v11, 4, v11
        v_add_u32 v10, v10, v11
        v_add_u32 v10, s46, v10
        v_mov_b32 v13, s21
        v_add_co_u32 v12, vcc, s20, v10
        v_addc_co_u32 v13, vcc, 0, v13, vcc
        """)
        for u in range(4): dma(12, u, 8 * 1024)
        tr_reads(14, [(nb * 32, 4 * 128 + nb * 32) for nb in range(4)], DB + 16 * rr)
    I(f"""
    v_and_b32 v10, 31, v1
    v_lshlrev_b32 v11, 3, v10
    s_lshl_b32 s46, s40, 8
    v_add_u32 v11, s46, v11
    global_load_dwordx2 v[6:7], v11, s[4:5]
    s_waitcnt vmcnt(0)
    """)
    stamp(12)
    wait_flags_and_go("L_f")
    I(f"""
    v_lshlrev_b32 v48, 16, v6
    v_and_b32 v49, s43, v6
    v_lshlrev_b32 v50, 16, v7
    v_and_b32 v51, s43, v7
    v_and_b32 v10, 31, v1
    v_lshlrev_b32 v14, 4, v10
    v_lshrrev_b32 v11, 5, v1
    v_lshlrev_b32 v11, 11, v11
    v_add_u32 v14, v14, v11
    s_lshl_b32 s46, s40, 9
    s_add_u32 s46, s46, {WS_Y}
    v_add_u32 v14, s46, v14
    v_add_u32 v15, 4096, v14
    v_add_u32 v2, 8192, v14
    v_add_u32 v3, 12288, v14
    s_lshl_b32 s47, s40, 3
    s_add_u32 s47, s47, {M['OALL']}
    v_mov_b32 v52, s47
    v_mov_b32 v53, {M['OALL']}
    s_lshl_b32 s47, s40, 8
    s_add_u32 s47, s47, {M['XN2']}
    v_lshlrev_b32 v54, 3, v10
    v_add_u32 v54, s47, v54
    v_lshlrev_b32 v55, 4, v8
    v_add_u32 v55, s47, v55
    s_lshl_b32 s47, s40, 6
    s_add_u32 s47, s47, {M['HH']}
    v_lshlrev_b32 v58, 1, v10
    v_add_u32 v58, s47, v58
    v_lshlrev_b32 v59, 4, v8
    v_add_u32 v59, s47, v59
    s_lshl_b32 s47, s44, 11
    s_lshl_b32 s46, s40, 9
    s_add_u32 s47, s47, s46
    s_add_u32 s47, s47, {WS_P}
    v_lshlrev_b32 v60, 2, v1
    v_add_u32 v60, s47, v60
    s_mov_b32 s60, 0xffff0000
    s_mov_b32 s61, 0xffff0000
    s_mov_b32 s62, 0
    s_mov_b32 s63, -1
    """)
    yp_addrs(56, 57)
    stamp(13)
    def f_issue(b):
        for i, ad in enumerate((14, 15, 2, 3)):
            I(f"global_load_dwordx4 v[{b+4*i}:{b+4*i+3}], v{ad}, s[26:27] sc1")
    def f_first(b):
        I(f"""
        v_pk_add_f32 v[4:5], v[{b}:{b+1}], v[{b+4}:{b+5}]
        v_pk_add_f32 v[6:7], v[{b+2}:{b+3}], v[{b+6}:{b+7}]
        v_pk_add_f32 v[10:11], v[{b+8}:{b+9}], v[{b+12}:{b+13}]
        v_pk_add_f32 v[12:13], v[{b+10}:{b+11}], v[{b+14}:{b+15}]
        v_pk_add_f32 v[4:5], v[4:5], v[10:11]
        v_pk_add_f32 v[6:7], v[6:7], v[12:13]
        """)
    poll2("L_f_poll", f_issue, 4, list(range(16, 32)), list(range(32, 48)), 61, f_first, 'F')
    stamp(14)
    I(f"""
    v_mov_b32 v160, v4
    v_mov_b32 v161, v5
    v_mov_b32 v162, v6
    v_mov_b32 v163, v7
    v_permlane32_swap_b32 v4, v160
    v_permlane32_swap_b32 v5, v161
    v_permlane32_swap_b32 v6, v162
    v_permlane32_swap_b32 v7, v163
    v_pk_add_f32 v[4:5], v[4:5], v[160:161]
    v_pk_add_f32 v[6:7], v[6:7], v[162:163]
    v_cvt_pk_bf16_f32 v160, v4, v5
    v_cvt_pk_bf16_f32 v161, v6, v7
    v_lshlrev_b32 v4, 16, v160
    v_and_b32 v5, s43, v160
    v_lshlrev_b32 v6, 16, v161
    v_and_b32 v7, s43, v161
    v_pk_add_f32 v[4:5], v[4:5], v[48:49]
    v_pk_add_f32 v[6:7], v[6:7], v[50:51]
    v_cvt_pk_bf16_f32 v160, v4, v5
    v_cvt_pk_bf16_f32 v161, v6, v7
    v_lshlrev_b32 v4, 16, v160
    v_and_b32 v5, s43, v160
    v_lshlrev_b32 v6, 16, v161
    v_and_b32 v7, s43, v161
    v_add_f32 v8, v4, v5
    v_mul_f32 v9, v4, v4
    v_add_f32 v10, v6, v7
    v_fmac_f32 v9, v5, v5
    v_add_f32 v8, v8, v10
    v_fmac_f32 v9, v6, v6
    v_fmac_f32 v9, v7, v7
    """)
    for r in (8, 4, 2, 1):
        I(f"v_add_f32_dpp v8, v8, v8 row_ror:{r} row_mask:0xf bank_mask:0xf")
        I(f"v_add_f32_dpp v9, v9, v9 row_ror:{r} row_mask:0xf bank_mask:0xf")
    I(f"""
    v_mov_b32 v10, v8
    v_mov_b32 v11, v9
    s_nop 0
    v_permlane16_swap_b32 v8, v10
    v_permlane16_swap_b32 v9, v11
    v_add_f32 v8, v8, v10
    v_add_f32 v9, v9, v11
    ds_write_b64 v52, v[8:9]
    s_waitcnt lgkmcnt(0)
    s_barrier
    ds_read_b128 v[8:11], v53
    ds_read_b128 v[12:15], v53 offset:16
    s_waitcnt lgkmcnt(0)
    v_pk_add_f32 v[8:9], v[8:9], v[10:11]
    v_pk_add_f32 v[12:13], v[12:13], v[14:15]
    v_pk_add_f32 v[8:9], v[8:9], v[12:13]
    v_mul_f32 v8, 0x3b000000, v8
    v_mul_f32 v9, 0x3b000000, v9
    v_cvt_pk_bf16_f32 v10, v8, v8
    v_fma_f32 v9, -v8, v8, v9
    v_and_b32 v10, s43, v10
    v_max_f32 v9, 0, v9
    v_cvt_pk_bf16_f32 v9, v9, v9
    v_sub_f32 v4, v4, v10
    v_and_b32 v9, s43, v9
    v_sub_f32 v5, v5, v10
    v_add_f32 v9, {hex(EPS)}, v9
    v_sub_f32 v6, v6, v10
    v_cvt_pk_bf16_f32 v9, v9, v9
    v_sub_f32 v7, v7, v10
    v_and_b32 v9, s43, v9
    v_cvt_pk_bf16_f32 v160, v4, v5
    v_sqrt_f32 v9, v9
    v_cvt_pk_bf16_f32 v161, v6, v7
    v_lshlrev_b32 v4, 16, v160
    v_cvt_pk_bf16_f32 v9, v9, v9
    v_and_b32 v5, s43, v160
    v_and_b32 v12, s43, v9
    v_lshlrev_b32 v6, 16, v161
    v_rcp_f32 v12, v12
    v_and_b32 v7, s43, v161
    v_pk_mul_f32 v[4:5], v[4:5], v[12:13] op_sel_hi:[1,0]
    v_pk_mul_f32 v[6:7], v[6:7], v[12:13] op_sel_hi:[1,0]
    v_cvt_pk_bf16_f32 v160, v4, v5
    v_cvt_pk_bf16_f32 v161, v6, v7
    ds_write_b64 v54, v[160:161]
    s_waitcnt vmcnt(0) lgkmcnt(0)
    """)
    gemv_kslice(55, WB, 32, 16)
    part_to_lds(32, 56, 57)
    I(f"""
    v_cvt_pk_bf16_f32 v12, v12, v12
    v_and_b32 v12, s43, v12
    v_mov_b32 v13, v12
    v_permlane32_swap_b32 v12, v13
    v_mul_f32 v12, v12, v13
    v_cvt_pk_bf16_f32 v12, v12, v12
    ds_write_b16 v58, v12
    s_waitcnt lgkmcnt(0)
    ds_read_b128 v[16:19], v59
    s_waitcnt lgkmcnt(0)
    """)
    for nb in range(8):
        I(f"v_mfma_f32_16x16x32_bf16 v[{20+4*nb}:{23+4*nb}], v[16:19], v[{DB+4*nb}:{DB+4*nb+3}], 0")
    for j in range(2):
        b = 20 + 16 * j
        I(f"v_cndmask_b32 v{12+2*j}, v{b}, v{b+4}, s[60:61]")
        I(f"v_cndmask_b32 v{13+2*j}, v{b+8}, v{b+12}, s[60:61]")
        I(f"v_cndmask_b32 v{12+2*j}, v{12+2*j}, v{13+2*j}, s[62:63]")
        I(f"global_store_dword v60, v{12+2*j}, s[26:27] offset:{256*j} sc1")
    stamp(15)
    flush_stamps()
    I("s_endpgm")

    def resid(xr, out):
        I(f"""
        v_cvt_pk_bf16_f32 v16, v16, v17
        v_cvt_pk_bf16_f32 v17, v18, v19
        v_lshlrev_b32 v20, 16, v16
        v_and_b32 v21, s43, v16
        v_lshlrev_b32 v22, 16, v17
        v_and_b32 v23, s43, v17
        v_lshlrev_b32 v24, 16, v{xr}
        v_and_b32 v25, s43, v{xr}
        v_lshlrev_b32 v26, 16, v{xr+1}
        v_and_b32 v27, s43, v{xr+1}
        v_pk_add_f32 v[20:21], v[20:21], v[24:25]
        v_pk_add_f32 v[22:23], v[22:23], v[26:27]
        v_cvt_pk_bf16_f32 v{out}, v20, v21
        v_cvt_pk_bf16_f32 v{out+1}, v22, v23
        """)
    a.label("L_t_o")
    I(f"""
    v_and_b32 v10, 7, v1
    v_lshlrev_b32 v11, 3, v10
    s_lshl_b32 s46, s44, 6
    v_add_u32 v11, s46, v11
    global_load_dwordx2 v[6:7], v11, s[4:5]
    v_mov_b32 v3, v11
    v_lshlrev_b32 v14, 4, v10
    v_lshrrev_b32 v12, 3, v1
    v_lshlrev_b32 v12, 11, v12
    v_add_u32 v14, v14, v12
    s_lshl_b32 s46, s44, 7
    v_add_u32 v14, s46, v14
    v_add_u32 v15, {WS_Y}, v14
    s_add_u32 s32, s26, {WS_P}
    s_addc_u32 s33, s27, 0
    s_and_b32 s33, s33, 0xffff
    s_mov_b32 s34, {NF * 2048}
    s_mov_b32 s35, 0x20000
    v_mov_b32 v4, {M['QREADY']}
    s_waitcnt vmcnt(0)
    """)
    if P['touch_out']:
        I("""
        v_mov_b32 v16, 0
        v_mov_b32 v17, 0
        s_mov_b64 exec, 0xff
        global_store_dwordx2 v3, v[16:17], s[22:23]
        s_mov_b64 exec, -1
        """)
    lds_wait("L_o_qw", 4, 5, 8)
    wait_flags_and_go("L_o")
    stamp(16)
    def red_r8(base, tmp):
        for c in range(4): I(f"v_add_f32_dpp v{base+c}, v{base+c}, v{base+c} row_ror:8 row_mask:0xf bank_mask:0xf")
        for c in range(4): I(f"v_mov_b32 v{tmp+c}, v{base+c}")
        for c in range(4): I(f"v_permlane16_swap_b32 v{base+c}, v{tmp+c}")
        for c in range(4): I(f"v_add_f32 v{base+c}, v{base+c}, v{tmp+c}")
        for c in range(4): I(f"v_mov_b32 v{tmp+c}, v{base+c}")
        for c in range(4): I(f"v_permlane32_swap_b32 v{base+c}, v{tmp+c}")
        for c in range(4): I(f"v_add_f32 v{base+c}, v{base+c}, v{tmp+c}")
    I("v_mov_b32 v70, v3")
    def oy_issue(b): I(f"global_load_dwordx4 v[{b}:{b+3}], v15, s[26:27] sc1")
    def oy_first(b):
        for c in range(4): I(f"v_mov_b32 v{72+c}, v{b+c}")
    poll2("L_o_polly", oy_issue, 1, list(range(16, 20)), list(range(24, 28)), 28, oy_first, 'y')
    red_r8(72, 76)
    I(f"""
    v_cvt_pk_bf16_f32 v72, v72, v73
    v_cvt_pk_bf16_f32 v73, v74, v75
    v_lshlrev_b32 v76, 16, v72
    v_and_b32 v77, s43, v72
    v_lshlrev_b32 v78, 16, v73
    v_and_b32 v79, s43, v73
    v_lshlrev_b32 v80, 16, v6
    v_and_b32 v81, s43, v6
    v_lshlrev_b32 v82, 16, v7
    v_and_b32 v83, s43, v7
    v_pk_add_f32 v[76:77], v[76:77], v[80:81]
    v_pk_add_f32 v[78:79], v[78:79], v[82:83]
    v_cvt_pk_bf16_f32 v72, v76, v77
    v_cvt_pk_bf16_f32 v73, v78, v79
    v_lshlrev_b32 v66, 16, v72
    v_and_b32 v67, s43, v72
    v_lshlrev_b32 v68, 16, v73
    v_and_b32 v69, s43, v73
    s_waitcnt vmcnt(0)
    """)
    stamp(17)
    def op_issue(b):
        for u in range(6):
            I(f"s_mov_b32 s46, {u * 8 * 2048}")
            I(f"buffer_load_dwordx4 v[{b+4*u}:{b+4*u+3}], v14, s[32:35], s46 offen sc1")
    def op_first(b):
        I(f"""
        v_pk_add_f32 v[72:73], v[{b}:{b+1}], v[{b+4}:{b+5}]
        v_pk_add_f32 v[74:75], v[{b+2}:{b+3}], v[{b+6}:{b+7}]
        v_pk_add_f32 v[76:77], v[{b+8}:{b+9}], v[{b+12}:{b+13}]
        v_pk_add_f32 v[78:79], v[{b+10}:{b+11}], v[{b+14}:{b+15}]
        v_pk_add_f32 v[80:81], v[{b+16}:{b+17}], v[{b+20}:{b+21}]
        v_pk_add_f32 v[82:83], v[{b+18}:{b+19}], v[{b+22}:{b+23}]
        v_pk_add_f32 v[72:73], v[72:73], v[76:77]
        v_pk_add_f32 v[74:75], v[74:75], v[78:79]
        v_pk_add_f32 v[72:73], v[72:73], v[80:81]
        v_pk_add_f32 v[74:75], v[74:75], v[82:83]
        """)
    poll2("L_o_pollp", op_issue, 6, list(range(16, 40)), list(range(40, 64)), 71, op_first, 'O')
    stamp(18)
    red_r8(72, 76)
    I(f"""
    v_cvt_pk_bf16_f32 v72, v72, v73
    v_cvt_pk_bf16_f32 v73, v74, v75
    v_lshlrev_b32 v76, 16, v72
    v_and_b32 v77, s43, v72
    v_lshlrev_b32 v78, 16, v73
    v_and_b32 v79, s43, v73
    v_pk_add_f32 v[76:77], v[76:77], v[66:67]
    v_pk_add_f32 v[78:79], v[78:79], v[68:69]
    v_cvt_pk_bf16_f32 v72, v76, v77
    v_cvt_pk_bf16_f32 v73, v78, v79
    s_mov_b64 exec, 0xff
    global_store_dwordx2 v70, v[72:73], s[22:23] {P['out_sc']}
    s_mov_b64 exec, -1
    """)
    stamp(19)
    flush_stamps()
    a.label("L_end")
    I("s_endpgm")
    a.raw('.section .rodata,"a"')
    a.raw(".p2align 6")
    a.raw(f".amdhsa_kernel {KN}_kernel")
    a.raw("  .amdhsa_next_free_vgpr 168")
    a.raw("  .amdhsa_next_free_sgpr 96")
    a.raw("  .amdhsa_accum_offset 168")
    a.raw("  .amdhsa_group_segment_fixed_size 0")
    a.raw("  .amdhsa_kernarg_size 96")
    a.raw("  .amdhsa_user_sgpr_count 2")
    a.raw("  .amdhsa_user_sgpr_kernarg_segment_ptr 1")
    a.raw("  .amdhsa_system_sgpr_workgroup_id_x 1")
    a.raw(".end_amdhsa_kernel")
    return a.text()

if __name__ == "__main__":
    out = sys.argv[1]
    kw = json.loads(sys.argv[2]) if len(sys.argv) > 2 else {}
    open(out, "w").write(gen(**kw))
    print("wrote", out)
```

```python
import sys, json
from asmlib import Asm

KN = "sequential_preLN__gqa_block_cached__glu_gated_bilinear__decode"

DEF = dict(D=18, R=8, S=112, C=2, stamps=False, dump=False, nt="nt", sleep_c=1, sleep_t=1, prio=True,
           skip_stage=False, segs=None, stage_nt="nt", qsleep=2, q_nt="nt", knt=None, vnt=None, tag_sc1=True, budget=0x40000, map="rot", out_sc="", aligned=True, stag=5, dbl="", wsleep=0, qdelay=0, De=None, Te=8, stage_at="ready", Dd=21, qst=False, touch_out=False, hoist=True)

def lds_map(R):
    ring = R * 16384
    m = {}
    m['RING'] = 0
    m['STAGE'] = ring
    f = ring + 16384
    m['FILLED'] = f
    m['NEXT'] = f + 16
    m['FINCNT'] = f + 32
    m['CLEARED'] = f + 36
    m['TAILGO'] = f + 40
    m['QREADY'] = f + 44
    m['NONCE'] = f + 48
    m['QPUB'] = f + 8
    m['XXT'] = f + 256
    m['QB'] = m['XXT'] + 2048
    m['FINO'] = m['QB'] + 256
    m['FINML'] = m['FINO'] + 2048
    m['OALL'] = m['FINML'] + 64
    m['XN2'] = m['OALL'] + 1024
    m['HH'] = m['XN2'] + 4096
    m['YP'] = m['HH'] + 256
    m['END'] = m['YP'] + 1024
    return m

WS_PO = 0x0
PREC = 640
WS_Y = 0x29000
WS_P = 0x30000
WS_QX = 0x48000
WS_TK = 0x88000
WS_CLR = 0x8C000
WS_STAMP = 0x20000000
NF = 43

LOG2E = 0x3fb8aa3b
SCALE = 0x3db504f3
EPS = 0x3727c5ac

def gen(**kw):
    P = dict(DEF); P.update(kw)
    D = P['D']; R = P['R']; NT = P['nt']; S = P['S']; C = P['C']
    M = lds_map(R)
    ldsz = (M['END'] + 255) // 256 * 256
    assert ldsz <= 163840, ldsz
    a = Asm(); I = a.I
    stamps = P['stamps']

    def spin():
        I("s_sub_u32 s89, s89, 1")
        I("s_cbranch_scc1 L_end")

    pend = []
    def stamp(slot):
        if not stamps: return
        k = len(pend); assert k < 6
        pend.append(slot)
        I(f"s_memrealtime s[{76+2*k}:{77+2*k}]")
    def flush_stamps(keep=0):
        if not stamps: return
        I("s_waitcnt lgkmcnt(0)")
        I("s_lshl_b32 s92, s2, 8")
        I(f"s_add_u32 s92, s92, {WS_STAMP}")
        I("s_add_u32 s92, s26, s92")
        I("s_addc_u32 s93, s27, 0")
        I("v_mov_b32 v166, 0")
        I("s_mov_b64 s[94:95], exec")
        I("s_mov_b64 exec, 1")
        for k, slot in enumerate(pend):
            I(f"v_mov_b32 v164, s{76+2*k}")
            I(f"v_mov_b32 v165, s{77+2*k}")
            I(f"global_store_dwordx2 v166, v[164:165], s[92:93] offset:{8*slot}")
        I("s_mov_b64 exec, s[94:95]")
        del pend[keep:]

    def lds_wait(lbl, addr_reg, tmp, sleep):
        a.label(lbl)
        spin()
        I(f"ds_read_b32 v{tmp}, v{addr_reg}")
        I("s_waitcnt lgkmcnt(0)")
        I(f"v_readfirstlane_b32 s42, v{tmp}")
        I("s_cmp_lg_u32 s42, 0")
        I(f"s_cbranch_scc1 {lbl}_ok")
        I(f"s_sleep {sleep}")
        I(f"s_branch {lbl}")
        a.label(f"{lbl}_ok")

    a.raw(f"; @launch grid=(256,1,1) block=(576,1,1) lds={ldsz}")
    for ln in """
Fused single-launch decode layer: h = x + Attn(LN(x)) ; out = h + Wd((LN(h) Wg) * (LN(h) Wu)).  One workgroup per CU, 9 waves.
Workgroup id -> head = id>>3, member = (id + head) & 7 : the 8 members of a head split its 32768 keys into tiles of 32 keys.
  wave 0      streams K/V tiles HBM -> LDS ring (LDS-DMA, a fixed window of loads in flight). Most tiles are assigned statically;
              the last ones of a head are handed out one by one through an atomic ticket, so that all members finish together.
  waves 1-4   QK^T, online softmax (true running max, scores rounded to bf16 as the reference does), PV, all with MFMA.
              Wave 1 first computes the workgroup's share of q = LN(x) Wq (64 of the 512 rows); the members exchange the shares.
  waves 5-8   fetch their slice of Wo / Wg,Wu,Wd into registers while the stream runs, then run the tail:
              W (64 workgroups): combine the 32 partials of 4 heads, times a 512x64 tile of Wo ;
              F (43 workgroups): h, LayerNorm, 32 gate/up columns, their 32 rows of Wd ;  O (16 workgroups): sum, residual, store.
Hand-offs between workgroups go through d_ws with write-through (sc1) stores and sc1 polling loads. Words are either reset to all-ones by
their producer early in the launch (and validated word by word), or carry the launch tag that workgroup 0 puts into d_debug at its start.
Every polling loop is bounded.""".strip().split("\n"):
        a.raw("; " + ln)
    a.raw('.amdgcn_target "amdgcn-amd-amdhsa--gfx950"')
    a.raw(".text")
    a.raw(f".globl {KN}_kernel")
    a.raw(".p2align 8")
    a.raw(f".type {KN}_kernel,@function")
    a.raw(f"{KN}_kernel:")
    I("s_cmp_ge_u32 s2, 256")
    I("s_cbranch_scc1 L_end")
    I("s_load_dwordx16 s[4:19], s[0:1], 0")
    I("s_load_dwordx8 s[20:27], s[0:1], 64")
    I("v_lshrrev_b32 v2, 6, v0")
    I("v_and_b32 v1, 63, v0")
    I("v_readfirstlane_b32 s28, v2")
    if P['map'] == "rot":
        I("s_lshr_b32 s29, s2, 3")
        I("s_add_u32 s30, s2, s29")
        I("s_and_b32 s30, s30, 7")
    elif P['map'] == "div":
        I("s_lshr_b32 s29, s2, 3")
        I("s_and_b32 s30, s2, 7")
    else:
        I("s_and_b32 s29, s2, 31")
        I("s_lshr_b32 s30, s2, 5")
    I("s_lshl_b32 s3, s29, 3")
    I("s_add_u32 s3, s3, s30")
    if P['map'] == "rot":
        I("s_mov_b32 s31, s30")
    else:
        I("s_sub_u32 s31, s30, s29")
        I("s_and_b32 s31, s31, 7")
    I(f"s_mov_b32 s89, {P['budget']}")
    I("s_waitcnt lgkmcnt(0)")
    I("s_cmp_eq_u32 s28, 0")
    I("s_cbranch_scc1 L_loader")
    I("s_cmp_lt_u32 s28, 5")
    I("s_cbranch_scc1 L_consumer")
    I("s_branch L_tail")

    a.label("L_loader")
    if P['prio']: I("s_setprio 3")
    stamp(0)
    I(f"""
    s_mov_b32 s32, s6
    s_and_b32 s33, s7, 0xffff
    s_mov_b32 s34, 0x10000000
    s_mov_b32 s35, 0x20000
    s_mov_b32 s36, s8
    s_and_b32 s37, s9, 0xffff
    s_mov_b32 s38, 0x10000000
    s_mov_b32 s39, 0x20000
    s_lshl_b32 s44, s29, 23
    v_lshrrev_b32 v8, 4, v1
    v_and_b32 v9, 15, v1
    v_lshlrev_b32 v10, 8, v8
    v_add_u32 v10, s44, v10
    """)
    for tt in range(4):
        I(f"v_add_u32 v11, {4*tt}, v8")
        I("v_xor_b32 v11, v11, v9")
        I("v_lshlrev_b32 v11, 4, v11")
        I(f"v_add_u32 v{2+tt}, v10, v11")
    for tp in range(2):
        I(f"v_add_u32 v11, {4*tp}, v8")
        I("v_lshlrev_b32 v11, 1, v11")
        I("v_xor_b32 v11, v11, v9")
        I("v_lshlrev_b32 v11, 4, v11")
        I(f"v_add_u32 v{6+tp}, v10, v11")
    Dd = P['Dd'] or D
    Dp = max(D, Dd)
    u0 = (Dp - 1) % 8
    half0 = (u0 - Dp + 1) // 8 - 1
    I(f"""
    s_mul_i32 s46, s30, {(128 if P['aligned'] else S) * 8192}
    s_mov_b32 s48, 0
    s_mov_b32 s49, {half0}
    s_mov_b32 s50, 0
    v_mov_b32 v12, {M['FILLED']}
    v_mov_b32 v13, {M['NEXT']}
    """)
    def loads_of_tile(first, Dw=None):
        Dw = Dw or D
        uw = u0
        for u in range(16):
            grp = u // 4
            if u % 4 == 0:
                I(f"s_add_u32 m0, s48, {grp * 4096}")
            I(f"s_waitcnt vmcnt({Dw-1})")
            if u % 8 == uw:
                I("s_add_u32 s49, s49, 1")
                I("v_mov_b32 v14, s49")
                if not first:
                    I("ds_write_b32 v12, v14")
            isv = u >= 8
            t = u % 8
            so = "s46" if t < 4 else "s47"
            KNT = NT if P['knt'] is None else P['knt']
            VNT = NT if P['vnt'] is None else P['vnt']
            if isv: I(f"buffer_load_dwordx4 v{6 + (t & 1)}, s[36:39], {so} offen offset:{(t % 4) * 1024} {VNT} lds")
            else:   I(f"buffer_load_dwordx4 v{2 + (t & 3)}, s[32:35], {so} offen offset:{(t % 4) * 1024} {KNT} lds")
    assert D >= 16
    I("s_add_u32 s47, s46, 4096")
    loads_of_tile(True)
    I(f"""
    v_mov_b32 v16, 0
    v_mov_b32 v17, 1
    v_mov_b32 v18, 2
    v_mov_b32 v19, 3
    v_mov_b32 v20, 0
    v_mov_b32 v21, 0
    v_mov_b32 v22, 0
    v_mov_b32 v23, 0
    v_mov_b32 v14, s49
    v_mov_b32 v15, 0x7fffffff
    ds_write_b64 v12, v[14:15]
    ds_write_b64 v12, v[20:21] offset:8
    ds_write_b128 v13, v[16:19]
    ds_write_b128 v13, v[20:23] offset:16
    s_waitcnt lgkmcnt(0)
    s_barrier
    s_setprio 3
    """)
    I("ds_read_b128 v[16:19], v13")
    lab = [0]
    def next_tile(advance, Dw=None):
        k = lab[0]; lab[0] += 1
        I("s_add_u32 s50, s50, 1")
        if advance: I("s_add_u32 s46, s46, 8192")
        I(f"""
        s_add_u32 s47, s46, 4096
        s_add_u32 s48, s48, 16384
        s_cmp_ge_u32 s48, {R*16384}
        s_cselect_b32 s48, 0, s48
        s_sub_u32 s52, s50, {R-1}
        """)
        a.label(f"L_ld_free{k}")
        spin()
        I(f"""
        s_waitcnt lgkmcnt(0)
        v_min3_u32 v20, v16, v17, v18
        v_min_u32 v20, v20, v19
        v_readfirstlane_b32 s51, v20
        ds_read_b128 v[16:19], v13
        s_cmp_ge_i32 s51, s52
        s_cbranch_scc0 L_ld_free{k}
        """)
        loads_of_tile(False, Dw)
    nstatic = S - 2
    bounds = [b for b in (P['segs'] or [16, 32, 48, 64, 80, 96]) if b < nstatic] + [nstatic] if stamps else [nstatic]
    for sg, b in enumerate(bounds):
        a.label(f"L_ld_tile{sg}")
        next_tile(True)
        I(f"s_cmp_lt_u32 s50, {b - 1}")
        I(f"s_cbranch_scc1 L_ld_tile{sg}")
        if stamps and sg < 7 and sg < len(bounds) - 1:
            I(f"s_memrealtime s[{60+2*sg}:{61+2*sg}]")
    def ticket(reg):
        I("s_mov_b64 exec, 1")
        I(f"global_atomic_add v{reg}, v25, v26, s[26:27] sc0 sc1")
        I("s_mov_b64 exec, -1")
    I(f"""
    s_lshl_b32 s53, s29, 8
    s_add_u32 s53, s53, {WS_TK}
    v_mov_b32 v25, s53
    v_mov_b32 v26, 1
    """)
    ticket(24)
    next_tile(True)
    ticket(27)
    next_tile(True)
    a.label("L_ld_dyn")
    for reg in (24, 27):
        if P['aligned']:
            I(f"""
            v_readfirstlane_b32 s53, v{reg}
            s_and_b32 s46, s53, 7
            s_lshl_b32 s46, s46, 7
            s_lshr_b32 s55, s53, 3
            s_add_u32 s46, s46, s55
            s_add_u32 s46, s46, {S}
            s_lshl_b32 s46, s46, 13
            s_cmp_lt_u32 s53, {8 * (128 - S)}
            s_cbranch_scc0 L_ld_over
            """)
        else:
            I(f"""
            v_readfirstlane_b32 s53, v{reg}
            s_add_u32 s53, s53, {8 * S}
            s_lshl_b32 s46, s53, 13
            s_cmp_lt_u32 s53, 1024
            s_cbranch_scc0 L_ld_over
            """)
        ticket(reg)
        next_tile(False, Dd)
    I("s_branch L_ld_dyn")
    a.label("L_ld_over")
    assert 32 >= Dp + 1, "a ticket must have landed two tiles later"
    I("s_add_u32 s53, s50, 1")
    I("v_mov_b32 v14, s53")
    I("ds_write_b32 v12, v14 offset:4")
    last_u = 8 + u0
    rem = 16 - last_u + Dp - 1
    while rem > 0:
        rem -= 8
        I(f"s_waitcnt vmcnt({rem})")
        I("s_add_u32 s49, s49, 1")
        I("v_mov_b32 v14, s49")
        I("ds_write_b32 v12, v14")
    assert rem == 0
    I("s_waitcnt lgkmcnt(0)")
    stamp(1)
    flush_stamps()
    if stamps:
        I("s_lshl_b32 s92, s2, 8")
        I(f"s_add_u32 s92, s92, {WS_STAMP + 20 * 8}")
        I("s_add_u32 s92, s26, s92")
        I("s_addc_u32 s93, s27, 0")
        I("v_mov_b32 v166, 0")
        I("s_mov_b64 exec, 1")
        for k in range(7):
            I(f"v_mov_b32 v164, s{60+2*k}")
            I(f"v_mov_b32 v165, s{61+2*k}")
            I(f"global_store_dwordx2 v166, v[164:165], s[92:93] offset:{8*k}")
        I("v_mov_b32 v164, s50")
        I("v_mov_b32 v165, 0")
        I(f"global_store_dwordx2 v166, v[164:165], s[92:93] offset:{8*7}")
    I("s_endpgm")

    def wave_sum(v, t):
        for r in (8, 4, 2, 1):
            I(f"v_add_f32_dpp v{v}, v{v}, v{v} row_ror:{r} row_mask:0xf bank_mask:0xf")
        I(f"v_mov_b32 v{t}, v{v}")
        I(f"v_permlane16_swap_b32 v{v}, v{t}")
        I(f"v_add_f32 v{v}, v{v}, v{t}")
        I(f"v_mov_b32 v{t}, v{v}")
        I(f"v_permlane32_swap_b32 v{v}, v{t}")
        I(f"v_add_f32 v{v}, v{v}, v{t}")
    def unpack8(src, dst):
        for j in range(4):
            I(f"v_lshlrev_b32 v{dst+2*j}, 16, v{src+j}")
            I(f"v_and_b32 v{dst+2*j+1}, s43, v{src+j}")
    def layernorm8(x, tmp):
        s, t, mb, den = tmp, tmp+1, tmp+2, tmp+3
        I(f"v_add_f32 v{s}, v{x}, v{x+1}")
        for j in range(2, 8): I(f"v_add_f32 v{s}, v{s}, v{x+j}")
        wave_sum(s, t)
        I(f"v_mul_f32 v{s}, 0x3b000000, v{s}")
        I(f"v_cvt_pk_bf16_f32 v{mb}, v{s}, v{s}")
        I(f"v_and_b32 v{mb}, s43, v{mb}")
        I(f"v_sub_f32 v{t}, v{x}, v{s}")
        I(f"v_mul_f32 v{den}, v{t}, v{t}")
        for j in range(1, 8):
            I(f"v_sub_f32 v{t}, v{x+j}, v{s}")
            I(f"v_fmac_f32 v{den}, v{t}, v{t}")
        wave_sum(den, t)
        I(f"v_mul_f32 v{den}, 0x3b000000, v{den}")
        I(f"v_cvt_pk_bf16_f32 v{den}, v{den}, v{den}")
        I(f"v_and_b32 v{den}, s43, v{den}")
        I(f"v_add_f32 v{den}, {hex(EPS)}, v{den}")
        I(f"v_cvt_pk_bf16_f32 v{den}, v{den}, v{den}")
        I(f"v_and_b32 v{den}, s43, v{den}")
        I(f"v_sqrt_f32 v{den}, v{den}")
        I(f"v_cvt_pk_bf16_f32 v{den}, v{den}, v{den}")
        I(f"v_and_b32 v{den}, s43, v{den}")
        I(f"v_rcp_f32 v{den}, v{den}")
        for j in range(0, 8, 2):
            I(f"v_sub_f32 v{x+j}, v{x+j}, v{mb}")
            I(f"v_sub_f32 v{x+j+1}, v{x+j+1}, v{mb}")
            I(f"v_cvt_pk_bf16_f32 v{t}, v{x+j}, v{x+j+1}")
            I(f"v_lshlrev_b32 v{x+j}, 16, v{t}")
            I(f"v_and_b32 v{x+j+1}, s43, v{t}")
            I(f"v_mul_f32 v{x+j}, v{x+j}, v{den}")
            I(f"v_mul_f32 v{x+j+1}, v{x+j+1}, v{den}")

    a.label("L_consumer")
    I("s_sub_u32 s40, s28, 1")
    I("s_mov_b32 s43, 0xffff0000")
    I("v_lshrrev_b32 v8, 4, v1")
    I("v_and_b32 v9, 15, v1")
    I("s_cmp_eq_u32 s40, 0")
    I("s_cbranch_scc1 L_c_q")
    I("s_barrier")
    I("s_branch L_c_qwait")
    a.label("L_c_q")
    I("""
    s_cmp_eq_u32 s2, 0
    s_cbranch_scc0 L_q_notag
    s_memrealtime s[56:57]
    s_waitcnt lgkmcnt(0)
    s_or_b32 s56, s56, 1
    s_or_b32 s57, s57, 0x40000000
    s_and_b32 s57, s57, 0x7fffffff
    v_mov_b32 v34, s56
    v_mov_b32 v35, s57
    v_mov_b32 v2, 0
    s_mov_b64 exec, 1
    global_store_dwordx2 v2, v[34:35], s[24:25] sc1
    s_mov_b64 exec, -1
    """)
    a.label("L_q_notag")
    I(f"""
    v_mov_b32 v2, 0
    global_load_dwordx2 v[34:35], v2, s[24:25] {"sc1" if P['tag_sc1'] else ""}
    s_mov_b32 s32, s10
    s_and_b32 s33, s11, 0xffff
    s_mov_b32 s34, 0x400000
    s_mov_b32 s35, 0x20000
    v_lshlrev_b32 v2, 4, v1
    global_load_dwordx4 v[30:33], v2, s[4:5]
    s_lshl_b32 s41, s30, 6
    v_add_u32 v3, s41, v8
    v_lshlrev_b32 v3, 13, v3
    v_lshlrev_b32 v4, 4, v9
    v_add_u32 v3, v3, v4
    s_lshl_b32 s41, s29, 8
    v_add_u32 v3, s41, v3
    """)
    for t in range(16):
        I(f"s_mov_b32 s42, {t * 32768}")
        I(f"buffer_load_dwordx4 v[{40+4*t}:{43+4*t}], v3, s[32:35], s42 offen {P['q_nt']}")
    if P['qst']: stamp(28)
    I("s_barrier")
    I("s_waitcnt vmcnt(16)")
    if P['qst']: stamp(29)
    unpack8(30, 10)
    layernorm8(10, 4)
    for e in range(8):
        I(f"v_cvt_pk_bf16_f32 v{18+e}, v{10+e}, v{10+e}")
    I(f"""
    v_lshrrev_b32 v4, 3, v1
    v_lshlrev_b32 v4, 8, v4
    v_and_b32 v5, 7, v1
    v_lshlrev_b32 v5, 3, v5
    v_add_u32 v4, v4, v5
    v_add_u32 v4, {M['XXT']}, v4
    """)
    for g in range(4):
        I(f"v_mov_b32 v26, v{18+g}")
        I(f"v_mov_b32 v27, v{18+g+4}")
        I(f"ds_write_b64 v4, v[26:27] offset:{g*64}")
    I(f"""
    v_and_b32 v5, 1, v9
    v_mov_b32 v6, 0xffff
    v_mov_b32 v7, s43
    v_cmp_eq_u32 vcc, 1, v5
    v_cndmask_b32 v5, v6, v7, vcc
    v_lshrrev_b32 v6, 1, v9
    """)
    for j in range(4):
        I(f"v_cmp_eq_u32 vcc, {j}, v6")
        I(f"v_cndmask_b32 v{10+j}, 0, v5, vcc")
    I(f"""
    s_lshl_b32 s41, s30, 8
    s_add_u32 s41, s41, {M['XXT']}
    v_lshlrev_b32 v4, 6, v8
    v_add_u32 v4, s41, v4
    s_waitcnt lgkmcnt(0)
    ds_read_b128 v[104:107], v4
    ds_read_b128 v[108:111], v4 offset:16
    ds_read_b128 v[112:115], v4 offset:32
    ds_read_b128 v[116:119], v4 offset:48
    s_waitcnt lgkmcnt(0)
    """)
    if P['qst']: stamp(31)
    for t in range(16):
        bb = 18 + 4 * (t % 2)
        for j in range(4):
            I(f"v_and_b32 v{bb+j}, v{104+t}, v{10+j}")
        I(f"s_waitcnt vmcnt({15 - t})")
        c = "0" if t == 0 else "v[26:29]"
        I(f"v_mfma_f32_16x16x32_bf16 v[26:29], v[{40+4*t}:{43+4*t}], v[{bb}:{bb+3}], {c}")
    if P['qst']: stamp(30)
    I("""
    v_readfirstlane_b32 s56, v34
    v_readfirstlane_b32 s57, v35
    s_cmp_lg_u32 s56, 0
    s_cbranch_scc1 L_q_havetag
    """)
    a.label("L_q_tagpoll")
    spin()
    I("""
    v_mov_b32 v2, 0
    global_load_dwordx2 v[34:35], v2, s[24:25] sc1
    s_waitcnt vmcnt(0)
    v_readfirstlane_b32 s56, v34
    v_readfirstlane_b32 s57, v35
    s_cmp_lg_u32 s56, 0
    s_cbranch_scc1 L_q_havetag
    s_sleep 2
    s_branch L_q_tagpoll
    """)
    a.label("L_q_havetag")
    I(f"v_mov_b32 v5, {M['CLEARED']}")
    lds_wait("L_q_clr", 5, 6, 1)
    I(f"""
    v_mov_b32_dpp v14, v28 row_ror:8 row_mask:0xf bank_mask:0xf
    v_mov_b32_dpp v16, v29 row_ror:8 row_mask:0xf bank_mask:0xf
    v_cmp_gt_u32 vcc, 8, v9
    v_mov_b32 v11, s56
    v_mov_b32 v13, s57
    v_cndmask_b32 v10, v14, v26, vcc
    v_cndmask_b32 v12, v16, v27, vcc
    v_mov_b32 v18, s56
    v_mov_b32 v19, s57
    v_mov_b32 v6, {M['NONCE']}
    ds_write_b64 v6, v[18:19]
    s_lshl_b32 s41, s3, 10
    s_add_u32 s41, s41, {WS_QX}
    v_and_b32 v4, 7, v9
    v_lshlrev_b32 v4, 1, v4
    v_lshrrev_b32 v5, 3, v9
    v_add_u32 v4, v4, v5
    v_lshlrev_b32 v5, 4, v8
    v_add_u32 v4, v4, v5
    v_lshlrev_b32 v4, 4, v4
    v_add_u32 v4, s41, v4
    global_store_dwordx4 v4, v[10:13], s[26:27] sc1
    v_mov_b32 v6, {M['QPUB']}
    v_mov_b32 v7, 1
    ds_write_b32 v6, v7
    s_mov_b64 exec, 1
    s_lshl_b32 s41, s3, 3
    s_add_u32 s41, s41, {WS_CLR}
    v_mov_b32 v4, s41
    global_store_dwordx2 v4, v[18:19], s[26:27] sc1
    s_mov_b64 exec, -1
    s_lshl_b32 s41, s29, 13
    s_add_u32 s41, s41, {WS_QX}
    v_lshlrev_b32 v4, 4, v1
    v_add_u32 v4, s41, v4
    v_add_u32 v5, 4096, v4
    """)
    stamp(5)
    if P['qdelay']: I(f"s_sleep {P['qdelay']}")
    a.label("L_q_poll")
    spin()
    for i in range(8):
        I(f"global_load_dwordx4 v[{40+4*i}:{43+4*i}], v{4 if i < 4 else 5}, s[26:27] offset:{1024*(i%4)} sc1")
    I("s_waitcnt vmcnt(0)")
    I("v_xor_b32 v6, s56, v41")
    I("v_xor_b32 v7, s57, v43")
    I("v_or_b32 v6, v6, v7")
    for i in range(1, 8):
        I(f"v_xor_b32 v7, s56, v{41+4*i}")
        I(f"v_or_b32 v6, v6, v7")
        I(f"v_xor_b32 v7, s57, v{43+4*i}")
        I(f"v_or_b32 v6, v6, v7")
    I("v_cmp_ne_u32 vcc, 0, v6")
    I("s_cbranch_vccz L_q_seen")
    if P['qsleep']: I(f"s_sleep {P['qsleep']}")
    I("s_branch L_q_poll")
    a.label("L_q_seen")
    stamp(6)
    for c in (0, 2):
        I(f"v_add_f32 v{40+c}, v{40+c}, v{44+c}")
        I(f"v_add_f32 v{48+c}, v{48+c}, v{52+c}")
        I(f"v_add_f32 v{56+c}, v{56+c}, v{60+c}")
        I(f"v_add_f32 v{64+c}, v{64+c}, v{68+c}")
    for c in (0, 2):
        I(f"v_add_f32 v{40+c}, v{40+c}, v{48+c}")
        I(f"v_add_f32 v{56+c}, v{56+c}, v{64+c}")
    for c in (0, 2):
        I(f"v_add_f32 v{40+c}, v{40+c}, v{56+c}")
    I(f"""
    v_cvt_pk_bf16_f32 v10, v40, v42
    v_lshrrev_b32 v11, 16, v10
    v_lshrrev_b32 v5, 1, v9
    v_and_b32 v6, 1, v1
    v_lshlrev_b32 v6, 4, v6
    v_add_u32 v5, v5, v6
    v_lshlrev_b32 v6, 5, v8
    v_add_u32 v5, v5, v6
    v_lshlrev_b32 v5, 1, v5
    v_add_u32 v5, {M['QB']}, v5
    ds_write_b16 v5, v10
    ds_write_b16 v5, v11 offset:16
    v_mov_b32 v6, {M['QREADY']}
    v_mov_b32 v7, 1
    s_waitcnt lgkmcnt(0)
    ds_write_b32 v6, v7
    """)
    flush_stamps()
    if P['dump']:
        I(f"""
        v_lshlrev_b32 v4, 2, v1
        v_add_u32 v5, {M['QB']}, v4
        ds_read_b32 v10, v5
        s_lshl_b32 s41, s3, 8
        s_add_u32 s41, s41, 0x100000
        v_add_u32 v4, s41, v4
        s_waitcnt lgkmcnt(0)
        global_store_dword v4, v10, s[26:27]
        """)
    a.label("L_c_qwait")
    I(f"v_mov_b32 v5, {M['QREADY']}")
    lds_wait("L_c_qw", 5, 6, 1)
    I(f"""
    v_lshlrev_b32 v5, 4, v8
    v_add_u32 v5, {M['QB']}, v5
    ds_read_b128 v[40:43], v5
    ds_read_b128 v[44:47], v5 offset:64
    ds_read_b128 v[48:51], v5 offset:128
    ds_read_b128 v[52:55], v5 offset:192
    """)
    I(f"""
    v_xor_b32 v2, v8, v9
    v_lshlrev_b32 v2, 4, v2
    v_lshlrev_b32 v10, 8, v9
    v_add_u32 v2, v2, v10
    v_lshrrev_b32 v10, 2, v9
    v_and_b32 v11, 3, v9
    v_lshlrev_b32 v12, 2, v8
    v_add_u32 v12, v12, v10
    v_and_b32 v13, 7, v12
    v_lshlrev_b32 v13, 1, v13
    v_lshrrev_b32 v14, 1, v11
    v_xor_b32 v13, v13, v14
    v_lshlrev_b32 v13, 4, v13
    v_and_b32 v14, 1, v11
    v_lshlrev_b32 v14, 3, v14
    v_lshlrev_b32 v3, 8, v12
    v_add_u32 v3, v3, v13
    v_add_u32 v3, v3, v14
    v_add_u32 v3, 8192, v3
    v_mov_b32 v4, 0xff800000
    v_mov_b32 v5, 0
    v_mov_b32 v6, 0
    v_mov_b32 v7, {M['FILLED']}
    s_lshl_b32 s41, s40, 2
    s_add_u32 s41, s41, {M['NEXT']}
    v_mov_b32 v38, s41
    s_mov_b32 s44, {hex(LOG2E)}
    s_mov_b32 s45, {hex(SCALE)}
    s_mov_b32 s46, s40
    s_lshl_b32 s47, s40, 14
    s_mov_b32 s48, -100
    s_mov_b32 s50, 0x7fffffff
    """)
    for r in range(56, 88): I(f"v_mov_b32 v{r}, 0")
    I(f"""
    s_lshl_b32 s41, s40, 9
    s_add_u32 s41, s41, {M['FINO']}
    v_lshlrev_b32 v120, 2, v9
    v_add_u32 v120, s41, v120
    s_lshl_b32 s41, s40, 3
    s_add_u32 s41, s41, {M['FINML']}
    v_mov_b32 v121, s41
    v_mov_b32 v122, {M['FINCNT']}
    v_mov_b32 v123, 1
    v_lshlrev_b32 v124, 3, v1
    s_mul_i32 s41, s3, {PREC}
    v_add_u32 v125, s41, v124
    v_add_u32 v124, {M['FINO']}, v124
    v_mov_b32 v126, {M['FINML']}
    v_mov_b32 v127, {M['TAILGO']}
    """)
    I("s_waitcnt lgkmcnt(0)")
    stamp(2)
    a.label("L_c_tile")
    def wait_half(lbl, k):
        I(f"s_lshl_b32 s49, s46, 1")
        I(f"s_add_u32 s49, s49, {k}")
        I(f"s_cmp_ge_i32 s48, s49")
        I(f"s_cbranch_scc1 {lbl}_ok")
        a.label(f"{lbl}_poll")
        spin()
        I("ds_read_b64 v[36:37], v7")
        I("s_waitcnt lgkmcnt(0)")
        I("v_readfirstlane_b32 s48, v36")
        I("v_readfirstlane_b32 s50, v37")
        I("s_cmp_ge_i32 s48, s49")
        I(f"s_cbranch_scc1 {lbl}_ok")
        if k == 1:
            I("s_cmp_ge_u32 s46, s50")
            I("s_cbranch_scc1 L_c_fin")
            I(f"s_sleep {P['sleep_c']}")
        I(f"s_branch {lbl}_poll")
        a.label(f"{lbl}_ok")
    wait_half("L_c_k", 1)
    I("v_add_u32 v10, s47, v2")
    for j in range(1, 4): I(f"v_xor_b32 v{10+j}, {j << 6}, v10")
    KF = 88
    for j in range(4):
        I(f"ds_read_b128 v[{KF+4*j}:{KF+4*j+3}], v{10+j}")
        I(f"ds_read_b128 v[{KF+16+4*j}:{KF+16+4*j+3}], v{10+j} offset:4096")
    for j in range(4):
        I(f"s_waitcnt lgkmcnt({6 - 2*j})")
        c0 = "0" if j == 0 else "v[18:21]"
        c1 = "0" if j == 0 else "v[22:25]"
        I(f"v_mfma_f32_16x16x32_bf16 v[18:21], v[{KF+4*j}:{KF+4*j+3}], v[{40+4*j}:{43+4*j}], {c0}")
        I(f"v_mfma_f32_16x16x32_bf16 v[22:25], v[{KF+16+4*j}:{KF+16+4*j+3}], v[{40+4*j}:{43+4*j}], {c1}")
    I("v_add_u32 v10, s47, v3")
    for nb in range(1, 8): I(f"v_xor_b32 v{10+nb}, {nb << 5}, v10")
    SS = 18
    for p in range(4): I(f"v_cvt_pk_bf16_f32 v{30+p}, v{SS+2*p}, v{SS+2*p+1}")
    for p in range(4):
        I(f"v_lshlrev_b32 v{SS+2*p}, 16, v{30+p}")
        I(f"v_and_b32 v{SS+2*p+1}, s43, v{30+p}")
    for i in range(8): I(f"v_mul_f32 v{SS+i}, s45, v{SS+i}")
    for p in range(4): I(f"v_cvt_pk_bf16_f32 v{30+p}, v{SS+2*p}, v{SS+2*p+1}")
    for p in range(4):
        I(f"v_lshlrev_b32 v{SS+2*p}, 16, v{30+p}")
        I(f"v_and_b32 v{SS+2*p+1}, s43, v{30+p}")
    I(f"""
    v_max3_f32 v34, v{SS}, v{SS+1}, v{SS+2}
    v_max3_f32 v35, v{SS+3}, v{SS+4}, v{SS+5}
    v_max3_f32 v34, v34, v{SS+6}, v{SS+7}
    v_max_f32 v34, v34, v35
    v_mov_b32 v35, v34
    v_permlane32_swap_b32 v34, v35
    v_max_f32 v34, v34, v35
    v_mov_b32 v35, v34
    v_permlane16_swap_b32 v34, v35
    v_max_f32 v34, v34, v35
    v_cmp_gt_f32 vcc, v34, v4
    s_cbranch_vccz L_c_norescale
    v_sub_f32 v35, v4, v34
    v_mul_f32 v35, s44, v35
    v_exp_f32 v35, v35
    v_mov_b32 v4, v34
    v_mul_f32 v6, s44, v34
    v_mul_f32 v5, v5, v35
    """)
    for r in range(56, 88): I(f"v_mul_f32 v{r}, v{r}, v35")
    a.label("L_c_norescale")
    for i in range(8): I(f"v_fma_f32 v{SS+i}, v{SS+i}, s44, -v6")
    for i in range(8): I(f"v_exp_f32 v{SS+i}, v{SS+i}")
    for p in range(4): I(f"v_cvt_pk_bf16_f32 v{26+p}, v{SS+2*p}, v{SS+2*p+1}")
    I(f"""
    v_add_f32 v30, v{SS}, v{SS+1}
    v_add_f32 v31, v{SS+2}, v{SS+3}
    v_add_f32 v32, v{SS+4}, v{SS+5}
    v_add_f32 v33, v{SS+6}, v{SS+7}
    v_add_f32 v30, v30, v31
    v_add_f32 v32, v32, v33
    v_add_f32 v30, v30, v32
    v_add_f32 v5, v5, v30
    """)
    wait_half("L_c_v", 2)
    def vread(nb):
        I(f"ds_read_b64_tr_b16 v[{KF+4*nb}:{KF+4*nb+1}], v{10+nb}")
        I(f"ds_read_b64_tr_b16 v[{KF+4*nb+2}:{KF+4*nb+3}], v{10+nb} offset:4096")
    def pv(nb):
        I(f"v_mfma_f32_16x16x32_bf16 v[{56+4*nb}:{59+4*nb}], v[26:29], v[{KF+4*nb}:{KF+4*nb+3}], v[{56+4*nb}:{59+4*nb}]")
    for nb in range(7): vread(nb)
    I("s_waitcnt lgkmcnt(6)")
    for nb in range(4): pv(nb)
    vread(7)
    I("s_waitcnt lgkmcnt(2)")
    for nb in range(4, 7): pv(nb)
    I("s_add_u32 s46, s46, 4")
    I("v_mov_b32 v30, s46")
    I("s_waitcnt lgkmcnt(0)")
    I("ds_write_b32 v38, v30")
    pv(7)
    I(f"""
    s_add_u32 s47, s47, {4*16384}
    s_cmp_ge_u32 s47, {R*16384}
    s_cselect_b32 s49, {R*16384}, 0
    s_sub_u32 s47, s47, s49
    s_cmp_ge_u32 s46, s50
    s_cbranch_scc0 L_c_tile
    """)
    a.label("L_c_fin")
    stamp(3)
    I(f"""
    v_mov_b32 v30, v5
    v_mov_b32 v4, v6
    ds_write_b32 v120, v56 offset:0
    v_permlane32_swap_b32 v5, v30
    ds_write_b32 v120, v60 offset:64
    ds_write_b32 v120, v64 offset:128
    v_add_f32 v5, v5, v30
    ds_write_b32 v120, v68 offset:192
    v_mov_b32 v30, v5
    ds_write_b32 v120, v72 offset:256
    ds_write_b32 v120, v76 offset:320
    v_permlane16_swap_b32 v5, v30
    ds_write_b32 v120, v80 offset:384
    ds_write_b32 v120, v84 offset:448
    v_add_f32 v5, v5, v30
    ds_write_b64 v121, v[4:5]
    s_mov_b64 exec, 1
    ds_add_rtn_u32 v32, v122, v123
    s_mov_b64 exec, -1
    ds_read_b128 v[20:23], v126
    ds_read_b128 v[24:27], v126 offset:16
    ds_read_b64 v[12:13], v124
    ds_read_b64 v[14:15], v124 offset:512
    ds_read_b64 v[16:17], v124 offset:1024
    ds_read_b64 v[18:19], v124 offset:1536
    s_waitcnt lgkmcnt(0)
    v_readfirstlane_b32 s41, v32
    v_max3_f32 v28, v20, v22, v24
    s_cmp_eq_u32 s41, 3
    s_cbranch_scc0 L_end
    ds_write_b32 v127, v123
    v_max_f32 v28, v28, v26
    v_sub_f32 v20, v20, v28
    v_sub_f32 v22, v22, v28
    v_sub_f32 v24, v24, v28
    v_sub_f32 v26, v26, v28
    v_exp_f32 v20, v20
    v_exp_f32 v22, v22
    v_exp_f32 v24, v24
    v_exp_f32 v26, v26
    v_pk_mul_f32 v[12:13], v[12:13], v[20:21] op_sel_hi:[1,0]
    v_mul_f32 v29, v21, v20
    v_pk_fma_f32 v[12:13], v[14:15], v[22:23], v[12:13] op_sel_hi:[1,0,1]
    v_fmac_f32 v29, v23, v22
    v_pk_fma_f32 v[12:13], v[16:17], v[24:25], v[12:13] op_sel_hi:[1,0,1]
    v_fmac_f32 v29, v25, v24
    v_pk_fma_f32 v[12:13], v[18:19], v[26:27], v[12:13] op_sel_hi:[1,0,1]
    v_fmac_f32 v29, v27, v26
    global_store_dwordx2 v125, v[12:13], s[26:27] sc1
    s_mov_b64 exec, 0xffff
    global_store_dwordx2 v125, v[28:29], s[26:27] offset:512 sc1
    s_mov_b64 exec, -1
    """)
    stamp(4)
    flush_stamps()
    I("s_endpgm")

    a.label("L_tail")
    I("s_sub_u32 s40, s28, 5")
    I("s_mov_b32 s43, 0xffff0000")
    I(f"""
    s_mov_b32 s54, 0
    s_mov_b32 s44, 0
    s_cmp_eq_u32 s31, 4
    s_cbranch_scc0 L_t_r0
    s_cmp_lt_u32 s29, 16
    s_cbranch_scc0 L_t_rdone
    s_mov_b32 s54, 3
    s_mov_b32 s44, s29
    s_branch L_t_rdone
    """)
    a.label("L_t_r0")
    I(f"""
    s_cmp_lt_u32 s29, 11
    s_cbranch_scc0 L_t_r1
    s_cmp_lt_u32 s31, 3
    s_cbranch_scc0 L_t_rdone
    s_mov_b32 s54, 1
    s_mov_b32 s44, s29
    s_cmp_eq_u32 s31, 0
    s_cbranch_scc1 L_t_rdone
    s_mov_b32 s54, 2
    s_lshl_b32 s44, s29, 1
    s_add_u32 s44, s44, s31
    s_sub_u32 s44, s44, 1
    s_branch L_t_rdone
    """)
    a.label("L_t_r1")
    I(f"""
    s_cmp_lt_u32 s29, 22
    s_cbranch_scc0 L_t_r2
    s_cmp_lt_u32 s31, 4
    s_cbranch_scc0 L_t_rdone
    s_mov_b32 s54, 2
    s_add_u32 s44, s29, 11
    s_cmp_eq_u32 s31, 3
    s_cbranch_scc1 L_t_rdone
    s_mov_b32 s54, 1
    s_mul_i32 s44, s29, 3
    s_add_u32 s44, s44, s31
    s_sub_u32 s44, s44, 22
    s_branch L_t_rdone
    """)
    a.label("L_t_r2")
    I(f"""
    s_cmp_lt_u32 s31, 3
    s_cbranch_scc0 L_t_rdone
    s_mov_b32 s54, 2
    s_add_u32 s44, s29, 11
    s_cmp_eq_u32 s31, 2
    s_cbranch_scc1 L_t_rdone
    s_mov_b32 s54, 1
    s_lshl_b32 s44, s29, 1
    s_add_u32 s44, s44, s31
    """)
    a.label("L_t_rdone")
    I("s_barrier")
    I(f"""
    v_lshrrev_b32 v8, 4, v1
    v_and_b32 v9, 15, v1
    s_cmp_eq_u32 s40, 0
    s_cbranch_scc0 L_t_noclear
    """)
    I(f"""
    v_mov_b32 v10, -1
    v_mov_b32 v11, -1
    v_mov_b32 v12, -1
    v_mov_b32 v13, -1
    s_mul_i32 s41, s3, {PREC}
    v_lshlrev_b32 v4, 3, v1
    v_add_u32 v4, s41, v4
    global_store_dwordx2 v4, v[10:11], s[26:27] sc1
    s_mov_b64 exec, 0xffff
    global_store_dwordx2 v4, v[10:11], s[26:27] offset:512 sc1
    s_mov_b64 exec, -1
    s_cmp_eq_u32 s30, 0
    s_cbranch_scc0 L_t_clr_tk
    s_lshl_b32 s41, s29, 8
    s_add_u32 s41, s41, {WS_TK}
    v_mov_b32 v4, s41
    v_mov_b32 v5, 0
    global_store_dword v4, v5, s[26:27] sc1
    """)
    a.label("L_t_clr_tk")
    I(f"""
    s_cmp_eq_u32 s54, 1
    s_cbranch_scc0 L_t_clr_f
    s_lshl_b32 s41, s44, 8
    s_add_u32 s41, s41, {WS_Y}
    v_lshlrev_b32 v4, 2, v1
    v_add_u32 v4, s41, v4
    global_store_dword v4, v10, s[26:27] sc1
    s_branch L_t_clr_done
    """)
    a.label("L_t_clr_f")
    I(f"""
    s_cmp_eq_u32 s54, 2
    s_cbranch_scc0 L_t_clr_done
    s_lshl_b32 s41, s44, 11
    s_add_u32 s41, s41, {WS_P}
    v_lshlrev_b32 v4, 4, v1
    v_add_u32 v4, s41, v4
    global_store_dwordx4 v4, v[10:13], s[26:27] sc1
    global_store_dwordx4 v4, v[10:13], s[26:27] offset:1024 sc1
    """)
    a.label("L_t_clr_done")
    I(f"""
    s_waitcnt vmcnt(0)
    v_mov_b32 v4, {M['CLEARED']}
    v_mov_b32 v5, 1
    ds_write_b32 v4, v5
    """)
    a.label("L_t_noclear")
    I(f"""
    s_cmp_eq_u32 s54, 0
    s_cbranch_scc1 L_end
    s_cmp_eq_u32 s54, 3
    s_cbranch_scc0 L_t_wf
    s_cmp_eq_u32 s40, 0
    s_cbranch_scc1 L_t_o
    s_endpgm
    """)
    a.label("L_t_wf")
    if P['stage_at'] != "start":
        I(f"v_mov_b32 v4, {M['QREADY'] if P['stage_at'] == 'ready' else M['QPUB']}")
        lds_wait("L_t_qw", 4, 5, 8)
    I("s_cmp_eq_u32 s54, 2")
    I("s_cbranch_scc1 L_t_f")

    STG = M['STAGE']
    SNT = P['stage_nt']
    def stage_setup():
        I(f"s_lshl_b32 s41, s40, 12")
        I(f"s_add_u32 s41, s41, {STG}")
    def dma(addr, u, step_bytes):
        if P['skip_stage']: return
        I(f"s_add_u32 m0, s41, {u*1024}")
        I(f"s_nop 0")
        I(f"global_load_lds_dwordx4 v[{addr}:{addr+1}], off {SNT}")
        if step_bytes:
            I(f"v_add_co_u32 v{addr}, vcc, {step_bytes}, v{addr}")
            I(f"v_addc_co_u32 v{addr+1}, vcc, 0, v{addr+1}, vcc")
    def tr_reads(trbase, offs, dst):
        I("s_waitcnt vmcnt(0)")
        d = dst
        for off in offs:
            I(f"ds_read_b64_tr_b16 v[{d}:{d+1}], v{trbase} offset:{off[0]}")
            I(f"ds_read_b64_tr_b16 v[{d+2}:{d+3}], v{trbase} offset:{off[1]}")
            d += 4
        I("s_waitcnt lgkmcnt(0)")
    def tr_addr(reg, rowstride):
        I(f"v_lshrrev_b32 v10, 2, v9")
        I(f"v_lshlrev_b32 v11, 3, v8")
        I(f"v_add_u32 v10, v10, v11")
        I(f"v_mul_u32_u24 v10, {rowstride}, v10")
        I(f"v_and_b32 v11, 3, v9")
        I(f"v_lshlrev_b32 v11, 3, v11")
        I(f"v_add_u32 v10, v10, v11")
        I(f"v_add_u32 v{reg}, s41, v10")
    def wait_flags_and_go(lbl):
        if P['stage_at'] != "ready" and lbl != "L_o":
            I(f"v_mov_b32 v4, {M['QREADY']}")
            lds_wait(f"{lbl}_qr", 4, 5, 8)
        I(f"""
        v_mov_b32 v4, {M['NONCE']}
        ds_read_b64 v[16:17], v4
        v_lshlrev_b32 v4, 4, v1
        v_add_u32 v4, {WS_CLR}, v4
        s_waitcnt lgkmcnt(0)
        """)
        a.label(f"{lbl}_clr")
        spin()
        I(f"""
        global_load_dwordx4 v[20:23], v4, s[26:27] sc1
        global_load_dwordx4 v[24:27], v4, s[26:27] offset:1024 sc1
        s_waitcnt vmcnt(0)
        """)
        I("v_xor_b32 v5, v16, v20")
        for r in (22, 24, 26):
            I(f"v_xor_b32 v18, v16, v{r}")
            I("v_or_b32 v5, v5, v18")
        for r in (21, 23, 25, 27):
            I(f"v_xor_b32 v18, v17, v{r}")
            I("v_or_b32 v5, v5, v18")
        I(f"""
        v_cmp_ne_u32 vcc, 0, v5
        s_cbranch_vccz {lbl}_go0
        s_sleep 32
        s_branch {lbl}_clr
        """)
        a.label(f"{lbl}_go0")
        if lbl == "L_o":
            I(f"""
            s_cmp_eq_u32 s44, 0
            s_cbranch_scc0 L_o_keep
            v_mov_b32 v4, 0
            v_mov_b32 v20, 0
            v_mov_b32 v21, 0
            s_mov_b64 exec, 1
            global_store_dwordx2 v4, v[20:21], s[24:25] sc1
            s_mov_b64 exec, -1
            """)
            a.label("L_o_keep")
        I(f"v_mov_b32 v4, {M['TAILGO']}")
        lds_wait(f"{lbl}_go", 4, 5, P['sleep_t'])
    def any_reset(regs, tmp):
        rs = list(regs)
        I(f"v_max3_u32 v{tmp}, v{rs[0]}, v{rs[1]}, v{rs[2]}")
        rs = rs[3:]
        while len(rs) >= 2:
            I(f"v_max3_u32 v{tmp}, v{tmp}, v{rs[0]}, v{rs[1]}"); rs = rs[2:]
        if rs: I(f"v_max_u32 v{tmp}, v{tmp}, v{rs[0]}")
        I(f"v_cmp_eq_u32 vcc, -1, v{tmp}")
    def poll2(lbl, issue, nloads, regsA, regsB, tmp, first, key):
        if key not in P['dbl']:
            a.label(f"{lbl}")
            spin()
            issue(regsA[0])
            I("s_waitcnt vmcnt(0)")
            any_reset(regsA, tmp)
            if key == 'W' and P['wsleep']:
                I(f"s_cbranch_vccz {lbl}_ok")
                I(f"s_sleep {P['wsleep']}")
                I(f"s_branch {lbl}")
                a.label(f"{lbl}_ok")
            else:
                I(f"s_cbranch_vccnz {lbl}")
            first(regsA[0])
            return
        issue(regsA[0])
        if P['stag']: I(f"s_sleep {P['stag']}")
        a.label(f"{lbl}")
        spin()
        issue(regsB[0])
        I(f"s_waitcnt vmcnt({nloads})")
        any_reset(regsA, tmp)
        I(f"s_cbranch_vccz {lbl}_a")
        issue(regsA[0])
        I(f"s_waitcnt vmcnt({nloads})")
        any_reset(regsB, tmp)
        I(f"s_cbranch_vccnz {lbl}")
        first(regsB[0])
        I(f"s_branch {lbl}_join")
        a.label(f"{lbl}_a")
        first(regsA[0])
        a.label(f"{lbl}_join")
    def gemv_kslice(abase, wb, acc, tmp):
        for ks in range(4):
            I(f"ds_read_b128 v[{tmp+4*ks}:{tmp+4*ks+3}], v{abase} offset:{ks*64}")
        for ks in range(4):
            I(f"s_waitcnt lgkmcnt({3-ks})")
            for nb in range(4):
                c = "0" if ks == 0 else f"v[{acc+4*nb}:{acc+4*nb+3}]"
                I(f"v_mfma_f32_16x16x32_bf16 v[{acc+4*nb}:{acc+4*nb+3}], v[{tmp+4*ks}:{tmp+4*ks+3}], v[{wb+16*ks+4*nb}:{wb+16*ks+4*nb+3}], {c}")
    def part_to_lds(acc, waddr, raddr):
        for nb in range(4): I(f"ds_write_b32 v{waddr}, v{acc+4*nb} offset:{64*nb}")
        I(f"""
        s_waitcnt lgkmcnt(0)
        s_barrier
        ds_read_b32 v12, v{raddr}
        ds_read_b32 v13, v{raddr} offset:256
        ds_read_b32 v14, v{raddr} offset:512
        ds_read_b32 v15, v{raddr} offset:768
        s_waitcnt lgkmcnt(0)
        v_add_f32 v12, v12, v13
        v_add_f32 v14, v14, v15
        v_add_f32 v12, v12, v14
        """)
    def yp_addrs(waddr, raddr):
        I(f"""
        s_lshl_b32 s47, s40, 8
        s_add_u32 s47, s47, {M['YP']}
        v_lshlrev_b32 v{waddr}, 2, v9
        v_add_u32 v{waddr}, s47, v{waddr}
        v_lshlrev_b32 v{raddr}, 2, v1
        v_add_u32 v{raddr}, {M['YP']}, v{raddr}
        """)

    WB = 64
    a.label("L_t_w")
    stage_setup()
    tr_addr(14, 128)
    I(f"""
    s_lshr_b32 s45, s44, 3
    s_and_b32 s46, s44, 7
    s_lshl_b32 s47, s45, 19
    s_lshl_b32 s48, s40, 17
    s_add_u32 s47, s47, s48
    s_lshl_b32 s48, s46, 7
    s_add_u32 s47, s47, s48
    v_lshrrev_b32 v10, 3, v1
    v_lshlrev_b32 v10, 10, v10
    v_and_b32 v11, 7, v1
    v_lshlrev_b32 v11, 4, v11
    v_add_u32 v10, v10, v11
    v_add_u32 v10, s47, v10
    v_mov_b32 v13, s13
    v_add_co_u32 v12, vcc, s12, v10
    v_addc_co_u32 v13, vcc, 0, v13, vcc
    """)
    for ks in range(4):
        for u in range(4): dma(12, u, 8 * 1024)
        tr_reads(14, [(nb * 32, 4 * 128 + nb * 32) for nb in range(4)], WB + 16 * ks)
    stamp(8)
    I(f"""
    s_lshl_b32 s47, s45, 2
    s_add_u32 s47, s47, s40
    s_mul_i32 s48, s47, {8 * PREC}
    """)
    wait_flags_and_go("L_w")
    I(f"""
    v_lshrrev_b32 v15, 5, v1
    v_mul_u32_u24 v15, {PREC}, v15
    v_add_u32 v15, s48, v15
    v_and_b32 v10, 31, v1
    v_lshlrev_b32 v14, 4, v10
    v_add_u32 v14, v15, v14
    v_add_u32 v15, 512, v15
    v_lshlrev_b32 v10, 3, v10
    s_lshl_b32 s47, s40, 8
    s_add_u32 s47, s47, {M['OALL']}
    v_add_u32 v7, s47, v10
    v_lshlrev_b32 v10, 4, v8
    v_add_u32 v10, s47, v10
    s_lshl_b32 s47, s44, 8
    s_add_u32 s47, s47, {WS_Y}
    v_lshlrev_b32 v6, 2, v1
    v_add_u32 v6, s47, v6
    """)
    yp_addrs(11, 5)
    stamp(9)
    def w_issue(b):
        for i in range(4): I(f"global_load_dwordx4 v[{b+4*i}:{b+4*i+3}], v14, s[26:27] offset:{2*PREC*i} sc1")
        for i in range(4): I(f"global_load_dwordx2 v[{b+16+2*i}:{b+17+2*i}], v15, s[26:27] offset:{2*PREC*i} sc1")
    def w_first(b):
        m = b + 16
        I(f"""
        v_max3_f32 v2, v{m}, v{m+2}, v{m+4}
        v_max_f32 v2, v2, v{m+6}
        v_mov_b32 v3, v2
        v_permlane32_swap_b32 v2, v3
        v_max_f32 v2, v2, v3
        v_sub_f32 v{m}, v{m}, v2
        v_sub_f32 v{m+2}, v{m+2}, v2
        v_sub_f32 v{m+4}, v{m+4}, v2
        v_sub_f32 v{m+6}, v{m+6}, v2
        v_exp_f32 v{m}, v{m}
        v_exp_f32 v{m+2}, v{m+2}
        v_exp_f32 v{m+4}, v{m+4}
        v_exp_f32 v{m+6}, v{m+6}
        v_pk_mul_f32 v[12:13], v[{b}:{b+1}], v[{m}:{m+1}] op_sel_hi:[1,0]
        v_pk_mul_f32 v[2:3], v[{b+2}:{b+3}], v[{m}:{m+1}] op_sel_hi:[1,0]
        v_mul_f32 v4, v{m}, v{m+1}
        """)
        for i in range(1, 4):
            I(f"v_pk_fma_f32 v[12:13], v[{b+4*i}:{b+4*i+1}], v[{m+2*i}:{m+2*i+1}], v[12:13] op_sel_hi:[1,0,1]")
            I(f"v_pk_fma_f32 v[2:3], v[{b+4*i+2}:{b+4*i+3}], v[{m+2*i}:{m+2*i+1}], v[2:3] op_sel_hi:[1,0,1]")
            I(f"v_fmac_f32 v4, v{m+2*i}, v{m+2*i+1}")
    poll2("L_w_poll", w_issue, 8, list(range(16, 40)), list(range(40, 64)), 13, w_first, 'W')
    stamp(10)
    I("""
    v_mov_b32 v128, v12
    v_mov_b32 v129, v13
    v_mov_b32 v130, v2
    v_mov_b32 v131, v3
    v_mov_b32 v132, v4
    v_permlane32_swap_b32 v12, v128
    v_permlane32_swap_b32 v13, v129
    v_permlane32_swap_b32 v2, v130
    v_permlane32_swap_b32 v3, v131
    v_permlane32_swap_b32 v4, v132
    v_add_f32 v4, v4, v132
    v_pk_add_f32 v[12:13], v[12:13], v[128:129]
    v_rcp_f32 v132, v4
    v_pk_add_f32 v[2:3], v[2:3], v[130:131]
    v_pk_mul_f32 v[12:13], v[12:13], v[132:133] op_sel_hi:[1,0]
    v_pk_mul_f32 v[2:3], v[2:3], v[132:133] op_sel_hi:[1,0]
    v_cvt_pk_bf16_f32 v12, v12, v13
    v_cvt_pk_bf16_f32 v13, v2, v3
    ds_write_b64 v7, v[12:13]
    s_waitcnt lgkmcnt(0)
    """)
    gemv_kslice(10, WB, 144, 128)
    part_to_lds(144, 11, 5)
    I(f"""
    s_cmp_eq_u32 s40, 0
    s_cbranch_scc0 L_end
    global_store_dword v6, v12, s[26:27] sc1
    """)
    stamp(11)
    flush_stamps()
    I("s_endpgm")

    a.label("L_t_f")
    stage_setup()
    tr_addr(14, 64)
    I(f"""
    s_lshl_b32 s46, s44, 6
    s_mul_i32 s47, s40, {128 * 2752}
    s_add_u32 s46, s46, s47
    v_lshrrev_b32 v10, 2, v1
    v_mul_u32_u24 v10, 2752, v10
    v_and_b32 v11, 3, v1
    v_lshlrev_b32 v11, 4, v11
    v_add_u32 v10, v10, v11
    v_add_u32 v10, s46, v10
    v_mov_b32 v13, s17
    v_add_co_u32 v12, vcc, s16, v10
    v_addc_co_u32 v13, vcc, 0, v13, vcc
    v_mov_b32 v17, s19
    v_add_co_u32 v16, vcc, s18, v10
    v_addc_co_u32 v17, vcc, 0, v17, vcc
    """)
    for ks in range(4):
        dma(12, 0, 16 * 2752); dma(12, 1, 16 * 2752)
        dma(16, 2, 16 * 2752); dma(16, 3, 16 * 2752)
        tr_reads(14, [(0, 256), (32, 256 + 32), (2048, 2048 + 256), (2048 + 32, 2048 + 256 + 32)], WB + 16 * ks)
    tr_addr(14, 128)
    DB = WB + 64
    for rr in range(2):
        I(f"""
        s_lshl_b32 s46, s44, 15
        s_lshl_b32 s47, s40, 8
        s_add_u32 s46, s46, s47
        s_add_u32 s46, s46, {128*rr}
        v_lshrrev_b32 v10, 3, v1
        v_lshlrev_b32 v10, 10, v10
        v_and_b32 v11, 7, v1
        v_lshlrev_b32 v11, 4, v11
        v_add_u32 v10, v10, v11
        v_add_u32 v10, s46, v10
        v_mov_b32 v13, s21
        v_add_co_u32 v12, vcc, s20, v10
        v_addc_co_u32 v13, vcc, 0, v13, vcc
        """)
        for u in range(4): dma(12, u, 8 * 1024)
        tr_reads(14, [(nb * 32, 4 * 128 + nb * 32) for nb in range(4)], DB + 16 * rr)
    I(f"""
    v_and_b32 v10, 31, v1
    v_lshlrev_b32 v11, 3, v10
    s_lshl_b32 s46, s40, 8
    v_add_u32 v11, s46, v11
    global_load_dwordx2 v[6:7], v11, s[4:5]
    s_waitcnt vmcnt(0)
    """)
    stamp(12)
    wait_flags_and_go("L_f")
    I(f"""
    v_lshlrev_b32 v48, 16, v6
    v_and_b32 v49, s43, v6
    v_lshlrev_b32 v50, 16, v7
    v_and_b32 v51, s43, v7
    v_and_b32 v10, 31, v1
    v_lshlrev_b32 v14, 4, v10
    v_lshrrev_b32 v11, 5, v1
    v_lshlrev_b32 v11, 11, v11
    v_add_u32 v14, v14, v11
    s_lshl_b32 s46, s40, 9
    s_add_u32 s46, s46, {WS_Y}
    v_add_u32 v14, s46, v14
    v_add_u32 v15, 4096, v14
    v_add_u32 v2, 8192, v14
    v_add_u32 v3, 12288, v14
    s_lshl_b32 s47, s40, 3
    s_add_u32 s47, s47, {M['OALL']}
    v_mov_b32 v52, s47
    v_mov_b32 v53, {M['OALL']}
    s_lshl_b32 s47, s40, 8
    s_add_u32 s47, s47, {M['XN2']}
    v_lshlrev_b32 v54, 3, v10
    v_add_u32 v54, s47, v54
    v_lshlrev_b32 v55, 4, v8
    v_add_u32 v55, s47, v55
    s_lshl_b32 s47, s40, 6
    s_add_u32 s47, s47, {M['HH']}
    v_lshlrev_b32 v58, 1, v10
    v_add_u32 v58, s47, v58
    v_lshlrev_b32 v59, 4, v8
    v_add_u32 v59, s47, v59
    s_lshl_b32 s47, s44, 11
    s_lshl_b32 s46, s40, 9
    s_add_u32 s47, s47, s46
    s_add_u32 s47, s47, {WS_P}
    v_lshlrev_b32 v60, 2, v1
    v_add_u32 v60, s47, v60
    s_mov_b32 s60, 0xffff0000
    s_mov_b32 s61, 0xffff0000
    s_mov_b32 s62, 0
    s_mov_b32 s63, -1
    """)
    yp_addrs(56, 57)
    stamp(13)
    def f_issue(b):
        for i, ad in enumerate((14, 15, 2, 3)):
            I(f"global_load_dwordx4 v[{b+4*i}:{b+4*i+3}], v{ad}, s[26:27] sc1")
    def f_first(b):
        I(f"""
        v_pk_add_f32 v[4:5], v[{b}:{b+1}], v[{b+4}:{b+5}]
        v_pk_add_f32 v[6:7], v[{b+2}:{b+3}], v[{b+6}:{b+7}]
        v_pk_add_f32 v[10:11], v[{b+8}:{b+9}], v[{b+12}:{b+13}]
        v_pk_add_f32 v[12:13], v[{b+10}:{b+11}], v[{b+14}:{b+15}]
        v_pk_add_f32 v[4:5], v[4:5], v[10:11]
        v_pk_add_f32 v[6:7], v[6:7], v[12:13]
        """)
    poll2("L_f_poll", f_issue, 4, list(range(16, 32)), list(range(32, 48)), 61, f_first, 'F')
    stamp(14)
    I(f"""
    v_mov_b32 v160, v4
    v_mov_b32 v161, v5
    v_mov_b32 v162, v6
    v_mov_b32 v163, v7
    v_permlane32_swap_b32 v4, v160
    v_permlane32_swap_b32 v5, v161
    v_permlane32_swap_b32 v6, v162
    v_permlane32_swap_b32 v7, v163
    v_pk_add_f32 v[4:5], v[4:5], v[160:161]
    v_pk_add_f32 v[6:7], v[6:7], v[162:163]
    v_cvt_pk_bf16_f32 v160, v4, v5
    v_cvt_pk_bf16_f32 v161, v6, v7
    v_lshlrev_b32 v4, 16, v160
    v_and_b32 v5, s43, v160
    v_lshlrev_b32 v6, 16, v161
    v_and_b32 v7, s43, v161
    v_pk_add_f32 v[4:5], v[4:5], v[48:49]
    v_pk_add_f32 v[6:7], v[6:7], v[50:51]
    v_cvt_pk_bf16_f32 v160, v4, v5
    v_cvt_pk_bf16_f32 v161, v6, v7
    v_lshlrev_b32 v4, 16, v160
    v_and_b32 v5, s43, v160
    v_lshlrev_b32 v6, 16, v161
    v_and_b32 v7, s43, v161
    v_add_f32 v8, v4, v5
    v_mul_f32 v9, v4, v4
    v_add_f32 v10, v6, v7
    v_fmac_f32 v9, v5, v5
    v_add_f32 v8, v8, v10
    v_fmac_f32 v9, v6, v6
    v_fmac_f32 v9, v7, v7
    """)
    for r in (8, 4, 2, 1):
        I(f"v_add_f32_dpp v8, v8, v8 row_ror:{r} row_mask:0xf bank_mask:0xf")
        I(f"v_add_f32_dpp v9, v9, v9 row_ror:{r} row_mask:0xf bank_mask:0xf")
    I(f"""
    v_mov_b32 v10, v8
    v_mov_b32 v11, v9
    s_nop 0
    v_permlane16_swap_b32 v8, v10
    v_permlane16_swap_b32 v9, v11
    v_add_f32 v8, v8, v10
    v_add_f32 v9, v9, v11
    ds_write_b64 v52, v[8:9]
    s_waitcnt lgkmcnt(0)
    s_barrier
    ds_read_b128 v[8:11], v53
    ds_read_b128 v[12:15], v53 offset:16
    s_waitcnt lgkmcnt(0)
    v_pk_add_f32 v[8:9], v[8:9], v[10:11]
    v_pk_add_f32 v[12:13], v[12:13], v[14:15]
    v_pk_add_f32 v[8:9], v[8:9], v[12:13]
    v_mul_f32 v8, 0x3b000000, v8
    v_mul_f32 v9, 0x3b000000, v9
    v_cvt_pk_bf16_f32 v10, v8, v8
    v_fma_f32 v9, -v8, v8, v9
    v_and_b32 v10, s43, v10
    v_max_f32 v9, 0, v9
    v_cvt_pk_bf16_f32 v9, v9, v9
    v_sub_f32 v4, v4, v10
    v_and_b32 v9, s43, v9
    v_sub_f32 v5, v5, v10
    v_add_f32 v9, {hex(EPS)}, v9
    v_sub_f32 v6, v6, v10
    v_cvt_pk_bf16_f32 v9, v9, v9
    v_sub_f32 v7, v7, v10
    v_and_b32 v9, s43, v9
    v_cvt_pk_bf16_f32 v160, v4, v5
    v_sqrt_f32 v9, v9
    v_cvt_pk_bf16_f32 v161, v6, v7
    v_lshlrev_b32 v4, 16, v160
    v_cvt_pk_bf16_f32 v9, v9, v9
    v_and_b32 v5, s43, v160
    v_and_b32 v12, s43, v9
    v_lshlrev_b32 v6, 16, v161
    v_rcp_f32 v12, v12
    v_and_b32 v7, s43, v161
    v_pk_mul_f32 v[4:5], v[4:5], v[12:13] op_sel_hi:[1,0]
    v_pk_mul_f32 v[6:7], v[6:7], v[12:13] op_sel_hi:[1,0]
    v_cvt_pk_bf16_f32 v160, v4, v5
    v_cvt_pk_bf16_f32 v161, v6, v7
    ds_write_b64 v54, v[160:161]
    s_waitcnt vmcnt(0) lgkmcnt(0)
    """)
    gemv_kslice(55, WB, 32, 16)
    part_to_lds(32, 56, 57)
    I(f"""
    v_cvt_pk_bf16_f32 v12, v12, v12
    v_and_b32 v12, s43, v12
    v_mov_b32 v13, v12
    v_permlane32_swap_b32 v12, v13
    v_mul_f32 v12, v12, v13
    v_cvt_pk_bf16_f32 v12, v12, v12
    ds_write_b16 v58, v12
    s_waitcnt lgkmcnt(0)
    ds_read_b128 v[16:19], v59
    s_waitcnt lgkmcnt(0)
    """)
    for nb in range(8):
        I(f"v_mfma_f32_16x16x32_bf16 v[{20+4*nb}:{23+4*nb}], v[16:19], v[{DB+4*nb}:{DB+4*nb+3}], 0")
    for j in range(2):
        b = 20 + 16 * j
        I(f"v_cndmask_b32 v{12+2*j}, v{b}, v{b+4}, s[60:61]")
        I(f"v_cndmask_b32 v{13+2*j}, v{b+8}, v{b+12}, s[60:61]")
        I(f"v_cndmask_b32 v{12+2*j}, v{12+2*j}, v{13+2*j}, s[62:63]")
        I(f"global_store_dword v60, v{12+2*j}, s[26:27] offset:{256*j} sc1")
    stamp(15)
    flush_stamps()
    I("s_endpgm")

    def resid(xr, out):
        I(f"""
        v_cvt_pk_bf16_f32 v16, v16, v17
        v_cvt_pk_bf16_f32 v17, v18, v19
        v_lshlrev_b32 v20, 16, v16
        v_and_b32 v21, s43, v16
        v_lshlrev_b32 v22, 16, v17
        v_and_b32 v23, s43, v17
        v_lshlrev_b32 v24, 16, v{xr}
        v_and_b32 v25, s43, v{xr}
        v_lshlrev_b32 v26, 16, v{xr+1}
        v_and_b32 v27, s43, v{xr+1}
        v_pk_add_f32 v[20:21], v[20:21], v[24:25]
        v_pk_add_f32 v[22:23], v[22:23], v[26:27]
        v_cvt_pk_bf16_f32 v{out}, v20, v21
        v_cvt_pk_bf16_f32 v{out+1}, v22, v23
        """)
    a.label("L_t_o")
    I(f"""
    v_and_b32 v10, 7, v1
    v_lshlrev_b32 v11, 3, v10
    s_lshl_b32 s46, s44, 6
    v_add_u32 v11, s46, v11
    global_load_dwordx2 v[6:7], v11, s[4:5]
    v_mov_b32 v3, v11
    v_lshlrev_b32 v14, 4, v10
    v_lshrrev_b32 v12, 3, v1
    v_lshlrev_b32 v12, 11, v12
    v_add_u32 v14, v14, v12
    s_lshl_b32 s46, s44, 7
    v_add_u32 v14, s46, v14
    v_add_u32 v15, {WS_Y}, v14
    s_add_u32 s32, s26, {WS_P}
    s_addc_u32 s33, s27, 0
    s_and_b32 s33, s33, 0xffff
    s_mov_b32 s34, {NF * 2048}
    s_mov_b32 s35, 0x20000
    v_mov_b32 v4, {M['QREADY']}
    s_waitcnt vmcnt(0)
    """)
    if P['touch_out']:
        I("""
        v_mov_b32 v16, 0
        v_mov_b32 v17, 0
        s_mov_b64 exec, 0xff
        global_store_dwordx2 v3, v[16:17], s[22:23]
        s_mov_b64 exec, -1
        """)
    lds_wait("L_o_qw", 4, 5, 8)
    wait_flags_and_go("L_o")
    stamp(16)
    def red_r8(base, tmp):
        for c in range(4): I(f"v_add_f32_dpp v{base+c}, v{base+c}, v{base+c} row_ror:8 row_mask:0xf bank_mask:0xf")
        for c in range(4): I(f"v_mov_b32 v{tmp+c}, v{base+c}")
        for c in range(4): I(f"v_permlane16_swap_b32 v{base+c}, v{tmp+c}")
        for c in range(4): I(f"v_add_f32 v{base+c}, v{base+c}, v{tmp+c}")
        for c in range(4): I(f"v_mov_b32 v{tmp+c}, v{base+c}")
        for c in range(4): I(f"v_permlane32_swap_b32 v{base+c}, v{tmp+c}")
        for c in range(4): I(f"v_add_f32 v{base+c}, v{base+c}, v{tmp+c}")
    I("v_mov_b32 v70, v3")
    def oy_issue(b): I(f"global_load_dwordx4 v[{b}:{b+3}], v15, s[26:27] sc1")
    def oy_first(b):
        for c in range(4): I(f"v_mov_b32 v{72+c}, v{b+c}")
    poll2("L_o_polly", oy_issue, 1, list(range(16, 20)), list(range(24, 28)), 28, oy_first, 'y')
    red_r8(72, 76)
    I(f"""
    v_cvt_pk_bf16_f32 v72, v72, v73
    v_cvt_pk_bf16_f32 v73, v74, v75
    v_lshlrev_b32 v76, 16, v72
    v_and_b32 v77, s43, v72
    v_lshlrev_b32 v78, 16, v73
    v_and_b32 v79, s43, v73
    v_lshlrev_b32 v80, 16, v6
    v_and_b32 v81, s43, v6
    v_lshlrev_b32 v82, 16, v7
    v_and_b32 v83, s43, v7
    v_pk_add_f32 v[76:77], v[76:77], v[80:81]
    v_pk_add_f32 v[78:79], v[78:79], v[82:83]
    v_cvt_pk_bf16_f32 v72, v76, v77
    v_cvt_pk_bf16_f32 v73, v78, v79
    v_lshlrev_b32 v66, 16, v72
    v_and_b32 v67, s43, v72
    v_lshlrev_b32 v68, 16, v73
    v_and_b32 v69, s43, v73
    s_waitcnt vmcnt(0)
    """)
    stamp(17)
    def op_issue(b):
        for u in range(6):
            I(f"s_mov_b32 s46, {u * 8 * 2048}")
            I(f"buffer_load_dwordx4 v[{b+4*u}:{b+4*u+3}], v14, s[32:35], s46 offen sc1")
    def op_first(b):
        I(f"""
        v_pk_add_f32 v[72:73], v[{b}:{b+1}], v[{b+4}:{b+5}]
        v_pk_add_f32 v[74:75], v[{b+2}:{b+3}], v[{b+6}:{b+7}]
        v_pk_add_f32 v[76:77], v[{b+8}:{b+9}], v[{b+12}:{b+13}]
        v_pk_add_f32 v[78:79], v[{b+10}:{b+11}], v[{b+14}:{b+15}]
        v_pk_add_f32 v[80:81], v[{b+16}:{b+17}], v[{b+20}:{b+21}]
        v_pk_add_f32 v[82:83], v[{b+18}:{b+19}], v[{b+22}:{b+23}]
        v_pk_add_f32 v[72:73], v[72:73], v[76:77]
        v_pk_add_f32 v[74:75], v[74:75], v[78:79]
        v_pk_add_f32 v[72:73], v[72:73], v[80:81]
        v_pk_add_f32 v[74:75], v[74:75], v[82:83]
        """)
    poll2("L_o_pollp", op_issue, 6, list(range(16, 40)), list(range(40, 64)), 71, op_first, 'O')
    stamp(18)
    red_r8(72, 76)
    I(f"""
    v_cvt_pk_bf16_f32 v72, v72, v73
    v_cvt_pk_bf16_f32 v73, v74, v75
    v_lshlrev_b32 v76, 16, v72
    v_and_b32 v77, s43, v72
    v_lshlrev_b32 v78, 16, v73
    v_and_b32 v79, s43, v73
    v_pk_add_f32 v[76:77], v[76:77], v[66:67]
    v_pk_add_f32 v[78:79], v[78:79], v[68:69]
    v_cvt_pk_bf16_f32 v72, v76, v77
    v_cvt_pk_bf16_f32 v73, v78, v79
    s_mov_b64 exec, 0xff
    global_store_dwordx2 v70, v[72:73], s[22:23] {P['out_sc']}
    s_mov_b64 exec, -1
    """)
    stamp(19)
    flush_stamps()
    a.label("L_end")
    I("s_endpgm")
    a.raw('.section .rodata,"a"')
    a.raw(".p2align 6")
    a.raw(f".amdhsa_kernel {KN}_kernel")
    a.raw("  .amdhsa_next_free_vgpr 168")
    a.raw("  .amdhsa_next_free_sgpr 96")
    a.raw("  .amdhsa_accum_offset 168")
    a.raw("  .amdhsa_group_segment_fixed_size 0")
    a.raw("  .amdhsa_kernarg_size 96")
    a.raw("  .amdhsa_user_sgpr_count 2")
    a.raw("  .amdhsa_user_sgpr_kernarg_segment_ptr 1")
    a.raw("  .amdhsa_system_sgpr_workgroup_id_x 1")
    a.raw(".end_amdhsa_kernel")
    return a.text()

if __name__ == "__main__":
    out = sys.argv[1]
    kw = json.loads(sys.argv[2]) if len(sys.argv) > 2 else {}
    open(out, "w").write(gen(**kw))
    print("wrote", out)
```

```python
import sys, json
from asmlib import Asm

KN = "sequential_preLN__gqa_block_cached__glu_gated_bilinear__decode"

DEF = dict(D=18, R=8, S=112, C=2, stamps=False, dump=False, nt="nt", sleep_c=1, sleep_t=1, prio=True,
           skip_stage=False, segs=None, stage_nt="nt", qsleep=2, q_nt="nt", knt=None, vnt=None, tag_sc1=True, budget=0x40000, map="rot", out_sc="", aligned=True, stag=5, dbl="", wsleep=0, qdelay=0, De=None, Te=8, stage_at="ready", Dd=24, qst=False, vtouch=True, touch_out=False, hoist=True)

def lds_map(R, S):
    ring = R * 16384
    m = {}
    m['RING'] = 0
    m['STAGE'] = ring
    f = ring + 16384
    m['FILLED'] = f
    m['QPUB'] = f + 60
    m['PCNT'] = f + 12
    m['NEXT'] = f + 16
    m['FINCNT'] = f + 32
    m['CLEARED'] = f + 36
    m['TAILGO'] = f + 40
    m['QREADY'] = f + 44
    m['NONCE'] = f + 48
    m['KALL'] = f + 56
    m['TID'] = f + 128
    m['PMAX'] = f + 64
    m['XXT'] = f + 256
    m['FINO'] = m['XXT']
    m['QB'] = m['XXT'] + 2048
    m['FINML'] = m['QB'] + 256
    m['OALL'] = m['FINML'] + 64
    m['XN2'] = m['OALL'] + 1024
    m['HH'] = m['XN2'] + 1024
    m['YP'] = m['HH'] + 256
    m['SC'] = m['YP'] + 1024
    m['SCF'] = m['SC'] + S * 64
    m['END'] = m['SCF'] + 2 * R * 64
    return m

WS_PO = 0x0
PREC = 640
WS_Y = 0x29000
WS_P = 0x30000
WS_QX = 0x48000
WS_TK = 0x88000
WS_CLR = 0x8C000
WS_KD = 0x90000
WS_SCX = 0x100000
WS_STAMP = 0x20000000
NF = 43

LOG2E = 0x3fb8aa3b
SCALE = 0x3db504f3
EPS = 0x3727c5ac

def gen(**kw):
    P = dict(DEF); P.update(kw)
    D = P['D']; R = P['R']; NT = P['nt']; S = P['S']; NP = 128 - S
    M = lds_map(R, S)
    ldsz = (M['END'] + 255) // 256 * 256
    assert ldsz <= 163840, ldsz
    a = Asm(); I = a.I
    stamps = P['stamps']

    def spin():
        I("s_sub_u32 s89, s89, 1")
        I("s_cbranch_scc1 L_end")

    pend = []
    def stamp(slot):
        if not stamps: return
        k = len(pend); assert k < 6
        pend.append(slot)
        I(f"s_memrealtime s[{76+2*k}:{77+2*k}]")
    def flush_stamps(keep=0):
        if not stamps: return
        I("s_waitcnt lgkmcnt(0)")
        I("s_lshl_b32 s92, s2, 8")
        I(f"s_add_u32 s92, s92, {WS_STAMP}")
        I("s_add_u32 s92, s26, s92")
        I("s_addc_u32 s93, s27, 0")
        I("v_mov_b32 v166, 0")
        I("s_mov_b64 s[94:95], exec")
        I("s_mov_b64 exec, 1")
        for k, slot in enumerate(pend):
            I(f"v_mov_b32 v164, s{76+2*k}")
            I(f"v_mov_b32 v165, s{77+2*k}")
            I(f"global_store_dwordx2 v166, v[164:165], s[92:93] offset:{8*slot}")
        I("s_mov_b64 exec, s[94:95]")
        del pend[keep:]

    def lds_wait(lbl, addr_reg, tmp, sleep):
        a.label(lbl)
        spin()
        I(f"ds_read_b32 v{tmp}, v{addr_reg}")
        I("s_waitcnt lgkmcnt(0)")
        I(f"v_readfirstlane_b32 s42, v{tmp}")
        I("s_cmp_lg_u32 s42, 0")
        I(f"s_cbranch_scc1 {lbl}_ok")
        I(f"s_sleep {sleep}")
        I(f"s_branch {lbl}")
        a.label(f"{lbl}_ok")

    a.raw(f"; @launch grid=(256,1,1) block=(576,1,1) lds={ldsz}")
    for ln in """
Fused single-launch decode layer: h = x + Attn(LN(x)) ; out = h + Wd((LN(h) Wg) * (LN(h) Wu)).  One workgroup per CU, 9 waves.
Workgroup id -> head = id>>3, member = (id + head) & 7 : the 8 members of a head split its 32768 keys into tiles of 32 keys.
  wave 0      streams first the K tiles, then the V tiles HBM -> LDS ring (LDS-DMA, a fixed window of loads in flight); the whole
              chip reads one tensor at a time. Most tiles are assigned statically; the last 10 tiles of every member's range form a
              per-head pool that is handed out tile by tile through atomic tickets, once for K and once for V (load balance).
  waves 1-4   K phase: QK^T with MFMA, scores rounded to bf16 as the reference does; kept in LDS (own tiles) or published in d_ws
              (pool tiles). V phase: softmax against the true maximum (running maximum for pool tiles), PV with MFMA.
              Wave 1 first computes the workgroup's share of q = LN(x) Wq (64 of the 512 rows); the members exchange the shares.
  waves 5-8   fetch their slice of Wo / Wg,Wu,Wd into registers while the stream runs, then run the tail:
              W (64 workgroups): combine the 32 partials of 4 heads, times a 512x64 tile of Wo ;
              F (43 workgroups): h, LayerNorm, 32 gate/up columns, their 32 rows of Wd ;  O (16 workgroups): sum, residual, store.
Hand-offs between workgroups go through d_ws with write-through (sc1) stores and sc1 polling loads. Words are either reset to all-ones by
their producer early in the launch (and validated word by word), or carry the launch tag that workgroup 0 puts into d_debug at its start.
Every polling loop is bounded.""".strip().split("\n"):
        a.raw("; " + ln)
    a.raw('.amdgcn_target "amdgcn-amd-amdhsa--gfx950"')
    a.raw(".text")
    a.raw(f".globl {KN}_kernel")
    a.raw(".p2align 8")
    a.raw(f".type {KN}_kernel,@function")
    a.raw(f"{KN}_kernel:")
    I("s_cmp_ge_u32 s2, 256")
    I("s_cbranch_scc1 L_end")
    I("s_load_dwordx16 s[4:19], s[0:1], 0")
    I("s_load_dwordx8 s[20:27], s[0:1], 64")
    I("v_lshrrev_b32 v2, 6, v0")
    I("v_and_b32 v1, 63, v0")
    I("v_readfirstlane_b32 s28, v2")
    if P['map'] == "rot":
        I("s_lshr_b32 s29, s2, 3")
        I("s_add_u32 s30, s2, s29")
        I("s_and_b32 s30, s30, 7")
    elif P['map'] == "div":
        I("s_lshr_b32 s29, s2, 3")
        I("s_and_b32 s30, s2, 7")
    else:
        I("s_and_b32 s29, s2, 31")
        I("s_lshr_b32 s30, s2, 5")
    I("s_lshl_b32 s3, s29, 3")
    I("s_add_u32 s3, s3, s30")
    if P['map'] == "rot":
        I("s_mov_b32 s31, s30")
    else:
        I("s_sub_u32 s31, s30, s29")
        I("s_and_b32 s31, s31, 7")
    I(f"s_mov_b32 s89, {P['budget']}")
    I("s_waitcnt lgkmcnt(0)")
    I("s_cmp_eq_u32 s28, 0")
    I("s_cbranch_scc1 L_loader")
    I("s_cmp_lt_u32 s28, 5")
    I("s_cbranch_scc1 L_consumer")
    I("s_branch L_tail")

    a.label("L_loader")
    if P['prio']: I("s_setprio 3")
    stamp(0)
    I(f"""
    s_mov_b32 s32, s6
    s_and_b32 s33, s7, 0xffff
    s_mov_b32 s34, 0x10000000
    s_mov_b32 s35, 0x20000
    s_mov_b32 s36, s8
    s_and_b32 s37, s9, 0xffff
    s_mov_b32 s38, 0x10000000
    s_mov_b32 s39, 0x20000
    s_lshl_b32 s44, s29, 23
    v_lshrrev_b32 v8, 4, v1
    v_and_b32 v9, 15, v1
    v_lshlrev_b32 v10, 8, v8
    v_add_u32 v10, s44, v10
    """)
    for tt in range(4):
        I(f"v_add_u32 v11, {4*tt}, v8")
        I("v_xor_b32 v11, v11, v9")
        I("v_lshlrev_b32 v11, 4, v11")
        I(f"v_add_u32 v{2+tt}, v10, v11")
    for tp in range(2):
        I(f"v_add_u32 v11, {4*tp}, v8")
        I("v_lshlrev_b32 v11, 1, v11")
        I("v_xor_b32 v11, v11, v9")
        I("v_lshlrev_b32 v11, 4, v11")
        I(f"v_add_u32 v{6+tp}, v10, v11")
    RS = 2 * R
    Dd = P['Dd'] or D
    Dp = max(D, Dd)
    u0 = (Dp - 1) % 8
    cnt0 = (u0 - Dp + 1) // 8 - 1
    I(f"""
    s_mul_i32 s46, s30, {128 * 8192}
    s_mov_b32 s48, 0
    s_mov_b32 s49, {cnt0}
    s_mov_b32 s50, 0
    v_mov_b32 v12, {M['FILLED']}
    v_mov_b32 v13, {M['NEXT']}
    """)
    KNT = NT if P['knt'] is None else P['knt']
    VNT = NT if P['vnt'] is None else P['vnt']
    def loads_of_tile(isv, first, Dw=None):
        Dw = Dw or D
        for u in range(8):
            if u % 4 == 0:
                I(f"s_add_u32 m0, s48, {(u // 4) * 4096}")
            I(f"s_waitcnt vmcnt({Dw-1})")
            if u == u0:
                I("s_add_u32 s49, s49, 1")
                I("v_mov_b32 v14, s49")
                if not first:
                    I("ds_write_b32 v12, v14")
            so = "s46" if u < 4 else "s47"
            if isv: I(f"buffer_load_dwordx4 v{6 + (u & 1)}, s[36:39], {so} offen offset:{(u % 4) * 1024} {VNT} lds")
            else:   I(f"buffer_load_dwordx4 v{2 + (u & 3)}, s[32:35], {so} offen offset:{(u % 4) * 1024} {KNT} lds")
    assert 16 <= D and Dp <= 24
    if P['vtouch']:
        I("buffer_load_dword v31, v6, s[36:39], s46 offen nt")
    I("s_add_u32 s47, s46, 4096")
    loads_of_tile(False, True)
    I("""
    s_add_u32 s50, s50, 1
    s_add_u32 s46, s46, 8192
    s_add_u32 s47, s46, 4096
    s_add_u32 s48, s48, 8192
    """)
    loads_of_tile(False, True)
    I(f"""
    v_mov_b32 v16, 0
    v_mov_b32 v17, 1
    v_mov_b32 v18, 2
    v_mov_b32 v19, 3
    v_mov_b32 v20, 0
    v_mov_b32 v21, 0
    v_mov_b32 v22, 0
    v_mov_b32 v23, 0
    v_mov_b32 v14, s49
    v_mov_b32 v15, 0x7fffffff
    ds_write_b64 v12, v[14:15]
    v_mov_b32 v24, 0x7fffffff
    v_mov_b32 v25, 0
    ds_write_b64 v12, v[24:25] offset:8
    ds_write_b128 v13, v[16:19]
    ds_write_b128 v13, v[20:23] offset:16
    ds_write_b128 v13, v[20:23] offset:32
    s_waitcnt lgkmcnt(0)
    s_barrier
    """)
    I("ds_read_b128 v[16:19], v13")
    lab = [0]
    def next_tile(isv, advance, Dw=None, extra=None):
        k = lab[0]; lab[0] += 1
        I("s_add_u32 s50, s50, 1")
        if advance: I("s_add_u32 s46, s46, 8192")
        I(f"""
        s_add_u32 s47, s46, 4096
        s_add_u32 s48, s48, 8192
        s_cmp_ge_u32 s48, {RS*8192}
        s_cselect_b32 s48, 0, s48
        s_sub_u32 s52, s50, {RS-1}
        """)
        a.label(f"L_ld_free{k}")
        spin()
        I(f"""
        s_waitcnt lgkmcnt(0)
        v_min3_u32 v20, v16, v17, v18
        v_min_u32 v20, v20, v19
        v_readfirstlane_b32 s51, v20
        ds_read_b128 v[16:19], v13
        s_cmp_ge_i32 s51, s52
        s_cbranch_scc0 L_ld_free{k}
        """)
        if extra == "tid":
            I(f"""
            s_lshr_b32 s53, s48, 11
            s_add_u32 s53, s53, {M['TID']}
            v_mov_b32 v21, s53
            v_mov_b32 v22, s59
            ds_write_b32 v21, v22
            """)
        if extra == "scores":
            I(f"""
            s_lshr_b32 s53, s48, 7
            s_add_u32 m0, s53, {M['SCF']}
            s_lshl_b32 s59, s59, 6
            s_mov_b64 exec, 0xffff
            buffer_load_dword v28, s[40:43], s59 offen sc1 lds
            s_mov_b64 exec, -1
            """)
        loads_of_tile(isv, False, Dw)
    LA = 3
    assert 9 * LA - 1 >= Dp
    NPOOL = 8 * NP
    nst = [0]
    def tstamp():
        if stamps and nst[0] < 7:
            I(f"s_memrealtime s[{60+2*nst[0]}:{61+2*nst[0]}]"); nst[0] += 1
    def ticket(reg):
        I("s_mov_b64 exec, 1")
        I(f"global_atomic_add v{reg}, v25, v26, s[26:27] sc0 sc1")
        I("s_mov_b64 exec, -1")
    def decode(reg, over):
        I(f"""
        v_readfirstlane_b32 s53, v{reg}
        s_and_b32 s55, s53, 7
        s_lshr_b32 s57, s53, 3
        s_lshl_b32 s46, s55, 7
        s_add_u32 s46, s46, s57
        s_add_u32 s46, s46, {S}
        s_lshl_b32 s46, s46, 13
        s_cmp_lt_u32 s53, {NPOOL}
        s_cbranch_scc0 {over}
        s_mov_b32 s59, s53
        """)
    TR = (24, 27, 29)
    nstatic = S - LA
    bounds = ([b for b in (P['segs'] or [16, 32, 64]) if b < nstatic] if stamps else []) + [nstatic]
    for sg, b in enumerate(bounds):
        a.label(f"L_ld_tile{sg}")
        next_tile(False, True)
        I(f"s_cmp_lt_u32 s50, {b - 1}")
        I(f"s_cbranch_scc1 L_ld_tile{sg}")
        if sg < len(bounds) - 1: tstamp()
    I(f"""
    s_lshl_b32 s53, s29, 8
    s_add_u32 s53, s53, {WS_TK}
    v_mov_b32 v25, s53
    v_mov_b32 v26, 1
    """)
    for reg in TR:
        ticket(reg)
        next_tile(False, True, Dd)
    a.label("L_ld_kdyn")
    for reg in TR:
        decode(reg, "L_ld_kover")
        ticket(reg)
        next_tile(False, False, Dd, extra="tid")
    I("s_branch L_ld_kdyn")
    a.label("L_ld_kover")
    tstamp()
    I(f"""
    s_add_u32 s56, s50, 1
    v_mov_b32 v14, s56
    ds_write_b32 v12, v14 offset:4
    s_mul_i32 s46, s30, {128 * 8192}
    s_sub_u32 s46, s46, 8192
    s_add_u32 s58, s56, {S - LA - 1}
    """)
    a.label("L_ld_v")
    next_tile(True, True)
    I("s_cmp_lt_u32 s50, s58")
    I("s_cbranch_scc1 L_ld_v")
    tstamp()
    I(f"""
    v_add_u32 v25, 128, v25
    s_mul_i32 s53, s29, {NPOOL * 64}
    s_add_u32 s53, s53, {WS_SCX}
    s_add_u32 s40, s26, s53
    s_addc_u32 s41, s27, 0
    s_and_b32 s41, s41, 0xffff
    s_mov_b32 s42, {NPOOL * 64}
    s_mov_b32 s43, 0x20000
    v_lshlrev_b32 v28, 2, v1
    v_mov_b32 v30, {M['KALL']}
    """)
    for reg in TR:
        ticket(reg)
        next_tile(True, True, Dd)
    a.label("L_ld_kall")
    spin()
    I("""
    ds_read_b32 v31, v30
    s_waitcnt lgkmcnt(0)
    v_readfirstlane_b32 s53, v31
    s_cmp_lg_u32 s53, 0
    s_cbranch_scc0 L_ld_kall
    ds_read_b128 v[16:19], v13
    """)
    a.label("L_ld_vdyn")
    for reg in TR:
        decode(reg, "L_ld_pover")
        ticket(reg)
        next_tile(True, False, Dd, extra="scores")
    I("s_branch L_ld_vdyn")
    a.label("L_ld_pover")
    I("""
    s_add_u32 s56, s50, 1
    v_mov_b32 v14, s56
    ds_write_b32 v12, v14 offset:8
    """)
    a.label("L_ld_over")
    rem = 8 - u0 + Dp - 1
    while rem > 0:
        rem -= 8
        I(f"s_waitcnt vmcnt({rem})")
        I("s_add_u32 s49, s49, 1")
        I("v_mov_b32 v14, s49")
        I("ds_write_b32 v12, v14")
    assert rem == 0
    I("s_waitcnt lgkmcnt(0)")
    stamp(1)
    flush_stamps()
    if stamps:
        I("s_lshl_b32 s92, s2, 8")
        I(f"s_add_u32 s92, s92, {WS_STAMP + 20 * 8}")
        I("s_add_u32 s92, s26, s92")
        I("s_addc_u32 s93, s27, 0")
        I("v_mov_b32 v166, 0")
        I("s_mov_b64 exec, 1")
        for k in range(7):
            I(f"v_mov_b32 v164, s{60+2*k}")
            I(f"v_mov_b32 v165, s{61+2*k}")
            I(f"global_store_dwordx2 v166, v[164:165], s[92:93] offset:{8*k}")
        I("v_mov_b32 v164, s56")
        I("v_mov_b32 v165, 0")
        I(f"global_store_dwordx2 v166, v[164:165], s[92:93] offset:{8*7}")
    I("s_endpgm")

    def wave_sum(v, t):
        for r in (8, 4, 2, 1):
            I(f"v_add_f32_dpp v{v}, v{v}, v{v} row_ror:{r} row_mask:0xf bank_mask:0xf")
        I(f"v_mov_b32 v{t}, v{v}")
        I(f"v_permlane16_swap_b32 v{v}, v{t}")
        I(f"v_add_f32 v{v}, v{v}, v{t}")
        I(f"v_mov_b32 v{t}, v{v}")
        I(f"v_permlane32_swap_b32 v{v}, v{t}")
        I(f"v_add_f32 v{v}, v{v}, v{t}")
    def unpack8(src, dst):
        for j in range(4):
            I(f"v_lshlrev_b32 v{dst+2*j}, 16, v{src+j}")
            I(f"v_and_b32 v{dst+2*j+1}, s43, v{src+j}")
    def layernorm8(x, tmp):
        s, t, mb, den = tmp, tmp+1, tmp+2, tmp+3
        I(f"v_add_f32 v{s}, v{x}, v{x+1}")
        for j in range(2, 8): I(f"v_add_f32 v{s}, v{s}, v{x+j}")
        wave_sum(s, t)
        I(f"v_mul_f32 v{s}, 0x3b000000, v{s}")
        I(f"v_cvt_pk_bf16_f32 v{mb}, v{s}, v{s}")
        I(f"v_and_b32 v{mb}, s43, v{mb}")
        I(f"v_sub_f32 v{t}, v{x}, v{s}")
        I(f"v_mul_f32 v{den}, v{t}, v{t}")
        for j in range(1, 8):
            I(f"v_sub_f32 v{t}, v{x+j}, v{s}")
            I(f"v_fmac_f32 v{den}, v{t}, v{t}")
        wave_sum(den, t)
        I(f"v_mul_f32 v{den}, 0x3b000000, v{den}")
        I(f"v_cvt_pk_bf16_f32 v{den}, v{den}, v{den}")
        I(f"v_and_b32 v{den}, s43, v{den}")
        I(f"v_add_f32 v{den}, {hex(EPS)}, v{den}")
        I(f"v_cvt_pk_bf16_f32 v{den}, v{den}, v{den}")
        I(f"v_and_b32 v{den}, s43, v{den}")
        I(f"v_sqrt_f32 v{den}, v{den}")
        I(f"v_cvt_pk_bf16_f32 v{den}, v{den}, v{den}")
        I(f"v_and_b32 v{den}, s43, v{den}")
        I(f"v_rcp_f32 v{den}, v{den}")
        for j in range(0, 8, 2):
            I(f"v_sub_f32 v{x+j}, v{x+j}, v{mb}")
            I(f"v_sub_f32 v{x+j+1}, v{x+j+1}, v{mb}")
            I(f"v_cvt_pk_bf16_f32 v{t}, v{x+j}, v{x+j+1}")
            I(f"v_lshlrev_b32 v{x+j}, 16, v{t}")
            I(f"v_and_b32 v{x+j+1}, s43, v{t}")
            I(f"v_mul_f32 v{x+j}, v{x+j}, v{den}")
            I(f"v_mul_f32 v{x+j+1}, v{x+j+1}, v{den}")

    a.label("L_consumer")
    I("s_sub_u32 s40, s28, 1")
    I("s_mov_b32 s43, 0xffff0000")
    I("v_lshrrev_b32 v8, 4, v1")
    I("v_and_b32 v9, 15, v1")
    I("s_cmp_eq_u32 s40, 0")
    I("s_cbranch_scc1 L_c_q")
    I("s_barrier")
    I("s_branch L_c_qwait")
    a.label("L_c_q")
    I("""
    s_cmp_eq_u32 s2, 0
    s_cbranch_scc0 L_q_notag
    s_memrealtime s[56:57]
    s_waitcnt lgkmcnt(0)
    s_or_b32 s56, s56, 1
    s_or_b32 s57, s57, 0x40000000
    s_and_b32 s57, s57, 0x7fffffff
    v_mov_b32 v34, s56
    v_mov_b32 v35, s57
    v_mov_b32 v2, 0
    s_mov_b64 exec, 1
    global_store_dwordx2 v2, v[34:35], s[24:25] sc1
    s_mov_b64 exec, -1
    """)
    a.label("L_q_notag")
    I(f"""
    v_mov_b32 v2, 0
    global_load_dwordx2 v[34:35], v2, s[24:25] {"sc1" if P['tag_sc1'] else ""}
    s_mov_b32 s32, s10
    s_and_b32 s33, s11, 0xffff
    s_mov_b32 s34, 0x400000
    s_mov_b32 s35, 0x20000
    v_lshlrev_b32 v2, 4, v1
    global_load_dwordx4 v[30:33], v2, s[4:5]
    s_lshl_b32 s41, s30, 6
    v_add_u32 v3, s41, v8
    v_lshlrev_b32 v3, 13, v3
    v_lshlrev_b32 v4, 4, v9
    v_add_u32 v3, v3, v4
    s_lshl_b32 s41, s29, 8
    v_add_u32 v3, s41, v3
    """)
    for t in range(16):
        I(f"s_mov_b32 s42, {t * 32768}")
        I(f"buffer_load_dwordx4 v[{40+4*t}:{43+4*t}], v3, s[32:35], s42 offen {P['q_nt']}")
    if P['qst']: stamp(28)
    I("s_barrier")
    I("s_waitcnt vmcnt(16)")
    if P['qst']: stamp(29)
    unpack8(30, 10)
    layernorm8(10, 4)
    for e in range(8):
        I(f"v_cvt_pk_bf16_f32 v{18+e}, v{10+e}, v{10+e}")
    I(f"""
    v_lshrrev_b32 v4, 3, v1
    v_lshlrev_b32 v4, 8, v4
    v_and_b32 v5, 7, v1
    v_lshlrev_b32 v5, 3, v5
    v_add_u32 v4, v4, v5
    v_add_u32 v4, {M['XXT']}, v4
    """)
    for g in range(4):
        I(f"v_mov_b32 v26, v{18+g}")
        I(f"v_mov_b32 v27, v{18+g+4}")
        I(f"ds_write_b64 v4, v[26:27] offset:{g*64}")
    I(f"""
    v_and_b32 v5, 1, v9
    v_mov_b32 v6, 0xffff
    v_mov_b32 v7, s43
    v_cmp_eq_u32 vcc, 1, v5
    v_cndmask_b32 v5, v6, v7, vcc
    v_lshrrev_b32 v6, 1, v9
    """)
    for j in range(4):
        I(f"v_cmp_eq_u32 vcc, {j}, v6")
        I(f"v_cndmask_b32 v{10+j}, 0, v5, vcc")
    I(f"""
    s_lshl_b32 s41, s30, 8
    s_add_u32 s41, s41, {M['XXT']}
    v_lshlrev_b32 v4, 6, v8
    v_add_u32 v4, s41, v4
    s_waitcnt lgkmcnt(0)
    ds_read_b128 v[104:107], v4
    ds_read_b128 v[108:111], v4 offset:16
    ds_read_b128 v[112:115], v4 offset:32
    ds_read_b128 v[116:119], v4 offset:48
    s_waitcnt lgkmcnt(0)
    """)
    if P['qst']: stamp(31)
    for t in range(16):
        bb = 18 + 4 * (t % 2)
        for j in range(4):
            I(f"v_and_b32 v{bb+j}, v{104+t}, v{10+j}")
        I(f"s_waitcnt vmcnt({15 - t})")
        c = "0" if t == 0 else "v[26:29]"
        I(f"v_mfma_f32_16x16x32_bf16 v[26:29], v[{40+4*t}:{43+4*t}], v[{bb}:{bb+3}], {c}")
    if P['qst']: stamp(30)
    I("""
    v_readfirstlane_b32 s56, v34
    v_readfirstlane_b32 s57, v35
    s_cmp_lg_u32 s56, 0
    s_cbranch_scc1 L_q_havetag
    """)
    a.label("L_q_tagpoll")
    spin()
    I("""
    v_mov_b32 v2, 0
    global_load_dwordx2 v[34:35], v2, s[24:25] sc1
    s_waitcnt vmcnt(0)
    v_readfirstlane_b32 s56, v34
    v_readfirstlane_b32 s57, v35
    s_cmp_lg_u32 s56, 0
    s_cbranch_scc1 L_q_havetag
    s_sleep 2
    s_branch L_q_tagpoll
    """)
    a.label("L_q_havetag")
    I(f"v_mov_b32 v5, {M['CLEARED']}")
    lds_wait("L_q_clr", 5, 6, 1)
    I(f"""
    v_mov_b32_dpp v14, v28 row_ror:8 row_mask:0xf bank_mask:0xf
    v_mov_b32_dpp v16, v29 row_ror:8 row_mask:0xf bank_mask:0xf
    v_cmp_gt_u32 vcc, 8, v9
    v_mov_b32 v11, s56
    v_mov_b32 v13, s57
    v_cndmask_b32 v10, v14, v26, vcc
    v_cndmask_b32 v12, v16, v27, vcc
    v_mov_b32 v18, s56
    v_mov_b32 v19, s57
    v_mov_b32 v6, {M['NONCE']}
    ds_write_b64 v6, v[18:19]
    s_lshl_b32 s41, s3, 10
    s_add_u32 s41, s41, {WS_QX}
    v_and_b32 v4, 7, v9
    v_lshlrev_b32 v4, 1, v4
    v_lshrrev_b32 v5, 3, v9
    v_add_u32 v4, v4, v5
    v_lshlrev_b32 v5, 4, v8
    v_add_u32 v4, v4, v5
    v_lshlrev_b32 v4, 4, v4
    v_add_u32 v4, s41, v4
    global_store_dwordx4 v4, v[10:13], s[26:27] sc1
    v_mov_b32 v6, {M['QPUB']}
    v_mov_b32 v7, 1
    ds_write_b32 v6, v7
    s_mov_b64 exec, 1
    s_lshl_b32 s41, s3, 3
    s_add_u32 s41, s41, {WS_CLR}
    v_mov_b32 v4, s41
    global_store_dwordx2 v4, v[18:19], s[26:27] sc1
    s_mov_b64 exec, -1
    s_lshl_b32 s41, s29, 13
    s_add_u32 s41, s41, {WS_QX}
    v_lshlrev_b32 v4, 4, v1
    v_add_u32 v4, s41, v4
    v_add_u32 v5, 4096, v4
    """)
    stamp(5)
    if P['qdelay']: I(f"s_sleep {P['qdelay']}")
    a.label("L_q_poll")
    spin()
    for i in range(8):
        I(f"global_load_dwordx4 v[{40+4*i}:{43+4*i}], v{4 if i < 4 else 5}, s[26:27] offset:{1024*(i%4)} sc1")
    I("s_waitcnt vmcnt(0)")
    I("v_xor_b32 v6, s56, v41")
    I("v_xor_b32 v7, s57, v43")
    I("v_or_b32 v6, v6, v7")
    for i in range(1, 8):
        I(f"v_xor_b32 v7, s56, v{41+4*i}")
        I(f"v_or_b32 v6, v6, v7")
        I(f"v_xor_b32 v7, s57, v{43+4*i}")
        I(f"v_or_b32 v6, v6, v7")
    I("v_cmp_ne_u32 vcc, 0, v6")
    I("s_cbranch_vccz L_q_seen")
    if P['qsleep']: I(f"s_sleep {P['qsleep']}")
    I("s_branch L_q_poll")
    a.label("L_q_seen")
    stamp(6)
    for c in (0, 2):
        I(f"v_add_f32 v{40+c}, v{40+c}, v{44+c}")
        I(f"v_add_f32 v{48+c}, v{48+c}, v{52+c}")
        I(f"v_add_f32 v{56+c}, v{56+c}, v{60+c}")
        I(f"v_add_f32 v{64+c}, v{64+c}, v{68+c}")
    for c in (0, 2):
        I(f"v_add_f32 v{40+c}, v{40+c}, v{48+c}")
        I(f"v_add_f32 v{56+c}, v{56+c}, v{64+c}")
    for c in (0, 2):
        I(f"v_add_f32 v{40+c}, v{40+c}, v{56+c}")
    I(f"""
    v_cvt_pk_bf16_f32 v10, v40, v42
    v_lshrrev_b32 v11, 16, v10
    v_lshrrev_b32 v5, 1, v9
    v_and_b32 v6, 1, v1
    v_lshlrev_b32 v6, 4, v6
    v_add_u32 v5, v5, v6
    v_lshlrev_b32 v6, 5, v8
    v_add_u32 v5, v5, v6
    v_lshlrev_b32 v5, 1, v5
    v_add_u32 v5, {M['QB']}, v5
    ds_write_b16 v5, v10
    ds_write_b16 v5, v11 offset:16
    v_mov_b32 v6, {M['QREADY']}
    v_mov_b32 v7, 1
    s_waitcnt lgkmcnt(0)
    ds_write_b32 v6, v7
    """)
    flush_stamps()
    if P['dump']:
        I(f"""
        v_lshlrev_b32 v4, 2, v1
        v_add_u32 v5, {M['QB']}, v4
        ds_read_b32 v10, v5
        s_lshl_b32 s41, s3, 8
        s_add_u32 s41, s41, 0x100000
        v_add_u32 v4, s41, v4
        s_waitcnt lgkmcnt(0)
        global_store_dword v4, v10, s[26:27]
        """)
    a.label("L_c_qwait")
    I(f"v_mov_b32 v5, {M['QREADY']}")
    lds_wait("L_c_qw", 5, 6, 1)
    I(f"""
    v_lshlrev_b32 v5, 4, v8
    v_add_u32 v5, {M['QB']}, v5
    ds_read_b128 v[40:43], v5
    ds_read_b128 v[44:47], v5 offset:64
    ds_read_b128 v[48:51], v5 offset:128
    ds_read_b128 v[52:55], v5 offset:192
    """)
    I(f"""
    v_xor_b32 v2, v8, v9
    v_lshlrev_b32 v2, 4, v2
    v_lshlrev_b32 v10, 8, v9
    v_add_u32 v2, v2, v10
    v_lshrrev_b32 v10, 2, v9
    v_and_b32 v11, 3, v9
    v_lshlrev_b32 v12, 2, v8
    v_add_u32 v12, v12, v10
    v_and_b32 v13, 7, v12
    v_lshlrev_b32 v13, 1, v13
    v_lshrrev_b32 v14, 1, v11
    v_xor_b32 v13, v13, v14
    v_lshlrev_b32 v13, 4, v13
    v_and_b32 v14, 1, v11
    v_lshlrev_b32 v14, 3, v14
    v_lshlrev_b32 v3, 8, v12
    v_add_u32 v3, v3, v13
    v_add_u32 v3, v3, v14
    v_mov_b32 v4, 0xff800000
    v_mov_b32 v5, 0
    v_mov_b32 v6, 0
    v_mov_b32 v7, {M['FILLED']}
    s_lshl_b32 s41, s40, 2
    s_add_u32 s41, s41, {M['NEXT']}
    v_mov_b32 v38, s41
    s_mov_b32 s44, {hex(LOG2E)}
    s_mov_b32 s45, {hex(SCALE)}
    s_mov_b32 s46, s40
    s_lshl_b32 s47, s40, 13
    s_mov_b32 s48, -100
    s_mov_b32 s50, 0x7fffffff
    """)
    for r in range(56, 88): I(f"v_mov_b32 v{r}, 0")
    I(f"""
    s_lshl_b32 s41, s40, 9
    s_add_u32 s41, s41, {M['FINO']}
    v_lshlrev_b32 v120, 2, v9
    v_add_u32 v120, s41, v120
    s_lshl_b32 s41, s40, 3
    s_add_u32 s41, s41, {M['FINML']}
    v_mov_b32 v121, s41
    v_mov_b32 v122, {M['FINCNT']}
    v_mov_b32 v123, 1
    v_lshlrev_b32 v124, 3, v1
    s_mul_i32 s41, s3, {PREC}
    v_add_u32 v125, s41, v124
    v_add_u32 v124, {M['FINO']}, v124
    v_mov_b32 v126, {M['FINML']}
    v_mov_b32 v127, {M['TAILGO']}
    """)
    I("s_waitcnt lgkmcnt(0)")
    stamp(2)
    I(f"""
    v_lshlrev_b32 v39, 4, v8
    v_add_u32 v39, {M['SC']}, v39
    s_mov_b32 s60, 0x00010001
    s_mov_b32 s61, 0x00010001
    s_mul_i32 s41, s29, {8 * NP * 64}
    s_add_u32 s41, s41, {WS_SCX}
    v_lshlrev_b32 v128, 4, v8
    v_add_u32 v128, s41, v128
    v_lshlrev_b32 v129, 4, v8
    v_add_u32 v129, {M['SCF']}, v129
    s_mov_b32 s52, 0x7fffffff
    """)
    RS = 2 * R
    KF = 88
    SS = 18
    def wait_tile(lbl, kind):
        I(f"s_add_u32 s49, s46, 1")
        if kind != 'K':
            I(f"s_cmp_ge_i32 s48, s49")
            I(f"s_cbranch_scc1 {lbl}_ok")
        a.label(f"{lbl}_poll")
        spin()
        I("ds_read_b128 v[34:37], v7")
        I("s_waitcnt lgkmcnt(0)")
        I("v_readfirstlane_b32 s48, v34")
        if kind == 'K':
            I("v_readfirstlane_b32 s50, v35")
            I("s_cmp_ge_u32 s46, s50")
            I("s_cbranch_scc1 L_c_sw")
        if kind == 'P': I("v_readfirstlane_b32 s52, v36")
        I("s_cmp_ge_i32 s48, s49")
        I(f"s_cbranch_scc1 {lbl}_ok")
        if kind == 'P':
            I("s_cmp_ge_u32 s46, s52")
            I("s_cbranch_scc1 L_c_fin")
        else:
            I(f"s_sleep {P['sleep_c']}")
        I(f"s_branch {lbl}_poll")
        a.label(f"{lbl}_ok")
    def advance():
        I(f"""
        s_add_u32 s47, s47, {4*8192}
        s_cmp_ge_u32 s47, {RS*8192}
        s_cselect_b32 s49, {RS*8192}, 0
        s_sub_u32 s47, s47, s49
        """)
    a.label("L_c_tile")
    I("s_cmp_ge_u32 s46, s50")
    I("s_cbranch_scc1 L_c_sw")
    wait_tile("L_c_k", 'K')
    I("v_add_u32 v10, s47, v2")
    for j in range(1, 4): I(f"v_xor_b32 v{10+j}, {j << 6}, v10")
    for j in range(4):
        I(f"ds_read_b128 v[{KF+4*j}:{KF+4*j+3}], v{10+j}")
        I(f"ds_read_b128 v[{KF+16+4*j}:{KF+16+4*j+3}], v{10+j} offset:4096")
    I(f"""
    s_lshr_b32 s49, s47, 11
    s_add_u32 s49, s49, {M['TID']}
    v_mov_b32 v14, s49
    ds_read_b32 v16, v14
    s_lshl_b32 s51, s46, 6
    s_add_u32 s46, s46, 4
    v_mov_b32 v15, s46
    """)
    for j in range(4):
        I(f"s_waitcnt lgkmcnt({7 - 2*j if j < 3 else 0})")
        if j == 3: I("ds_write_b32 v38, v15")
        c0 = "0" if j == 0 else "v[18:21]"
        c1 = "0" if j == 0 else "v[22:25]"
        I(f"v_mfma_f32_16x16x32_bf16 v[18:21], v[{KF+4*j}:{KF+4*j+3}], v[{40+4*j}:{43+4*j}], {c0}")
        I(f"v_mfma_f32_16x16x32_bf16 v[22:25], v[{KF+16+4*j}:{KF+16+4*j+3}], v[{40+4*j}:{43+4*j}], {c1}")
    advance()
    for p in range(4): I(f"v_cvt_pk_bf16_f32 v{30+p}, v{SS+2*p}, v{SS+2*p+1}")
    for p in range(4):
        I(f"v_lshlrev_b32 v{SS+2*p}, 16, v{30+p}")
        I(f"v_and_b32 v{SS+2*p+1}, s43, v{30+p}")
    for i in range(8): I(f"v_mul_f32 v{SS+i}, s45, v{SS+i}")
    for p in range(4): I(f"v_cvt_pk_bf16_f32 v{28+p}, v{SS+2*p}, v{SS+2*p+1}")
    I(f"""
    s_cmp_lt_u32 s51, {S * 64}
    s_cbranch_scc0 L_c_kpool
    v_add_u32 v14, s51, v39
    s_mov_b64 exec, s[60:61]
    ds_write_b128 v14, v[28:31]
    s_mov_b64 exec, -1
    s_branch L_c_kmax
    """)
    a.label("L_c_kpool")
    I(f"""
    v_lshlrev_b32 v16, 6, v16
    v_add_u32 v14, v16, v128
    s_mov_b64 exec, s[60:61]
    global_store_dwordx4 v14, v[28:31], s[26:27] sc1
    s_mov_b64 exec, -1
    """)
    a.label("L_c_kmax")
    for p in range(4):
        I(f"v_lshlrev_b32 v{SS+2*p}, 16, v{28+p}")
        I(f"v_and_b32 v{SS+2*p+1}, s43, v{28+p}")
    for p in range(4): I(f"v_max3_f32 v4, v4, v{SS+2*p}, v{SS+2*p+1}")
    I("s_branch L_c_tile")
    a.label("L_c_sw")
    I(f"""
    v_mov_b32 v30, v4
    s_lshl_b32 s41, s40, 2
    s_add_u32 s41, s41, {M['PMAX']}
    v_permlane32_swap_b32 v4, v30
    v_mov_b32 v31, s41
    v_max_f32 v4, v4, v30
    v_mov_b32 v32, {M['PCNT']}
    v_mov_b32 v30, v4
    v_mov_b32 v33, {M['PMAX']}
    s_nop 0
    v_permlane16_swap_b32 v4, v30
    v_max_f32 v4, v4, v30
    ds_write_b32 v31, v4
    s_waitcnt vmcnt(0) lgkmcnt(0)
    ds_add_u32 v32, v123
    """)
    a.label("L_c_sw_wait")
    spin()
    I("""
    ds_read_b32 v30, v32
    ds_read_b128 v[20:23], v33
    s_waitcnt lgkmcnt(0)
    v_readfirstlane_b32 s41, v30
    s_cmp_ge_u32 s41, 256
    s_cbranch_scc0 L_c_sw_wait
    """)
    I(f"""
    v_max3_f32 v4, v20, v21, v22
    v_max_f32 v4, v4, v23
    v_mul_f32 v6, s44, v4
    s_add_u32 s51, s50, {S}
    """)
    def softmax_part():
        for i in range(8): I(f"v_fma_f32 v{SS+i}, v{SS+i}, s44, -v6")
        for i in range(8): I(f"v_exp_f32 v{SS+i}, v{SS+i}")
        for p in range(4): I(f"v_cvt_pk_bf16_f32 v{26+p}, v{SS+2*p}, v{SS+2*p+1}")
        I(f"""
        v_add_f32 v30, v{SS}, v{SS+1}
        v_add_f32 v31, v{SS+2}, v{SS+3}
        v_add_f32 v32, v{SS+4}, v{SS+5}
        v_add_f32 v33, v{SS+6}, v{SS+7}
        v_add_f32 v30, v30, v31
        v_add_f32 v32, v32, v33
        v_add_f32 v30, v30, v32
        v_add_f32 v5, v5, v30
        """)
    def vread(nb):
        I(f"ds_read_b64_tr_b16 v[{KF+4*nb}:{KF+4*nb+1}], v{10+nb}")
        I(f"ds_read_b64_tr_b16 v[{KF+4*nb+2}:{KF+4*nb+3}], v{10+nb} offset:4096")
    def pv(nb):
        I(f"v_mfma_f32_16x16x32_bf16 v[{56+4*nb}:{59+4*nb}], v[26:29], v[{KF+4*nb}:{KF+4*nb+3}], v[{56+4*nb}:{59+4*nb}]")
    def pv_part():
        for nb in range(7): vread(nb)
        I("s_waitcnt lgkmcnt(6)")
        for nb in range(4): pv(nb)
        vread(7)
        I("s_waitcnt lgkmcnt(2)")
        for nb in range(4, 7): pv(nb)
        I("s_add_u32 s46, s46, 4")
        I("v_mov_b32 v30, s46")
        I("s_waitcnt lgkmcnt(0)")
        I("ds_write_b32 v38, v30")
        pv(7)
        advance()
    def vaddr():
        I("v_add_u32 v10, s47, v3")
        for nb in range(1, 8): I(f"v_xor_b32 v{10+nb}, {nb << 5}, v10")
    def unpack_scores():
        for p in range(4):
            I(f"v_lshlrev_b32 v{SS+2*p}, 16, v{28+p}")
            I(f"v_and_b32 v{SS+2*p+1}, s43, v{28+p}")
    a.label("L_c_vtile")
    I(f"""
    s_sub_u32 s49, s46, s50
    s_lshl_b32 s49, s49, 6
    v_add_u32 v14, s49, v39
    ds_read_b128 v[28:31], v14
    """)
    vaddr()
    I("s_waitcnt lgkmcnt(0)")
    unpack_scores()
    softmax_part()
    wait_tile("L_c_v", 'V')
    pv_part()
    I("s_cmp_lt_u32 s46, s51")
    I("s_cbranch_scc1 L_c_vtile")
    a.label("L_c_ptile")
    I("s_cmp_ge_u32 s46, s52")
    I("s_cbranch_scc1 L_c_fin")
    wait_tile("L_c_p", 'P')
    I(f"""
    s_lshr_b32 s49, s47, 7
    v_add_u32 v14, s49, v129
    ds_read_b128 v[28:31], v14
    """)
    vaddr()
    I("s_waitcnt lgkmcnt(0)")
    unpack_scores()
    I(f"""
    v_max3_f32 v34, v{SS}, v{SS+1}, v{SS+2}
    v_max3_f32 v35, v{SS+3}, v{SS+4}, v{SS+5}
    v_max3_f32 v34, v34, v{SS+6}, v{SS+7}
    v_max_f32 v34, v34, v35
    v_mov_b32 v35, v34
    v_permlane32_swap_b32 v34, v35
    v_max_f32 v34, v34, v35
    v_mov_b32 v35, v34
    v_permlane16_swap_b32 v34, v35
    v_max_f32 v34, v34, v35
    v_cmp_gt_f32 vcc, v34, v4
    s_cbranch_vccz L_c_norescale
    v_sub_f32 v35, v4, v34
    v_mul_f32 v35, s44, v35
    v_exp_f32 v35, v35
    v_mov_b32 v4, v34
    v_mul_f32 v6, s44, v34
    v_mul_f32 v5, v5, v35
    """)
    for r in range(56, 88): I(f"v_mul_f32 v{r}, v{r}, v35")
    a.label("L_c_norescale")
    softmax_part()
    pv_part()
    I("s_branch L_c_ptile")
    a.label("L_c_fin")
    stamp(3)
    I(f"""
    v_mov_b32 v30, v5
    v_mov_b32 v4, v6
    ds_write_b32 v120, v56 offset:0
    v_permlane32_swap_b32 v5, v30
    ds_write_b32 v120, v60 offset:64
    ds_write_b32 v120, v64 offset:128
    v_add_f32 v5, v5, v30
    ds_write_b32 v120, v68 offset:192
    v_mov_b32 v30, v5
    ds_write_b32 v120, v72 offset:256
    ds_write_b32 v120, v76 offset:320
    v_permlane16_swap_b32 v5, v30
    ds_write_b32 v120, v80 offset:384
    ds_write_b32 v120, v84 offset:448
    v_add_f32 v5, v5, v30
    ds_write_b64 v121, v[4:5]
    s_mov_b64 exec, 1
    ds_add_rtn_u32 v32, v122, v123
    s_mov_b64 exec, -1
    ds_read_b128 v[20:23], v126
    ds_read_b128 v[24:27], v126 offset:16
    ds_read_b64 v[12:13], v124
    ds_read_b64 v[14:15], v124 offset:512
    ds_read_b64 v[16:17], v124 offset:1024
    ds_read_b64 v[18:19], v124 offset:1536
    s_waitcnt lgkmcnt(0)
    v_readfirstlane_b32 s41, v32
    v_max3_f32 v28, v20, v22, v24
    s_cmp_eq_u32 s41, 3
    s_cbranch_scc0 L_end
    ds_write_b32 v127, v123
    v_max_f32 v28, v28, v26
    v_sub_f32 v20, v20, v28
    v_sub_f32 v22, v22, v28
    v_sub_f32 v24, v24, v28
    v_sub_f32 v26, v26, v28
    v_exp_f32 v20, v20
    v_exp_f32 v22, v22
    v_exp_f32 v24, v24
    v_exp_f32 v26, v26
    v_pk_mul_f32 v[12:13], v[12:13], v[20:21] op_sel_hi:[1,0]
    v_mul_f32 v29, v21, v20
    v_pk_fma_f32 v[12:13], v[14:15], v[22:23], v[12:13] op_sel_hi:[1,0,1]
    v_fmac_f32 v29, v23, v22
    v_pk_fma_f32 v[12:13], v[16:17], v[24:25], v[12:13] op_sel_hi:[1,0,1]
    v_fmac_f32 v29, v25, v24
    v_pk_fma_f32 v[12:13], v[18:19], v[26:27], v[12:13] op_sel_hi:[1,0,1]
    v_fmac_f32 v29, v27, v26
    global_store_dwordx2 v125, v[12:13], s[26:27] sc1
    s_mov_b64 exec, 0xffff
    global_store_dwordx2 v125, v[28:29], s[26:27] offset:512 sc1
    s_mov_b64 exec, -1
    """)
    stamp(4)
    flush_stamps()
    I("s_endpgm")

    a.label("L_tail")
    I("s_sub_u32 s40, s28, 5")
    I("s_mov_b32 s43, 0xffff0000")
    I(f"""
    s_mov_b32 s54, 0
    s_mov_b32 s44, 0
    s_cmp_eq_u32 s31, 4
    s_cbranch_scc0 L_t_r0
    s_cmp_lt_u32 s29, 16
    s_cbranch_scc0 L_t_rdone
    s_mov_b32 s54, 3
    s_mov_b32 s44, s29
    s_branch L_t_rdone
    """)
    a.label("L_t_r0")
    I(f"""
    s_cmp_lt_u32 s29, 11
    s_cbranch_scc0 L_t_r1
    s_cmp_lt_u32 s31, 3
    s_cbranch_scc0 L_t_rdone
    s_mov_b32 s54, 1
    s_mov_b32 s44, s29
    s_cmp_eq_u32 s31, 0
    s_cbranch_scc1 L_t_rdone
    s_mov_b32 s54, 2
    s_lshl_b32 s44, s29, 1
    s_add_u32 s44, s44, s31
    s_sub_u32 s44, s44, 1
    s_branch L_t_rdone
    """)
    a.label("L_t_r1")
    I(f"""
    s_cmp_lt_u32 s29, 22
    s_cbranch_scc0 L_t_r2
    s_cmp_lt_u32 s31, 4
    s_cbranch_scc0 L_t_rdone
    s_mov_b32 s54, 2
    s_add_u32 s44, s29, 11
    s_cmp_eq_u32 s31, 3
    s_cbranch_scc1 L_t_rdone
    s_mov_b32 s54, 1
    s_mul_i32 s44, s29, 3
    s_add_u32 s44, s44, s31
    s_sub_u32 s44, s44, 22
    s_branch L_t_rdone
    """)
    a.label("L_t_r2")
    I(f"""
    s_cmp_lt_u32 s31, 3
    s_cbranch_scc0 L_t_rdone
    s_mov_b32 s54, 2
    s_add_u32 s44, s29, 11
    s_cmp_eq_u32 s31, 2
    s_cbranch_scc1 L_t_rdone
    s_mov_b32 s54, 1
    s_lshl_b32 s44, s29, 1
    s_add_u32 s44, s44, s31
    """)
    a.label("L_t_rdone")
    I("s_barrier")
    I(f"""
    v_lshrrev_b32 v8, 4, v1
    v_and_b32 v9, 15, v1
    s_cmp_eq_u32 s40, 0
    s_cbranch_scc0 L_t_noclear
    """)
    I(f"""
    v_mov_b32 v10, -1
    v_mov_b32 v11, -1
    v_mov_b32 v12, -1
    v_mov_b32 v13, -1
    s_mul_i32 s41, s3, {PREC}
    v_lshlrev_b32 v4, 3, v1
    v_add_u32 v4, s41, v4
    global_store_dwordx2 v4, v[10:11], s[26:27] sc1
    s_mov_b64 exec, 0xffff
    global_store_dwordx2 v4, v[10:11], s[26:27] offset:512 sc1
    s_mov_b64 exec, -1
    s_cmp_eq_u32 s30, 0
    s_cbranch_scc0 L_t_clr_tk
    s_lshl_b32 s41, s29, 8
    s_add_u32 s41, s41, {WS_TK}
    v_mov_b32 v4, s41
    v_mov_b32 v5, 0
    global_store_dword v4, v5, s[26:27] sc1
    global_store_dword v4, v5, s[26:27] offset:128 sc1
    """)
    a.label("L_t_clr_tk")
    I(f"""
    s_cmp_eq_u32 s54, 1
    s_cbranch_scc0 L_t_clr_f
    s_lshl_b32 s41, s44, 8
    s_add_u32 s41, s41, {WS_Y}
    v_lshlrev_b32 v4, 2, v1
    v_add_u32 v4, s41, v4
    global_store_dword v4, v10, s[26:27] sc1
    s_branch L_t_clr_done
    """)
    a.label("L_t_clr_f")
    I(f"""
    s_cmp_eq_u32 s54, 2
    s_cbranch_scc0 L_t_clr_done
    s_lshl_b32 s41, s44, 11
    s_add_u32 s41, s41, {WS_P}
    v_lshlrev_b32 v4, 4, v1
    v_add_u32 v4, s41, v4
    global_store_dwordx4 v4, v[10:13], s[26:27] sc1
    global_store_dwordx4 v4, v[10:13], s[26:27] offset:1024 sc1
    """)
    a.label("L_t_clr_done")
    I(f"""
    s_waitcnt vmcnt(0)
    v_mov_b32 v4, {M['CLEARED']}
    v_mov_b32 v5, 1
    ds_write_b32 v4, v5
    """)
    a.label("L_t_noclear")
    def kall(lbl):
        I(f"v_mov_b32 v4, {M['PCNT']}")
        a.label(f"{lbl}_pc")
        spin()
        I(f"""
        ds_read_b32 v5, v4
        s_waitcnt lgkmcnt(0)
        v_readfirstlane_b32 s42, v5
        s_cmp_ge_u32 s42, 256
        s_cbranch_scc1 {lbl}_pcok
        s_sleep 16
        s_branch {lbl}_pc
        """)
        a.label(f"{lbl}_pcok")
        I(f"""
        v_mov_b32 v4, {M['NONCE']}
        ds_read_b64 v[16:17], v4
        s_lshl_b32 s42, s3, 3
        s_add_u32 s42, s42, {WS_KD}
        v_mov_b32 v4, s42
        s_waitcnt lgkmcnt(0)
        s_mov_b64 exec, 1
        global_store_dwordx2 v4, v[16:17], s[26:27] sc1
        s_mov_b64 exec, -1
        s_lshl_b32 s42, s29, 6
        s_add_u32 s42, s42, {WS_KD}
        v_and_b32 v4, 7, v1
        v_lshlrev_b32 v4, 3, v4
        v_add_u32 v4, s42, v4
        """)
        a.label(f"{lbl}_kd")
        spin()
        I(f"""
        global_load_dwordx2 v[20:21], v4, s[26:27] sc1
        s_waitcnt vmcnt(0)
        v_xor_b32 v5, v16, v20
        v_xor_b32 v18, v17, v21
        v_or_b32 v5, v5, v18
        v_cmp_ne_u32 vcc, 0, v5
        s_cbranch_vccz {lbl}_kdok
        s_sleep 16
        s_branch {lbl}_kd
        """)
        a.label(f"{lbl}_kdok")
        I(f"""
        v_mov_b32 v4, {M['KALL']}
        v_mov_b32 v5, 1
        ds_write_b32 v4, v5
        """)
    I(f"""
    s_cmp_eq_u32 s54, 0
    s_cbranch_scc0 L_t_hasrole
    s_cmp_eq_u32 s40, 0
    s_cbranch_scc0 L_end
    """)
    kall("L_n_k")
    I("s_endpgm")
    a.label("L_t_hasrole")
    I(f"""
    s_cmp_eq_u32 s54, 3
    s_cbranch_scc0 L_t_wf
    s_cmp_eq_u32 s40, 0
    s_cbranch_scc1 L_t_o
    s_endpgm
    """)
    a.label("L_t_wf")
    if P['stage_at'] != "start":
        I(f"v_mov_b32 v4, {M['QREADY'] if P['stage_at'] == 'ready' else M['QPUB']}")
        lds_wait("L_t_qw", 4, 5, 8)
    I("s_cmp_eq_u32 s54, 2")
    I("s_cbranch_scc1 L_t_f")

    STG = M['STAGE']
    SNT = P['stage_nt']
    def stage_setup():
        I(f"s_lshl_b32 s41, s40, 12")
        I(f"s_add_u32 s41, s41, {STG}")
    def dma(addr, u, step_bytes):
        if P['skip_stage']: return
        I(f"s_add_u32 m0, s41, {u*1024}")
        I(f"s_nop 0")
        I(f"global_load_lds_dwordx4 v[{addr}:{addr+1}], off {SNT}")
        if step_bytes:
            I(f"v_add_co_u32 v{addr}, vcc, {step_bytes}, v{addr}")
            I(f"v_addc_co_u32 v{addr+1}, vcc, 0, v{addr+1}, vcc")
    def tr_reads(trbase, offs, dst):
        I("s_waitcnt vmcnt(0)")
        d = dst
        for off in offs:
            I(f"ds_read_b64_tr_b16 v[{d}:{d+1}], v{trbase} offset:{off[0]}")
            I(f"ds_read_b64_tr_b16 v[{d+2}:{d+3}], v{trbase} offset:{off[1]}")
            d += 4
        I("s_waitcnt lgkmcnt(0)")
    def tr_addr(reg, rowstride):
        I(f"v_lshrrev_b32 v10, 2, v9")
        I(f"v_lshlrev_b32 v11, 3, v8")
        I(f"v_add_u32 v10, v10, v11")
        I(f"v_mul_u32_u24 v10, {rowstride}, v10")
        I(f"v_and_b32 v11, 3, v9")
        I(f"v_lshlrev_b32 v11, 3, v11")
        I(f"v_add_u32 v10, v10, v11")
        I(f"v_add_u32 v{reg}, s41, v10")
    def wait_flags_and_go(lbl):
        I("s_cmp_eq_u32 s40, 0")
        I(f"s_cbranch_scc0 {lbl}_nok")
        kall(f"{lbl}_k")
        a.label(f"{lbl}_nok")
        if P['stage_at'] != "ready" and lbl != "L_o":
            I(f"v_mov_b32 v4, {M['QREADY']}")
            lds_wait(f"{lbl}_qr", 4, 5, 8)
        I(f"""
        v_mov_b32 v4, {M['NONCE']}
        ds_read_b64 v[16:17], v4
        v_lshlrev_b32 v4, 4, v1
        v_add_u32 v4, {WS_CLR}, v4
        s_waitcnt lgkmcnt(0)
        """)
        a.label(f"{lbl}_clr")
        spin()
        I(f"""
        global_load_dwordx4 v[20:23], v4, s[26:27] sc1
        global_load_dwordx4 v[24:27], v4, s[26:27] offset:1024 sc1
        s_waitcnt vmcnt(0)
        """)
        I("v_xor_b32 v5, v16, v20")
        for r in (22, 24, 26):
            I(f"v_xor_b32 v18, v16, v{r}")
            I("v_or_b32 v5, v5, v18")
        for r in (21, 23, 25, 27):
            I(f"v_xor_b32 v18, v17, v{r}")
            I("v_or_b32 v5, v5, v18")
        I(f"""
        v_cmp_ne_u32 vcc, 0, v5
        s_cbranch_vccz {lbl}_go0
        s_sleep 32
        s_branch {lbl}_clr
        """)
        a.label(f"{lbl}_go0")
        if lbl == "L_o":
            I(f"""
            s_cmp_eq_u32 s44, 0
            s_cbranch_scc0 L_o_keep
            v_mov_b32 v4, 0
            v_mov_b32 v20, 0
            v_mov_b32 v21, 0
            s_mov_b64 exec, 1
            global_store_dwordx2 v4, v[20:21], s[24:25] sc1
            s_mov_b64 exec, -1
            """)
            a.label("L_o_keep")
        I(f"v_mov_b32 v4, {M['TAILGO']}")
        lds_wait(f"{lbl}_go", 4, 5, P['sleep_t'])
    def any_reset(regs, tmp):
        rs = list(regs)
        I(f"v_max3_u32 v{tmp}, v{rs[0]}, v{rs[1]}, v{rs[2]}")
        rs = rs[3:]
        while len(rs) >= 2:
            I(f"v_max3_u32 v{tmp}, v{tmp}, v{rs[0]}, v{rs[1]}"); rs = rs[2:]
        if rs: I(f"v_max_u32 v{tmp}, v{tmp}, v{rs[0]}")
        I(f"v_cmp_eq_u32 vcc, -1, v{tmp}")
    def poll2(lbl, issue, nloads, regsA, regsB, tmp, first, key):
        if key not in P['dbl']:
            a.label(f"{lbl}")
            spin()
            issue(regsA[0])
            I("s_waitcnt vmcnt(0)")
            any_reset(regsA, tmp)
            if key == 'W' and P['wsleep']:
                I(f"s_cbranch_vccz {lbl}_ok")
                I(f"s_sleep {P['wsleep']}")
                I(f"s_branch {lbl}")
                a.label(f"{lbl}_ok")
            else:
                I(f"s_cbranch_vccnz {lbl}")
            first(regsA[0])
            return
        issue(regsA[0])
        if P['stag']: I(f"s_sleep {P['stag']}")
        a.label(f"{lbl}")
        spin()
        issue(regsB[0])
        I(f"s_waitcnt vmcnt({nloads})")
        any_reset(regsA, tmp)
        I(f"s_cbranch_vccz {lbl}_a")
        issue(regsA[0])
        I(f"s_waitcnt vmcnt({nloads})")
        any_reset(regsB, tmp)
        I(f"s_cbranch_vccnz {lbl}")
        first(regsB[0])
        I(f"s_branch {lbl}_join")
        a.label(f"{lbl}_a")
        first(regsA[0])
        a.label(f"{lbl}_join")
    def gemv_kslice(abase, wb, acc, tmp):
        for ks in range(4):
            I(f"ds_read_b128 v[{tmp+4*ks}:{tmp+4*ks+3}], v{abase} offset:{ks*64}")
        for ks in range(4):
            I(f"s_waitcnt lgkmcnt({3-ks})")
            for nb in range(4):
                c = "0" if ks == 0 else f"v[{acc+4*nb}:{acc+4*nb+3}]"
                I(f"v_mfma_f32_16x16x32_bf16 v[{acc+4*nb}:{acc+4*nb+3}], v[{tmp+4*ks}:{tmp+4*ks+3}], v[{wb+16*ks+4*nb}:{wb+16*ks+4*nb+3}], {c}")
    def part_to_lds(acc, waddr, raddr):
        for nb in range(4): I(f"ds_write_b32 v{waddr}, v{acc+4*nb} offset:{64*nb}")
        I(f"""
        s_waitcnt lgkmcnt(0)
        s_barrier
        ds_read_b32 v12, v{raddr}
        ds_read_b32 v13, v{raddr} offset:256
        ds_read_b32 v14, v{raddr} offset:512
        ds_read_b32 v15, v{raddr} offset:768
        s_waitcnt lgkmcnt(0)
        v_add_f32 v12, v12, v13
        v_add_f32 v14, v14, v15
        v_add_f32 v12, v12, v14
        """)
    def yp_addrs(waddr, raddr):
        I(f"""
        s_lshl_b32 s47, s40, 8
        s_add_u32 s47, s47, {M['YP']}
        v_lshlrev_b32 v{waddr}, 2, v9
        v_add_u32 v{waddr}, s47, v{waddr}
        v_lshlrev_b32 v{raddr}, 2, v1
        v_add_u32 v{raddr}, {M['YP']}, v{raddr}
        """)

    def wait_vphase(lbl):
        if not P['split']: return
        I(f"v_mov_b32 v4, {M['PCNT']}")
        a.label(lbl)
        spin()
        I(f"""
        ds_read_b32 v5, v4
        s_waitcnt lgkmcnt(0)
        v_readfirstlane_b32 s42, v5
        s_cmp_ge_u32 s42, 256
        s_cbranch_scc1 {lbl}_ok
        s_sleep 16
        s_branch {lbl}
        """)
        a.label(f"{lbl}_ok")
    WB = 64
    a.label("L_t_w")
    stage_setup()
    tr_addr(14, 128)
    I(f"""
    s_lshr_b32 s45, s44, 3
    s_and_b32 s46, s44, 7
    s_lshl_b32 s47, s45, 19
    s_lshl_b32 s48, s40, 17
    s_add_u32 s47, s47, s48
    s_lshl_b32 s48, s46, 7
    s_add_u32 s47, s47, s48
    v_lshrrev_b32 v10, 3, v1
    v_lshlrev_b32 v10, 10, v10
    v_and_b32 v11, 7, v1
    v_lshlrev_b32 v11, 4, v11
    v_add_u32 v10, v10, v11
    v_add_u32 v10, s47, v10
    v_mov_b32 v13, s13
    v_add_co_u32 v12, vcc, s12, v10
    v_addc_co_u32 v13, vcc, 0, v13, vcc
    """)
    for ks in range(4):
        if ks == 2: wait_vphase("L_w_vp")
        for u in range(4): dma(12, u, 8 * 1024)
        tr_reads(14, [(nb * 32, 4 * 128 + nb * 32) for nb in range(4)], WB + 16 * ks)
    stamp(8)
    I(f"""
    s_lshl_b32 s47, s45, 2
    s_add_u32 s47, s47, s40
    s_mul_i32 s48, s47, {8 * PREC}
    """)
    wait_flags_and_go("L_w")
    I(f"""
    v_lshrrev_b32 v15, 5, v1
    v_mul_u32_u24 v15, {PREC}, v15
    v_add_u32 v15, s48, v15
    v_and_b32 v10, 31, v1
    v_lshlrev_b32 v14, 4, v10
    v_add_u32 v14, v15, v14
    v_add_u32 v15, 512, v15
    v_lshlrev_b32 v10, 3, v10
    s_lshl_b32 s47, s40, 8
    s_add_u32 s47, s47, {M['OALL']}
    v_add_u32 v7, s47, v10
    v_lshlrev_b32 v10, 4, v8
    v_add_u32 v10, s47, v10
    s_lshl_b32 s47, s44, 8
    s_add_u32 s47, s47, {WS_Y}
    v_lshlrev_b32 v6, 2, v1
    v_add_u32 v6, s47, v6
    """)
    yp_addrs(11, 5)
    stamp(9)
    def w_issue(b):
        for i in range(4): I(f"global_load_dwordx4 v[{b+4*i}:{b+4*i+3}], v14, s[26:27] offset:{2*PREC*i} sc1")
        for i in range(4): I(f"global_load_dwordx2 v[{b+16+2*i}:{b+17+2*i}], v15, s[26:27] offset:{2*PREC*i} sc1")
    def w_first(b):
        m = b + 16
        I(f"""
        v_max3_f32 v2, v{m}, v{m+2}, v{m+4}
        v_max_f32 v2, v2, v{m+6}
        v_mov_b32 v3, v2
        v_permlane32_swap_b32 v2, v3
        v_max_f32 v2, v2, v3
        v_sub_f32 v{m}, v{m}, v2
        v_sub_f32 v{m+2}, v{m+2}, v2
        v_sub_f32 v{m+4}, v{m+4}, v2
        v_sub_f32 v{m+6}, v{m+6}, v2
        v_exp_f32 v{m}, v{m}
        v_exp_f32 v{m+2}, v{m+2}
        v_exp_f32 v{m+4}, v{m+4}
        v_exp_f32 v{m+6}, v{m+6}
        v_pk_mul_f32 v[12:13], v[{b}:{b+1}], v[{m}:{m+1}] op_sel_hi:[1,0]
        v_pk_mul_f32 v[2:3], v[{b+2}:{b+3}], v[{m}:{m+1}] op_sel_hi:[1,0]
        v_mul_f32 v4, v{m}, v{m+1}
        """)
        for i in range(1, 4):
            I(f"v_pk_fma_f32 v[12:13], v[{b+4*i}:{b+4*i+1}], v[{m+2*i}:{m+2*i+1}], v[12:13] op_sel_hi:[1,0,1]")
            I(f"v_pk_fma_f32 v[2:3], v[{b+4*i+2}:{b+4*i+3}], v[{m+2*i}:{m+2*i+1}], v[2:3] op_sel_hi:[1,0,1]")
            I(f"v_fmac_f32 v4, v{m+2*i}, v{m+2*i+1}")
    poll2("L_w_poll", w_issue, 8, list(range(16, 40)), list(range(40, 64)), 13, w_first, 'W')
    stamp(10)
    I("""
    v_mov_b32 v128, v12
    v_mov_b32 v129, v13
    v_mov_b32 v130, v2
    v_mov_b32 v131, v3
    v_mov_b32 v132, v4
    v_permlane32_swap_b32 v12, v128
    v_permlane32_swap_b32 v13, v129
    v_permlane32_swap_b32 v2, v130
    v_permlane32_swap_b32 v3, v131
    v_permlane32_swap_b32 v4, v132
    v_add_f32 v4, v4, v132
    v_pk_add_f32 v[12:13], v[12:13], v[128:129]
    v_rcp_f32 v132, v4
    v_pk_add_f32 v[2:3], v[2:3], v[130:131]
    v_pk_mul_f32 v[12:13], v[12:13], v[132:133] op_sel_hi:[1,0]
    v_pk_mul_f32 v[2:3], v[2:3], v[132:133] op_sel_hi:[1,0]
    v_cvt_pk_bf16_f32 v12, v12, v13
    v_cvt_pk_bf16_f32 v13, v2, v3
    ds_write_b64 v7, v[12:13]
    s_waitcnt lgkmcnt(0)
    """)
    gemv_kslice(10, WB, 144, 128)
    part_to_lds(144, 11, 5)
    I(f"""
    s_cmp_eq_u32 s40, 0
    s_cbranch_scc0 L_end
    global_store_dword v6, v12, s[26:27] sc1
    """)
    stamp(11)
    flush_stamps()
    I("s_endpgm")

    a.label("L_t_f")
    stage_setup()
    tr_addr(14, 64)
    I(f"""
    s_lshl_b32 s46, s44, 6
    s_mul_i32 s47, s40, {128 * 2752}
    s_add_u32 s46, s46, s47
    v_lshrrev_b32 v10, 2, v1
    v_mul_u32_u24 v10, 2752, v10
    v_and_b32 v11, 3, v1
    v_lshlrev_b32 v11, 4, v11
    v_add_u32 v10, v10, v11
    v_add_u32 v10, s46, v10
    v_mov_b32 v13, s17
    v_add_co_u32 v12, vcc, s16, v10
    v_addc_co_u32 v13, vcc, 0, v13, vcc
    v_mov_b32 v17, s19
    v_add_co_u32 v16, vcc, s18, v10
    v_addc_co_u32 v17, vcc, 0, v17, vcc
    """)
    for ks in range(4):
        if ks == 3: wait_vphase("L_f_vp")
        dma(12, 0, 16 * 2752); dma(12, 1, 16 * 2752)
        dma(16, 2, 16 * 2752); dma(16, 3, 16 * 2752)
        tr_reads(14, [(0, 256), (32, 256 + 32), (2048, 2048 + 256), (2048 + 32, 2048 + 256 + 32)], WB + 16 * ks)
    tr_addr(14, 128)
    DB = WB + 64
    for rr in range(2):
        I(f"""
        s_lshl_b32 s46, s44, 15
        s_lshl_b32 s47, s40, 8
        s_add_u32 s46, s46, s47
        s_add_u32 s46, s46, {128*rr}
        v_lshrrev_b32 v10, 3, v1
        v_lshlrev_b32 v10, 10, v10
        v_and_b32 v11, 7, v1
        v_lshlrev_b32 v11, 4, v11
        v_add_u32 v10, v10, v11
        v_add_u32 v10, s46, v10
        v_mov_b32 v13, s21
        v_add_co_u32 v12, vcc, s20, v10
        v_addc_co_u32 v13, vcc, 0, v13, vcc
        """)
        for u in range(4): dma(12, u, 8 * 1024)
        tr_reads(14, [(nb * 32, 4 * 128 + nb * 32) for nb in range(4)], DB + 16 * rr)
    I(f"""
    v_and_b32 v10, 31, v1
    v_lshlrev_b32 v11, 3, v10
    s_lshl_b32 s46, s40, 8
    v_add_u32 v11, s46, v11
    global_load_dwordx2 v[6:7], v11, s[4:5]
    s_waitcnt vmcnt(0)
    """)
    stamp(12)
    wait_flags_and_go("L_f")
    I(f"""
    v_lshlrev_b32 v48, 16, v6
    v_and_b32 v49, s43, v6
    v_lshlrev_b32 v50, 16, v7
    v_and_b32 v51, s43, v7
    v_and_b32 v10, 31, v1
    v_lshlrev_b32 v14, 4, v10
    v_lshrrev_b32 v11, 5, v1
    v_lshlrev_b32 v11, 11, v11
    v_add_u32 v14, v14, v11
    s_lshl_b32 s46, s40, 9
    s_add_u32 s46, s46, {WS_Y}
    v_add_u32 v14, s46, v14
    v_add_u32 v15, 4096, v14
    v_add_u32 v2, 8192, v14
    v_add_u32 v3, 12288, v14
    s_lshl_b32 s47, s40, 3
    s_add_u32 s47, s47, {M['OALL']}
    v_mov_b32 v52, s47
    v_mov_b32 v53, {M['OALL']}
    s_lshl_b32 s47, s40, 8
    s_add_u32 s47, s47, {M['XN2']}
    v_lshlrev_b32 v54, 3, v10
    v_add_u32 v54, s47, v54
    v_lshlrev_b32 v55, 4, v8
    v_add_u32 v55, s47, v55
    s_lshl_b32 s47, s40, 6
    s_add_u32 s47, s47, {M['HH']}
    v_lshlrev_b32 v58, 1, v10
    v_add_u32 v58, s47, v58
    v_lshlrev_b32 v59, 4, v8
    v_add_u32 v59, s47, v59
    s_lshl_b32 s47, s44, 11
    s_lshl_b32 s46, s40, 9
    s_add_u32 s47, s47, s46
    s_add_u32 s47, s47, {WS_P}
    v_lshlrev_b32 v60, 2, v1
    v_add_u32 v60, s47, v60
    s_mov_b32 s60, 0xffff0000
    s_mov_b32 s61, 0xffff0000
    s_mov_b32 s62, 0
    s_mov_b32 s63, -1
    """)
    yp_addrs(56, 57)
    stamp(13)
    def f_issue(b):
        for i, ad in enumerate((14, 15, 2, 3)):
            I(f"global_load_dwordx4 v[{b+4*i}:{b+4*i+3}], v{ad}, s[26:27] sc1")
    def f_first(b):
        I(f"""
        v_pk_add_f32 v[4:5], v[{b}:{b+1}], v[{b+4}:{b+5}]
        v_pk_add_f32 v[6:7], v[{b+2}:{b+3}], v[{b+6}:{b+7}]
        v_pk_add_f32 v[10:11], v[{b+8}:{b+9}], v[{b+12}:{b+13}]
        v_pk_add_f32 v[12:13], v[{b+10}:{b+11}], v[{b+14}:{b+15}]
        v_pk_add_f32 v[4:5], v[4:5], v[10:11]
        v_pk_add_f32 v[6:7], v[6:7], v[12:13]
        """)
    poll2("L_f_poll", f_issue, 4, list(range(16, 32)), list(range(32, 48)), 61, f_first, 'F')
    stamp(14)
    I(f"""
    v_mov_b32 v160, v4
    v_mov_b32 v161, v5
    v_mov_b32 v162, v6
    v_mov_b32 v163, v7
    v_permlane32_swap_b32 v4, v160
    v_permlane32_swap_b32 v5, v161
    v_permlane32_swap_b32 v6, v162
    v_permlane32_swap_b32 v7, v163
    v_pk_add_f32 v[4:5], v[4:5], v[160:161]
    v_pk_add_f32 v[6:7], v[6:7], v[162:163]
    v_cvt_pk_bf16_f32 v160, v4, v5
    v_cvt_pk_bf16_f32 v161, v6, v7
    v_lshlrev_b32 v4, 16, v160
    v_and_b32 v5, s43, v160
    v_lshlrev_b32 v6, 16, v161
    v_and_b32 v7, s43, v161
    v_pk_add_f32 v[4:5], v[4:5], v[48:49]
    v_pk_add_f32 v[6:7], v[6:7], v[50:51]
    v_cvt_pk_bf16_f32 v160, v4, v5
    v_cvt_pk_bf16_f32 v161, v6, v7
    v_lshlrev_b32 v4, 16, v160
    v_and_b32 v5, s43, v160
    v_lshlrev_b32 v6, 16, v161
    v_and_b32 v7, s43, v161
    v_add_f32 v8, v4, v5
    v_mul_f32 v9, v4, v4
    v_add_f32 v10, v6, v7
    v_fmac_f32 v9, v5, v5
    v_add_f32 v8, v8, v10
    v_fmac_f32 v9, v6, v6
    v_fmac_f32 v9, v7, v7
    """)
    for r in (8, 4, 2, 1):
        I(f"v_add_f32_dpp v8, v8, v8 row_ror:{r} row_mask:0xf bank_mask:0xf")
        I(f"v_add_f32_dpp v9, v9, v9 row_ror:{r} row_mask:0xf bank_mask:0xf")
    I(f"""
    v_mov_b32 v10, v8
    v_mov_b32 v11, v9
    s_nop 0
    v_permlane16_swap_b32 v8, v10
    v_permlane16_swap_b32 v9, v11
    v_add_f32 v8, v8, v10
    v_add_f32 v9, v9, v11
    ds_write_b64 v52, v[8:9]
    s_waitcnt lgkmcnt(0)
    s_barrier
    ds_read_b128 v[8:11], v53
    ds_read_b128 v[12:15], v53 offset:16
    s_waitcnt lgkmcnt(0)
    v_pk_add_f32 v[8:9], v[8:9], v[10:11]
    v_pk_add_f32 v[12:13], v[12:13], v[14:15]
    v_pk_add_f32 v[8:9], v[8:9], v[12:13]
    v_mul_f32 v8, 0x3b000000, v8
    v_mul_f32 v9, 0x3b000000, v9
    v_cvt_pk_bf16_f32 v10, v8, v8
    v_fma_f32 v9, -v8, v8, v9
    v_and_b32 v10, s43, v10
    v_max_f32 v9, 0, v9
    v_cvt_pk_bf16_f32 v9, v9, v9
    v_sub_f32 v4, v4, v10
    v_and_b32 v9, s43, v9
    v_sub_f32 v5, v5, v10
    v_add_f32 v9, {hex(EPS)}, v9
    v_sub_f32 v6, v6, v10
    v_cvt_pk_bf16_f32 v9, v9, v9
    v_sub_f32 v7, v7, v10
    v_and_b32 v9, s43, v9
    v_cvt_pk_bf16_f32 v160, v4, v5
    v_sqrt_f32 v9, v9
    v_cvt_pk_bf16_f32 v161, v6, v7
    v_lshlrev_b32 v4, 16, v160
    v_cvt_pk_bf16_f32 v9, v9, v9
    v_and_b32 v5, s43, v160
    v_and_b32 v12, s43, v9
    v_lshlrev_b32 v6, 16, v161
    v_rcp_f32 v12, v12
    v_and_b32 v7, s43, v161
    v_pk_mul_f32 v[4:5], v[4:5], v[12:13] op_sel_hi:[1,0]
    v_pk_mul_f32 v[6:7], v[6:7], v[12:13] op_sel_hi:[1,0]
    v_cvt_pk_bf16_f32 v160, v4, v5
    v_cvt_pk_bf16_f32 v161, v6, v7
    ds_write_b64 v54, v[160:161]
    s_waitcnt vmcnt(0) lgkmcnt(0)
    """)
    gemv_kslice(55, WB, 32, 16)
    part_to_lds(32, 56, 57)
    I(f"""
    v_cvt_pk_bf16_f32 v12, v12, v12
    v_and_b32 v12, s43, v12
    v_mov_b32 v13, v12
    v_permlane32_swap_b32 v12, v13
    v_mul_f32 v12, v12, v13
    v_cvt_pk_bf16_f32 v12, v12, v12
    ds_write_b16 v58, v12
    s_waitcnt lgkmcnt(0)
    ds_read_b128 v[16:19], v59
    s_waitcnt lgkmcnt(0)
    """)
    for nb in range(8):
        I(f"v_mfma_f32_16x16x32_bf16 v[{20+4*nb}:{23+4*nb}], v[16:19], v[{DB+4*nb}:{DB+4*nb+3}], 0")
    for j in range(2):
        b = 20 + 16 * j
        I(f"v_cndmask_b32 v{12+2*j}, v{b}, v{b+4}, s[60:61]")
        I(f"v_cndmask_b32 v{13+2*j}, v{b+8}, v{b+12}, s[60:61]")
        I(f"v_cndmask_b32 v{12+2*j}, v{12+2*j}, v{13+2*j}, s[62:63]")
        I(f"global_store_dword v60, v{12+2*j}, s[26:27] offset:{256*j} sc1")
    stamp(15)
    flush_stamps()
    I("s_endpgm")

    def resid(xr, out):
        I(f"""
        v_cvt_pk_bf16_f32 v16, v16, v17
        v_cvt_pk_bf16_f32 v17, v18, v19
        v_lshlrev_b32 v20, 16, v16
        v_and_b32 v21, s43, v16
        v_lshlrev_b32 v22, 16, v17
        v_and_b32 v23, s43, v17
        v_lshlrev_b32 v24, 16, v{xr}
        v_and_b32 v25, s43, v{xr}
        v_lshlrev_b32 v26, 16, v{xr+1}
        v_and_b32 v27, s43, v{xr+1}
        v_pk_add_f32 v[20:21], v[20:21], v[24:25]
        v_pk_add_f32 v[22:23], v[22:23], v[26:27]
        v_cvt_pk_bf16_f32 v{out}, v20, v21
        v_cvt_pk_bf16_f32 v{out+1}, v22, v23
        """)
    a.label("L_t_o")
    I(f"""
    v_and_b32 v10, 7, v1
    v_lshlrev_b32 v11, 3, v10
    s_lshl_b32 s46, s44, 6
    v_add_u32 v11, s46, v11
    global_load_dwordx2 v[6:7], v11, s[4:5]
    v_mov_b32 v3, v11
    v_lshlrev_b32 v14, 4, v10
    v_lshrrev_b32 v12, 3, v1
    v_lshlrev_b32 v12, 11, v12
    v_add_u32 v14, v14, v12
    s_lshl_b32 s46, s44, 7
    v_add_u32 v14, s46, v14
    v_add_u32 v15, {WS_Y}, v14
    s_add_u32 s32, s26, {WS_P}
    s_addc_u32 s33, s27, 0
    s_and_b32 s33, s33, 0xffff
    s_mov_b32 s34, {NF * 2048}
    s_mov_b32 s35, 0x20000
    v_mov_b32 v4, {M['QREADY']}
    s_waitcnt vmcnt(0)
    """)
    if P['touch_out']:
        I("""
        v_mov_b32 v16, 0
        v_mov_b32 v17, 0
        s_mov_b64 exec, 0xff
        global_store_dwordx2 v3, v[16:17], s[22:23]
        s_mov_b64 exec, -1
        """)
    lds_wait("L_o_qw", 4, 5, 8)
    wait_flags_and_go("L_o")
    stamp(16)
    def red_r8(base, tmp):
        for c in range(4): I(f"v_add_f32_dpp v{base+c}, v{base+c}, v{base+c} row_ror:8 row_mask:0xf bank_mask:0xf")
        for c in range(4): I(f"v_mov_b32 v{tmp+c}, v{base+c}")
        for c in range(4): I(f"v_permlane16_swap_b32 v{base+c}, v{tmp+c}")
        for c in range(4): I(f"v_add_f32 v{base+c}, v{base+c}, v{tmp+c}")
        for c in range(4): I(f"v_mov_b32 v{tmp+c}, v{base+c}")
        for c in range(4): I(f"v_permlane32_swap_b32 v{base+c}, v{tmp+c}")
        for c in range(4): I(f"v_add_f32 v{base+c}, v{base+c}, v{tmp+c}")
    I("v_mov_b32 v70, v3")
    def oy_issue(b): I(f"global_load_dwordx4 v[{b}:{b+3}], v15, s[26:27] sc1")
    def oy_first(b):
        for c in range(4): I(f"v_mov_b32 v{72+c}, v{b+c}")
    poll2("L_o_polly", oy_issue, 1, list(range(16, 20)), list(range(24, 28)), 28, oy_first, 'y')
    red_r8(72, 76)
    I(f"""
    v_cvt_pk_bf16_f32 v72, v72, v73
    v_cvt_pk_bf16_f32 v73, v74, v75
    v_lshlrev_b32 v76, 16, v72
    v_and_b32 v77, s43, v72
    v_lshlrev_b32 v78, 16, v73
    v_and_b32 v79, s43, v73
    v_lshlrev_b32 v80, 16, v6
    v_and_b32 v81, s43, v6
    v_lshlrev_b32 v82, 16, v7
    v_and_b32 v83, s43, v7
    v_pk_add_f32 v[76:77], v[76:77], v[80:81]
    v_pk_add_f32 v[78:79], v[78:79], v[82:83]
    v_cvt_pk_bf16_f32 v72, v76, v77
    v_cvt_pk_bf16_f32 v73, v78, v79
    v_lshlrev_b32 v66, 16, v72
    v_and_b32 v67, s43, v72
    v_lshlrev_b32 v68, 16, v73
    v_and_b32 v69, s43, v73
    s_waitcnt vmcnt(0)
    """)
    stamp(17)
    def op_issue(b):
        for u in range(6):
            I(f"s_mov_b32 s46, {u * 8 * 2048}")
            I(f"buffer_load_dwordx4 v[{b+4*u}:{b+4*u+3}], v14, s[32:35], s46 offen sc1")
    def op_first(b):
        I(f"""
        v_pk_add_f32 v[72:73], v[{b}:{b+1}], v[{b+4}:{b+5}]
        v_pk_add_f32 v[74:75], v[{b+2}:{b+3}], v[{b+6}:{b+7}]
        v_pk_add_f32 v[76:77], v[{b+8}:{b+9}], v[{b+12}:{b+13}]
        v_pk_add_f32 v[78:79], v[{b+10}:{b+11}], v[{b+14}:{b+15}]
        v_pk_add_f32 v[80:81], v[{b+16}:{b+17}], v[{b+20}:{b+21}]
        v_pk_add_f32 v[82:83], v[{b+18}:{b+19}], v[{b+22}:{b+23}]
        v_pk_add_f32 v[72:73], v[72:73], v[76:77]
        v_pk_add_f32 v[74:75], v[74:75], v[78:79]
        v_pk_add_f32 v[72:73], v[72:73], v[80:81]
        v_pk_add_f32 v[74:75], v[74:75], v[82:83]
        """)
    poll2("L_o_pollp", op_issue, 6, list(range(16, 40)), list(range(40, 64)), 71, op_first, 'O')
    stamp(18)
    red_r8(72, 76)
    I(f"""
    v_cvt_pk_bf16_f32 v72, v72, v73
    v_cvt_pk_bf16_f32 v73, v74, v75
    v_lshlrev_b32 v76, 16, v72
    v_and_b32 v77, s43, v72
    v_lshlrev_b32 v78, 16, v73
    v_and_b32 v79, s43, v73
    v_pk_add_f32 v[76:77], v[76:77], v[66:67]
    v_pk_add_f32 v[78:79], v[78:79], v[68:69]
    v_cvt_pk_bf16_f32 v72, v76, v77
    v_cvt_pk_bf16_f32 v73, v78, v79
    s_mov_b64 exec, 0xff
    global_store_dwordx2 v70, v[72:73], s[22:23] {P['out_sc']}
    s_mov_b64 exec, -1
    """)
    stamp(19)
    flush_stamps()
    a.label("L_end")
    I("s_endpgm")
    a.raw('.section .rodata,"a"')
    a.raw(".p2align 6")
    a.raw(f".amdhsa_kernel {KN}_kernel")
    a.raw("  .amdhsa_next_free_vgpr 168")
    a.raw("  .amdhsa_next_free_sgpr 96")
    a.raw("  .amdhsa_accum_offset 168")
    a.raw("  .amdhsa_group_segment_fixed_size 0")
    a.raw("  .amdhsa_kernarg_size 96")
    a.raw("  .amdhsa_user_sgpr_count 2")
    a.raw("  .amdhsa_user_sgpr_kernarg_segment_ptr 1")
    a.raw("  .amdhsa_system_sgpr_workgroup_id_x 1")
    a.raw(".end_amdhsa_kernel")
    return a.text()

if __name__ == "__main__":
    out = sys.argv[1]
    kw = json.loads(sys.argv[2]) if len(sys.argv) > 2 else {}
    open(out, "w").write(gen(**kw))
    print("wrote", out)
```

```python
import sys, json
from asmlib import Asm

KN = "sequential_preLN__gqa_block_cached__glu_gated_bilinear__decode"

DEF = dict(D=18, R=8, S=112, C=2, stamps=False, dump=False, nt="nt", sleep_c=1, sleep_t=1, prio=True,
           skip_stage=False, segs=None, stage_nt="nt", qsleep=2, q_nt="nt", knt=None, vnt=None, tag_sc1=True, budget=0x40000, map="rot", out_sc="", aligned=True, stag=5, dbl="", wsleep=0, qdelay=0, De=None, Te=8, stage_at="ready", Dd=24, qst=False, vtouch=True, ptouch=False, touch_out=False, hoist=True)

def lds_map(R, S):
    ring = R * 16384
    m = {}
    m['RING'] = 0
    m['STAGE'] = ring
    f = ring + 16384
    m['FILLED'] = f
    m['QPUB'] = f + 60
    m['PCNT'] = f + 12
    m['NEXT'] = f + 16
    m['FINCNT'] = f + 32
    m['CLEARED'] = f + 36
    m['TAILGO'] = f + 40
    m['QREADY'] = f + 44
    m['NONCE'] = f + 48
    m['KALL'] = f + 56
    m['TID'] = f + 128
    m['PMAX'] = f + 64
    m['XXT'] = f + 256
    m['FINO'] = m['XXT']
    m['QB'] = m['XXT'] + 2048
    m['FINML'] = m['QB'] + 256
    m['OALL'] = m['FINML'] + 64
    m['XN2'] = m['OALL'] + 1024
    m['HH'] = m['XN2'] + 1024
    m['YP'] = m['HH'] + 256
    m['SC'] = m['YP'] + 1024
    m['SCF'] = m['SC'] + S * 64
    m['END'] = m['SCF'] + 2 * R * 64
    return m

WS_PO = 0x0
PREC = 640
WS_Y = 0x29000
WS_P = 0x30000
WS_QX = 0x48000
WS_TK = 0x88000
WS_CLR = 0x8C000
WS_KD = 0x90000
WS_SCX = 0x100000
WS_STAMP = 0x20000000
NF = 43

LOG2E = 0x3fb8aa3b
SCALE = 0x3db504f3
EPS = 0x3727c5ac

def gen(**kw):
    P = dict(DEF); P.update(kw)
    D = P['D']; R = P['R']; NT = P['nt']; S = P['S']; NP = 128 - S
    M = lds_map(R, S)
    ldsz = (M['END'] + 255) // 256 * 256
    assert ldsz <= 163840, ldsz
    a = Asm(); I = a.I
    stamps = P['stamps']

    def spin():
        I("s_sub_u32 s89, s89, 1")
        I("s_cbranch_scc1 L_end")

    pend = []
    def stamp(slot):
        if not stamps: return
        k = len(pend); assert k < 6
        pend.append(slot)
        I(f"s_memrealtime s[{76+2*k}:{77+2*k}]")
    def flush_stamps(keep=0):
        if not stamps: return
        I("s_waitcnt lgkmcnt(0)")
        I("s_lshl_b32 s92, s2, 8")
        I(f"s_add_u32 s92, s92, {WS_STAMP}")
        I("s_add_u32 s92, s26, s92")
        I("s_addc_u32 s93, s27, 0")
        I("v_mov_b32 v166, 0")
        I("s_mov_b64 s[94:95], exec")
        I("s_mov_b64 exec, 1")
        for k, slot in enumerate(pend):
            I(f"v_mov_b32 v164, s{76+2*k}")
            I(f"v_mov_b32 v165, s{77+2*k}")
            I(f"global_store_dwordx2 v166, v[164:165], s[92:93] offset:{8*slot}")
        I("s_mov_b64 exec, s[94:95]")
        del pend[keep:]

    def lds_wait(lbl, addr_reg, tmp, sleep):
        a.label(lbl)
        spin()
        I(f"ds_read_b32 v{tmp}, v{addr_reg}")
        I("s_waitcnt lgkmcnt(0)")
        I(f"v_readfirstlane_b32 s42, v{tmp}")
        I("s_cmp_lg_u32 s42, 0")
        I(f"s_cbranch_scc1 {lbl}_ok")
        I(f"s_sleep {sleep}")
        I(f"s_branch {lbl}")
        a.label(f"{lbl}_ok")

    a.raw(f"; @launch grid=(256,1,1) block=(576,1,1) lds={ldsz}")
    for ln in """
Fused single-launch decode layer: h = x + Attn(LN(x)) ; out = h + Wd((LN(h) Wg) * (LN(h) Wu)).  One workgroup per CU, 9 waves.
Workgroup id -> head = id>>3, member = (id + head) & 7 : the 8 members of a head split its 32768 keys into tiles of 32 keys.
  wave 0      streams first the K tiles, then the V tiles HBM -> LDS ring (LDS-DMA, a fixed window of loads in flight); the whole
              chip reads one tensor at a time. Most tiles are assigned statically; the last 10 tiles of every member's range form a
              per-head pool that is handed out tile by tile through atomic tickets, once for K and once for V (load balance).
  waves 1-4   K phase: QK^T with MFMA, scores rounded to bf16 as the reference does; kept in LDS (own tiles) or published in d_ws
              (pool tiles). V phase: softmax against the true maximum (running maximum for pool tiles), PV with MFMA.
              Wave 1 first computes the workgroup's share of q = LN(x) Wq (64 of the 512 rows); the members exchange the shares.
  waves 5-8   fetch their slice of Wo / Wg,Wu,Wd into registers while the stream runs, then run the tail:
              W (64 workgroups): combine the 32 partials of 4 heads, times a 512x64 tile of Wo ;
              F (43 workgroups): h, LayerNorm, 32 gate/up columns, their 32 rows of Wd ;  O (16 workgroups): sum, residual, store.
Hand-offs between workgroups go through d_ws with write-through (sc1) stores and sc1 polling loads. Words are either reset to all-ones by
their producer early in the launch (and validated word by word), or carry the launch tag that workgroup 0 puts into d_debug at its start.
Every polling loop is bounded.""".strip().split("\n"):
        a.raw("; " + ln)
    a.raw('.amdgcn_target "amdgcn-amd-amdhsa--gfx950"')
    a.raw(".text")
    a.raw(f".globl {KN}_kernel")
    a.raw(".p2align 8")
    a.raw(f".type {KN}_kernel,@function")
    a.raw(f"{KN}_kernel:")
    I("s_cmp_ge_u32 s2, 256")
    I("s_cbranch_scc1 L_end")
    I("s_load_dwordx16 s[4:19], s[0:1], 0")
    I("s_load_dwordx8 s[20:27], s[0:1], 64")
    I("v_lshrrev_b32 v2, 6, v0")
    I("v_and_b32 v1, 63, v0")
    I("v_readfirstlane_b32 s28, v2")
    if P['map'] == "rot":
        I("s_lshr_b32 s29, s2, 3")
        I("s_add_u32 s30, s2, s29")
        I("s_and_b32 s30, s30, 7")
    elif P['map'] == "div":
        I("s_lshr_b32 s29, s2, 3")
        I("s_and_b32 s30, s2, 7")
    else:
        I("s_and_b32 s29, s2, 31")
        I("s_lshr_b32 s30, s2, 5")
    I("s_lshl_b32 s3, s29, 3")
    I("s_add_u32 s3, s3, s30")
    if P['map'] == "rot":
        I("s_mov_b32 s31, s30")
    else:
        I("s_sub_u32 s31, s30, s29")
        I("s_and_b32 s31, s31, 7")
    I(f"s_mov_b32 s89, {P['budget']}")
    I("s_waitcnt lgkmcnt(0)")
    I("s_cmp_eq_u32 s28, 0")
    I("s_cbranch_scc1 L_loader")
    I("s_cmp_lt_u32 s28, 5")
    I("s_cbranch_scc1 L_consumer")
    I("s_branch L_tail")

    a.label("L_loader")
    if P['prio']: I("s_setprio 3")
    stamp(0)
    I(f"""
    s_mov_b32 s32, s6
    s_and_b32 s33, s7, 0xffff
    s_mov_b32 s34, 0x10000000
    s_mov_b32 s35, 0x20000
    s_mov_b32 s36, s8
    s_and_b32 s37, s9, 0xffff
    s_mov_b32 s38, 0x10000000
    s_mov_b32 s39, 0x20000
    s_lshl_b32 s44, s29, 23
    v_lshrrev_b32 v8, 4, v1
    v_and_b32 v9, 15, v1
    v_lshlrev_b32 v10, 8, v8
    v_add_u32 v10, s44, v10
    """)
    for tt in range(4):
        I(f"v_add_u32 v11, {4*tt}, v8")
        I("v_xor_b32 v11, v11, v9")
        I("v_lshlrev_b32 v11, 4, v11")
        I(f"v_add_u32 v{2+tt}, v10, v11")
    for tp in range(2):
        I(f"v_add_u32 v11, {4*tp}, v8")
        I("v_lshlrev_b32 v11, 1, v11")
        I("v_xor_b32 v11, v11, v9")
        I("v_lshlrev_b32 v11, 4, v11")
        I(f"v_add_u32 v{6+tp}, v10, v11")
    RS = 2 * R
    Dd = P['Dd'] or D
    Dp = max(D, Dd)
    u0 = (Dp - 1) % 8
    cnt0 = (u0 - Dp + 1) // 8 - 1
    I(f"""
    s_mul_i32 s46, s30, {128 * 8192}
    s_mov_b32 s48, 0
    s_mov_b32 s49, {cnt0}
    s_mov_b32 s50, 0
    v_mov_b32 v12, {M['FILLED']}
    v_mov_b32 v13, {M['NEXT']}
    """)
    KNT = NT if P['knt'] is None else P['knt']
    VNT = NT if P['vnt'] is None else P['vnt']
    def loads_of_tile(isv, first, Dw=None):
        Dw = Dw or D
        for u in range(8):
            if u % 4 == 0:
                I(f"s_add_u32 m0, s48, {(u // 4) * 4096}")
            I(f"s_waitcnt vmcnt({Dw-1})")
            if u == u0:
                I("s_add_u32 s49, s49, 1")
                I("v_mov_b32 v14, s49")
                if not first:
                    I("ds_write_b32 v12, v14")
            so = "s46" if u < 4 else "s47"
            if isv: I(f"buffer_load_dwordx4 v{6 + (u & 1)}, s[36:39], {so} offen offset:{(u % 4) * 1024} {VNT} lds")
            else:   I(f"buffer_load_dwordx4 v{2 + (u & 3)}, s[32:35], {so} offen offset:{(u % 4) * 1024} {KNT} lds")
    assert 16 <= D and Dp <= 24
    if P['vtouch']:
        I("buffer_load_dword v31, v6, s[36:39], s46 offen nt")
    I("s_add_u32 s47, s46, 4096")
    loads_of_tile(False, True)
    I("""
    s_add_u32 s50, s50, 1
    s_add_u32 s46, s46, 8192
    s_add_u32 s47, s46, 4096
    s_add_u32 s48, s48, 8192
    """)
    loads_of_tile(False, True)
    I(f"""
    v_mov_b32 v16, 0
    v_mov_b32 v17, 1
    v_mov_b32 v18, 2
    v_mov_b32 v19, 3
    v_mov_b32 v20, 0
    v_mov_b32 v21, 0
    v_mov_b32 v22, 0
    v_mov_b32 v23, 0
    v_mov_b32 v14, s49
    v_mov_b32 v15, 0x7fffffff
    ds_write_b64 v12, v[14:15]
    v_mov_b32 v24, 0x7fffffff
    v_mov_b32 v25, 0
    ds_write_b64 v12, v[24:25] offset:8
    ds_write_b128 v13, v[16:19]
    ds_write_b128 v13, v[20:23] offset:16
    ds_write_b128 v13, v[20:23] offset:32
    s_waitcnt lgkmcnt(0)
    s_barrier
    """)
    I("ds_read_b128 v[16:19], v13")
    lab = [0]
    def next_tile(isv, advance, Dw=None, extra=None):
        k = lab[0]; lab[0] += 1
        I("s_add_u32 s50, s50, 1")
        if advance: I("s_add_u32 s46, s46, 8192")
        I(f"""
        s_add_u32 s47, s46, 4096
        s_add_u32 s48, s48, 8192
        s_cmp_ge_u32 s48, {RS*8192}
        s_cselect_b32 s48, 0, s48
        s_sub_u32 s52, s50, {RS-1}
        """)
        a.label(f"L_ld_free{k}")
        spin()
        I(f"""
        s_waitcnt lgkmcnt(0)
        v_min3_u32 v20, v16, v17, v18
        v_min_u32 v20, v20, v19
        v_readfirstlane_b32 s51, v20
        ds_read_b128 v[16:19], v13
        s_cmp_ge_i32 s51, s52
        s_cbranch_scc0 L_ld_free{k}
        """)
        if extra == "tid":
            I(f"""
            s_lshr_b32 s53, s48, 11
            s_add_u32 s53, s53, {M['TID']}
            v_mov_b32 v21, s53
            v_mov_b32 v22, s59
            ds_write_b32 v21, v22
            """)
        if extra == "scores":
            I(f"""
            s_lshr_b32 s53, s48, 7
            s_add_u32 m0, s53, {M['SCF']}
            s_lshl_b32 s59, s59, 6
            s_mov_b64 exec, 0xffff
            buffer_load_dword v28, s[40:43], s59 offen sc1 lds
            s_mov_b64 exec, -1
            """)
        loads_of_tile(isv, False, Dw)
    LA = 3
    assert 9 * LA - 1 >= Dp
    assert Dp - u0 <= 21
    NPOOL = 8 * NP
    nst = [0]
    def tstamp():
        if stamps and nst[0] < 7:
            I(f"s_memrealtime s[{60+2*nst[0]}:{61+2*nst[0]}]"); nst[0] += 1
    def ticket(reg):
        I("s_mov_b64 exec, 1")
        I(f"global_atomic_add v{reg}, v25, v26, s[26:27] sc0 sc1")
        I("s_mov_b64 exec, -1")
    def decode(reg, over):
        I(f"""
        v_readfirstlane_b32 s53, v{reg}
        s_and_b32 s55, s53, 7
        s_lshr_b32 s57, s53, 3
        s_lshl_b32 s46, s55, 7
        s_add_u32 s46, s46, s57
        s_add_u32 s46, s46, {S}
        s_lshl_b32 s46, s46, 13
        s_cmp_lt_u32 s53, {NPOOL}
        s_cbranch_scc0 {over}
        s_mov_b32 s59, s53
        """)
    TR = (24, 27, 29)
    nstatic = S - LA
    bounds = ([b for b in (P['segs'] or [16, 32, 64]) if b < nstatic] if stamps else []) + [nstatic]
    for sg, b in enumerate(bounds):
        a.label(f"L_ld_tile{sg}")
        next_tile(False, True)
        I(f"s_cmp_lt_u32 s50, {b - 1}")
        I(f"s_cbranch_scc1 L_ld_tile{sg}")
        if sg < len(bounds) - 1: tstamp()
    I(f"""
    s_lshl_b32 s53, s29, 8
    s_add_u32 s53, s53, {WS_TK}
    v_mov_b32 v25, s53
    v_mov_b32 v26, 1
    """)
    for reg in TR:
        ticket(reg)
        next_tile(False, True, Dd)
    a.label("L_ld_kdyn")
    for reg in TR:
        decode(reg, "L_ld_kover")
        ticket(reg)
        next_tile(False, False, Dd, extra="tid")
    I("s_branch L_ld_kdyn")
    a.label("L_ld_kover")
    tstamp()
    I(f"""
    s_add_u32 s56, s50, 1
    v_mov_b32 v14, s56
    ds_write_b32 v12, v14 offset:4
    s_mul_i32 s46, s30, {128 * 8192}
    s_sub_u32 s46, s46, 8192
    s_add_u32 s58, s56, {S - LA - 1}
    """)
    a.label("L_ld_v")
    next_tile(True, True)
    I("s_cmp_lt_u32 s50, s58")
    I("s_cbranch_scc1 L_ld_v")
    tstamp()
    I(f"""
    v_add_u32 v25, 128, v25
    s_mul_i32 s53, s29, {NPOOL * 64}
    s_add_u32 s53, s53, {WS_SCX}
    s_add_u32 s40, s26, s53
    s_addc_u32 s41, s27, 0
    s_and_b32 s41, s41, 0xffff
    s_mov_b32 s42, {NPOOL * 64}
    s_mov_b32 s43, 0x20000
    v_lshlrev_b32 v28, 2, v1
    v_mov_b32 v30, {M['KALL']}
    """)
    for reg in TR:
        ticket(reg)
        next_tile(True, True, Dd)
    a.label("L_ld_kall")
    spin()
    I("""
    ds_read_b32 v31, v30
    s_waitcnt lgkmcnt(0)
    v_readfirstlane_b32 s53, v31
    s_cmp_lg_u32 s53, 0
    s_cbranch_scc0 L_ld_kall
    ds_read_b128 v[16:19], v13
    """)
    a.label("L_ld_vdyn")
    for reg in TR:
        decode(reg, "L_ld_pover")
        ticket(reg)
        next_tile(True, False, Dd, extra="scores")
    I("s_branch L_ld_vdyn")
    a.label("L_ld_pover")
    I("""
    s_add_u32 s56, s50, 1
    v_mov_b32 v14, s56
    ds_write_b32 v12, v14 offset:8
    """)
    a.label("L_ld_over")
    rem = 8 - u0 + Dp - 1
    while rem > 0:
        rem -= 8
        I(f"s_waitcnt vmcnt({rem})")
        I("s_add_u32 s49, s49, 1")
        I("v_mov_b32 v14, s49")
        I("ds_write_b32 v12, v14")
    assert rem == 0
    I("s_waitcnt lgkmcnt(0)")
    stamp(1)
    flush_stamps()
    if stamps:
        I("s_lshl_b32 s92, s2, 8")
        I(f"s_add_u32 s92, s92, {WS_STAMP + 20 * 8}")
        I("s_add_u32 s92, s26, s92")
        I("s_addc_u32 s93, s27, 0")
        I("v_mov_b32 v166, 0")
        I("s_mov_b64 exec, 1")
        for k in range(7):
            I(f"v_mov_b32 v164, s{60+2*k}")
            I(f"v_mov_b32 v165, s{61+2*k}")
            I(f"global_store_dwordx2 v166, v[164:165], s[92:93] offset:{8*k}")
        I("v_mov_b32 v164, s56")
        I("v_mov_b32 v165, 0")
        I(f"global_store_dwordx2 v166, v[164:165], s[92:93] offset:{8*7}")
    I("s_endpgm")

    def wave_sum(v, t):
        for r in (8, 4, 2, 1):
            I(f"v_add_f32_dpp v{v}, v{v}, v{v} row_ror:{r} row_mask:0xf bank_mask:0xf")
        I(f"v_mov_b32 v{t}, v{v}")
        I(f"v_permlane16_swap_b32 v{v}, v{t}")
        I(f"v_add_f32 v{v}, v{v}, v{t}")
        I(f"v_mov_b32 v{t}, v{v}")
        I(f"v_permlane32_swap_b32 v{v}, v{t}")
        I(f"v_add_f32 v{v}, v{v}, v{t}")
    def unpack8(src, dst):
        for j in range(4):
            I(f"v_lshlrev_b32 v{dst+2*j}, 16, v{src+j}")
            I(f"v_and_b32 v{dst+2*j+1}, s43, v{src+j}")
    def layernorm8(x, tmp):
        s, t, mb, den = tmp, tmp+1, tmp+2, tmp+3
        I(f"v_add_f32 v{s}, v{x}, v{x+1}")
        for j in range(2, 8): I(f"v_add_f32 v{s}, v{s}, v{x+j}")
        wave_sum(s, t)
        I(f"v_mul_f32 v{s}, 0x3b000000, v{s}")
        I(f"v_cvt_pk_bf16_f32 v{mb}, v{s}, v{s}")
        I(f"v_and_b32 v{mb}, s43, v{mb}")
        I(f"v_sub_f32 v{t}, v{x}, v{s}")
        I(f"v_mul_f32 v{den}, v{t}, v{t}")
        for j in range(1, 8):
            I(f"v_sub_f32 v{t}, v{x+j}, v{s}")
            I(f"v_fmac_f32 v{den}, v{t}, v{t}")
        wave_sum(den, t)
        I(f"v_mul_f32 v{den}, 0x3b000000, v{den}")
        I(f"v_cvt_pk_bf16_f32 v{den}, v{den}, v{den}")
        I(f"v_and_b32 v{den}, s43, v{den}")
        I(f"v_add_f32 v{den}, {hex(EPS)}, v{den}")
        I(f"v_cvt_pk_bf16_f32 v{den}, v{den}, v{den}")
        I(f"v_and_b32 v{den}, s43, v{den}")
        I(f"v_sqrt_f32 v{den}, v{den}")
        I(f"v_cvt_pk_bf16_f32 v{den}, v{den}, v{den}")
        I(f"v_and_b32 v{den}, s43, v{den}")
        I(f"v_rcp_f32 v{den}, v{den}")
        for j in range(0, 8, 2):
            I(f"v_sub_f32 v{x+j}, v{x+j}, v{mb}")
            I(f"v_sub_f32 v{x+j+1}, v{x+j+1}, v{mb}")
            I(f"v_cvt_pk_bf16_f32 v{t}, v{x+j}, v{x+j+1}")
            I(f"v_lshlrev_b32 v{x+j}, 16, v{t}")
            I(f"v_and_b32 v{x+j+1}, s43, v{t}")
            I(f"v_mul_f32 v{x+j}, v{x+j}, v{den}")
            I(f"v_mul_f32 v{x+j+1}, v{x+j+1}, v{den}")

    a.label("L_consumer")
    I("s_sub_u32 s40, s28, 1")
    I("s_mov_b32 s43, 0xffff0000")
    I("v_lshrrev_b32 v8, 4, v1")
    I("v_and_b32 v9, 15, v1")
    I("s_cmp_eq_u32 s40, 0")
    I("s_cbranch_scc1 L_c_q")
    I("s_barrier")
    I("s_branch L_c_qwait")
    a.label("L_c_q")
    I("""
    s_cmp_eq_u32 s2, 0
    s_cbranch_scc0 L_q_notag
    s_memrealtime s[56:57]
    s_waitcnt lgkmcnt(0)
    s_or_b32 s56, s56, 1
    s_or_b32 s57, s57, 0x40000000
    s_and_b32 s57, s57, 0x7fffffff
    v_mov_b32 v34, s56
    v_mov_b32 v35, s57
    v_mov_b32 v2, 0
    s_mov_b64 exec, 1
    global_store_dwordx2 v2, v[34:35], s[24:25] sc1
    s_mov_b64 exec, -1
    """)
    a.label("L_q_notag")
    I(f"""
    v_mov_b32 v2, 0
    global_load_dwordx2 v[34:35], v2, s[24:25] {"sc1" if P['tag_sc1'] else ""}
    s_mov_b32 s32, s10
    s_and_b32 s33, s11, 0xffff
    s_mov_b32 s34, 0x400000
    s_mov_b32 s35, 0x20000
    v_lshlrev_b32 v2, 4, v1
    global_load_dwordx4 v[30:33], v2, s[4:5]
    s_lshl_b32 s41, s30, 6
    v_add_u32 v3, s41, v8
    v_lshlrev_b32 v3, 13, v3
    v_lshlrev_b32 v4, 4, v9
    v_add_u32 v3, v3, v4
    s_lshl_b32 s41, s29, 8
    v_add_u32 v3, s41, v3
    """)
    for t in range(16):
        I(f"s_mov_b32 s42, {t * 32768}")
        I(f"buffer_load_dwordx4 v[{40+4*t}:{43+4*t}], v3, s[32:35], s42 offen {P['q_nt']}")
    if P['qst']: stamp(28)
    I("s_barrier")
    I("s_waitcnt vmcnt(16)")
    if P['qst']: stamp(29)
    unpack8(30, 10)
    layernorm8(10, 4)
    for e in range(8):
        I(f"v_cvt_pk_bf16_f32 v{18+e}, v{10+e}, v{10+e}")
    I(f"""
    v_lshrrev_b32 v4, 3, v1
    v_lshlrev_b32 v4, 8, v4
    v_and_b32 v5, 7, v1
    v_lshlrev_b32 v5, 3, v5
    v_add_u32 v4, v4, v5
    v_add_u32 v4, {M['XXT']}, v4
    """)
    for g in range(4):
        I(f"v_mov_b32 v26, v{18+g}")
        I(f"v_mov_b32 v27, v{18+g+4}")
        I(f"ds_write_b64 v4, v[26:27] offset:{g*64}")
    I(f"""
    v_and_b32 v5, 1, v9
    v_mov_b32 v6, 0xffff
    v_mov_b32 v7, s43
    v_cmp_eq_u32 vcc, 1, v5
    v_cndmask_b32 v5, v6, v7, vcc
    v_lshrrev_b32 v6, 1, v9
    """)
    for j in range(4):
        I(f"v_cmp_eq_u32 vcc, {j}, v6")
        I(f"v_cndmask_b32 v{10+j}, 0, v5, vcc")
    I(f"""
    s_lshl_b32 s41, s30, 8
    s_add_u32 s41, s41, {M['XXT']}
    v_lshlrev_b32 v4, 6, v8
    v_add_u32 v4, s41, v4
    s_waitcnt lgkmcnt(0)
    ds_read_b128 v[104:107], v4
    ds_read_b128 v[108:111], v4 offset:16
    ds_read_b128 v[112:115], v4 offset:32
    ds_read_b128 v[116:119], v4 offset:48
    s_waitcnt lgkmcnt(0)
    """)
    if P['qst']: stamp(31)
    for t in range(16):
        bb = 18 + 4 * (t % 2)
        for j in range(4):
            I(f"v_and_b32 v{bb+j}, v{104+t}, v{10+j}")
        I(f"s_waitcnt vmcnt({15 - t})")
        c = "0" if t == 0 else "v[26:29]"
        I(f"v_mfma_f32_16x16x32_bf16 v[26:29], v[{40+4*t}:{43+4*t}], v[{bb}:{bb+3}], {c}")
    if P['qst']: stamp(30)
    I("""
    v_readfirstlane_b32 s56, v34
    v_readfirstlane_b32 s57, v35
    s_cmp_lg_u32 s56, 0
    s_cbranch_scc1 L_q_havetag
    """)
    a.label("L_q_tagpoll")
    spin()
    I("""
    v_mov_b32 v2, 0
    global_load_dwordx2 v[34:35], v2, s[24:25] sc1
    s_waitcnt vmcnt(0)
    v_readfirstlane_b32 s56, v34
    v_readfirstlane_b32 s57, v35
    s_cmp_lg_u32 s56, 0
    s_cbranch_scc1 L_q_havetag
    s_sleep 2
    s_branch L_q_tagpoll
    """)
    a.label("L_q_havetag")
    I(f"v_mov_b32 v5, {M['CLEARED']}")
    lds_wait("L_q_clr", 5, 6, 1)
    I(f"""
    v_mov_b32_dpp v14, v28 row_ror:8 row_mask:0xf bank_mask:0xf
    v_mov_b32_dpp v16, v29 row_ror:8 row_mask:0xf bank_mask:0xf
    v_cmp_gt_u32 vcc, 8, v9
    v_mov_b32 v11, s56
    v_mov_b32 v13, s57
    v_cndmask_b32 v10, v14, v26, vcc
    v_cndmask_b32 v12, v16, v27, vcc
    v_mov_b32 v18, s56
    v_mov_b32 v19, s57
    v_mov_b32 v6, {M['NONCE']}
    ds_write_b64 v6, v[18:19]
    s_lshl_b32 s41, s3, 10
    s_add_u32 s41, s41, {WS_QX}
    v_and_b32 v4, 7, v9
    v_lshlrev_b32 v4, 1, v4
    v_lshrrev_b32 v5, 3, v9
    v_add_u32 v4, v4, v5
    v_lshlrev_b32 v5, 4, v8
    v_add_u32 v4, v4, v5
    v_lshlrev_b32 v4, 4, v4
    v_add_u32 v4, s41, v4
    global_store_dwordx4 v4, v[10:13], s[26:27] sc1
    v_mov_b32 v6, {M['QPUB']}
    v_mov_b32 v7, 1
    ds_write_b32 v6, v7
    s_mov_b64 exec, 1
    s_lshl_b32 s41, s3, 3
    s_add_u32 s41, s41, {WS_CLR}
    v_mov_b32 v4, s41
    global_store_dwordx2 v4, v[18:19], s[26:27] sc1
    s_mov_b64 exec, -1
    s_lshl_b32 s41, s29, 13
    s_add_u32 s41, s41, {WS_QX}
    v_lshlrev_b32 v4, 4, v1
    v_add_u32 v4, s41, v4
    v_add_u32 v5, 4096, v4
    """)
    stamp(5)
    if P['qdelay']: I(f"s_sleep {P['qdelay']}")
    a.label("L_q_poll")
    spin()
    for i in range(8):
        I(f"global_load_dwordx4 v[{40+4*i}:{43+4*i}], v{4 if i < 4 else 5}, s[26:27] offset:{1024*(i%4)} sc1")
    I("s_waitcnt vmcnt(0)")
    I("v_xor_b32 v6, s56, v41")
    I("v_xor_b32 v7, s57, v43")
    I("v_or_b32 v6, v6, v7")
    for i in range(1, 8):
        I(f"v_xor_b32 v7, s56, v{41+4*i}")
        I(f"v_or_b32 v6, v6, v7")
        I(f"v_xor_b32 v7, s57, v{43+4*i}")
        I(f"v_or_b32 v6, v6, v7")
    I("v_cmp_ne_u32 vcc, 0, v6")
    I("s_cbranch_vccz L_q_seen")
    if P['qsleep']: I(f"s_sleep {P['qsleep']}")
    I("s_branch L_q_poll")
    a.label("L_q_seen")
    stamp(6)
    for c in (0, 2):
        I(f"v_add_f32 v{40+c}, v{40+c}, v{44+c}")
        I(f"v_add_f32 v{48+c}, v{48+c}, v{52+c}")
        I(f"v_add_f32 v{56+c}, v{56+c}, v{60+c}")
        I(f"v_add_f32 v{64+c}, v{64+c}, v{68+c}")
    for c in (0, 2):
        I(f"v_add_f32 v{40+c}, v{40+c}, v{48+c}")
        I(f"v_add_f32 v{56+c}, v{56+c}, v{64+c}")
    for c in (0, 2):
        I(f"v_add_f32 v{40+c}, v{40+c}, v{56+c}")
    I(f"""
    v_cvt_pk_bf16_f32 v10, v40, v42
    v_lshrrev_b32 v11, 16, v10
    v_lshrrev_b32 v5, 1, v9
    v_and_b32 v6, 1, v1
    v_lshlrev_b32 v6, 4, v6
    v_add_u32 v5, v5, v6
    v_lshlrev_b32 v6, 5, v8
    v_add_u32 v5, v5, v6
    v_lshlrev_b32 v5, 1, v5
    v_add_u32 v5, {M['QB']}, v5
    ds_write_b16 v5, v10
    ds_write_b16 v5, v11 offset:16
    v_mov_b32 v6, {M['QREADY']}
    v_mov_b32 v7, 1
    s_waitcnt lgkmcnt(0)
    ds_write_b32 v6, v7
    """)
    flush_stamps()
    if P['dump']:
        I(f"""
        v_lshlrev_b32 v4, 2, v1
        v_add_u32 v5, {M['QB']}, v4
        ds_read_b32 v10, v5
        s_lshl_b32 s41, s3, 8
        s_add_u32 s41, s41, 0x100000
        v_add_u32 v4, s41, v4
        s_waitcnt lgkmcnt(0)
        global_store_dword v4, v10, s[26:27]
        """)
    a.label("L_c_qwait")
    I(f"v_mov_b32 v5, {M['QREADY']}")
    lds_wait("L_c_qw", 5, 6, 1)
    I(f"""
    v_lshlrev_b32 v5, 4, v8
    v_add_u32 v5, {M['QB']}, v5
    ds_read_b128 v[40:43], v5
    ds_read_b128 v[44:47], v5 offset:64
    ds_read_b128 v[48:51], v5 offset:128
    ds_read_b128 v[52:55], v5 offset:192
    """)
    I(f"""
    v_xor_b32 v2, v8, v9
    v_lshlrev_b32 v2, 4, v2
    v_lshlrev_b32 v10, 8, v9
    v_add_u32 v2, v2, v10
    v_lshrrev_b32 v10, 2, v9
    v_and_b32 v11, 3, v9
    v_lshlrev_b32 v12, 2, v8
    v_add_u32 v12, v12, v10
    v_and_b32 v13, 7, v12
    v_lshlrev_b32 v13, 1, v13
    v_lshrrev_b32 v14, 1, v11
    v_xor_b32 v13, v13, v14
    v_lshlrev_b32 v13, 4, v13
    v_and_b32 v14, 1, v11
    v_lshlrev_b32 v14, 3, v14
    v_lshlrev_b32 v3, 8, v12
    v_add_u32 v3, v3, v13
    v_add_u32 v3, v3, v14
    v_mov_b32 v4, 0xff800000
    v_mov_b32 v5, 0
    v_mov_b32 v6, 0
    v_mov_b32 v7, {M['FILLED']}
    s_lshl_b32 s41, s40, 2
    s_add_u32 s41, s41, {M['NEXT']}
    v_mov_b32 v38, s41
    s_mov_b32 s44, {hex(LOG2E)}
    s_mov_b32 s45, {hex(SCALE)}
    s_mov_b32 s46, s40
    s_lshl_b32 s47, s40, 13
    s_mov_b32 s48, -100
    s_mov_b32 s50, 0x7fffffff
    """)
    for r in range(56, 88): I(f"v_mov_b32 v{r}, 0")
    I(f"""
    s_lshl_b32 s41, s40, 9
    s_add_u32 s41, s41, {M['FINO']}
    v_lshlrev_b32 v120, 2, v9
    v_add_u32 v120, s41, v120
    s_lshl_b32 s41, s40, 3
    s_add_u32 s41, s41, {M['FINML']}
    v_mov_b32 v121, s41
    v_mov_b32 v122, {M['FINCNT']}
    v_mov_b32 v123, 1
    v_lshlrev_b32 v124, 3, v1
    s_mul_i32 s41, s3, {PREC}
    v_add_u32 v125, s41, v124
    v_add_u32 v124, {M['FINO']}, v124
    v_mov_b32 v126, {M['FINML']}
    v_mov_b32 v127, {M['TAILGO']}
    """)
    I("s_waitcnt lgkmcnt(0)")
    stamp(2)
    I(f"""
    v_lshlrev_b32 v39, 4, v8
    v_add_u32 v39, {M['SC']}, v39
    s_mov_b32 s60, 0x00010001
    s_mov_b32 s61, 0x00010001
    s_mul_i32 s41, s29, {8 * NP * 64}
    s_add_u32 s41, s41, {WS_SCX}
    v_lshlrev_b32 v128, 4, v8
    v_add_u32 v128, s41, v128
    v_lshlrev_b32 v129, 4, v8
    v_add_u32 v129, {M['SCF']}, v129
    s_mov_b32 s52, 0x7fffffff
    """)
    RS = 2 * R
    KF = 88
    SS = 18
    def wait_tile(lbl, kind):
        I(f"s_add_u32 s49, s46, 1")
        if kind != 'K':
            I(f"s_cmp_ge_i32 s48, s49")
            I(f"s_cbranch_scc1 {lbl}_ok")
        a.label(f"{lbl}_poll")
        spin()
        I("ds_read_b128 v[34:37], v7")
        I("s_waitcnt lgkmcnt(0)")
        I("v_readfirstlane_b32 s48, v34")
        if kind == 'K':
            I("v_readfirstlane_b32 s50, v35")
            I("s_cmp_ge_u32 s46, s50")
            I("s_cbranch_scc1 L_c_sw")
        if kind == 'P': I("v_readfirstlane_b32 s52, v36")
        I("s_cmp_ge_i32 s48, s49")
        I(f"s_cbranch_scc1 {lbl}_ok")
        if kind == 'P':
            I("s_cmp_ge_u32 s46, s52")
            I("s_cbranch_scc1 L_c_fin")
        elif kind != 'T':
            I(f"s_sleep {P['sleep_c']}")
        I(f"s_branch {lbl}_poll")
        a.label(f"{lbl}_ok")
    def advance():
        I(f"""
        s_add_u32 s47, s47, {4*8192}
        s_cmp_ge_u32 s47, {RS*8192}
        s_cselect_b32 s49, {RS*8192}, 0
        s_sub_u32 s47, s47, s49
        """)
    a.label("L_c_tile")
    I("s_cmp_ge_u32 s46, s50")
    I("s_cbranch_scc1 L_c_sw")
    wait_tile("L_c_k", 'K')
    I("v_add_u32 v10, s47, v2")
    for j in range(1, 4): I(f"v_xor_b32 v{10+j}, {j << 6}, v10")
    for j in range(4):
        I(f"ds_read_b128 v[{KF+4*j}:{KF+4*j+3}], v{10+j}")
        I(f"ds_read_b128 v[{KF+16+4*j}:{KF+16+4*j+3}], v{10+j} offset:4096")
    I(f"""
    s_lshr_b32 s49, s47, 11
    s_add_u32 s49, s49, {M['TID']}
    v_mov_b32 v14, s49
    ds_read_b32 v16, v14
    s_lshl_b32 s51, s46, 6
    s_add_u32 s46, s46, 4
    v_mov_b32 v15, s46
    """)
    for j in range(4):
        I(f"s_waitcnt lgkmcnt({7 - 2*j if j < 3 else 0})")
        if j == 3: I("ds_write_b32 v38, v15")
        c0 = "0" if j == 0 else "v[18:21]"
        c1 = "0" if j == 0 else "v[22:25]"
        I(f"v_mfma_f32_16x16x32_bf16 v[18:21], v[{KF+4*j}:{KF+4*j+3}], v[{40+4*j}:{43+4*j}], {c0}")
        I(f"v_mfma_f32_16x16x32_bf16 v[22:25], v[{KF+16+4*j}:{KF+16+4*j+3}], v[{40+4*j}:{43+4*j}], {c1}")
    advance()
    for p in range(4): I(f"v_cvt_pk_bf16_f32 v{30+p}, v{SS+2*p}, v{SS+2*p+1}")
    for p in range(4):
        I(f"v_lshlrev_b32 v{SS+2*p}, 16, v{30+p}")
        I(f"v_and_b32 v{SS+2*p+1}, s43, v{30+p}")
    for i in range(8): I(f"v_mul_f32 v{SS+i}, s45, v{SS+i}")
    for p in range(4): I(f"v_cvt_pk_bf16_f32 v{28+p}, v{SS+2*p}, v{SS+2*p+1}")
    I(f"""
    s_cmp_lt_u32 s51, {S * 64}
    s_cbranch_scc0 L_c_kpool
    v_add_u32 v14, s51, v39
    s_mov_b64 exec, s[60:61]
    ds_write_b128 v14, v[28:31]
    s_mov_b64 exec, -1
    s_branch L_c_kmax
    """)
    a.label("L_c_kpool")
    I(f"""
    v_lshlrev_b32 v16, 6, v16
    v_add_u32 v14, v16, v128
    s_mov_b64 exec, s[60:61]
    global_store_dwordx4 v14, v[28:31], s[26:27] sc1
    s_mov_b64 exec, -1
    """)
    a.label("L_c_kmax")
    for p in range(4):
        I(f"v_lshlrev_b32 v{SS+2*p}, 16, v{28+p}")
        I(f"v_and_b32 v{SS+2*p+1}, s43, v{28+p}")
    for p in range(4): I(f"v_max3_f32 v4, v4, v{SS+2*p}, v{SS+2*p+1}")
    I("s_branch L_c_tile")
    a.label("L_c_sw")
    I(f"""
    v_mov_b32 v30, v4
    s_lshl_b32 s41, s40, 2
    s_add_u32 s41, s41, {M['PMAX']}
    v_permlane32_swap_b32 v4, v30
    v_mov_b32 v31, s41
    v_max_f32 v4, v4, v30
    v_mov_b32 v32, {M['PCNT']}
    v_mov_b32 v30, v4
    v_mov_b32 v33, {M['PMAX']}
    s_nop 0
    v_permlane16_swap_b32 v4, v30
    v_max_f32 v4, v4, v30
    ds_write_b32 v31, v4
    s_waitcnt vmcnt(0) lgkmcnt(0)
    ds_add_u32 v32, v123
    """)
    a.label("L_c_sw_wait")
    spin()
    I("""
    ds_read_b32 v30, v32
    ds_read_b128 v[20:23], v33
    s_waitcnt lgkmcnt(0)
    v_readfirstlane_b32 s41, v30
    s_cmp_ge_u32 s41, 256
    s_cbranch_scc0 L_c_sw_wait
    """)
    I(f"""
    v_max3_f32 v4, v20, v21, v22
    v_max_f32 v4, v4, v23
    v_mul_f32 v6, s44, v4
    s_add_u32 s51, s50, {S}
    """)
    def softmax_part():
        for i in range(8): I(f"v_fma_f32 v{SS+i}, v{SS+i}, s44, -v6")
        for i in range(8): I(f"v_exp_f32 v{SS+i}, v{SS+i}")
        for p in range(4): I(f"v_cvt_pk_bf16_f32 v{26+p}, v{SS+2*p}, v{SS+2*p+1}")
        I(f"""
        v_add_f32 v30, v{SS}, v{SS+1}
        v_add_f32 v31, v{SS+2}, v{SS+3}
        v_add_f32 v32, v{SS+4}, v{SS+5}
        v_add_f32 v33, v{SS+6}, v{SS+7}
        v_add_f32 v30, v30, v31
        v_add_f32 v32, v32, v33
        v_add_f32 v30, v30, v32
        v_add_f32 v5, v5, v30
        """)
    def vread(nb):
        I(f"ds_read_b64_tr_b16 v[{KF+4*nb}:{KF+4*nb+1}], v{10+nb}")
        I(f"ds_read_b64_tr_b16 v[{KF+4*nb+2}:{KF+4*nb+3}], v{10+nb} offset:4096")
    def pv(nb):
        I(f"v_mfma_f32_16x16x32_bf16 v[{56+4*nb}:{59+4*nb}], v[26:29], v[{KF+4*nb}:{KF+4*nb+3}], v[{56+4*nb}:{59+4*nb}]")
    def pv_part():
        for nb in range(7): vread(nb)
        I("s_waitcnt lgkmcnt(6)")
        for nb in range(4): pv(nb)
        vread(7)
        I("s_waitcnt lgkmcnt(2)")
        for nb in range(4, 7): pv(nb)
        I("s_add_u32 s46, s46, 4")
        I("v_mov_b32 v30, s46")
        I("s_waitcnt lgkmcnt(0)")
        I("ds_write_b32 v38, v30")
        pv(7)
        advance()
    def vaddr():
        I("v_add_u32 v10, s47, v3")
        for nb in range(1, 8): I(f"v_xor_b32 v{10+nb}, {nb << 5}, v10")
    def unpack_scores():
        for p in range(4):
            I(f"v_lshlrev_b32 v{SS+2*p}, 16, v{28+p}")
            I(f"v_and_b32 v{SS+2*p+1}, s43, v{28+p}")
    a.label("L_c_vtile")
    I(f"""
    s_sub_u32 s49, s46, s50
    s_lshl_b32 s49, s49, 6
    v_add_u32 v14, s49, v39
    ds_read_b128 v[28:31], v14
    """)
    vaddr()
    I("s_waitcnt lgkmcnt(0)")
    unpack_scores()
    softmax_part()
    wait_tile("L_c_v", 'V')
    pv_part()
    I("s_cmp_lt_u32 s46, s51")
    I("s_cbranch_scc1 L_c_vtile")
    a.label("L_c_ptile")
    a.label("L_c_ps_poll")
    spin()
    I("""
    ds_read_b128 v[34:37], v7
    s_waitcnt lgkmcnt(0)
    v_readfirstlane_b32 s52, v36
    v_readfirstlane_b32 s48, v34
    s_cmp_ge_u32 s46, s52
    s_cbranch_scc1 L_c_fin
    s_cmp_ge_i32 s48, s46
    s_cbranch_scc0 L_c_ps_poll
    """)
    I(f"""
    s_lshr_b32 s49, s47, 7
    v_add_u32 v14, s49, v129
    ds_read_b128 v[28:31], v14
    """)
    vaddr()
    I("s_waitcnt lgkmcnt(0)")
    unpack_scores()
    I(f"""
    v_max3_f32 v34, v{SS}, v{SS+1}, v{SS+2}
    v_max3_f32 v35, v{SS+3}, v{SS+4}, v{SS+5}
    v_max3_f32 v34, v34, v{SS+6}, v{SS+7}
    v_max_f32 v34, v34, v35
    v_mov_b32 v35, v34
    v_permlane32_swap_b32 v34, v35
    v_max_f32 v34, v34, v35
    v_mov_b32 v35, v34
    v_permlane16_swap_b32 v34, v35
    v_max_f32 v34, v34, v35
    v_cmp_gt_f32 vcc, v34, v4
    s_cbranch_vccz L_c_norescale
    v_sub_f32 v35, v4, v34
    v_mul_f32 v35, s44, v35
    v_exp_f32 v35, v35
    v_mov_b32 v4, v34
    v_mul_f32 v6, s44, v34
    v_mul_f32 v5, v5, v35
    """)
    for r in range(56, 88): I(f"v_mul_f32 v{r}, v{r}, v35")
    a.label("L_c_norescale")
    softmax_part()
    wait_tile("L_c_pv", 'T')
    pv_part()
    I("s_branch L_c_ptile")
    a.label("L_c_fin")
    stamp(3)
    I(f"""
    v_mov_b32 v30, v5
    v_mov_b32 v4, v6
    ds_write_b32 v120, v56 offset:0
    v_permlane32_swap_b32 v5, v30
    ds_write_b32 v120, v60 offset:64
    ds_write_b32 v120, v64 offset:128
    v_add_f32 v5, v5, v30
    ds_write_b32 v120, v68 offset:192
    v_mov_b32 v30, v5
    ds_write_b32 v120, v72 offset:256
    ds_write_b32 v120, v76 offset:320
    v_permlane16_swap_b32 v5, v30
    ds_write_b32 v120, v80 offset:384
    ds_write_b32 v120, v84 offset:448
    v_add_f32 v5, v5, v30
    ds_write_b64 v121, v[4:5]
    s_mov_b64 exec, 1
    ds_add_rtn_u32 v32, v122, v123
    s_mov_b64 exec, -1
    ds_read_b128 v[20:23], v126
    ds_read_b128 v[24:27], v126 offset:16
    ds_read_b64 v[12:13], v124
    ds_read_b64 v[14:15], v124 offset:512
    ds_read_b64 v[16:17], v124 offset:1024
    ds_read_b64 v[18:19], v124 offset:1536
    s_waitcnt lgkmcnt(0)
    v_readfirstlane_b32 s41, v32
    v_max3_f32 v28, v20, v22, v24
    s_cmp_eq_u32 s41, 3
    s_cbranch_scc0 L_end
    ds_write_b32 v127, v123
    v_max_f32 v28, v28, v26
    v_sub_f32 v20, v20, v28
    v_sub_f32 v22, v22, v28
    v_sub_f32 v24, v24, v28
    v_sub_f32 v26, v26, v28
    v_exp_f32 v20, v20
    v_exp_f32 v22, v22
    v_exp_f32 v24, v24
    v_exp_f32 v26, v26
    v_pk_mul_f32 v[12:13], v[12:13], v[20:21] op_sel_hi:[1,0]
    v_mul_f32 v29, v21, v20
    v_pk_fma_f32 v[12:13], v[14:15], v[22:23], v[12:13] op_sel_hi:[1,0,1]
    v_fmac_f32 v29, v23, v22
    v_pk_fma_f32 v[12:13], v[16:17], v[24:25], v[12:13] op_sel_hi:[1,0,1]
    v_fmac_f32 v29, v25, v24
    v_pk_fma_f32 v[12:13], v[18:19], v[26:27], v[12:13] op_sel_hi:[1,0,1]
    v_fmac_f32 v29, v27, v26
    global_store_dwordx2 v125, v[12:13], s[26:27] sc1
    s_mov_b64 exec, 0xffff
    global_store_dwordx2 v125, v[28:29], s[26:27] offset:512 sc1
    s_mov_b64 exec, -1
    """)
    stamp(4)
    flush_stamps()
    I("s_endpgm")

    a.label("L_tail")
    I("s_sub_u32 s40, s28, 5")
    I("s_mov_b32 s43, 0xffff0000")
    I(f"""
    s_mov_b32 s54, 0
    s_mov_b32 s44, 0
    s_cmp_eq_u32 s31, 4
    s_cbranch_scc0 L_t_r0
    s_cmp_lt_u32 s29, 16
    s_cbranch_scc0 L_t_rdone
    s_mov_b32 s54, 3
    s_mov_b32 s44, s29
    s_branch L_t_rdone
    """)
    a.label("L_t_r0")
    I(f"""
    s_cmp_lt_u32 s29, 11
    s_cbranch_scc0 L_t_r1
    s_cmp_lt_u32 s31, 3
    s_cbranch_scc0 L_t_rdone
    s_mov_b32 s54, 1
    s_mov_b32 s44, s29
    s_cmp_eq_u32 s31, 0
    s_cbranch_scc1 L_t_rdone
    s_mov_b32 s54, 2
    s_lshl_b32 s44, s29, 1
    s_add_u32 s44, s44, s31
    s_sub_u32 s44, s44, 1
    s_branch L_t_rdone
    """)
    a.label("L_t_r1")
    I(f"""
    s_cmp_lt_u32 s29, 22
    s_cbranch_scc0 L_t_r2
    s_cmp_lt_u32 s31, 4
    s_cbranch_scc0 L_t_rdone
    s_mov_b32 s54, 2
    s_add_u32 s44, s29, 11
    s_cmp_eq_u32 s31, 3
    s_cbranch_scc1 L_t_rdone
    s_mov_b32 s54, 1
    s_mul_i32 s44, s29, 3
    s_add_u32 s44, s44, s31
    s_sub_u32 s44, s44, 22
    s_branch L_t_rdone
    """)
    a.label("L_t_r2")
    I(f"""
    s_cmp_lt_u32 s31, 3
    s_cbranch_scc0 L_t_rdone
    s_mov_b32 s54, 2
    s_add_u32 s44, s29, 11
    s_cmp_eq_u32 s31, 2
    s_cbranch_scc1 L_t_rdone
    s_mov_b32 s54, 1
    s_lshl_b32 s44, s29, 1
    s_add_u32 s44, s44, s31
    """)
    a.label("L_t_rdone")
    I("s_barrier")
    I(f"""
    v_lshrrev_b32 v8, 4, v1
    v_and_b32 v9, 15, v1
    s_cmp_eq_u32 s40, 0
    s_cbranch_scc0 L_t_noclear
    """)
    I(f"""
    v_mov_b32 v10, -1
    v_mov_b32 v11, -1
    v_mov_b32 v12, -1
    v_mov_b32 v13, -1
    s_mul_i32 s41, s3, {PREC}
    v_lshlrev_b32 v4, 3, v1
    v_add_u32 v4, s41, v4
    global_store_dwordx2 v4, v[10:11], s[26:27] sc1
    s_mov_b64 exec, 0xffff
    global_store_dwordx2 v4, v[10:11], s[26:27] offset:512 sc1
    s_mov_b64 exec, -1
    s_cmp_eq_u32 s30, 0
    s_cbranch_scc0 L_t_clr_tk
    s_lshl_b32 s41, s29, 8
    s_add_u32 s41, s41, {WS_TK}
    v_mov_b32 v4, s41
    v_mov_b32 v5, 0
    global_store_dword v4, v5, s[26:27] sc1
    global_store_dword v4, v5, s[26:27] offset:128 sc1
    """)
    a.label("L_t_clr_tk")
    I(f"""
    s_cmp_eq_u32 s54, 1
    s_cbranch_scc0 L_t_clr_f
    s_lshl_b32 s41, s44, 8
    s_add_u32 s41, s41, {WS_Y}
    v_lshlrev_b32 v4, 2, v1
    v_add_u32 v4, s41, v4
    global_store_dword v4, v10, s[26:27] sc1
    s_branch L_t_clr_done
    """)
    a.label("L_t_clr_f")
    I(f"""
    s_cmp_eq_u32 s54, 2
    s_cbranch_scc0 L_t_clr_done
    s_lshl_b32 s41, s44, 11
    s_add_u32 s41, s41, {WS_P}
    v_lshlrev_b32 v4, 4, v1
    v_add_u32 v4, s41, v4
    global_store_dwordx4 v4, v[10:13], s[26:27] sc1
    global_store_dwordx4 v4, v[10:13], s[26:27] offset:1024 sc1
    """)
    a.label("L_t_clr_done")
    I(f"""
    s_waitcnt vmcnt(0)
    v_mov_b32 v4, {M['CLEARED']}
    v_mov_b32 v5, 1
    ds_write_b32 v4, v5
    """)
    a.label("L_t_noclear")
    def kall(lbl):
        I(f"v_mov_b32 v4, {M['PCNT']}")
        a.label(f"{lbl}_pc")
        spin()
        I(f"""
        ds_read_b32 v5, v4
        s_waitcnt lgkmcnt(0)
        v_readfirstlane_b32 s42, v5
        s_cmp_ge_u32 s42, 256
        s_cbranch_scc1 {lbl}_pcok
        s_sleep 16
        s_branch {lbl}_pc
        """)
        a.label(f"{lbl}_pcok")
        I(f"""
        v_mov_b32 v4, {M['NONCE']}
        ds_read_b64 v[16:17], v4
        s_lshl_b32 s42, s3, 3
        s_add_u32 s42, s42, {WS_KD}
        v_mov_b32 v4, s42
        s_waitcnt lgkmcnt(0)
        s_mov_b64 exec, 1
        global_store_dwordx2 v4, v[16:17], s[26:27] sc1
        s_mov_b64 exec, -1
        s_lshl_b32 s42, s29, 6
        s_add_u32 s42, s42, {WS_KD}
        v_and_b32 v4, 7, v1
        v_lshlrev_b32 v4, 3, v4
        v_add_u32 v4, s42, v4
        """)
        a.label(f"{lbl}_kd")
        spin()
        I(f"""
        global_load_dwordx2 v[20:21], v4, s[26:27] sc1
        s_waitcnt vmcnt(0)
        v_xor_b32 v5, v16, v20
        v_xor_b32 v18, v17, v21
        v_or_b32 v5, v5, v18
        v_cmp_ne_u32 vcc, 0, v5
        s_cbranch_vccz {lbl}_kdok
        s_sleep 16
        s_branch {lbl}_kd
        """)
        a.label(f"{lbl}_kdok")
        I(f"""
        v_mov_b32 v4, {M['KALL']}
        v_mov_b32 v5, 1
        ds_write_b32 v4, v5
        """)
    if P['ptouch']:
        I("""
        s_cmp_eq_u32 s40, 1
        s_cbranch_scc0 L_t_notouch
        """)
        I(f"v_mov_b32 v4, {M['QREADY']}")
        lds_wait("L_t_tqw", 4, 5, 8)
        I("""
        s_lshl_b32 s41, s29, 23
        s_add_u32 s64, s6, s41
        s_addc_u32 s65, s7, 0
        s_add_u32 s66, s8, s41
        s_addc_u32 s67, s9, 0
        """)
        for p in range(4):
            I(f"s_mov_b32 s41, {p * 0x200000 + 0x100000}")
            I(f"s_load_dword s{68+p}, s[64:65], s41")
            I(f"s_load_dword s{72+p}, s[66:67], s41")
        I("s_waitcnt lgkmcnt(0)")
        a.label("L_t_notouch")
    I(f"""
    s_cmp_eq_u32 s54, 0
    s_cbranch_scc0 L_t_hasrole
    s_cmp_eq_u32 s40, 0
    s_cbranch_scc0 L_end
    """)
    kall("L_n_k")
    I("s_endpgm")
    a.label("L_t_hasrole")
    I(f"""
    s_cmp_eq_u32 s54, 3
    s_cbranch_scc0 L_t_wf
    s_cmp_eq_u32 s40, 0
    s_cbranch_scc1 L_t_o
    s_endpgm
    """)
    a.label("L_t_wf")
    if P['stage_at'] != "start":
        I(f"v_mov_b32 v4, {M['QREADY'] if P['stage_at'] == 'ready' else M['QPUB']}")
        lds_wait("L_t_qw", 4, 5, 8)
    I("s_cmp_eq_u32 s54, 2")
    I("s_cbranch_scc1 L_t_f")

    STG = M['STAGE']
    SNT = P['stage_nt']
    def stage_setup():
        I(f"s_lshl_b32 s41, s40, 12")
        I(f"s_add_u32 s41, s41, {STG}")
    def dma(addr, u, step_bytes):
        if P['skip_stage']: return
        I(f"s_add_u32 m0, s41, {u*1024}")
        I(f"s_nop 0")
        I(f"global_load_lds_dwordx4 v[{addr}:{addr+1}], off {SNT}")
        if step_bytes:
            I(f"v_add_co_u32 v{addr}, vcc, {step_bytes}, v{addr}")
            I(f"v_addc_co_u32 v{addr+1}, vcc, 0, v{addr+1}, vcc")
    def tr_reads(trbase, offs, dst):
        I("s_waitcnt vmcnt(0)")
        d = dst
        for off in offs:
            I(f"ds_read_b64_tr_b16 v[{d}:{d+1}], v{trbase} offset:{off[0]}")
            I(f"ds_read_b64_tr_b16 v[{d+2}:{d+3}], v{trbase} offset:{off[1]}")
            d += 4
        I("s_waitcnt lgkmcnt(0)")
    def tr_addr(reg, rowstride):
        I(f"v_lshrrev_b32 v10, 2, v9")
        I(f"v_lshlrev_b32 v11, 3, v8")
        I(f"v_add_u32 v10, v10, v11")
        I(f"v_mul_u32_u24 v10, {rowstride}, v10")
        I(f"v_and_b32 v11, 3, v9")
        I(f"v_lshlrev_b32 v11, 3, v11")
        I(f"v_add_u32 v10, v10, v11")
        I(f"v_add_u32 v{reg}, s41, v10")
    def wait_flags_and_go(lbl):
        I("s_cmp_eq_u32 s40, 0")
        I(f"s_cbranch_scc0 {lbl}_nok")
        kall(f"{lbl}_k")
        a.label(f"{lbl}_nok")
        if P['stage_at'] != "ready" and lbl != "L_o":
            I(f"v_mov_b32 v4, {M['QREADY']}")
            lds_wait(f"{lbl}_qr", 4, 5, 8)
        I(f"""
        v_mov_b32 v4, {M['NONCE']}
        ds_read_b64 v[16:17], v4
        v_lshlrev_b32 v4, 4, v1
        v_add_u32 v4, {WS_CLR}, v4
        s_waitcnt lgkmcnt(0)
        """)
        a.label(f"{lbl}_clr")
        spin()
        I(f"""
        global_load_dwordx4 v[20:23], v4, s[26:27] sc1
        global_load_dwordx4 v[24:27], v4, s[26:27] offset:1024 sc1
        s_waitcnt vmcnt(0)
        """)
        I("v_xor_b32 v5, v16, v20")
        for r in (22, 24, 26):
            I(f"v_xor_b32 v18, v16, v{r}")
            I("v_or_b32 v5, v5, v18")
        for r in (21, 23, 25, 27):
            I(f"v_xor_b32 v18, v17, v{r}")
            I("v_or_b32 v5, v5, v18")
        I(f"""
        v_cmp_ne_u32 vcc, 0, v5
        s_cbranch_vccz {lbl}_go0
        s_sleep 32
        s_branch {lbl}_clr
        """)
        a.label(f"{lbl}_go0")
        if lbl == "L_o":
            I(f"""
            s_cmp_eq_u32 s44, 0
            s_cbranch_scc0 L_o_keep
            v_mov_b32 v4, 0
            v_mov_b32 v20, 0
            v_mov_b32 v21, 0
            s_mov_b64 exec, 1
            global_store_dwordx2 v4, v[20:21], s[24:25] sc1
            s_mov_b64 exec, -1
            """)
            a.label("L_o_keep")
        I(f"v_mov_b32 v4, {M['TAILGO']}")
        lds_wait(f"{lbl}_go", 4, 5, P['sleep_t'])
    def any_reset(regs, tmp):
        rs = list(regs)
        I(f"v_max3_u32 v{tmp}, v{rs[0]}, v{rs[1]}, v{rs[2]}")
        rs = rs[3:]
        while len(rs) >= 2:
            I(f"v_max3_u32 v{tmp}, v{tmp}, v{rs[0]}, v{rs[1]}"); rs = rs[2:]
        if rs: I(f"v_max_u32 v{tmp}, v{tmp}, v{rs[0]}")
        I(f"v_cmp_eq_u32 vcc, -1, v{tmp}")
    def poll2(lbl, issue, nloads, regsA, regsB, tmp, first, key):
        if key not in P['dbl']:
            a.label(f"{lbl}")
            spin()
            issue(regsA[0])
            I("s_waitcnt vmcnt(0)")
            any_reset(regsA, tmp)
            if key == 'W' and P['wsleep']:
                I(f"s_cbranch_vccz {lbl}_ok")
                I(f"s_sleep {P['wsleep']}")
                I(f"s_branch {lbl}")
                a.label(f"{lbl}_ok")
            else:
                I(f"s_cbranch_vccnz {lbl}")
            first(regsA[0])
            return
        issue(regsA[0])
        if P['stag']: I(f"s_sleep {P['stag']}")
        a.label(f"{lbl}")
        spin()
        issue(regsB[0])
        I(f"s_waitcnt vmcnt({nloads})")
        any_reset(regsA, tmp)
        I(f"s_cbranch_vccz {lbl}_a")
        issue(regsA[0])
        I(f"s_waitcnt vmcnt({nloads})")
        any_reset(regsB, tmp)
        I(f"s_cbranch_vccnz {lbl}")
        first(regsB[0])
        I(f"s_branch {lbl}_join")
        a.label(f"{lbl}_a")
        first(regsA[0])
        a.label(f"{lbl}_join")
    def gemv_kslice(abase, wb, acc, tmp):
        for ks in range(4):
            I(f"ds_read_b128 v[{tmp+4*ks}:{tmp+4*ks+3}], v{abase} offset:{ks*64}")
        for ks in range(4):
            I(f"s_waitcnt lgkmcnt({3-ks})")
            for nb in range(4):
                c = "0" if ks == 0 else f"v[{acc+4*nb}:{acc+4*nb+3}]"
                I(f"v_mfma_f32_16x16x32_bf16 v[{acc+4*nb}:{acc+4*nb+3}], v[{tmp+4*ks}:{tmp+4*ks+3}], v[{wb+16*ks+4*nb}:{wb+16*ks+4*nb+3}], {c}")
    def part_to_lds(acc, waddr, raddr):
        for nb in range(4): I(f"ds_write_b32 v{waddr}, v{acc+4*nb} offset:{64*nb}")
        I(f"""
        s_waitcnt lgkmcnt(0)
        s_barrier
        ds_read_b32 v12, v{raddr}
        ds_read_b32 v13, v{raddr} offset:256
        ds_read_b32 v14, v{raddr} offset:512
        ds_read_b32 v15, v{raddr} offset:768
        s_waitcnt lgkmcnt(0)
        v_add_f32 v12, v12, v13
        v_add_f32 v14, v14, v15
        v_add_f32 v12, v12, v14
        """)
    def yp_addrs(waddr, raddr):
        I(f"""
        s_lshl_b32 s47, s40, 8
        s_add_u32 s47, s47, {M['YP']}
        v_lshlrev_b32 v{waddr}, 2, v9
        v_add_u32 v{waddr}, s47, v{waddr}
        v_lshlrev_b32 v{raddr}, 2, v1
        v_add_u32 v{raddr}, {M['YP']}, v{raddr}
        """)

    def wait_vphase(lbl):
        if not P['split']: return
        I(f"v_mov_b32 v4, {M['PCNT']}")
        a.label(lbl)
        spin()
        I(f"""
        ds_read_b32 v5, v4
        s_waitcnt lgkmcnt(0)
        v_readfirstlane_b32 s42, v5
        s_cmp_ge_u32 s42, 256
        s_cbranch_scc1 {lbl}_ok
        s_sleep 16
        s_branch {lbl}
        """)
        a.label(f"{lbl}_ok")
    WB = 64
    a.label("L_t_w")
    if P['ptouch']:
        I("""
        s_lshr_b32 s45, s44, 3
        s_lshl_b32 s45, s45, 19
        s_load_dword s68, s[12:13], s45
        s_waitcnt lgkmcnt(0)
        """)
    stage_setup()
    tr_addr(14, 128)
    I(f"""
    s_lshr_b32 s45, s44, 3
    s_and_b32 s46, s44, 7
    s_lshl_b32 s47, s45, 19
    s_lshl_b32 s48, s40, 17
    s_add_u32 s47, s47, s48
    s_lshl_b32 s48, s46, 7
    s_add_u32 s47, s47, s48
    v_lshrrev_b32 v10, 3, v1
    v_lshlrev_b32 v10, 10, v10
    v_and_b32 v11, 7, v1
    v_lshlrev_b32 v11, 4, v11
    v_add_u32 v10, v10, v11
    v_add_u32 v10, s47, v10
    v_mov_b32 v13, s13
    v_add_co_u32 v12, vcc, s12, v10
    v_addc_co_u32 v13, vcc, 0, v13, vcc
    """)
    for ks in range(4):
        if ks == 2: wait_vphase("L_w_vp")
        for u in range(4): dma(12, u, 8 * 1024)
        tr_reads(14, [(nb * 32, 4 * 128 + nb * 32) for nb in range(4)], WB + 16 * ks)
    stamp(8)
    I(f"""
    s_lshl_b32 s47, s45, 2
    s_add_u32 s47, s47, s40
    s_mul_i32 s48, s47, {8 * PREC}
    """)
    wait_flags_and_go("L_w")
    I(f"""
    v_lshrrev_b32 v15, 5, v1
    v_mul_u32_u24 v15, {PREC}, v15
    v_add_u32 v15, s48, v15
    v_and_b32 v10, 31, v1
    v_lshlrev_b32 v14, 4, v10
    v_add_u32 v14, v15, v14
    v_add_u32 v15, 512, v15
    v_lshlrev_b32 v10, 3, v10
    s_lshl_b32 s47, s40, 8
    s_add_u32 s47, s47, {M['OALL']}
    v_add_u32 v7, s47, v10
    v_lshlrev_b32 v10, 4, v8
    v_add_u32 v10, s47, v10
    s_lshl_b32 s47, s44, 8
    s_add_u32 s47, s47, {WS_Y}
    v_lshlrev_b32 v6, 2, v1
    v_add_u32 v6, s47, v6
    """)
    yp_addrs(11, 5)
    stamp(9)
    def w_issue(b):
        for i in range(4): I(f"global_load_dwordx4 v[{b+4*i}:{b+4*i+3}], v14, s[26:27] offset:{2*PREC*i} sc1")
        for i in range(4): I(f"global_load_dwordx2 v[{b+16+2*i}:{b+17+2*i}], v15, s[26:27] offset:{2*PREC*i} sc1")
    def w_first(b):
        m = b + 16
        I(f"""
        v_max3_f32 v2, v{m}, v{m+2}, v{m+4}
        v_max_f32 v2, v2, v{m+6}
        v_mov_b32 v3, v2
        v_permlane32_swap_b32 v2, v3
        v_max_f32 v2, v2, v3
        v_sub_f32 v{m}, v{m}, v2
        v_sub_f32 v{m+2}, v{m+2}, v2
        v_sub_f32 v{m+4}, v{m+4}, v2
        v_sub_f32 v{m+6}, v{m+6}, v2
        v_exp_f32 v{m}, v{m}
        v_exp_f32 v{m+2}, v{m+2}
        v_exp_f32 v{m+4}, v{m+4}
        v_exp_f32 v{m+6}, v{m+6}
        v_pk_mul_f32 v[12:13], v[{b}:{b+1}], v[{m}:{m+1}] op_sel_hi:[1,0]
        v_pk_mul_f32 v[2:3], v[{b+2}:{b+3}], v[{m}:{m+1}] op_sel_hi:[1,0]
        v_mul_f32 v4, v{m}, v{m+1}
        """)
        for i in range(1, 4):
            I(f"v_pk_fma_f32 v[12:13], v[{b+4*i}:{b+4*i+1}], v[{m+2*i}:{m+2*i+1}], v[12:13] op_sel_hi:[1,0,1]")
            I(f"v_pk_fma_f32 v[2:3], v[{b+4*i+2}:{b+4*i+3}], v[{m+2*i}:{m+2*i+1}], v[2:3] op_sel_hi:[1,0,1]")
            I(f"v_fmac_f32 v4, v{m+2*i}, v{m+2*i+1}")
    poll2("L_w_poll", w_issue, 8, list(range(16, 40)), list(range(40, 64)), 13, w_first, 'W')
    stamp(10)
    I("""
    v_mov_b32 v128, v12
    v_mov_b32 v129, v13
    v_mov_b32 v130, v2
    v_mov_b32 v131, v3
    v_mov_b32 v132, v4
    v_permlane32_swap_b32 v12, v128
    v_permlane32_swap_b32 v13, v129
    v_permlane32_swap_b32 v2, v130
    v_permlane32_swap_b32 v3, v131
    v_permlane32_swap_b32 v4, v132
    v_add_f32 v4, v4, v132
    v_pk_add_f32 v[12:13], v[12:13], v[128:129]
    v_rcp_f32 v132, v4
    v_pk_add_f32 v[2:3], v[2:3], v[130:131]
    v_pk_mul_f32 v[12:13], v[12:13], v[132:133] op_sel_hi:[1,0]
    v_pk_mul_f32 v[2:3], v[2:3], v[132:133] op_sel_hi:[1,0]
    v_cvt_pk_bf16_f32 v12, v12, v13
    v_cvt_pk_bf16_f32 v13, v2, v3
    ds_write_b64 v7, v[12:13]
    s_waitcnt lgkmcnt(0)
    """)
    gemv_kslice(10, WB, 144, 128)
    part_to_lds(144, 11, 5)
    I(f"""
    s_cmp_eq_u32 s40, 0
    s_cbranch_scc0 L_end
    global_store_dword v6, v12, s[26:27] sc1
    """)
    stamp(11)
    flush_stamps()
    I("s_endpgm")

    a.label("L_t_f")
    if P['ptouch']:
        I("""
        s_load_dword s68, s[16:17], 0
        s_load_dword s69, s[18:19], 0
        s_load_dword s70, s[20:21], 0
        s_waitcnt lgkmcnt(0)
        """)
    stage_setup()
    tr_addr(14, 64)
    I(f"""
    s_lshl_b32 s46, s44, 6
    s_mul_i32 s47, s40, {128 * 2752}
    s_add_u32 s46, s46, s47
    v_lshrrev_b32 v10, 2, v1
    v_mul_u32_u24 v10, 2752, v10
    v_and_b32 v11, 3, v1
    v_lshlrev_b32 v11, 4, v11
    v_add_u32 v10, v10, v11
    v_add_u32 v10, s46, v10
    v_mov_b32 v13, s17
    v_add_co_u32 v12, vcc, s16, v10
    v_addc_co_u32 v13, vcc, 0, v13, vcc
    v_mov_b32 v17, s19
    v_add_co_u32 v16, vcc, s18, v10
    v_addc_co_u32 v17, vcc, 0, v17, vcc
    """)
    for ks in range(4):
        if ks == 3: wait_vphase("L_f_vp")
        dma(12, 0, 16 * 2752); dma(12, 1, 16 * 2752)
        dma(16, 2, 16 * 2752); dma(16, 3, 16 * 2752)
        tr_reads(14, [(0, 256), (32, 256 + 32), (2048, 2048 + 256), (2048 + 32, 2048 + 256 + 32)], WB + 16 * ks)
    tr_addr(14, 128)
    DB = WB + 64
    for rr in range(2):
        I(f"""
        s_lshl_b32 s46, s44, 15
        s_lshl_b32 s47, s40, 8
        s_add_u32 s46, s46, s47
        s_add_u32 s46, s46, {128*rr}
        v_lshrrev_b32 v10, 3, v1
        v_lshlrev_b32 v10, 10, v10
        v_and_b32 v11, 7, v1
        v_lshlrev_b32 v11, 4, v11
        v_add_u32 v10, v10, v11
        v_add_u32 v10, s46, v10
        v_mov_b32 v13, s21
        v_add_co_u32 v12, vcc, s20, v10
        v_addc_co_u32 v13, vcc, 0, v13, vcc
        """)
        for u in range(4): dma(12, u, 8 * 1024)
        tr_reads(14, [(nb * 32, 4 * 128 + nb * 32) for nb in range(4)], DB + 16 * rr)
    I(f"""
    v_and_b32 v10, 31, v1
    v_lshlrev_b32 v11, 3, v10
    s_lshl_b32 s46, s40, 8
    v_add_u32 v11, s46, v11
    global_load_dwordx2 v[6:7], v11, s[4:5]
    s_waitcnt vmcnt(0)
    """)
    stamp(12)
    wait_flags_and_go("L_f")
    I(f"""
    v_lshlrev_b32 v48, 16, v6
    v_and_b32 v49, s43, v6
    v_lshlrev_b32 v50, 16, v7
    v_and_b32 v51, s43, v7
    v_and_b32 v10, 31, v1
    v_lshlrev_b32 v14, 4, v10
    v_lshrrev_b32 v11, 5, v1
    v_lshlrev_b32 v11, 11, v11
    v_add_u32 v14, v14, v11
    s_lshl_b32 s46, s40, 9
    s_add_u32 s46, s46, {WS_Y}
    v_add_u32 v14, s46, v14
    v_add_u32 v15, 4096, v14
    v_add_u32 v2, 8192, v14
    v_add_u32 v3, 12288, v14
    s_lshl_b32 s47, s40, 3
    s_add_u32 s47, s47, {M['OALL']}
    v_mov_b32 v52, s47
    v_mov_b32 v53, {M['OALL']}
    s_lshl_b32 s47, s40, 8
    s_add_u32 s47, s47, {M['XN2']}
    v_lshlrev_b32 v54, 3, v10
    v_add_u32 v54, s47, v54
    v_lshlrev_b32 v55, 4, v8
    v_add_u32 v55, s47, v55
    s_lshl_b32 s47, s40, 6
    s_add_u32 s47, s47, {M['HH']}
    v_lshlrev_b32 v58, 1, v10
    v_add_u32 v58, s47, v58
    v_lshlrev_b32 v59, 4, v8
    v_add_u32 v59, s47, v59
    s_lshl_b32 s47, s44, 11
    s_lshl_b32 s46, s40, 9
    s_add_u32 s47, s47, s46
    s_add_u32 s47, s47, {WS_P}
    v_lshlrev_b32 v60, 2, v1
    v_add_u32 v60, s47, v60
    s_mov_b32 s60, 0xffff0000
    s_mov_b32 s61, 0xffff0000
    s_mov_b32 s62, 0
    s_mov_b32 s63, -1
    """)
    yp_addrs(56, 57)
    stamp(13)
    def f_issue(b):
        for i, ad in enumerate((14, 15, 2, 3)):
            I(f"global_load_dwordx4 v[{b+4*i}:{b+4*i+3}], v{ad}, s[26:27] sc1")
    def f_first(b):
        I(f"""
        v_pk_add_f32 v[4:5], v[{b}:{b+1}], v[{b+4}:{b+5}]
        v_pk_add_f32 v[6:7], v[{b+2}:{b+3}], v[{b+6}:{b+7}]
        v_pk_add_f32 v[10:11], v[{b+8}:{b+9}], v[{b+12}:{b+13}]
        v_pk_add_f32 v[12:13], v[{b+10}:{b+11}], v[{b+14}:{b+15}]
        v_pk_add_f32 v[4:5], v[4:5], v[10:11]
        v_pk_add_f32 v[6:7], v[6:7], v[12:13]
        """)
    poll2("L_f_poll", f_issue, 4, list(range(16, 32)), list(range(32, 48)), 61, f_first, 'F')
    stamp(14)
    I(f"""
    v_mov_b32 v160, v4
    v_mov_b32 v161, v5
    v_mov_b32 v162, v6
    v_mov_b32 v163, v7
    v_permlane32_swap_b32 v4, v160
    v_permlane32_swap_b32 v5, v161
    v_permlane32_swap_b32 v6, v162
    v_permlane32_swap_b32 v7, v163
    v_pk_add_f32 v[4:5], v[4:5], v[160:161]
    v_pk_add_f32 v[6:7], v[6:7], v[162:163]
    v_cvt_pk_bf16_f32 v160, v4, v5
    v_cvt_pk_bf16_f32 v161, v6, v7
    v_lshlrev_b32 v4, 16, v160
    v_and_b32 v5, s43, v160
    v_lshlrev_b32 v6, 16, v161
    v_and_b32 v7, s43, v161
    v_pk_add_f32 v[4:5], v[4:5], v[48:49]
    v_pk_add_f32 v[6:7], v[6:7], v[50:51]
    v_cvt_pk_bf16_f32 v160, v4, v5
    v_cvt_pk_bf16_f32 v161, v6, v7
    v_lshlrev_b32 v4, 16, v160
    v_and_b32 v5, s43, v160
    v_lshlrev_b32 v6, 16, v161
    v_and_b32 v7, s43, v161
    v_add_f32 v8, v4, v5
    v_mul_f32 v9, v4, v4
    v_add_f32 v10, v6, v7
    v_fmac_f32 v9, v5, v5
    v_add_f32 v8, v8, v10
    v_fmac_f32 v9, v6, v6
    v_fmac_f32 v9, v7, v7
    """)
    for r in (8, 4, 2, 1):
        I(f"v_add_f32_dpp v8, v8, v8 row_ror:{r} row_mask:0xf bank_mask:0xf")
        I(f"v_add_f32_dpp v9, v9, v9 row_ror:{r} row_mask:0xf bank_mask:0xf")
    I(f"""
    v_mov_b32 v10, v8
    v_mov_b32 v11, v9
    s_nop 0
    v_permlane16_swap_b32 v8, v10
    v_permlane16_swap_b32 v9, v11
    v_add_f32 v8, v8, v10
    v_add_f32 v9, v9, v11
    ds_write_b64 v52, v[8:9]
    s_waitcnt lgkmcnt(0)
    s_barrier
    ds_read_b128 v[8:11], v53
    ds_read_b128 v[12:15], v53 offset:16
    s_waitcnt lgkmcnt(0)
    v_pk_add_f32 v[8:9], v[8:9], v[10:11]
    v_pk_add_f32 v[12:13], v[12:13], v[14:15]
    v_pk_add_f32 v[8:9], v[8:9], v[12:13]
    v_mul_f32 v8, 0x3b000000, v8
    v_mul_f32 v9, 0x3b000000, v9
    v_cvt_pk_bf16_f32 v10, v8, v8
    v_fma_f32 v9, -v8, v8, v9
    v_and_b32 v10, s43, v10
    v_max_f32 v9, 0, v9
    v_cvt_pk_bf16_f32 v9, v9, v9
    v_sub_f32 v4, v4, v10
    v_and_b32 v9, s43, v9
    v_sub_f32 v5, v5, v10
    v_add_f32 v9, {hex(EPS)}, v9
    v_sub_f32 v6, v6, v10
    v_cvt_pk_bf16_f32 v9, v9, v9
    v_sub_f32 v7, v7, v10
    v_and_b32 v9, s43, v9
    v_cvt_pk_bf16_f32 v160, v4, v5
    v_sqrt_f32 v9, v9
    v_cvt_pk_bf16_f32 v161, v6, v7
    v_lshlrev_b32 v4, 16, v160
    v_cvt_pk_bf16_f32 v9, v9, v9
    v_and_b32 v5, s43, v160
    v_and_b32 v12, s43, v9
    v_lshlrev_b32 v6, 16, v161
    v_rcp_f32 v12, v12
    v_and_b32 v7, s43, v161
    v_pk_mul_f32 v[4:5], v[4:5], v[12:13] op_sel_hi:[1,0]
    v_pk_mul_f32 v[6:7], v[6:7], v[12:13] op_sel_hi:[1,0]
    v_cvt_pk_bf16_f32 v160, v4, v5
    v_cvt_pk_bf16_f32 v161, v6, v7
    ds_write_b64 v54, v[160:161]
    s_waitcnt vmcnt(0) lgkmcnt(0)
    """)
    gemv_kslice(55, WB, 32, 16)
    part_to_lds(32, 56, 57)
    I(f"""
    v_cvt_pk_bf16_f32 v12, v12, v12
    v_and_b32 v12, s43, v12
    v_mov_b32 v13, v12
    v_permlane32_swap_b32 v12, v13
    v_mul_f32 v12, v12, v13
    v_cvt_pk_bf16_f32 v12, v12, v12
    ds_write_b16 v58, v12
    s_waitcnt lgkmcnt(0)
    ds_read_b128 v[16:19], v59
    s_waitcnt lgkmcnt(0)
    """)
    for nb in range(8):
        I(f"v_mfma_f32_16x16x32_bf16 v[{20+4*nb}:{23+4*nb}], v[16:19], v[{DB+4*nb}:{DB+4*nb+3}], 0")
    for j in range(2):
        b = 20 + 16 * j
        I(f"v_cndmask_b32 v{12+2*j}, v{b}, v{b+4}, s[60:61]")
        I(f"v_cndmask_b32 v{13+2*j}, v{b+8}, v{b+12}, s[60:61]")
        I(f"v_cndmask_b32 v{12+2*j}, v{12+2*j}, v{13+2*j}, s[62:63]")
        I(f"global_store_dword v60, v{12+2*j}, s[26:27] offset:{256*j} sc1")
    stamp(15)
    flush_stamps()
    I("s_endpgm")

    def resid(xr, out):
        I(f"""
        v_cvt_pk_bf16_f32 v16, v16, v17
        v_cvt_pk_bf16_f32 v17, v18, v19
        v_lshlrev_b32 v20, 16, v16
        v_and_b32 v21, s43, v16
        v_lshlrev_b32 v22, 16, v17
        v_and_b32 v23, s43, v17
        v_lshlrev_b32 v24, 16, v{xr}
        v_and_b32 v25, s43, v{xr}
        v_lshlrev_b32 v26, 16, v{xr+1}
        v_and_b32 v27, s43, v{xr+1}
        v_pk_add_f32 v[20:21], v[20:21], v[24:25]
        v_pk_add_f32 v[22:23], v[22:23], v[26:27]
        v_cvt_pk_bf16_f32 v{out}, v20, v21
        v_cvt_pk_bf16_f32 v{out+1}, v22, v23
        """)
    a.label("L_t_o")
    I(f"""
    v_and_b32 v10, 7, v1
    v_lshlrev_b32 v11, 3, v10
    s_lshl_b32 s46, s44, 6
    v_add_u32 v11, s46, v11
    global_load_dwordx2 v[6:7], v11, s[4:5]
    v_mov_b32 v3, v11
    v_lshlrev_b32 v14, 4, v10
    v_lshrrev_b32 v12, 3, v1
    v_lshlrev_b32 v12, 11, v12
    v_add_u32 v14, v14, v12
    s_lshl_b32 s46, s44, 7
    v_add_u32 v14, s46, v14
    v_add_u32 v15, {WS_Y}, v14
    s_add_u32 s32, s26, {WS_P}
    s_addc_u32 s33, s27, 0
    s_and_b32 s33, s33, 0xffff
    s_mov_b32 s34, {NF * 2048}
    s_mov_b32 s35, 0x20000
    v_mov_b32 v4, {M['QREADY']}
    s_waitcnt vmcnt(0)
    """)
    if P['touch_out']:
        I("""
        v_mov_b32 v16, 0
        v_mov_b32 v17, 0
        s_mov_b64 exec, 0xff
        global_store_dwordx2 v3, v[16:17], s[22:23]
        s_mov_b64 exec, -1
        """)
    lds_wait("L_o_qw", 4, 5, 8)
    wait_flags_and_go("L_o")
    stamp(16)
    def red_r8(base, tmp):
        for c in range(4): I(f"v_add_f32_dpp v{base+c}, v{base+c}, v{base+c} row_ror:8 row_mask:0xf bank_mask:0xf")
        for c in range(4): I(f"v_mov_b32 v{tmp+c}, v{base+c}")
        for c in range(4): I(f"v_permlane16_swap_b32 v{base+c}, v{tmp+c}")
        for c in range(4): I(f"v_add_f32 v{base+c}, v{base+c}, v{tmp+c}")
        for c in range(4): I(f"v_mov_b32 v{tmp+c}, v{base+c}")
        for c in range(4): I(f"v_permlane32_swap_b32 v{base+c}, v{tmp+c}")
        for c in range(4): I(f"v_add_f32 v{base+c}, v{base+c}, v{tmp+c}")
    I("v_mov_b32 v70, v3")
    def oy_issue(b): I(f"global_load_dwordx4 v[{b}:{b+3}], v15, s[26:27] sc1")
    def oy_first(b):
        for c in range(4): I(f"v_mov_b32 v{72+c}, v{b+c}")
    poll2("L_o_polly", oy_issue, 1, list(range(16, 20)), list(range(24, 28)), 28, oy_first, 'y')
    red_r8(72, 76)
    I(f"""
    v_cvt_pk_bf16_f32 v72, v72, v73
    v_cvt_pk_bf16_f32 v73, v74, v75
    v_lshlrev_b32 v76, 16, v72
    v_and_b32 v77, s43, v72
    v_lshlrev_b32 v78, 16, v73
    v_and_b32 v79, s43, v73
    v_lshlrev_b32 v80, 16, v6
    v_and_b32 v81, s43, v6
    v_lshlrev_b32 v82, 16, v7
    v_and_b32 v83, s43, v7
    v_pk_add_f32 v[76:77], v[76:77], v[80:81]
    v_pk_add_f32 v[78:79], v[78:79], v[82:83]
    v_cvt_pk_bf16_f32 v72, v76, v77
    v_cvt_pk_bf16_f32 v73, v78, v79
    v_lshlrev_b32 v66, 16, v72
    v_and_b32 v67, s43, v72
    v_lshlrev_b32 v68, 16, v73
    v_and_b32 v69, s43, v73
    s_waitcnt vmcnt(0)
    """)
    stamp(17)
    def op_issue(b):
        for u in range(6):
            I(f"s_mov_b32 s46, {u * 8 * 2048}")
            I(f"buffer_load_dwordx4 v[{b+4*u}:{b+4*u+3}], v14, s[32:35], s46 offen sc1")
    def op_first(b):
        I(f"""
        v_pk_add_f32 v[72:73], v[{b}:{b+1}], v[{b+4}:{b+5}]
        v_pk_add_f32 v[74:75], v[{b+2}:{b+3}], v[{b+6}:{b+7}]
        v_pk_add_f32 v[76:77], v[{b+8}:{b+9}], v[{b+12}:{b+13}]
        v_pk_add_f32 v[78:79], v[{b+10}:{b+11}], v[{b+14}:{b+15}]
        v_pk_add_f32 v[80:81], v[{b+16}:{b+17}], v[{b+20}:{b+21}]
        v_pk_add_f32 v[82:83], v[{b+18}:{b+19}], v[{b+22}:{b+23}]
        v_pk_add_f32 v[72:73], v[72:73], v[76:77]
        v_pk_add_f32 v[74:75], v[74:75], v[78:79]
        v_pk_add_f32 v[72:73], v[72:73], v[80:81]
        v_pk_add_f32 v[74:75], v[74:75], v[82:83]
        """)
    poll2("L_o_pollp", op_issue, 6, list(range(16, 40)), list(range(40, 64)), 71, op_first, 'O')
    stamp(18)
    red_r8(72, 76)
    I(f"""
    v_cvt_pk_bf16_f32 v72, v72, v73
    v_cvt_pk_bf16_f32 v73, v74, v75
    v_lshlrev_b32 v76, 16, v72
    v_and_b32 v77, s43, v72
    v_lshlrev_b32 v78, 16, v73
    v_and_b32 v79, s43, v73
    v_pk_add_f32 v[76:77], v[76:77], v[66:67]
    v_pk_add_f32 v[78:79], v[78:79], v[68:69]
    v_cvt_pk_bf16_f32 v72, v76, v77
    v_cvt_pk_bf16_f32 v73, v78, v79
    s_mov_b64 exec, 0xff
    global_store_dwordx2 v70, v[72:73], s[22:23] {P['out_sc']}
    s_mov_b64 exec, -1
    """)
    stamp(19)
    flush_stamps()
    a.label("L_end")
    I("s_endpgm")
    a.raw('.section .rodata,"a"')
    a.raw(".p2align 6")
    a.raw(f".amdhsa_kernel {KN}_kernel")
    a.raw("  .amdhsa_next_free_vgpr 168")
    a.raw("  .amdhsa_next_free_sgpr 96")
    a.raw("  .amdhsa_accum_offset 168")
    a.raw("  .amdhsa_group_segment_fixed_size 0")
    a.raw("  .amdhsa_kernarg_size 96")
    a.raw("  .amdhsa_user_sgpr_count 2")
    a.raw("  .amdhsa_user_sgpr_kernarg_segment_ptr 1")
    a.raw("  .amdhsa_system_sgpr_workgroup_id_x 1")
    a.raw(".end_amdhsa_kernel")
    return a.text()

if __name__ == "__main__":
    out = sys.argv[1]
    kw = json.loads(sys.argv[2]) if len(sys.argv) > 2 else {}
    open(out, "w").write(gen(**kw))
    print("wrote", out)
```

```python
import sys, json
from asmlib import Asm

KN = "sequential_preLN__gqa_block_cached__glu_gated_bilinear__decode"

DEF = dict(D=18, R=8, S=112, C=2, stamps=False, dump=False, nt="nt", sleep_c=1, sleep_t=1, prio=True,
           skip_stage=False, skip_role="", f_late="gd", g_early=2, w_late=2, w_split=False, segs=None, stage_nt="nt", qsleep=2, q_nt="nt", knt=None, vnt=None, tag_sc1=True, budget=0x40000, map="rot", out_sc="", aligned=True, stag=5, dbl="", wsleep=0, fsleep=0, osleep=0, cprio=0, tprio=0, qdelay=0, De=None, Te=8, stage_at="ready", Dd=24, qst=False, vtouch=True, ptouch=False, touch_out=False, hoist=True)

def lds_map(R, S):
    ring = R * 16384
    m = {}
    m['RING'] = 0
    m['STAGE'] = ring
    f = ring + 16384
    m['FILLED'] = f
    m['QPUB'] = f + 60
    m['PCNT'] = f + 12
    m['NEXT'] = f + 16
    m['FINCNT'] = f + 32
    m['CLEARED'] = f + 36
    m['TAILGO'] = f + 40
    m['QREADY'] = f + 44
    m['NONCE'] = f + 48
    m['KALL'] = f + 56
    m['TID'] = f + 128
    m['PMAX'] = f + 64
    m['XXT'] = f + 256
    m['FINO'] = m['XXT']
    m['QB'] = m['XXT'] + 2048
    m['FINML'] = m['QB'] + 256
    m['OALL'] = m['FINML'] + 64
    m['XN2'] = m['OALL'] + 1024
    m['HH'] = m['XN2'] + 1024
    m['YP'] = m['HH'] + 256
    m['SC'] = m['YP'] + 1024
    m['SCF'] = m['SC'] + S * 64
    m['END'] = m['SCF'] + 2 * R * 64
    return m

WS_PO = 0x0
PREC = 640
WS_Y = 0x29000
WS_P = 0x30000
WS_QX = 0x48000
WS_TK = 0x88000
WS_CLR = 0x8C000
WS_KD = 0x90000
WS_SCX = 0x100000
WS_STAMP = 0x20000000
NF = 43

LOG2E = 0x3fb8aa3b
SCALE = 0x3db504f3
EPS = 0x3727c5ac

def gen(**kw):
    P = dict(DEF); P.update(kw)
    D = P['D']; R = P['R']; NT = P['nt']; S = P['S']; NP = 128 - S
    M = lds_map(R, S)
    ldsz = (M['END'] + 255) // 256 * 256
    assert ldsz <= 163840, ldsz
    a = Asm(); I = a.I
    stamps = P['stamps']

    def spin():
        I("s_sub_u32 s89, s89, 1")
        I("s_cbranch_scc1 L_end")

    pend = []
    def stamp(slot):
        if not stamps: return
        k = len(pend); assert k < 6
        pend.append(slot)
        I(f"s_memrealtime s[{76+2*k}:{77+2*k}]")
    def flush_stamps(keep=0):
        if not stamps: return
        I("s_waitcnt lgkmcnt(0)")
        I("s_lshl_b32 s92, s2, 8")
        I(f"s_add_u32 s92, s92, {WS_STAMP}")
        I("s_add_u32 s92, s26, s92")
        I("s_addc_u32 s93, s27, 0")
        I("v_mov_b32 v166, 0")
        I("s_mov_b64 s[94:95], exec")
        I("s_mov_b64 exec, 1")
        for k, slot in enumerate(pend):
            I(f"v_mov_b32 v164, s{76+2*k}")
            I(f"v_mov_b32 v165, s{77+2*k}")
            I(f"global_store_dwordx2 v166, v[164:165], s[92:93] offset:{8*slot}")
        I("s_mov_b64 exec, s[94:95]")
        del pend[keep:]

    def lds_wait(lbl, addr_reg, tmp, sleep):
        a.label(lbl)
        spin()
        I(f"ds_read_b32 v{tmp}, v{addr_reg}")
        I("s_waitcnt lgkmcnt(0)")
        I(f"v_readfirstlane_b32 s42, v{tmp}")
        I("s_cmp_lg_u32 s42, 0")
        I(f"s_cbranch_scc1 {lbl}_ok")
        I(f"s_sleep {sleep}")
        I(f"s_branch {lbl}")
        a.label(f"{lbl}_ok")

    a.raw(f"; @launch grid=(256,1,1) block=(576,1,1) lds={ldsz}")
    for ln in """
Fused single-launch decode layer: h = x + Attn(LN(x)) ; out = h + Wd((LN(h) Wg) * (LN(h) Wu)).  One workgroup per CU, 9 waves.
Workgroup id -> head = id>>3, member = (id + head) & 7 : the 8 members of a head split its 32768 keys into tiles of 32 keys.
  wave 0      streams first the K tiles, then the V tiles HBM -> LDS ring (LDS-DMA, a fixed window of loads in flight); the whole
              chip reads one tensor at a time. Most tiles are assigned statically; the last 8 tiles of every member's range form a
              per-head pool that is handed out tile by tile through atomic tickets, once for K and once for V (load balance).
  waves 1-4   K phase: QK^T with MFMA, scores rounded to bf16 as the reference does; kept in LDS (own tiles) or published in d_ws
              (pool tiles). V phase: softmax against the true maximum (running maximum for pool tiles), PV with MFMA.
              Wave 1 first computes the workgroup's share of q = LN(x) Wq (64 of the 512 rows); the members exchange the shares.
  waves 5-8   fetch their slice of Wo / Wg,Wu,Wd into registers (part of it while the stream runs, part of it right after it, when HBM
              is idle), then run the tail:
              W (64 workgroups): combine the 32 partials of 4 heads, times a 512x64 tile of Wo ;
              F (43 workgroups): h, LayerNorm, 32 gate/up columns, their 32 rows of Wd ;  O (16 workgroups): sum, residual, store.
Hand-offs between workgroups go through d_ws with write-through (sc1) stores and sc1 polling loads. Words are either reset to all-ones by
their producer early in the launch (and validated word by word), or carry the launch tag that workgroup 0 puts into d_debug at its start.
Every polling loop is bounded.""".strip().split("\n"):
        a.raw("; " + ln)
    a.raw('.amdgcn_target "amdgcn-amd-amdhsa--gfx950"')
    a.raw(".text")
    a.raw(f".globl {KN}_kernel")
    a.raw(".p2align 8")
    a.raw(f".type {KN}_kernel,@function")
    a.raw(f"{KN}_kernel:")
    I("s_cmp_ge_u32 s2, 256")
    I("s_cbranch_scc1 L_end")
    I("s_load_dwordx16 s[4:19], s[0:1], 0")
    I("s_load_dwordx8 s[20:27], s[0:1], 64")
    I("v_lshrrev_b32 v2, 6, v0")
    I("v_and_b32 v1, 63, v0")
    I("v_readfirstlane_b32 s28, v2")
    if P['map'] == "rot":
        I("s_lshr_b32 s29, s2, 3")
        I("s_add_u32 s30, s2, s29")
        I("s_and_b32 s30, s30, 7")
    elif P['map'] == "div":
        I("s_lshr_b32 s29, s2, 3")
        I("s_and_b32 s30, s2, 7")
    else:
        I("s_and_b32 s29, s2, 31")
        I("s_lshr_b32 s30, s2, 5")
    I("s_lshl_b32 s3, s29, 3")
    I("s_add_u32 s3, s3, s30")
    if P['map'] == "rot":
        I("s_mov_b32 s31, s30")
    else:
        I("s_sub_u32 s31, s30, s29")
        I("s_and_b32 s31, s31, 7")
    I(f"s_mov_b32 s89, {P['budget']}")
    I("s_waitcnt lgkmcnt(0)")
    I("s_cmp_eq_u32 s28, 0")
    I("s_cbranch_scc1 L_loader")
    I("s_cmp_lt_u32 s28, 5")
    I("s_cbranch_scc1 L_consumer")
    I("s_branch L_tail")

    a.label("L_loader")
    if P['prio']: I("s_setprio 3")
    stamp(0)
    I(f"""
    s_mov_b32 s32, s6
    s_and_b32 s33, s7, 0xffff
    s_mov_b32 s34, 0x10000000
    s_mov_b32 s35, 0x20000
    s_mov_b32 s36, s8
    s_and_b32 s37, s9, 0xffff
    s_mov_b32 s38, 0x10000000
    s_mov_b32 s39, 0x20000
    s_lshl_b32 s44, s29, 23
    v_lshrrev_b32 v8, 4, v1
    v_and_b32 v9, 15, v1
    v_lshlrev_b32 v10, 8, v8
    v_add_u32 v10, s44, v10
    """)
    for tt in range(4):
        I(f"v_add_u32 v11, {4*tt}, v8")
        I("v_xor_b32 v11, v11, v9")
        I("v_lshlrev_b32 v11, 4, v11")
        I(f"v_add_u32 v{2+tt}, v10, v11")
    for tp in range(2):
        I(f"v_add_u32 v11, {4*tp}, v8")
        I("v_lshlrev_b32 v11, 1, v11")
        I("v_xor_b32 v11, v11, v9")
        I("v_lshlrev_b32 v11, 4, v11")
        I(f"v_add_u32 v{6+tp}, v10, v11")
    RS = 2 * R
    Dd = P['Dd'] or D
    Dp = max(D, Dd)
    u0 = (Dp - 1) % 8
    cnt0 = (u0 - Dp + 1) // 8 - 1
    I(f"""
    s_mul_i32 s46, s30, {128 * 8192}
    s_mov_b32 s48, 0
    s_mov_b32 s49, {cnt0}
    s_mov_b32 s50, 0
    v_mov_b32 v12, {M['FILLED']}
    v_mov_b32 v13, {M['NEXT']}
    """)
    KNT = NT if P['knt'] is None else P['knt']
    VNT = NT if P['vnt'] is None else P['vnt']
    def loads_of_tile(isv, first, Dw=None):
        Dw = Dw or D
        for u in range(8):
            if u % 4 == 0:
                I(f"s_add_u32 m0, s48, {(u // 4) * 4096}")
            I(f"s_waitcnt vmcnt({Dw-1})")
            if u == u0:
                I("s_add_u32 s49, s49, 1")
                I("v_mov_b32 v14, s49")
                if not first:
                    I("ds_write_b32 v12, v14")
            so = "s46" if u < 4 else "s47"
            if isv: I(f"buffer_load_dwordx4 v{6 + (u & 1)}, s[36:39], {so} offen offset:{(u % 4) * 1024} {VNT} lds")
            else:   I(f"buffer_load_dwordx4 v{2 + (u & 3)}, s[32:35], {so} offen offset:{(u % 4) * 1024} {KNT} lds")
    assert 16 <= D and Dp <= 24
    if P['vtouch']:
        I("buffer_load_dword v31, v6, s[36:39], s46 offen nt")
    I("s_add_u32 s47, s46, 4096")
    loads_of_tile(False, True)
    I("""
    s_add_u32 s50, s50, 1
    s_add_u32 s46, s46, 8192
    s_add_u32 s47, s46, 4096
    s_add_u32 s48, s48, 8192
    """)
    loads_of_tile(False, True)
    I(f"""
    v_mov_b32 v16, 0
    v_mov_b32 v17, 1
    v_mov_b32 v18, 2
    v_mov_b32 v19, 3
    v_mov_b32 v20, 0
    v_mov_b32 v21, 0
    v_mov_b32 v22, 0
    v_mov_b32 v23, 0
    v_mov_b32 v14, s49
    v_mov_b32 v15, 0x7fffffff
    ds_write_b64 v12, v[14:15]
    v_mov_b32 v24, 0x7fffffff
    v_mov_b32 v25, 0
    ds_write_b64 v12, v[24:25] offset:8
    ds_write_b128 v13, v[16:19]
    ds_write_b128 v13, v[20:23] offset:16
    ds_write_b128 v13, v[20:23] offset:32
    s_waitcnt lgkmcnt(0)
    s_barrier
    """)
    I("ds_read_b128 v[16:19], v13")
    lab = [0]
    def next_tile(isv, advance, Dw=None, extra=None):
        k = lab[0]; lab[0] += 1
        I("s_add_u32 s50, s50, 1")
        if advance: I("s_add_u32 s46, s46, 8192")
        I(f"""
        s_add_u32 s47, s46, 4096
        s_add_u32 s48, s48, 8192
        s_cmp_ge_u32 s48, {RS*8192}
        s_cselect_b32 s48, 0, s48
        s_sub_u32 s52, s50, {RS-1}
        """)
        a.label(f"L_ld_free{k}")
        spin()
        I(f"""
        s_waitcnt lgkmcnt(0)
        v_min3_u32 v20, v16, v17, v18
        v_min_u32 v20, v20, v19
        v_readfirstlane_b32 s51, v20
        ds_read_b128 v[16:19], v13
        s_cmp_ge_i32 s51, s52
        s_cbranch_scc0 L_ld_free{k}
        """)
        if extra == "tid":
            I(f"""
            s_lshr_b32 s53, s48, 11
            s_add_u32 s53, s53, {M['TID']}
            v_mov_b32 v21, s53
            v_mov_b32 v22, s59
            ds_write_b32 v21, v22
            """)
        if extra == "scores":
            I(f"""
            s_lshr_b32 s53, s48, 7
            s_add_u32 m0, s53, {M['SCF']}
            s_lshl_b32 s59, s59, 6
            s_mov_b64 exec, 0xffff
            buffer_load_dword v28, s[40:43], s59 offen sc1 lds
            s_mov_b64 exec, -1
            """)
        loads_of_tile(isv, False, Dw)
    LA = 3
    assert 9 * LA - 1 >= Dp
    assert Dp - u0 <= 21
    NPOOL = 8 * NP
    nst = [0]
    def tstamp():
        if stamps and nst[0] < 7:
            I(f"s_memrealtime s[{60+2*nst[0]}:{61+2*nst[0]}]"); nst[0] += 1
    def ticket(reg):
        I("s_mov_b64 exec, 1")
        I(f"global_atomic_add v{reg}, v25, v26, s[26:27] sc0 sc1")
        I("s_mov_b64 exec, -1")
    def decode(reg, over):
        I(f"""
        v_readfirstlane_b32 s53, v{reg}
        s_and_b32 s55, s53, 7
        s_lshr_b32 s57, s53, 3
        s_lshl_b32 s46, s55, 7
        s_add_u32 s46, s46, s57
        s_add_u32 s46, s46, {S}
        s_lshl_b32 s46, s46, 13
        s_cmp_lt_u32 s53, {NPOOL}
        s_cbranch_scc0 {over}
        s_mov_b32 s59, s53
        """)
    TR = (24, 27, 29)
    nstatic = S - LA
    bounds = ([b for b in (P['segs'] or [16, 32, 64]) if b < nstatic] if stamps else []) + [nstatic]
    for sg, b in enumerate(bounds):
        a.label(f"L_ld_tile{sg}")
        next_tile(False, True)
        I(f"s_cmp_lt_u32 s50, {b - 1}")
        I(f"s_cbranch_scc1 L_ld_tile{sg}")
        if sg < len(bounds) - 1: tstamp()
    I(f"""
    s_lshl_b32 s53, s29, 8
    s_add_u32 s53, s53, {WS_TK}
    v_mov_b32 v25, s53
    v_mov_b32 v26, 1
    """)
    for reg in TR:
        ticket(reg)
        next_tile(False, True, Dd)
    a.label("L_ld_kdyn")
    for reg in TR:
        decode(reg, "L_ld_kover")
        ticket(reg)
        next_tile(False, False, Dd, extra="tid")
    I("s_branch L_ld_kdyn")
    a.label("L_ld_kover")
    tstamp()
    I(f"""
    s_add_u32 s56, s50, 1
    v_mov_b32 v14, s56
    ds_write_b32 v12, v14 offset:4
    s_mul_i32 s46, s30, {128 * 8192}
    s_sub_u32 s46, s46, 8192
    s_add_u32 s58, s56, {S - LA - 1}
    """)
    a.label("L_ld_v")
    next_tile(True, True)
    I("s_cmp_lt_u32 s50, s58")
    I("s_cbranch_scc1 L_ld_v")
    tstamp()
    I(f"""
    v_add_u32 v25, 128, v25
    s_mul_i32 s53, s29, {NPOOL * 64}
    s_add_u32 s53, s53, {WS_SCX}
    s_add_u32 s40, s26, s53
    s_addc_u32 s41, s27, 0
    s_and_b32 s41, s41, 0xffff
    s_mov_b32 s42, {NPOOL * 64}
    s_mov_b32 s43, 0x20000
    v_lshlrev_b32 v28, 2, v1
    v_mov_b32 v30, {M['KALL']}
    """)
    for reg in TR:
        ticket(reg)
        next_tile(True, True, Dd)
    a.label("L_ld_kall")
    spin()
    I("""
    ds_read_b32 v31, v30
    s_waitcnt lgkmcnt(0)
    v_readfirstlane_b32 s53, v31
    s_cmp_lg_u32 s53, 0
    s_cbranch_scc0 L_ld_kall
    ds_read_b128 v[16:19], v13
    """)
    a.label("L_ld_vdyn")
    for reg in TR:
        decode(reg, "L_ld_pover")
        ticket(reg)
        next_tile(True, False, Dd, extra="scores")
    I("s_branch L_ld_vdyn")
    a.label("L_ld_pover")
    I("""
    s_add_u32 s56, s50, 1
    v_mov_b32 v14, s56
    ds_write_b32 v12, v14 offset:8
    """)
    a.label("L_ld_over")
    rem = 8 - u0 + Dp - 1
    while rem > 0:
        rem -= 8
        I(f"s_waitcnt vmcnt({rem})")
        I("s_add_u32 s49, s49, 1")
        I("v_mov_b32 v14, s49")
        I("ds_write_b32 v12, v14")
    assert rem == 0
    I("s_waitcnt lgkmcnt(0)")
    stamp(1)
    flush_stamps()
    if stamps:
        I("s_lshl_b32 s92, s2, 8")
        I(f"s_add_u32 s92, s92, {WS_STAMP + 20 * 8}")
        I("s_add_u32 s92, s26, s92")
        I("s_addc_u32 s93, s27, 0")
        I("v_mov_b32 v166, 0")
        I("s_mov_b64 exec, 1")
        for k in range(7):
            I(f"v_mov_b32 v164, s{60+2*k}")
            I(f"v_mov_b32 v165, s{61+2*k}")
            I(f"global_store_dwordx2 v166, v[164:165], s[92:93] offset:{8*k}")
        I("v_mov_b32 v164, s56")
        I("v_mov_b32 v165, 0")
        I(f"global_store_dwordx2 v166, v[164:165], s[92:93] offset:{8*7}")
    I("s_endpgm")

    def wave_sum(v, t):
        for r in (8, 4, 2, 1):
            I(f"v_add_f32_dpp v{v}, v{v}, v{v} row_ror:{r} row_mask:0xf bank_mask:0xf")
        I(f"v_mov_b32 v{t}, v{v}")
        I(f"v_permlane16_swap_b32 v{v}, v{t}")
        I(f"v_add_f32 v{v}, v{v}, v{t}")
        I(f"v_mov_b32 v{t}, v{v}")
        I(f"v_permlane32_swap_b32 v{v}, v{t}")
        I(f"v_add_f32 v{v}, v{v}, v{t}")
    def unpack8(src, dst):
        for j in range(4):
            I(f"v_lshlrev_b32 v{dst+2*j}, 16, v{src+j}")
            I(f"v_and_b32 v{dst+2*j+1}, s43, v{src+j}")
    def layernorm8(x, tmp):
        s, t, mb, den = tmp, tmp+1, tmp+2, tmp+3
        I(f"v_add_f32 v{s}, v{x}, v{x+1}")
        for j in range(2, 8): I(f"v_add_f32 v{s}, v{s}, v{x+j}")
        wave_sum(s, t)
        I(f"v_mul_f32 v{s}, 0x3b000000, v{s}")
        I(f"v_cvt_pk_bf16_f32 v{mb}, v{s}, v{s}")
        I(f"v_and_b32 v{mb}, s43, v{mb}")
        I(f"v_sub_f32 v{t}, v{x}, v{s}")
        I(f"v_mul_f32 v{den}, v{t}, v{t}")
        for j in range(1, 8):
            I(f"v_sub_f32 v{t}, v{x+j}, v{s}")
            I(f"v_fmac_f32 v{den}, v{t}, v{t}")
        wave_sum(den, t)
        I(f"v_mul_f32 v{den}, 0x3b000000, v{den}")
        I(f"v_cvt_pk_bf16_f32 v{den}, v{den}, v{den}")
        I(f"v_and_b32 v{den}, s43, v{den}")
        I(f"v_add_f32 v{den}, {hex(EPS)}, v{den}")
        I(f"v_cvt_pk_bf16_f32 v{den}, v{den}, v{den}")
        I(f"v_and_b32 v{den}, s43, v{den}")
        I(f"v_sqrt_f32 v{den}, v{den}")
        I(f"v_cvt_pk_bf16_f32 v{den}, v{den}, v{den}")
        I(f"v_and_b32 v{den}, s43, v{den}")
        I(f"v_rcp_f32 v{den}, v{den}")
        for j in range(0, 8, 2):
            I(f"v_sub_f32 v{x+j}, v{x+j}, v{mb}")
            I(f"v_sub_f32 v{x+j+1}, v{x+j+1}, v{mb}")
            I(f"v_cvt_pk_bf16_f32 v{t}, v{x+j}, v{x+j+1}")
            I(f"v_lshlrev_b32 v{x+j}, 16, v{t}")
            I(f"v_and_b32 v{x+j+1}, s43, v{t}")
            I(f"v_mul_f32 v{x+j}, v{x+j}, v{den}")
            I(f"v_mul_f32 v{x+j+1}, v{x+j+1}, v{den}")

    a.label("L_consumer")
    if P['cprio']: I(f"s_setprio {P['cprio']}")
    I("s_sub_u32 s40, s28, 1")
    I("s_mov_b32 s43, 0xffff0000")
    I("v_lshrrev_b32 v8, 4, v1")
    I("v_and_b32 v9, 15, v1")
    I("s_cmp_eq_u32 s40, 0")
    I("s_cbranch_scc1 L_c_q")
    I("s_barrier")
    I("s_branch L_c_qwait")
    a.label("L_c_q")
    I("""
    s_cmp_eq_u32 s2, 0
    s_cbranch_scc0 L_q_notag
    s_memrealtime s[56:57]
    s_waitcnt lgkmcnt(0)
    s_or_b32 s56, s56, 1
    s_or_b32 s57, s57, 0x40000000
    s_and_b32 s57, s57, 0x7fffffff
    v_mov_b32 v34, s56
    v_mov_b32 v35, s57
    v_mov_b32 v2, 0
    s_mov_b64 exec, 1
    global_store_dwordx2 v2, v[34:35], s[24:25] sc1
    s_mov_b64 exec, -1
    """)
    a.label("L_q_notag")
    I(f"""
    v_mov_b32 v2, 0
    global_load_dwordx2 v[34:35], v2, s[24:25] {"sc1" if P['tag_sc1'] else ""}
    s_mov_b32 s32, s10
    s_and_b32 s33, s11, 0xffff
    s_mov_b32 s34, 0x400000
    s_mov_b32 s35, 0x20000
    v_lshlrev_b32 v2, 4, v1
    global_load_dwordx4 v[30:33], v2, s[4:5]
    s_lshl_b32 s41, s30, 6
    v_add_u32 v3, s41, v8
    v_lshlrev_b32 v3, 13, v3
    v_lshlrev_b32 v4, 4, v9
    v_add_u32 v3, v3, v4
    s_lshl_b32 s41, s29, 8
    v_add_u32 v3, s41, v3
    """)
    for t in range(16):
        I(f"s_mov_b32 s42, {t * 32768}")
        I(f"buffer_load_dwordx4 v[{40+4*t}:{43+4*t}], v3, s[32:35], s42 offen {P['q_nt']}")
    if P['qst']: stamp(28)
    I("s_barrier")
    I("s_waitcnt vmcnt(16)")
    if P['qst']: stamp(29)
    unpack8(30, 10)
    layernorm8(10, 4)
    for e in range(8):
        I(f"v_cvt_pk_bf16_f32 v{18+e}, v{10+e}, v{10+e}")
    I(f"""
    v_lshrrev_b32 v4, 3, v1
    v_lshlrev_b32 v4, 8, v4
    v_and_b32 v5, 7, v1
    v_lshlrev_b32 v5, 3, v5
    v_add_u32 v4, v4, v5
    v_add_u32 v4, {M['XXT']}, v4
    """)
    for g in range(4):
        I(f"v_mov_b32 v26, v{18+g}")
        I(f"v_mov_b32 v27, v{18+g+4}")
        I(f"ds_write_b64 v4, v[26:27] offset:{g*64}")
    I(f"""
    v_and_b32 v5, 1, v9
    v_mov_b32 v6, 0xffff
    v_mov_b32 v7, s43
    v_cmp_eq_u32 vcc, 1, v5
    v_cndmask_b32 v5, v6, v7, vcc
    v_lshrrev_b32 v6, 1, v9
    """)
    for j in range(4):
        I(f"v_cmp_eq_u32 vcc, {j}, v6")
        I(f"v_cndmask_b32 v{10+j}, 0, v5, vcc")
    I(f"""
    s_lshl_b32 s41, s30, 8
    s_add_u32 s41, s41, {M['XXT']}
    v_lshlrev_b32 v4, 6, v8
    v_add_u32 v4, s41, v4
    s_waitcnt lgkmcnt(0)
    ds_read_b128 v[104:107], v4
    ds_read_b128 v[108:111], v4 offset:16
    ds_read_b128 v[112:115], v4 offset:32
    ds_read_b128 v[116:119], v4 offset:48
    s_waitcnt lgkmcnt(0)
    """)
    if P['qst']: stamp(31)
    for t in range(16):
        bb = 18 + 4 * (t % 2)
        for j in range(4):
            I(f"v_and_b32 v{bb+j}, v{104+t}, v{10+j}")
        I(f"s_waitcnt vmcnt({15 - t})")
        c = "0" if t == 0 else "v[26:29]"
        I(f"v_mfma_f32_16x16x32_bf16 v[26:29], v[{40+4*t}:{43+4*t}], v[{bb}:{bb+3}], {c}")
    if P['qst']: stamp(30)
    I("""
    v_readfirstlane_b32 s56, v34
    v_readfirstlane_b32 s57, v35
    s_cmp_lg_u32 s56, 0
    s_cbranch_scc1 L_q_havetag
    """)
    a.label("L_q_tagpoll")
    spin()
    I("""
    v_mov_b32 v2, 0
    global_load_dwordx2 v[34:35], v2, s[24:25] sc1
    s_waitcnt vmcnt(0)
    v_readfirstlane_b32 s56, v34
    v_readfirstlane_b32 s57, v35
    s_cmp_lg_u32 s56, 0
    s_cbranch_scc1 L_q_havetag
    s_sleep 2
    s_branch L_q_tagpoll
    """)
    a.label("L_q_havetag")
    I(f"v_mov_b32 v5, {M['CLEARED']}")
    lds_wait("L_q_clr", 5, 6, 1)
    I(f"""
    v_mov_b32_dpp v14, v28 row_ror:8 row_mask:0xf bank_mask:0xf
    v_mov_b32_dpp v16, v29 row_ror:8 row_mask:0xf bank_mask:0xf
    v_cmp_gt_u32 vcc, 8, v9
    v_mov_b32 v11, s56
    v_mov_b32 v13, s57
    v_cndmask_b32 v10, v14, v26, vcc
    v_cndmask_b32 v12, v16, v27, vcc
    v_mov_b32 v18, s56
    v_mov_b32 v19, s57
    v_mov_b32 v6, {M['NONCE']}
    ds_write_b64 v6, v[18:19]
    s_lshl_b32 s41, s3, 10
    s_add_u32 s41, s41, {WS_QX}
    v_and_b32 v4, 7, v9
    v_lshlrev_b32 v4, 1, v4
    v_lshrrev_b32 v5, 3, v9
    v_add_u32 v4, v4, v5
    v_lshlrev_b32 v5, 4, v8
    v_add_u32 v4, v4, v5
    v_lshlrev_b32 v4, 4, v4
    v_add_u32 v4, s41, v4
    global_store_dwordx4 v4, v[10:13], s[26:27] sc1
    v_mov_b32 v6, {M['QPUB']}
    v_mov_b32 v7, 1
    ds_write_b32 v6, v7
    s_mov_b64 exec, 1
    s_lshl_b32 s41, s3, 3
    s_add_u32 s41, s41, {WS_CLR}
    v_mov_b32 v4, s41
    global_store_dwordx2 v4, v[18:19], s[26:27] sc1
    s_mov_b64 exec, -1
    s_lshl_b32 s41, s29, 13
    s_add_u32 s41, s41, {WS_QX}
    v_lshlrev_b32 v4, 4, v1
    v_add_u32 v4, s41, v4
    v_add_u32 v5, 4096, v4
    """)
    stamp(5)
    if P['qdelay']: I(f"s_sleep {P['qdelay']}")
    a.label("L_q_poll")
    spin()
    for i in range(8):
        I(f"global_load_dwordx4 v[{40+4*i}:{43+4*i}], v{4 if i < 4 else 5}, s[26:27] offset:{1024*(i%4)} sc1")
    I("s_waitcnt vmcnt(0)")
    I("v_xor_b32 v6, s56, v41")
    I("v_xor_b32 v7, s57, v43")
    I("v_or_b32 v6, v6, v7")
    for i in range(1, 8):
        I(f"v_xor_b32 v7, s56, v{41+4*i}")
        I(f"v_or_b32 v6, v6, v7")
        I(f"v_xor_b32 v7, s57, v{43+4*i}")
        I(f"v_or_b32 v6, v6, v7")
    I("v_cmp_ne_u32 vcc, 0, v6")
    I("s_cbranch_vccz L_q_seen")
    if P['qsleep']: I(f"s_sleep {P['qsleep']}")
    I("s_branch L_q_poll")
    a.label("L_q_seen")
    stamp(6)
    for c in (0, 2):
        I(f"v_add_f32 v{40+c}, v{40+c}, v{44+c}")
        I(f"v_add_f32 v{48+c}, v{48+c}, v{52+c}")
        I(f"v_add_f32 v{56+c}, v{56+c}, v{60+c}")
        I(f"v_add_f32 v{64+c}, v{64+c}, v{68+c}")
    for c in (0, 2):
        I(f"v_add_f32 v{40+c}, v{40+c}, v{48+c}")
        I(f"v_add_f32 v{56+c}, v{56+c}, v{64+c}")
    for c in (0, 2):
        I(f"v_add_f32 v{40+c}, v{40+c}, v{56+c}")
    I(f"""
    v_cvt_pk_bf16_f32 v10, v40, v42
    v_lshrrev_b32 v11, 16, v10
    v_lshrrev_b32 v5, 1, v9
    v_and_b32 v6, 1, v1
    v_lshlrev_b32 v6, 4, v6
    v_add_u32 v5, v5, v6
    v_lshlrev_b32 v6, 5, v8
    v_add_u32 v5, v5, v6
    v_lshlrev_b32 v5, 1, v5
    v_add_u32 v5, {M['QB']}, v5
    ds_write_b16 v5, v10
    ds_write_b16 v5, v11 offset:16
    v_mov_b32 v6, {M['QREADY']}
    v_mov_b32 v7, 1
    s_waitcnt lgkmcnt(0)
    ds_write_b32 v6, v7
    """)
    flush_stamps()
    if P['dump']:
        I(f"""
        v_lshlrev_b32 v4, 2, v1
        v_add_u32 v5, {M['QB']}, v4
        ds_read_b32 v10, v5
        s_lshl_b32 s41, s3, 8
        s_add_u32 s41, s41, 0x100000
        v_add_u32 v4, s41, v4
        s_waitcnt lgkmcnt(0)
        global_store_dword v4, v10, s[26:27]
        """)
    a.label("L_c_qwait")
    I(f"v_mov_b32 v5, {M['QREADY']}")
    lds_wait("L_c_qw", 5, 6, 1)
    I(f"""
    v_lshlrev_b32 v5, 4, v8
    v_add_u32 v5, {M['QB']}, v5
    ds_read_b128 v[40:43], v5
    ds_read_b128 v[44:47], v5 offset:64
    ds_read_b128 v[48:51], v5 offset:128
    ds_read_b128 v[52:55], v5 offset:192
    """)
    I(f"""
    v_xor_b32 v2, v8, v9
    v_lshlrev_b32 v2, 4, v2
    v_lshlrev_b32 v10, 8, v9
    v_add_u32 v2, v2, v10
    v_lshrrev_b32 v10, 2, v9
    v_and_b32 v11, 3, v9
    v_lshlrev_b32 v12, 2, v8
    v_add_u32 v12, v12, v10
    v_and_b32 v13, 7, v12
    v_lshlrev_b32 v13, 1, v13
    v_lshrrev_b32 v14, 1, v11
    v_xor_b32 v13, v13, v14
    v_lshlrev_b32 v13, 4, v13
    v_and_b32 v14, 1, v11
    v_lshlrev_b32 v14, 3, v14
    v_lshlrev_b32 v3, 8, v12
    v_add_u32 v3, v3, v13
    v_add_u32 v3, v3, v14
    v_mov_b32 v4, 0xff800000
    v_mov_b32 v5, 0
    v_mov_b32 v6, 0
    v_mov_b32 v7, {M['FILLED']}
    s_lshl_b32 s41, s40, 2
    s_add_u32 s41, s41, {M['NEXT']}
    v_mov_b32 v38, s41
    s_mov_b32 s44, {hex(LOG2E)}
    s_mov_b32 s45, {hex(SCALE)}
    s_mov_b32 s46, s40
    s_lshl_b32 s47, s40, 13
    s_mov_b32 s48, -100
    s_mov_b32 s50, 0x7fffffff
    """)
    for r in range(56, 88): I(f"v_mov_b32 v{r}, 0")
    I(f"""
    s_lshl_b32 s41, s40, 9
    s_add_u32 s41, s41, {M['FINO']}
    v_lshlrev_b32 v120, 2, v9
    v_add_u32 v120, s41, v120
    s_lshl_b32 s41, s40, 3
    s_add_u32 s41, s41, {M['FINML']}
    v_mov_b32 v121, s41
    v_mov_b32 v122, {M['FINCNT']}
    v_mov_b32 v123, 1
    v_lshlrev_b32 v124, 3, v1
    s_mul_i32 s41, s3, {PREC}
    v_add_u32 v125, s41, v124
    v_add_u32 v124, {M['FINO']}, v124
    v_mov_b32 v126, {M['FINML']}
    v_mov_b32 v127, {M['TAILGO']}
    """)
    I("s_waitcnt lgkmcnt(0)")
    stamp(2)
    I(f"""
    v_lshlrev_b32 v39, 4, v8
    v_add_u32 v39, {M['SC']}, v39
    s_mov_b32 s60, 0x00010001
    s_mov_b32 s61, 0x00010001
    s_mul_i32 s41, s29, {8 * NP * 64}
    s_add_u32 s41, s41, {WS_SCX}
    v_lshlrev_b32 v128, 4, v8
    v_add_u32 v128, s41, v128
    v_lshlrev_b32 v129, 4, v8
    v_add_u32 v129, {M['SCF']}, v129
    s_mov_b32 s52, 0x7fffffff
    """)
    RS = 2 * R
    KF = 88
    SS = 18
    def wait_tile(lbl, kind):
        I(f"s_add_u32 s49, s46, 1")
        if kind != 'K':
            I(f"s_cmp_ge_i32 s48, s49")
            I(f"s_cbranch_scc1 {lbl}_ok")
        a.label(f"{lbl}_poll")
        spin()
        I("ds_read_b128 v[34:37], v7")
        I("s_waitcnt lgkmcnt(0)")
        I("v_readfirstlane_b32 s48, v34")
        if kind == 'K':
            I("v_readfirstlane_b32 s50, v35")
            I("s_cmp_ge_u32 s46, s50")
            I("s_cbranch_scc1 L_c_sw")
        if kind == 'P': I("v_readfirstlane_b32 s52, v36")
        I("s_cmp_ge_i32 s48, s49")
        I(f"s_cbranch_scc1 {lbl}_ok")
        if kind == 'P':
            I("s_cmp_ge_u32 s46, s52")
            I("s_cbranch_scc1 L_c_fin")
        elif kind != 'T':
            I(f"s_sleep {P['sleep_c']}")
        I(f"s_branch {lbl}_poll")
        a.label(f"{lbl}_ok")
    def advance():
        I(f"""
        s_add_u32 s47, s47, {4*8192}
        s_cmp_ge_u32 s47, {RS*8192}
        s_cselect_b32 s49, {RS*8192}, 0
        s_sub_u32 s47, s47, s49
        """)
    a.label("L_c_tile")
    I("s_cmp_ge_u32 s46, s50")
    I("s_cbranch_scc1 L_c_sw")
    wait_tile("L_c_k", 'K')
    I("v_add_u32 v10, s47, v2")
    for j in range(1, 4): I(f"v_xor_b32 v{10+j}, {j << 6}, v10")
    for j in range(4):
        I(f"ds_read_b128 v[{KF+4*j}:{KF+4*j+3}], v{10+j}")
        I(f"ds_read_b128 v[{KF+16+4*j}:{KF+16+4*j+3}], v{10+j} offset:4096")
    I(f"""
    s_lshr_b32 s49, s47, 11
    s_add_u32 s49, s49, {M['TID']}
    v_mov_b32 v14, s49
    ds_read_b32 v16, v14
    s_lshl_b32 s51, s46, 6
    s_add_u32 s46, s46, 4
    v_mov_b32 v15, s46
    """)
    for j in range(4):
        I(f"s_waitcnt lgkmcnt({7 - 2*j if j < 3 else 0})")
        if j == 3: I("ds_write_b32 v38, v15")
        c0 = "0" if j == 0 else "v[18:21]"
        c1 = "0" if j == 0 else "v[22:25]"
        I(f"v_mfma_f32_16x16x32_bf16 v[18:21], v[{KF+4*j}:{KF+4*j+3}], v[{40+4*j}:{43+4*j}], {c0}")
        I(f"v_mfma_f32_16x16x32_bf16 v[22:25], v[{KF+16+4*j}:{KF+16+4*j+3}], v[{40+4*j}:{43+4*j}], {c1}")
    advance()
    for p in range(4): I(f"v_cvt_pk_bf16_f32 v{30+p}, v{SS+2*p}, v{SS+2*p+1}")
    for p in range(4):
        I(f"v_lshlrev_b32 v{SS+2*p}, 16, v{30+p}")
        I(f"v_and_b32 v{SS+2*p+1}, s43, v{30+p}")
    for i in range(8): I(f"v_mul_f32 v{SS+i}, s45, v{SS+i}")
    for p in range(4): I(f"v_cvt_pk_bf16_f32 v{28+p}, v{SS+2*p}, v{SS+2*p+1}")
    I(f"""
    s_cmp_lt_u32 s51, {S * 64}
    s_cbranch_scc0 L_c_kpool
    v_add_u32 v14, s51, v39
    s_mov_b64 exec, s[60:61]
    ds_write_b128 v14, v[28:31]
    s_mov_b64 exec, -1
    s_branch L_c_kmax
    """)
    a.label("L_c_kpool")
    I(f"""
    v_lshlrev_b32 v16, 6, v16
    v_add_u32 v14, v16, v128
    s_mov_b64 exec, s[60:61]
    global_store_dwordx4 v14, v[28:31], s[26:27] sc1
    s_mov_b64 exec, -1
    """)
    a.label("L_c_kmax")
    for p in range(4):
        I(f"v_lshlrev_b32 v{SS+2*p}, 16, v{28+p}")
        I(f"v_and_b32 v{SS+2*p+1}, s43, v{28+p}")
    for p in range(4): I(f"v_max3_f32 v4, v4, v{SS+2*p}, v{SS+2*p+1}")
    I("s_branch L_c_tile")
    a.label("L_c_sw")
    I(f"""
    v_mov_b32 v30, v4
    s_lshl_b32 s41, s40, 2
    s_add_u32 s41, s41, {M['PMAX']}
    v_permlane32_swap_b32 v4, v30
    v_mov_b32 v31, s41
    v_max_f32 v4, v4, v30
    v_mov_b32 v32, {M['PCNT']}
    v_mov_b32 v30, v4
    v_mov_b32 v33, {M['PMAX']}
    s_nop 0
    v_permlane16_swap_b32 v4, v30
    v_max_f32 v4, v4, v30
    ds_write_b32 v31, v4
    s_waitcnt vmcnt(0) lgkmcnt(0)
    ds_add_u32 v32, v123
    """)
    a.label("L_c_sw_wait")
    spin()
    I("""
    ds_read_b32 v30, v32
    ds_read_b128 v[20:23], v33
    s_waitcnt lgkmcnt(0)
    v_readfirstlane_b32 s41, v30
    s_cmp_ge_u32 s41, 256
    s_cbranch_scc0 L_c_sw_wait
    """)
    I(f"""
    v_max3_f32 v4, v20, v21, v22
    v_max_f32 v4, v4, v23
    v_mul_f32 v6, s44, v4
    s_add_u32 s51, s50, {S}
    """)
    def softmax_part():
        for i in range(8): I(f"v_fma_f32 v{SS+i}, v{SS+i}, s44, -v6")
        for i in range(8): I(f"v_exp_f32 v{SS+i}, v{SS+i}")
        for p in range(4): I(f"v_cvt_pk_bf16_f32 v{26+p}, v{SS+2*p}, v{SS+2*p+1}")
        I(f"""
        v_add_f32 v30, v{SS}, v{SS+1}
        v_add_f32 v31, v{SS+2}, v{SS+3}
        v_add_f32 v32, v{SS+4}, v{SS+5}
        v_add_f32 v33, v{SS+6}, v{SS+7}
        v_add_f32 v30, v30, v31
        v_add_f32 v32, v32, v33
        v_add_f32 v30, v30, v32
        v_add_f32 v5, v5, v30
        """)
    def vread(nb):
        I(f"ds_read_b64_tr_b16 v[{KF+4*nb}:{KF+4*nb+1}], v{10+nb}")
        I(f"ds_read_b64_tr_b16 v[{KF+4*nb+2}:{KF+4*nb+3}], v{10+nb} offset:4096")
    def pv(nb):
        I(f"v_mfma_f32_16x16x32_bf16 v[{56+4*nb}:{59+4*nb}], v[26:29], v[{KF+4*nb}:{KF+4*nb+3}], v[{56+4*nb}:{59+4*nb}]")
    def pv_part():
        for nb in range(7): vread(nb)
        I("s_waitcnt lgkmcnt(6)")
        for nb in range(4): pv(nb)
        vread(7)
        I("s_waitcnt lgkmcnt(2)")
        for nb in range(4, 7): pv(nb)
        I("s_add_u32 s46, s46, 4")
        I("v_mov_b32 v30, s46")
        I("s_waitcnt lgkmcnt(0)")
        I("ds_write_b32 v38, v30")
        pv(7)
        advance()
    def vaddr():
        I("v_add_u32 v10, s47, v3")
        for nb in range(1, 8): I(f"v_xor_b32 v{10+nb}, {nb << 5}, v10")
    def unpack_scores():
        for p in range(4):
            I(f"v_lshlrev_b32 v{SS+2*p}, 16, v{28+p}")
            I(f"v_and_b32 v{SS+2*p+1}, s43, v{28+p}")
    a.label("L_c_vtile")
    I(f"""
    s_sub_u32 s49, s46, s50
    s_lshl_b32 s49, s49, 6
    v_add_u32 v14, s49, v39
    ds_read_b128 v[28:31], v14
    """)
    vaddr()
    I("s_waitcnt lgkmcnt(0)")
    unpack_scores()
    softmax_part()
    wait_tile("L_c_v", 'V')
    pv_part()
    I("s_cmp_lt_u32 s46, s51")
    I("s_cbranch_scc1 L_c_vtile")
    a.label("L_c_ptile")
    I("s_cmp_ge_u32 s46, s52")
    I("s_cbranch_scc1 L_c_fin")
    a.label("L_c_ps_poll")
    spin()
    I("""
    ds_read_b128 v[34:37], v7
    s_waitcnt lgkmcnt(0)
    v_readfirstlane_b32 s52, v36
    v_readfirstlane_b32 s48, v34
    s_cmp_ge_u32 s46, s52
    s_cbranch_scc1 L_c_fin
    s_cmp_ge_i32 s48, s46
    s_cbranch_scc0 L_c_ps_poll
    """)
    I(f"""
    s_lshr_b32 s49, s47, 7
    v_add_u32 v14, s49, v129
    ds_read_b128 v[28:31], v14
    """)
    vaddr()
    I("s_waitcnt lgkmcnt(0)")
    unpack_scores()
    I(f"""
    v_max3_f32 v34, v{SS}, v{SS+1}, v{SS+2}
    v_max3_f32 v35, v{SS+3}, v{SS+4}, v{SS+5}
    v_max3_f32 v34, v34, v{SS+6}, v{SS+7}
    v_max_f32 v34, v34, v35
    v_mov_b32 v35, v34
    v_permlane32_swap_b32 v34, v35
    v_max_f32 v34, v34, v35
    v_mov_b32 v35, v34
    v_permlane16_swap_b32 v34, v35
    v_max_f32 v34, v34, v35
    v_cmp_gt_f32 vcc, v34, v4
    s_cbranch_vccz L_c_norescale
    v_sub_f32 v35, v4, v34
    v_mul_f32 v35, s44, v35
    v_exp_f32 v35, v35
    v_mov_b32 v4, v34
    v_mul_f32 v6, s44, v34
    v_mul_f32 v5, v5, v35
    """)
    for r in range(56, 88): I(f"v_mul_f32 v{r}, v{r}, v35")
    a.label("L_c_norescale")
    softmax_part()
    wait_tile("L_c_pv", 'T')
    pv_part()
    I("s_branch L_c_ptile")
    a.label("L_c_fin")
    stamp(3)
    I(f"""
    v_mov_b32 v30, v5
    v_mov_b32 v4, v6
    ds_write_b32 v120, v56 offset:0
    v_permlane32_swap_b32 v5, v30
    ds_write_b32 v120, v60 offset:64
    ds_write_b32 v120, v64 offset:128
    v_add_f32 v5, v5, v30
    ds_write_b32 v120, v68 offset:192
    v_mov_b32 v30, v5
    ds_write_b32 v120, v72 offset:256
    ds_write_b32 v120, v76 offset:320
    v_permlane16_swap_b32 v5, v30
    ds_write_b32 v120, v80 offset:384
    ds_write_b32 v120, v84 offset:448
    v_add_f32 v5, v5, v30
    ds_write_b64 v121, v[4:5]
    s_mov_b64 exec, 1
    ds_add_rtn_u32 v32, v122, v123
    s_mov_b64 exec, -1
    ds_read_b128 v[20:23], v126
    ds_read_b128 v[24:27], v126 offset:16
    ds_read_b64 v[12:13], v124
    ds_read_b64 v[14:15], v124 offset:512
    ds_read_b64 v[16:17], v124 offset:1024
    ds_read_b64 v[18:19], v124 offset:1536
    s_waitcnt lgkmcnt(0)
    v_readfirstlane_b32 s41, v32
    v_max3_f32 v28, v20, v22, v24
    s_cmp_eq_u32 s41, 3
    s_cbranch_scc0 L_end
    ds_write_b32 v127, v123
    v_max_f32 v28, v28, v26
    v_sub_f32 v20, v20, v28
    v_sub_f32 v22, v22, v28
    v_sub_f32 v24, v24, v28
    v_sub_f32 v26, v26, v28
    v_exp_f32 v20, v20
    v_exp_f32 v22, v22
    v_exp_f32 v24, v24
    v_exp_f32 v26, v26
    v_pk_mul_f32 v[12:13], v[12:13], v[20:21] op_sel_hi:[1,0]
    v_mul_f32 v29, v21, v20
    v_pk_fma_f32 v[12:13], v[14:15], v[22:23], v[12:13] op_sel_hi:[1,0,1]
    v_fmac_f32 v29, v23, v22
    v_pk_fma_f32 v[12:13], v[16:17], v[24:25], v[12:13] op_sel_hi:[1,0,1]
    v_fmac_f32 v29, v25, v24
    v_pk_fma_f32 v[12:13], v[18:19], v[26:27], v[12:13] op_sel_hi:[1,0,1]
    v_fmac_f32 v29, v27, v26
    global_store_dwordx2 v125, v[12:13], s[26:27] sc1
    s_mov_b64 exec, 0xffff
    global_store_dwordx2 v125, v[28:29], s[26:27] offset:512 sc1
    s_mov_b64 exec, -1
    """)
    stamp(4)
    flush_stamps()
    I("s_endpgm")

    a.label("L_tail")
    I("s_sub_u32 s40, s28, 5")
    I("s_mov_b32 s43, 0xffff0000")
    I(f"""
    s_mov_b32 s54, 0
    s_mov_b32 s44, 0
    s_cmp_eq_u32 s31, 4
    s_cbranch_scc0 L_t_r0
    s_cmp_lt_u32 s29, 16
    s_cbranch_scc0 L_t_rdone
    s_mov_b32 s54, 3
    s_mov_b32 s44, s29
    s_branch L_t_rdone
    """)
    a.label("L_t_r0")
    I(f"""
    s_cmp_lt_u32 s29, 11
    s_cbranch_scc0 L_t_r1
    s_cmp_lt_u32 s31, 3
    s_cbranch_scc0 L_t_rdone
    s_mov_b32 s54, 1
    s_mov_b32 s44, s29
    s_cmp_eq_u32 s31, 0
    s_cbranch_scc1 L_t_rdone
    s_mov_b32 s54, 2
    s_lshl_b32 s44, s29, 1
    s_add_u32 s44, s44, s31
    s_sub_u32 s44, s44, 1
    s_branch L_t_rdone
    """)
    a.label("L_t_r1")
    I(f"""
    s_cmp_lt_u32 s29, 22
    s_cbranch_scc0 L_t_r2
    s_cmp_lt_u32 s31, 4
    s_cbranch_scc0 L_t_rdone
    s_mov_b32 s54, 2
    s_add_u32 s44, s29, 11
    s_cmp_eq_u32 s31, 3
    s_cbranch_scc1 L_t_rdone
    s_mov_b32 s54, 1
    s_mul_i32 s44, s29, 3
    s_add_u32 s44, s44, s31
    s_sub_u32 s44, s44, 22
    s_branch L_t_rdone
    """)
    a.label("L_t_r2")
    I(f"""
    s_cmp_lt_u32 s31, 3
    s_cbranch_scc0 L_t_rdone
    s_mov_b32 s54, 2
    s_add_u32 s44, s29, 11
    s_cmp_eq_u32 s31, 2
    s_cbranch_scc1 L_t_rdone
    s_mov_b32 s54, 1
    s_lshl_b32 s44, s29, 1
    s_add_u32 s44, s44, s31
    """)
    a.label("L_t_rdone")
    I("s_barrier")
    I(f"""
    v_lshrrev_b32 v8, 4, v1
    v_and_b32 v9, 15, v1
    s_cmp_eq_u32 s40, 0
    s_cbranch_scc0 L_t_noclear
    """)
    I(f"""
    v_mov_b32 v10, -1
    v_mov_b32 v11, -1
    v_mov_b32 v12, -1
    v_mov_b32 v13, -1
    s_mul_i32 s41, s3, {PREC}
    v_lshlrev_b32 v4, 3, v1
    v_add_u32 v4, s41, v4
    global_store_dwordx2 v4, v[10:11], s[26:27] sc1
    s_mov_b64 exec, 0xffff
    global_store_dwordx2 v4, v[10:11], s[26:27] offset:512 sc1
    s_mov_b64 exec, -1
    s_cmp_eq_u32 s30, 0
    s_cbranch_scc0 L_t_clr_tk
    s_lshl_b32 s41, s29, 8
    s_add_u32 s41, s41, {WS_TK}
    v_mov_b32 v4, s41
    v_mov_b32 v5, 0
    global_store_dword v4, v5, s[26:27] sc1
    global_store_dword v4, v5, s[26:27] offset:128 sc1
    """)
    a.label("L_t_clr_tk")
    I(f"""
    s_cmp_eq_u32 s54, 1
    s_cbranch_scc0 L_t_clr_f
    s_lshl_b32 s41, s44, 8
    s_add_u32 s41, s41, {WS_Y}
    v_lshlrev_b32 v4, 2, v1
    v_add_u32 v4, s41, v4
    global_store_dword v4, v10, s[26:27] sc1
    s_branch L_t_clr_done
    """)
    a.label("L_t_clr_f")
    I(f"""
    s_cmp_eq_u32 s54, 2
    s_cbranch_scc0 L_t_clr_done
    s_lshl_b32 s41, s44, 11
    s_add_u32 s41, s41, {WS_P}
    v_lshlrev_b32 v4, 4, v1
    v_add_u32 v4, s41, v4
    global_store_dwordx4 v4, v[10:13], s[26:27] sc1
    global_store_dwordx4 v4, v[10:13], s[26:27] offset:1024 sc1
    """)
    a.label("L_t_clr_done")
    I(f"""
    s_waitcnt vmcnt(0)
    v_mov_b32 v4, {M['CLEARED']}
    v_mov_b32 v5, 1
    ds_write_b32 v4, v5
    """)
    a.label("L_t_noclear")
    def kall(lbl):
        I(f"v_mov_b32 v4, {M['PCNT']}")
        a.label(f"{lbl}_pc")
        spin()
        I(f"""
        ds_read_b32 v5, v4
        s_waitcnt lgkmcnt(0)
        v_readfirstlane_b32 s42, v5
        s_cmp_ge_u32 s42, 256
        s_cbranch_scc1 {lbl}_pcok
        s_sleep 16
        s_branch {lbl}_pc
        """)
        a.label(f"{lbl}_pcok")
        I(f"""
        v_mov_b32 v4, {M['NONCE']}
        ds_read_b64 v[16:17], v4
        s_lshl_b32 s42, s3, 3
        s_add_u32 s42, s42, {WS_KD}
        v_mov_b32 v4, s42
        s_waitcnt lgkmcnt(0)
        s_mov_b64 exec, 1
        global_store_dwordx2 v4, v[16:17], s[26:27] sc1
        s_mov_b64 exec, -1
        s_lshl_b32 s42, s29, 6
        s_add_u32 s42, s42, {WS_KD}
        v_and_b32 v4, 7, v1
        v_lshlrev_b32 v4, 3, v4
        v_add_u32 v4, s42, v4
        """)
        a.label(f"{lbl}_kd")
        spin()
        I(f"""
        global_load_dwordx2 v[20:21], v4, s[26:27] sc1
        s_waitcnt vmcnt(0)
        v_xor_b32 v5, v16, v20
        v_xor_b32 v18, v17, v21
        v_or_b32 v5, v5, v18
        v_cmp_ne_u32 vcc, 0, v5
        s_cbranch_vccz {lbl}_kdok
        s_sleep 16
        s_branch {lbl}_kd
        """)
        a.label(f"{lbl}_kdok")
        I(f"""
        v_mov_b32 v4, {M['KALL']}
        v_mov_b32 v5, 1
        ds_write_b32 v4, v5
        """)
    if P['ptouch']:
        I("""
        s_cmp_eq_u32 s40, 1
        s_cbranch_scc0 L_t_notouch
        """)
        I(f"v_mov_b32 v4, {M['QREADY']}")
        lds_wait("L_t_tqw", 4, 5, 8)
        I("""
        s_lshl_b32 s41, s29, 23
        s_add_u32 s64, s6, s41
        s_addc_u32 s65, s7, 0
        s_add_u32 s66, s8, s41
        s_addc_u32 s67, s9, 0
        """)
        for p in range(4):
            I(f"s_mov_b32 s41, {p * 0x200000 + 0x100000}")
            I(f"s_load_dword s{68+p}, s[64:65], s41")
            I(f"s_load_dword s{72+p}, s[66:67], s41")
        I("s_waitcnt lgkmcnt(0)")
        a.label("L_t_notouch")
    I(f"""
    s_cmp_eq_u32 s54, 0
    s_cbranch_scc0 L_t_hasrole
    s_cmp_eq_u32 s40, 0
    s_cbranch_scc0 L_end
    """)
    kall("L_n_k")
    I("s_endpgm")
    a.label("L_t_hasrole")
    I(f"""
    s_cmp_eq_u32 s54, 3
    s_cbranch_scc0 L_t_wf
    s_cmp_eq_u32 s40, 0
    s_cbranch_scc1 L_t_o
    s_endpgm
    """)
    a.label("L_t_wf")
    if P['stage_at'] != "start":
        I(f"v_mov_b32 v4, {M['QREADY'] if P['stage_at'] == 'ready' else M['QPUB']}")
        lds_wait("L_t_qw", 4, 5, 8)
    I("s_cmp_eq_u32 s54, 2")
    I("s_cbranch_scc1 L_t_f")

    STG = M['STAGE']
    SNT = P['stage_nt']
    def stage_setup():
        I(f"s_lshl_b32 s41, s40, 12")
        I(f"s_add_u32 s41, s41, {STG}")
    cur_role = [""]
    def dma(addr, u, step_bytes):
        if P['skip_stage'] or (cur_role[0] and cur_role[0] in P['skip_role']): return
        I(f"s_add_u32 m0, s41, {u*1024}")
        I(f"s_nop 0")
        I(f"global_load_lds_dwordx4 v[{addr}:{addr+1}], off {SNT}")
        if step_bytes:
            I(f"v_add_co_u32 v{addr}, vcc, {step_bytes}, v{addr}")
            I(f"v_addc_co_u32 v{addr+1}, vcc, 0, v{addr+1}, vcc")
    def tr_reads(trbase, offs, dst):
        I("s_waitcnt vmcnt(0)")
        d = dst
        for off in offs:
            I(f"ds_read_b64_tr_b16 v[{d}:{d+1}], v{trbase} offset:{off[0]}")
            I(f"ds_read_b64_tr_b16 v[{d+2}:{d+3}], v{trbase} offset:{off[1]}")
            d += 4
        I("s_waitcnt lgkmcnt(0)")
    def tr_addr(reg, rowstride):
        I(f"v_lshrrev_b32 v10, 2, v9")
        I(f"v_lshlrev_b32 v11, 3, v8")
        I(f"v_add_u32 v10, v10, v11")
        I(f"v_mul_u32_u24 v10, {rowstride}, v10")
        I(f"v_and_b32 v11, 3, v9")
        I(f"v_lshlrev_b32 v11, 3, v11")
        I(f"v_add_u32 v10, v10, v11")
        I(f"v_add_u32 v{reg}, s41, v10")
    def wait_flags_and_go(lbl):
        I("s_cmp_eq_u32 s40, 0")
        I(f"s_cbranch_scc0 {lbl}_nok")
        kall(f"{lbl}_k")
        a.label(f"{lbl}_nok")
        if P['stage_at'] != "ready" and lbl != "L_o":
            I(f"v_mov_b32 v4, {M['QREADY']}")
            lds_wait(f"{lbl}_qr", 4, 5, 8)
        I(f"""
        v_mov_b32 v4, {M['NONCE']}
        ds_read_b64 v[16:17], v4
        v_lshlrev_b32 v4, 4, v1
        v_add_u32 v4, {WS_CLR}, v4
        s_waitcnt lgkmcnt(0)
        """)
        a.label(f"{lbl}_clr")
        spin()
        I(f"""
        global_load_dwordx4 v[20:23], v4, s[26:27] sc1
        global_load_dwordx4 v[24:27], v4, s[26:27] offset:1024 sc1
        s_waitcnt vmcnt(0)
        """)
        I("v_xor_b32 v5, v16, v20")
        for r in (22, 24, 26):
            I(f"v_xor_b32 v18, v16, v{r}")
            I("v_or_b32 v5, v5, v18")
        for r in (21, 23, 25, 27):
            I(f"v_xor_b32 v18, v17, v{r}")
            I("v_or_b32 v5, v5, v18")
        I(f"""
        v_cmp_ne_u32 vcc, 0, v5
        s_cbranch_vccz {lbl}_go0
        s_sleep 32
        s_branch {lbl}_clr
        """)
        a.label(f"{lbl}_go0")
        if lbl == "L_o":
            I(f"""
            s_cmp_eq_u32 s44, 0
            s_cbranch_scc0 L_o_keep
            v_mov_b32 v4, 0
            v_mov_b32 v20, 0
            v_mov_b32 v21, 0
            s_mov_b64 exec, 1
            global_store_dwordx2 v4, v[20:21], s[24:25] sc1
            s_mov_b64 exec, -1
            """)
            a.label("L_o_keep")
        I(f"v_mov_b32 v4, {M['TAILGO']}")
        lds_wait(f"{lbl}_go", 4, 5, P['sleep_t'])
        if P['tprio']: I(f"s_setprio {P['tprio']}")
    def any_reset(regs, tmp):
        rs = list(regs)
        I(f"v_max3_u32 v{tmp}, v{rs[0]}, v{rs[1]}, v{rs[2]}")
        rs = rs[3:]
        while len(rs) >= 2:
            I(f"v_max3_u32 v{tmp}, v{tmp}, v{rs[0]}, v{rs[1]}"); rs = rs[2:]
        if rs: I(f"v_max_u32 v{tmp}, v{tmp}, v{rs[0]}")
        I(f"v_cmp_eq_u32 vcc, -1, v{tmp}")
    def poll2(lbl, issue, nloads, regsA, regsB, tmp, first, key):
        if key not in P['dbl']:
            a.label(f"{lbl}")
            spin()
            issue(regsA[0])
            I("s_waitcnt vmcnt(0)")
            any_reset(regsA, tmp)
            slp = {'W': P['wsleep'], 'F': P['fsleep'], 'O': P['osleep'], 'y': P['osleep']}[key]
            if slp:
                I(f"s_cbranch_vccz {lbl}_ok")
                I(f"s_sleep {slp}")
                I(f"s_branch {lbl}")
                a.label(f"{lbl}_ok")
            else:
                I(f"s_cbranch_vccnz {lbl}")
            first(regsA[0])
            return
        issue(regsA[0])
        if P['stag']: I(f"s_sleep {P['stag']}")
        a.label(f"{lbl}")
        spin()
        issue(regsB[0])
        I(f"s_waitcnt vmcnt({nloads})")
        any_reset(regsA, tmp)
        I(f"s_cbranch_vccz {lbl}_a")
        issue(regsA[0])
        I(f"s_waitcnt vmcnt({nloads})")
        any_reset(regsB, tmp)
        I(f"s_cbranch_vccnz {lbl}")
        first(regsB[0])
        I(f"s_branch {lbl}_join")
        a.label(f"{lbl}_a")
        first(regsA[0])
        a.label(f"{lbl}_join")
    def gemv_kslice(abase, wb, acc, tmp):
        for ks in range(4):
            I(f"ds_read_b128 v[{tmp+4*ks}:{tmp+4*ks+3}], v{abase} offset:{ks*64}")
        for ks in range(4):
            I(f"s_waitcnt lgkmcnt({3-ks})")
            for nb in range(4):
                c = "0" if ks == 0 else f"v[{acc+4*nb}:{acc+4*nb+3}]"
                I(f"v_mfma_f32_16x16x32_bf16 v[{acc+4*nb}:{acc+4*nb+3}], v[{tmp+4*ks}:{tmp+4*ks+3}], v[{wb+16*ks+4*nb}:{wb+16*ks+4*nb+3}], {c}")
    def part_to_lds(acc, waddr, raddr):
        for nb in range(4): I(f"ds_write_b32 v{waddr}, v{acc+4*nb} offset:{64*nb}")
        I(f"""
        s_waitcnt lgkmcnt(0)
        s_barrier
        ds_read_b32 v12, v{raddr}
        ds_read_b32 v13, v{raddr} offset:256
        ds_read_b32 v14, v{raddr} offset:512
        ds_read_b32 v15, v{raddr} offset:768
        s_waitcnt lgkmcnt(0)
        v_add_f32 v12, v12, v13
        v_add_f32 v14, v14, v15
        v_add_f32 v12, v12, v14
        """)
    def yp_addrs(waddr, raddr):
        I(f"""
        s_lshl_b32 s47, s40, 8
        s_add_u32 s47, s47, {M['YP']}
        v_lshlrev_b32 v{waddr}, 2, v9
        v_add_u32 v{waddr}, s47, v{waddr}
        v_lshlrev_b32 v{raddr}, 2, v1
        v_add_u32 v{raddr}, {M['YP']}, v{raddr}
        """)

    def wait_vphase(lbl):
        if not P['split']: return
        I(f"v_mov_b32 v4, {M['PCNT']}")
        a.label(lbl)
        spin()
        I(f"""
        ds_read_b32 v5, v4
        s_waitcnt lgkmcnt(0)
        v_readfirstlane_b32 s42, v5
        s_cmp_ge_u32 s42, 256
        s_cbranch_scc1 {lbl}_ok
        s_sleep 16
        s_branch {lbl}
        """)
        a.label(f"{lbl}_ok")
    WB = 64
    a.label("L_t_w")
    cur_role[0] = "W"
    if P['ptouch']:
        I("""
        s_lshr_b32 s45, s44, 3
        s_lshl_b32 s45, s45, 19
        s_load_dword s68, s[12:13], s45
        s_waitcnt lgkmcnt(0)
        """)
    stage_setup()
    tr_addr(14, 128)
    I(f"""
    s_lshr_b32 s45, s44, 3
    s_and_b32 s46, s44, 7
    s_lshl_b32 s47, s45, 19
    s_lshl_b32 s48, s40, 17
    s_add_u32 s47, s47, s48
    s_lshl_b32 s48, s46, 7
    s_add_u32 s47, s47, s48
    v_lshrrev_b32 v10, 3, v1
    v_lshlrev_b32 v10, 10, v10
    v_and_b32 v11, 7, v1
    v_lshlrev_b32 v11, 4, v11
    v_add_u32 v10, v10, v11
    v_add_u32 v10, s47, v10
    v_mov_b32 v13, s13
    v_add_co_u32 v12, vcc, s12, v10
    v_addc_co_u32 v13, vcc, 0, v13, vcc
    """)
    WL = P['w_late']
    WE = 4 - WL
    for ks in range(WE):
        if (WL == 0 and ks == 2) or (WL == 2 and ks == 1 and P['w_split']): wait_vphase("L_w_vp")
        for u in range(4): dma(12, u, 8 * 1024)
        tr_reads(14, [(nb * 32, 4 * 128 + nb * 32) for nb in range(4)], WB + 16 * ks)
    if WL:
        I(f"""
        s_mov_b32 s64, s12
        s_and_b32 s65, s13, 0xffff
        s_mov_b32 s66, 0x400000
        s_mov_b32 s67, 0x20000
        v_lshrrev_b32 v45, 3, v1
        v_lshlrev_b32 v45, 10, v45
        v_and_b32 v11, 7, v1
        v_lshlrev_b32 v11, 4, v11
        v_add_u32 v45, v45, v11
        s_lshl_b32 s55, s40, 14
        s_lshl_b32 s56, s45, 19
        s_lshl_b32 s57, s40, 17
        s_add_u32 s56, s56, s57
        s_lshl_b32 s57, s46, 7
        s_add_u32 s56, s56, s57
        s_mov_b32 s41, s55
        """)
        tr_addr(47, 128)
    stamp(8)
    I(f"""
    s_lshl_b32 s47, s45, 2
    s_add_u32 s47, s47, s40
    s_mul_i32 s48, s47, {8 * PREC}
    """)
    wait_flags_and_go("L_w")
    for ks in range(WE, 4):
        for u in range(4):
            I(f"s_add_u32 m0, s55, {ks * 4096 + u * 1024}")
            I(f"s_add_u32 s58, s56, {(32 * ks + 8 * u) * 1024}")
            I(f"buffer_load_dwordx4 v45, s[64:67], s58 offen {SNT} lds")
    I(f"""
    v_lshrrev_b32 v15, 5, v1
    v_mul_u32_u24 v15, {PREC}, v15
    v_add_u32 v15, s48, v15
    v_and_b32 v10, 31, v1
    v_lshlrev_b32 v14, 4, v10
    v_add_u32 v14, v15, v14
    v_add_u32 v15, 512, v15
    v_lshlrev_b32 v10, 3, v10
    s_lshl_b32 s47, s40, 8
    s_add_u32 s47, s47, {M['OALL']}
    v_add_u32 v7, s47, v10
    v_lshlrev_b32 v10, 4, v8
    v_add_u32 v10, s47, v10
    s_lshl_b32 s47, s44, 8
    s_add_u32 s47, s47, {WS_Y}
    v_lshlrev_b32 v6, 2, v1
    v_add_u32 v6, s47, v6
    """)
    yp_addrs(11, 5)
    if WL:
        I("s_waitcnt vmcnt(0)")
        d = WB + 16 * WE; n = 0
        for ks in range(WE, 4):
            for nb in range(4):
                I(f"ds_read_b64_tr_b16 v[{d}:{d+1}], v47 offset:{ks * 4096 + nb * 32}")
                I(f"ds_read_b64_tr_b16 v[{d+2}:{d+3}], v47 offset:{ks * 4096 + 4 * 128 + nb * 32}")
                d += 4
            I("s_waitcnt lgkmcnt(0)")
    stamp(9)
    def w_issue(b):
        for i in range(4): I(f"global_load_dwordx4 v[{b+4*i}:{b+4*i+3}], v14, s[26:27] offset:{2*PREC*i} sc1")
        for i in range(4): I(f"global_load_dwordx2 v[{b+16+2*i}:{b+17+2*i}], v15, s[26:27] offset:{2*PREC*i} sc1")
    def w_first(b):
        m = b + 16
        I(f"""
        v_max3_f32 v2, v{m}, v{m+2}, v{m+4}
        v_max_f32 v2, v2, v{m+6}
        v_mov_b32 v3, v2
        v_permlane32_swap_b32 v2, v3
        v_max_f32 v2, v2, v3
        v_sub_f32 v{m}, v{m}, v2
        v_sub_f32 v{m+2}, v{m+2}, v2
        v_sub_f32 v{m+4}, v{m+4}, v2
        v_sub_f32 v{m+6}, v{m+6}, v2
        v_exp_f32 v{m}, v{m}
        v_exp_f32 v{m+2}, v{m+2}
        v_exp_f32 v{m+4}, v{m+4}
        v_exp_f32 v{m+6}, v{m+6}
        v_pk_mul_f32 v[12:13], v[{b}:{b+1}], v[{m}:{m+1}] op_sel_hi:[1,0]
        v_pk_mul_f32 v[2:3], v[{b+2}:{b+3}], v[{m}:{m+1}] op_sel_hi:[1,0]
        v_mul_f32 v4, v{m}, v{m+1}
        """)
        for i in range(1, 4):
            I(f"v_pk_fma_f32 v[12:13], v[{b+4*i}:{b+4*i+1}], v[{m+2*i}:{m+2*i+1}], v[12:13] op_sel_hi:[1,0,1]")
            I(f"v_pk_fma_f32 v[2:3], v[{b+4*i+2}:{b+4*i+3}], v[{m+2*i}:{m+2*i+1}], v[2:3] op_sel_hi:[1,0,1]")
            I(f"v_fmac_f32 v4, v{m+2*i}, v{m+2*i+1}")
    poll2("L_w_poll", w_issue, 8, list(range(16, 40)), list(range(40, 64)), 13, w_first, 'W')
    stamp(10)
    I("""
    v_mov_b32 v128, v12
    v_mov_b32 v129, v13
    v_mov_b32 v130, v2
    v_mov_b32 v131, v3
    v_mov_b32 v132, v4
    v_permlane32_swap_b32 v12, v128
    v_permlane32_swap_b32 v13, v129
    v_permlane32_swap_b32 v2, v130
    v_permlane32_swap_b32 v3, v131
    v_permlane32_swap_b32 v4, v132
    v_add_f32 v4, v4, v132
    v_pk_add_f32 v[12:13], v[12:13], v[128:129]
    v_rcp_f32 v132, v4
    v_pk_add_f32 v[2:3], v[2:3], v[130:131]
    v_pk_mul_f32 v[12:13], v[12:13], v[132:133] op_sel_hi:[1,0]
    v_pk_mul_f32 v[2:3], v[2:3], v[132:133] op_sel_hi:[1,0]
    v_cvt_pk_bf16_f32 v12, v12, v13
    v_cvt_pk_bf16_f32 v13, v2, v3
    ds_write_b64 v7, v[12:13]
    s_waitcnt lgkmcnt(0)
    """)
    gemv_kslice(10, WB, 144, 128)
    part_to_lds(144, 11, 5)
    I(f"""
    s_cmp_eq_u32 s40, 0
    s_cbranch_scc0 L_end
    global_store_dword v6, v12, s[26:27] sc1
    """)
    stamp(11)
    flush_stamps()
    I("s_endpgm")

    a.label("L_t_f")
    cur_role[0] = "F"
    if P['ptouch']:
        I("""
        s_load_dword s68, s[16:17], 0
        s_load_dword s69, s[18:19], 0
        s_load_dword s70, s[20:21], 0
        s_waitcnt lgkmcnt(0)
        """)
    stage_setup()
    tr_addr(14, 64)
    I(f"""
    s_lshl_b32 s46, s44, 6
    s_mul_i32 s47, s40, {128 * 2752}
    s_add_u32 s46, s46, s47
    v_lshrrev_b32 v10, 2, v1
    v_mul_u32_u24 v10, 2752, v10
    v_and_b32 v11, 3, v1
    v_lshlrev_b32 v11, 4, v11
    v_add_u32 v10, v10, v11
    v_add_u32 v10, s46, v10
    v_mov_b32 v13, s17
    v_add_co_u32 v12, vcc, s16, v10
    v_addc_co_u32 v13, vcc, 0, v13, vcc
    v_mov_b32 v17, s19
    v_add_co_u32 v16, vcc, s18, v10
    v_addc_co_u32 v17, vcc, 0, v17, vcc
    """)
    DB = WB + 64
    LATE_G = 'g' in P['f_late']; LATE_D = 'd' in P['f_late']
    GU_OFFS = [(0, 256), (32, 256 + 32), (2048, 2048 + 256), (2048 + 32, 2048 + 256 + 32)]
    D_OFFS = [(nb * 32, 4 * 128 + nb * 32) for nb in range(4)]
    GE = P['g_early'] if LATE_G else 4
    if LATE_G:
        for ks in range(GE):
            dma(12, 0, 16 * 2752); dma(12, 1, 16 * 2752)
            dma(16, 2, 16 * 2752); dma(16, 3, 16 * 2752)
            tr_reads(14, GU_OFFS, WB + 16 * ks)
    if not LATE_G:
        for ks in range(4):
            if ks == 3 and not LATE_D: wait_vphase("L_f_vp")
            if ks == 2 and LATE_D: wait_vphase("L_f_vp")
            dma(12, 0, 16 * 2752); dma(12, 1, 16 * 2752)
            dma(16, 2, 16 * 2752); dma(16, 3, 16 * 2752)
            tr_reads(14, GU_OFFS, WB + 16 * ks)
    if not LATE_D:
        tr_addr(14, 128)
        for rr in range(2):
            if LATE_G and rr == 1: wait_vphase("L_f_vp")
            I(f"""
            s_lshl_b32 s46, s44, 15
            s_lshl_b32 s47, s40, 8
            s_add_u32 s46, s46, s47
            s_add_u32 s46, s46, {128*rr}
            v_lshrrev_b32 v10, 3, v1
            v_lshlrev_b32 v10, 10, v10
            v_and_b32 v11, 7, v1
            v_lshlrev_b32 v11, 4, v11
            v_add_u32 v10, v10, v11
            v_add_u32 v10, s46, v10
            v_mov_b32 v13, s21
            v_add_co_u32 v12, vcc, s20, v10
            v_addc_co_u32 v13, vcc, 0, v13, vcc
            """)
            for u in range(4): dma(12, u, 8 * 1024)
            tr_reads(14, D_OFFS, DB + 16 * rr)
    if LATE_G or LATE_D:
        I(f"""
        s_mov_b32 s64, s16
        s_and_b32 s65, s17, 0xffff
        s_mov_b32 s66, {512 * 2752}
        s_mov_b32 s67, 0x20000
        s_mov_b32 s68, s18
        s_and_b32 s69, s19, 0xffff
        s_mov_b32 s70, {512 * 2752}
        s_mov_b32 s71, 0x20000
        s_mov_b32 s72, s20
        s_and_b32 s73, s21, 0xffff
        s_mov_b32 s74, {1376 * 1024}
        s_mov_b32 s75, 0x20000
        v_lshrrev_b32 v44, 2, v1
        v_mul_u32_u24 v44, 2752, v44
        v_and_b32 v11, 3, v1
        v_lshlrev_b32 v11, 4, v11
        v_add_u32 v44, v44, v11
        v_lshrrev_b32 v45, 3, v1
        v_lshlrev_b32 v45, 10, v45
        v_and_b32 v11, 7, v1
        v_lshlrev_b32 v11, 4, v11
        v_add_u32 v45, v45, v11
        s_mul_i32 s55, s40, 24576
        s_mul_i32 s56, s40, {128 * 2752}
        s_lshl_b32 s57, s44, 6
        s_add_u32 s56, s56, s57
        s_lshl_b32 s57, s44, 15
        s_lshl_b32 s58, s40, 8
        s_add_u32 s57, s57, s58
        s_mov_b32 s41, s55
        """)
        tr_addr(46, 64)
        I("s_add_u32 s41, s55, 16384")
        tr_addr(47, 128)
    I(f"""
    v_and_b32 v10, 31, v1
    v_lshlrev_b32 v11, 3, v10
    s_lshl_b32 s46, s40, 8
    v_add_u32 v11, s46, v11
    global_load_dwordx2 v[6:7], v11, s[4:5]
    s_waitcnt vmcnt(0)
    """)
    stamp(12)
    wait_flags_and_go("L_f")
    nlate_d = 0
    if LATE_G:
        for ks in range(GE, 4):
            for u in range(4):
                I(f"s_add_u32 m0, s55, {ks * 4096 + u * 1024}")
                I(f"s_add_u32 s58, s56, {(32 * ks + 16 * (u & 1)) * 2752}")
                I(f"buffer_load_dwordx4 v44, s[{64 if u < 2 else 68}:{67 if u < 2 else 71}], s58 offen {SNT} lds")
    if LATE_D:
        for rr in range(2):
            for u in range(4):
                I(f"s_add_u32 m0, s55, {16384 + rr * 4096 + u * 1024}")
                I(f"s_add_u32 s58, s57, {rr * 128 + u * 8192}")
                I(f"buffer_load_dwordx4 v45, s[72:75], s58 offen {SNT} lds")
                nlate_d += 1
    I(f"""
    v_lshlrev_b32 v48, 16, v6
    v_and_b32 v49, s43, v6
    v_lshlrev_b32 v50, 16, v7
    v_and_b32 v51, s43, v7
    v_and_b32 v10, 31, v1
    v_lshlrev_b32 v14, 4, v10
    v_lshrrev_b32 v11, 5, v1
    v_lshlrev_b32 v11, 11, v11
    v_add_u32 v14, v14, v11
    s_lshl_b32 s46, s40, 9
    s_add_u32 s46, s46, {WS_Y}
    v_add_u32 v14, s46, v14
    v_add_u32 v15, 4096, v14
    v_add_u32 v2, 8192, v14
    v_add_u32 v3, 12288, v14
    s_lshl_b32 s47, s40, 3
    s_add_u32 s47, s47, {M['OALL']}
    v_mov_b32 v52, s47
    v_mov_b32 v53, {M['OALL']}
    s_lshl_b32 s47, s40, 8
    s_add_u32 s47, s47, {M['XN2']}
    v_lshlrev_b32 v54, 3, v10
    v_add_u32 v54, s47, v54
    v_lshlrev_b32 v55, 4, v8
    v_add_u32 v55, s47, v55
    s_lshl_b32 s47, s40, 6
    s_add_u32 s47, s47, {M['HH']}
    v_lshlrev_b32 v58, 1, v10
    v_add_u32 v58, s47, v58
    v_lshlrev_b32 v59, 4, v8
    v_add_u32 v59, s47, v59
    s_lshl_b32 s47, s44, 11
    s_lshl_b32 s46, s40, 9
    s_add_u32 s47, s47, s46
    s_add_u32 s47, s47, {WS_P}
    v_lshlrev_b32 v60, 2, v1
    v_add_u32 v60, s47, v60
    s_mov_b32 s60, 0xffff0000
    s_mov_b32 s61, 0xffff0000
    s_mov_b32 s62, 0
    s_mov_b32 s63, -1
    """)
    yp_addrs(56, 57)
    def late_tr(base, offs_list, dst):
        d = dst; n = 0
        for off in offs_list:
            I(f"ds_read_b64_tr_b16 v[{d}:{d+1}], v{base} offset:{off[0]}")
            I(f"ds_read_b64_tr_b16 v[{d+2}:{d+3}], v{base} offset:{off[1]}")
            d += 4; n += 2
            if n % 8 == 0: I("s_waitcnt lgkmcnt(0)")
    if LATE_G:
        I(f"s_waitcnt vmcnt({nlate_d})")
        late_tr(46, [(o[0] + ks * 4096, o[1] + ks * 4096) for ks in range(GE, 4) for o in GU_OFFS], WB + 16 * GE)
    if LATE_D:
        I("s_waitcnt vmcnt(0)")
        late_tr(47, [(o[0] + rr * 4096, o[1] + rr * 4096) for rr in range(2) for o in D_OFFS], DB)
    stamp(13)
    def f_issue(b):
        for i, ad in enumerate((14, 15, 2, 3)):
            I(f"global_load_dwordx4 v[{b+4*i}:{b+4*i+3}], v{ad}, s[26:27] sc1")
    def f_first(b):
        I(f"""
        v_pk_add_f32 v[4:5], v[{b}:{b+1}], v[{b+4}:{b+5}]
        v_pk_add_f32 v[6:7], v[{b+2}:{b+3}], v[{b+6}:{b+7}]
        v_pk_add_f32 v[10:11], v[{b+8}:{b+9}], v[{b+12}:{b+13}]
        v_pk_add_f32 v[12:13], v[{b+10}:{b+11}], v[{b+14}:{b+15}]
        v_pk_add_f32 v[4:5], v[4:5], v[10:11]
        v_pk_add_f32 v[6:7], v[6:7], v[12:13]
        """)
    poll2("L_f_poll", f_issue, 4, list(range(16, 32)), list(range(32, 48)), 61, f_first, 'F')
    stamp(14)
    I(f"""
    v_mov_b32 v160, v4
    v_mov_b32 v161, v5
    v_mov_b32 v162, v6
    v_mov_b32 v163, v7
    v_permlane32_swap_b32 v4, v160
    v_permlane32_swap_b32 v5, v161
    v_permlane32_swap_b32 v6, v162
    v_permlane32_swap_b32 v7, v163
    v_pk_add_f32 v[4:5], v[4:5], v[160:161]
    v_pk_add_f32 v[6:7], v[6:7], v[162:163]
    v_cvt_pk_bf16_f32 v160, v4, v5
    v_cvt_pk_bf16_f32 v161, v6, v7
    v_lshlrev_b32 v4, 16, v160
    v_and_b32 v5, s43, v160
    v_lshlrev_b32 v6, 16, v161
    v_and_b32 v7, s43, v161
    v_pk_add_f32 v[4:5], v[4:5], v[48:49]
    v_pk_add_f32 v[6:7], v[6:7], v[50:51]
    v_cvt_pk_bf16_f32 v160, v4, v5
    v_cvt_pk_bf16_f32 v161, v6, v7
    v_lshlrev_b32 v4, 16, v160
    v_and_b32 v5, s43, v160
    v_lshlrev_b32 v6, 16, v161
    v_and_b32 v7, s43, v161
    v_add_f32 v8, v4, v5
    v_mul_f32 v9, v4, v4
    v_add_f32 v10, v6, v7
    v_fmac_f32 v9, v5, v5
    v_add_f32 v8, v8, v10
    v_fmac_f32 v9, v6, v6
    v_fmac_f32 v9, v7, v7
    """)
    for r in (8, 4, 2, 1):
        I(f"v_add_f32_dpp v8, v8, v8 row_ror:{r} row_mask:0xf bank_mask:0xf")
        I(f"v_add_f32_dpp v9, v9, v9 row_ror:{r} row_mask:0xf bank_mask:0xf")
    I(f"""
    v_mov_b32 v10, v8
    v_mov_b32 v11, v9
    s_nop 0
    v_permlane16_swap_b32 v8, v10
    v_permlane16_swap_b32 v9, v11
    v_add_f32 v8, v8, v10
    v_add_f32 v9, v9, v11
    ds_write_b64 v52, v[8:9]
    s_waitcnt lgkmcnt(0)
    s_barrier
    ds_read_b128 v[8:11], v53
    ds_read_b128 v[12:15], v53 offset:16
    s_waitcnt lgkmcnt(0)
    v_pk_add_f32 v[8:9], v[8:9], v[10:11]
    v_pk_add_f32 v[12:13], v[12:13], v[14:15]
    v_pk_add_f32 v[8:9], v[8:9], v[12:13]
    v_mul_f32 v8, 0x3b000000, v8
    v_mul_f32 v9, 0x3b000000, v9
    v_cvt_pk_bf16_f32 v10, v8, v8
    v_fma_f32 v9, -v8, v8, v9
    v_and_b32 v10, s43, v10
    v_max_f32 v9, 0, v9
    v_cvt_pk_bf16_f32 v9, v9, v9
    v_sub_f32 v4, v4, v10
    v_and_b32 v9, s43, v9
    v_sub_f32 v5, v5, v10
    v_add_f32 v9, {hex(EPS)}, v9
    v_sub_f32 v6, v6, v10
    v_cvt_pk_bf16_f32 v9, v9, v9
    v_sub_f32 v7, v7, v10
    v_and_b32 v9, s43, v9
    v_cvt_pk_bf16_f32 v160, v4, v5
    v_sqrt_f32 v9, v9
    v_cvt_pk_bf16_f32 v161, v6, v7
    v_lshlrev_b32 v4, 16, v160
    v_cvt_pk_bf16_f32 v9, v9, v9
    v_and_b32 v5, s43, v160
    v_and_b32 v12, s43, v9
    v_lshlrev_b32 v6, 16, v161
    v_rcp_f32 v12, v12
    v_and_b32 v7, s43, v161
    v_pk_mul_f32 v[4:5], v[4:5], v[12:13] op_sel_hi:[1,0]
    v_pk_mul_f32 v[6:7], v[6:7], v[12:13] op_sel_hi:[1,0]
    v_cvt_pk_bf16_f32 v160, v4, v5
    v_cvt_pk_bf16_f32 v161, v6, v7
    ds_write_b64 v54, v[160:161]
    s_waitcnt vmcnt(0) lgkmcnt(0)
    """)
    gemv_kslice(55, WB, 32, 16)
    part_to_lds(32, 56, 57)
    I(f"""
    v_cvt_pk_bf16_f32 v12, v12, v12
    v_and_b32 v12, s43, v12
    v_mov_b32 v13, v12
    v_permlane32_swap_b32 v12, v13
    v_mul_f32 v12, v12, v13
    v_cvt_pk_bf16_f32 v12, v12, v12
    ds_write_b16 v58, v12
    s_waitcnt lgkmcnt(0)
    ds_read_b128 v[16:19], v59
    s_waitcnt lgkmcnt(0)
    """)
    for nb in range(8):
        I(f"v_mfma_f32_16x16x32_bf16 v[{20+4*nb}:{23+4*nb}], v[16:19], v[{DB+4*nb}:{DB+4*nb+3}], 0")
    for j in range(2):
        b = 20 + 16 * j
        I(f"v_cndmask_b32 v{12+2*j}, v{b}, v{b+4}, s[60:61]")
        I(f"v_cndmask_b32 v{13+2*j}, v{b+8}, v{b+12}, s[60:61]")
        I(f"v_cndmask_b32 v{12+2*j}, v{12+2*j}, v{13+2*j}, s[62:63]")
        I(f"global_store_dword v60, v{12+2*j}, s[26:27] offset:{256*j} sc1")
    stamp(15)
    flush_stamps()
    I("s_endpgm")

    def resid(xr, out):
        I(f"""
        v_cvt_pk_bf16_f32 v16, v16, v17
        v_cvt_pk_bf16_f32 v17, v18, v19
        v_lshlrev_b32 v20, 16, v16
        v_and_b32 v21, s43, v16
        v_lshlrev_b32 v22, 16, v17
        v_and_b32 v23, s43, v17
        v_lshlrev_b32 v24, 16, v{xr}
        v_and_b32 v25, s43, v{xr}
        v_lshlrev_b32 v26, 16, v{xr+1}
        v_and_b32 v27, s43, v{xr+1}
        v_pk_add_f32 v[20:21], v[20:21], v[24:25]
        v_pk_add_f32 v[22:23], v[22:23], v[26:27]
        v_cvt_pk_bf16_f32 v{out}, v20, v21
        v_cvt_pk_bf16_f32 v{out+1}, v22, v23
        """)
    a.label("L_t_o")
    I(f"""
    v_and_b32 v10, 7, v1
    v_lshlrev_b32 v11, 3, v10
    s_lshl_b32 s46, s44, 6
    v_add_u32 v11, s46, v11
    global_load_dwordx2 v[6:7], v11, s[4:5]
    v_mov_b32 v3, v11
    v_lshlrev_b32 v14, 4, v10
    v_lshrrev_b32 v12, 3, v1
    v_lshlrev_b32 v12, 11, v12
    v_add_u32 v14, v14, v12
    s_lshl_b32 s46, s44, 7
    v_add_u32 v14, s46, v14
    v_add_u32 v15, {WS_Y}, v14
    s_add_u32 s32, s26, {WS_P}
    s_addc_u32 s33, s27, 0
    s_and_b32 s33, s33, 0xffff
    s_mov_b32 s34, {NF * 2048}
    s_mov_b32 s35, 0x20000
    v_mov_b32 v4, {M['QREADY']}
    s_waitcnt vmcnt(0)
    """)
    if P['touch_out']:
        I("""
        v_mov_b32 v16, 0
        v_mov_b32 v17, 0
        s_mov_b64 exec, 0xff
        global_store_dwordx2 v3, v[16:17], s[22:23]
        s_mov_b64 exec, -1
        """)
    lds_wait("L_o_qw", 4, 5, 8)
    wait_flags_and_go("L_o")
    stamp(16)
    def red_r8(base, tmp):
        for c in range(4): I(f"v_add_f32_dpp v{base+c}, v{base+c}, v{base+c} row_ror:8 row_mask:0xf bank_mask:0xf")
        for c in range(4): I(f"v_mov_b32 v{tmp+c}, v{base+c}")
        for c in range(4): I(f"v_permlane16_swap_b32 v{base+c}, v{tmp+c}")
        for c in range(4): I(f"v_add_f32 v{base+c}, v{base+c}, v{tmp+c}")
        for c in range(4): I(f"v_mov_b32 v{tmp+c}, v{base+c}")
        for c in range(4): I(f"v_permlane32_swap_b32 v{base+c}, v{tmp+c}")
        for c in range(4): I(f"v_add_f32 v{base+c}, v{base+c}, v{tmp+c}")
    I("v_mov_b32 v70, v3")
    def oy_issue(b): I(f"global_load_dwordx4 v[{b}:{b+3}], v15, s[26:27] sc1")
    def oy_first(b):
        for c in range(4): I(f"v_mov_b32 v{72+c}, v{b+c}")
    poll2("L_o_polly", oy_issue, 1, list(range(16, 20)), list(range(24, 28)), 28, oy_first, 'y')
    red_r8(72, 76)
    I(f"""
    v_cvt_pk_bf16_f32 v72, v72, v73
    v_cvt_pk_bf16_f32 v73, v74, v75
    v_lshlrev_b32 v76, 16, v72
    v_and_b32 v77, s43, v72
    v_lshlrev_b32 v78, 16, v73
    v_and_b32 v79, s43, v73
    v_lshlrev_b32 v80, 16, v6
    v_and_b32 v81, s43, v6
    v_lshlrev_b32 v82, 16, v7
    v_and_b32 v83, s43, v7
    v_pk_add_f32 v[76:77], v[76:77], v[80:81]
    v_pk_add_f32 v[78:79], v[78:79], v[82:83]
    v_cvt_pk_bf16_f32 v72, v76, v77
    v_cvt_pk_bf16_f32 v73, v78, v79
    v_lshlrev_b32 v66, 16, v72
    v_and_b32 v67, s43, v72
    v_lshlrev_b32 v68, 16, v73
    v_and_b32 v69, s43, v73
    s_waitcnt vmcnt(0)
    """)
    stamp(17)
    def op_issue(b):
        for u in range(6):
            I(f"s_mov_b32 s46, {u * 8 * 2048}")
            I(f"buffer_load_dwordx4 v[{b+4*u}:{b+4*u+3}], v14, s[32:35], s46 offen sc1")
    def op_first(b):
        I(f"""
        v_pk_add_f32 v[72:73], v[{b}:{b+1}], v[{b+4}:{b+5}]
        v_pk_add_f32 v[74:75], v[{b+2}:{b+3}], v[{b+6}:{b+7}]
        v_pk_add_f32 v[76:77], v[{b+8}:{b+9}], v[{b+12}:{b+13}]
        v_pk_add_f32 v[78:79], v[{b+10}:{b+11}], v[{b+14}:{b+15}]
        v_pk_add_f32 v[80:81], v[{b+16}:{b+17}], v[{b+20}:{b+21}]
        v_pk_add_f32 v[82:83], v[{b+18}:{b+19}], v[{b+22}:{b+23}]
        v_pk_add_f32 v[72:73], v[72:73], v[76:77]
        v_pk_add_f32 v[74:75], v[74:75], v[78:79]
        v_pk_add_f32 v[72:73], v[72:73], v[80:81]
        v_pk_add_f32 v[74:75], v[74:75], v[82:83]
        """)
    poll2("L_o_pollp", op_issue, 6, list(range(16, 40)), list(range(40, 64)), 71, op_first, 'O')
    stamp(18)
    red_r8(72, 76)
    I(f"""
    v_cvt_pk_bf16_f32 v72, v72, v73
    v_cvt_pk_bf16_f32 v73, v74, v75
    v_lshlrev_b32 v76, 16, v72
    v_and_b32 v77, s43, v72
    v_lshlrev_b32 v78, 16, v73
    v_and_b32 v79, s43, v73
    v_pk_add_f32 v[76:77], v[76:77], v[66:67]
    v_pk_add_f32 v[78:79], v[78:79], v[68:69]
    v_cvt_pk_bf16_f32 v72, v76, v77
    v_cvt_pk_bf16_f32 v73, v78, v79
    s_mov_b64 exec, 0xff
    global_store_dwordx2 v70, v[72:73], s[22:23] {P['out_sc']}
    s_mov_b64 exec, -1
    """)
    stamp(19)
    flush_stamps()
    a.label("L_end")
    I("s_endpgm")
    a.raw('.section .rodata,"a"')
    a.raw(".p2align 6")
    a.raw(f".amdhsa_kernel {KN}_kernel")
    a.raw("  .amdhsa_next_free_vgpr 168")
    a.raw("  .amdhsa_next_free_sgpr 96")
    a.raw("  .amdhsa_accum_offset 168")
    a.raw("  .amdhsa_group_segment_fixed_size 0")
    a.raw("  .amdhsa_kernarg_size 96")
    a.raw("  .amdhsa_user_sgpr_count 2")
    a.raw("  .amdhsa_user_sgpr_kernarg_segment_ptr 1")
    a.raw("  .amdhsa_system_sgpr_workgroup_id_x 1")
    a.raw(".end_amdhsa_kernel")
    return a.text()

if __name__ == "__main__":
    out = sys.argv[1]
    kw = json.loads(sys.argv[2]) if len(sys.argv) > 2 else {}
    open(out, "w").write(gen(**kw))
    print("wrote", out)
```

```python
import sys, json
from asmlib import Asm

KN = "sequential_preLN__gqa_block_cached__glu_gated_bilinear__decode"

DEF = dict(D=18, R=8, S=112, C=2, stamps=False, dump=False, nt="nt", sleep_c=1, sleep_t=1, prio=True,
           skip_stage=False, skip_role="", f_late="gd", g_early=1, w_late=2, w_split=False, peel=False, pre=True, segs=None, stage_nt="nt", qsleep=2, q_nt="nt", knt=None, vnt=None, tag_sc1=True, budget=0x40000, map="rot", out_sc="", aligned=True, stag=5, dbl="", wsleep=0, fsleep=0, osleep=0, cprio=0, tprio=0, qdelay=0, De=None, Te=8, stage_at="ready", rolemap="bal", w_at_start=False, Dd=24, qst=False, vtouch=True, ptouch=False, touch_out=False, hoist=True)

def lds_map(R, S):
    ring = R * 16384
    m = {}
    m['RING'] = 0
    m['STAGE'] = ring
    f = ring + 16384
    m['FILLED'] = f
    m['QPUB'] = f + 60
    m['PCNT'] = f + 12
    m['NEXT'] = f + 16
    m['FINCNT'] = f + 32
    m['CLEARED'] = f + 36
    m['TAILGO'] = f + 40
    m['QREADY'] = f + 44
    m['NONCE'] = f + 48
    m['KALL'] = f + 56
    m['TID'] = f + 128
    m['PMAX'] = f + 64
    m['XXT'] = f + 256
    m['FINO'] = m['XXT']
    m['QB'] = m['XXT'] + 2048
    m['FINML'] = m['QB'] + 256
    m['OALL'] = m['FINML'] + 64
    m['XN2'] = m['OALL'] + 1024
    m['HH'] = m['XN2'] + 1024
    m['YP'] = m['HH'] + 256
    m['SC'] = m['YP'] + 1024
    m['SCF'] = m['SC'] + S * 64
    m['END'] = m['SCF'] + 2 * R * 64
    return m

WS_PO = 0x0
PREC = 640
WS_Y = 0x29000
WS_P = 0x30000
WS_QX = 0x48000
WS_TK = 0x88000
WS_CLR = 0x8C000
WS_KD = 0x90000
WS_SCX = 0x100000
WS_STAMP = 0x20000000
NF = 43

LOG2E = 0x3fb8aa3b
SCALE = 0x3db504f3
EPS = 0x3727c5ac

def gen(**kw):
    P = dict(DEF); P.update(kw)
    D = P['D']; R = P['R']; NT = P['nt']; S = P['S']; NP = 128 - S
    M = lds_map(R, S)
    ldsz = (M['END'] + 255) // 256 * 256
    assert ldsz <= 163840, ldsz
    a = Asm(); I = a.I
    stamps = P['stamps']

    def spin():
        I("s_sub_u32 s89, s89, 1")
        I("s_cbranch_scc1 L_end")

    pend = []
    def stamp(slot):
        if not stamps: return
        k = len(pend); assert k < 6
        pend.append(slot)
        I(f"s_memrealtime s[{76+2*k}:{77+2*k}]")
    def flush_stamps(keep=0):
        if not stamps: return
        I("s_waitcnt lgkmcnt(0)")
        I("s_lshl_b32 s92, s2, 8")
        I(f"s_add_u32 s92, s92, {WS_STAMP}")
        I("s_add_u32 s92, s26, s92")
        I("s_addc_u32 s93, s27, 0")
        I("v_mov_b32 v166, 0")
        I("s_mov_b64 s[94:95], exec")
        I("s_mov_b64 exec, 1")
        for k, slot in enumerate(pend):
            I(f"v_mov_b32 v164, s{76+2*k}")
            I(f"v_mov_b32 v165, s{77+2*k}")
            I(f"global_store_dwordx2 v166, v[164:165], s[92:93] offset:{8*slot}")
        I("s_mov_b64 exec, s[94:95]")
        del pend[keep:]

    def lds_wait(lbl, addr_reg, tmp, sleep):
        a.label(lbl)
        spin()
        I(f"ds_read_b32 v{tmp}, v{addr_reg}")
        I("s_waitcnt lgkmcnt(0)")
        I(f"v_readfirstlane_b32 s42, v{tmp}")
        I("s_cmp_lg_u32 s42, 0")
        I(f"s_cbranch_scc1 {lbl}_ok")
        I(f"s_sleep {sleep}")
        I(f"s_branch {lbl}")
        a.label(f"{lbl}_ok")

    a.raw(f"; @launch grid=(256,1,1) block=(576,1,1) lds={ldsz}")
    for ln in """
Fused single-launch decode layer: h = x + Attn(LN(x)) ; out = h + Wd((LN(h) Wg) * (LN(h) Wu)).  One workgroup per CU, 9 waves.
Workgroup id -> head = id>>3, member = (id + head) & 7 : the 8 members of a head split its 32768 keys into tiles of 32 keys.
  wave 0      streams first the K tiles, then the V tiles HBM -> LDS ring (LDS-DMA, a fixed window of loads in flight); the whole
              chip reads one tensor at a time. Most tiles are assigned statically; the last 8 tiles of every member's range form a
              per-head pool that is handed out tile by tile through atomic tickets, once for K and once for V (load balance).
  waves 1-4   K phase: QK^T with MFMA, scores rounded to bf16 as the reference does; kept in LDS (own tiles) or published in d_ws
              (pool tiles). V phase: softmax against the true maximum (running maximum for pool tiles), PV with MFMA.
              Wave 1 first computes the workgroup's share of q = LN(x) Wq (64 of the 512 rows); the members exchange the shares.
  waves 5-8   fetch their slice of Wo / Wg,Wu,Wd into registers (part of it while the stream runs, part of it right after it, when HBM
              is idle), then run the tail:
              W (64 workgroups): combine the 32 partials of 4 heads, times a 512x64 tile of Wo ;
              F (43 workgroups): h, LayerNorm, 32 gate/up columns, their 32 rows of Wd ;  O (16 workgroups): sum, residual, store.
Hand-offs between workgroups go through d_ws with write-through (sc1) stores and sc1 polling loads. Words are either reset to all-ones by
their producer early in the launch (and validated word by word), or carry the launch tag that workgroup 0 puts into d_debug at its start.
Every polling loop is bounded.""".strip().split("\n"):
        a.raw("; " + ln)
    a.raw('.amdgcn_target "amdgcn-amd-amdhsa--gfx950"')
    a.raw(".text")
    a.raw(f".globl {KN}_kernel")
    a.raw(".p2align 8")
    a.raw(f".type {KN}_kernel,@function")
    a.raw(f"{KN}_kernel:")
    I("s_cmp_ge_u32 s2, 256")
    I("s_cbranch_scc1 L_end")
    I("s_load_dwordx16 s[4:19], s[0:1], 0")
    I("s_load_dwordx8 s[20:27], s[0:1], 64")
    I("v_lshrrev_b32 v2, 6, v0")
    I("v_and_b32 v1, 63, v0")
    I("v_readfirstlane_b32 s28, v2")
    if P['map'] == "rot":
        I("s_lshr_b32 s29, s2, 3")
        I("s_add_u32 s30, s2, s29")
        I("s_and_b32 s30, s30, 7")
    elif P['map'] == "div":
        I("s_lshr_b32 s29, s2, 3")
        I("s_and_b32 s30, s2, 7")
    else:
        I("s_and_b32 s29, s2, 31")
        I("s_lshr_b32 s30, s2, 5")
    I("s_lshl_b32 s3, s29, 3")
    I("s_add_u32 s3, s3, s30")
    if P['map'] == "rot":
        I("s_mov_b32 s31, s30")
    else:
        I("s_sub_u32 s31, s30, s29")
        I("s_and_b32 s31, s31, 7")
    I(f"s_mov_b32 s89, {P['budget']}")
    I("s_waitcnt lgkmcnt(0)")
    I("s_cmp_eq_u32 s28, 0")
    I("s_cbranch_scc1 L_loader")
    I("s_cmp_lt_u32 s28, 5")
    I("s_cbranch_scc1 L_consumer")
    I("s_branch L_tail")

    a.label("L_loader")
    if P['prio']: I("s_setprio 3")
    stamp(0)
    I(f"""
    s_mov_b32 s32, s6
    s_and_b32 s33, s7, 0xffff
    s_mov_b32 s34, 0x10000000
    s_mov_b32 s35, 0x20000
    s_mov_b32 s36, s8
    s_and_b32 s37, s9, 0xffff
    s_mov_b32 s38, 0x10000000
    s_mov_b32 s39, 0x20000
    s_lshl_b32 s44, s29, 23
    v_lshrrev_b32 v8, 4, v1
    v_and_b32 v9, 15, v1
    v_lshlrev_b32 v10, 8, v8
    v_add_u32 v10, s44, v10
    """)
    for tt in range(4):
        I(f"v_add_u32 v11, {4*tt}, v8")
        I("v_xor_b32 v11, v11, v9")
        I("v_lshlrev_b32 v11, 4, v11")
        I(f"v_add_u32 v{2+tt}, v10, v11")
    for tp in range(2):
        I(f"v_add_u32 v11, {4*tp}, v8")
        I("v_lshlrev_b32 v11, 1, v11")
        I("v_xor_b32 v11, v11, v9")
        I("v_lshlrev_b32 v11, 4, v11")
        I(f"v_add_u32 v{6+tp}, v10, v11")
    RS = 2 * R
    Dd = P['Dd'] or D
    Dp = max(D, Dd)
    u0 = (Dp - 1) % 8
    cnt0 = (u0 - Dp + 1) // 8 - 1
    I(f"""
    s_mul_i32 s46, s30, {128 * 8192}
    s_mov_b32 s48, 0
    s_mov_b32 s49, {cnt0}
    s_mov_b32 s50, 0
    v_mov_b32 v12, {M['FILLED']}
    v_mov_b32 v13, {M['NEXT']}
    """)
    KNT = NT if P['knt'] is None else P['knt']
    VNT = NT if P['vnt'] is None else P['vnt']
    def loads_of_tile(isv, first, Dw=None):
        Dw = Dw or D
        for u in range(8):
            if u % 4 == 0:
                I(f"s_add_u32 m0, s48, {(u // 4) * 4096}")
            I(f"s_waitcnt vmcnt({Dw-1})")
            if u == u0:
                I("s_add_u32 s49, s49, 1")
                I("v_mov_b32 v14, s49")
                if not first:
                    I("ds_write_b32 v12, v14")
            so = "s46" if u < 4 else "s47"
            if isv: I(f"buffer_load_dwordx4 v{6 + (u & 1)}, s[36:39], {so} offen offset:{(u % 4) * 1024} {VNT} lds")
            else:   I(f"buffer_load_dwordx4 v{2 + (u & 3)}, s[32:35], {so} offen offset:{(u % 4) * 1024} {KNT} lds")
    assert 16 <= D and Dp <= 24
    if P['vtouch']:
        I("buffer_load_dword v31, v6, s[36:39], s46 offen nt")
    I("s_add_u32 s47, s46, 4096")
    loads_of_tile(False, True)
    I("""
    s_add_u32 s50, s50, 1
    s_add_u32 s46, s46, 8192
    s_add_u32 s47, s46, 4096
    s_add_u32 s48, s48, 8192
    """)
    loads_of_tile(False, True)
    I(f"""
    v_mov_b32 v16, 0
    v_mov_b32 v17, 1
    v_mov_b32 v18, 2
    v_mov_b32 v19, 3
    v_mov_b32 v20, 0
    v_mov_b32 v21, 0
    v_mov_b32 v22, 0
    v_mov_b32 v23, 0
    v_mov_b32 v14, s49
    v_mov_b32 v15, 0x7fffffff
    ds_write_b64 v12, v[14:15]
    v_mov_b32 v24, 0x7fffffff
    v_mov_b32 v25, 0
    ds_write_b64 v12, v[24:25] offset:8
    ds_write_b128 v13, v[16:19]
    ds_write_b128 v13, v[20:23] offset:16
    ds_write_b128 v13, v[20:23] offset:32
    s_waitcnt lgkmcnt(0)
    s_barrier
    """)
    I("ds_read_b128 v[16:19], v13")
    lab = [0]
    def next_tile(isv, advance, Dw=None, extra=None):
        k = lab[0]; lab[0] += 1
        I("s_add_u32 s50, s50, 1")
        if advance: I("s_add_u32 s46, s46, 8192")
        I(f"""
        s_add_u32 s47, s46, 4096
        s_add_u32 s48, s48, 8192
        s_cmp_ge_u32 s48, {RS*8192}
        s_cselect_b32 s48, 0, s48
        s_sub_u32 s52, s50, {RS-1}
        """)
        a.label(f"L_ld_free{k}")
        spin()
        I(f"""
        s_waitcnt lgkmcnt(0)
        v_min3_u32 v20, v16, v17, v18
        v_min_u32 v20, v20, v19
        v_readfirstlane_b32 s51, v20
        ds_read_b128 v[16:19], v13
        s_cmp_ge_i32 s51, s52
        s_cbranch_scc0 L_ld_free{k}
        """)
        if extra == "tid":
            I(f"""
            s_lshr_b32 s53, s48, 11
            s_add_u32 s53, s53, {M['TID']}
            v_mov_b32 v21, s53
            v_mov_b32 v22, s59
            ds_write_b32 v21, v22
            """)
        if extra == "scores":
            I(f"""
            s_lshr_b32 s53, s48, 7
            s_add_u32 m0, s53, {M['SCF']}
            s_lshl_b32 s59, s59, 6
            s_mov_b64 exec, 0xffff
            buffer_load_dword v28, s[40:43], s59 offen sc1 lds
            s_mov_b64 exec, -1
            """)
        loads_of_tile(isv, False, Dw)
    LA = 3
    assert 9 * LA - 1 >= Dp
    assert Dp - u0 <= 21
    NPOOL = 8 * NP
    nst = [0]
    def tstamp():
        if stamps and nst[0] < 7:
            I(f"s_memrealtime s[{60+2*nst[0]}:{61+2*nst[0]}]"); nst[0] += 1
    def ticket(reg):
        I("s_mov_b64 exec, 1")
        I(f"global_atomic_add v{reg}, v25, v26, s[26:27] sc0 sc1")
        I("s_mov_b64 exec, -1")
    def decode(reg, over):
        I(f"""
        v_readfirstlane_b32 s53, v{reg}
        s_and_b32 s55, s53, 7
        s_lshr_b32 s57, s53, 3
        s_lshl_b32 s46, s55, 7
        s_add_u32 s46, s46, s57
        s_add_u32 s46, s46, {S}
        s_lshl_b32 s46, s46, 13
        s_cmp_lt_u32 s53, {NPOOL}
        s_cbranch_scc0 {over}
        s_mov_b32 s59, s53
        """)
    TR = (24, 27, 29)
    nstatic = S - LA
    bounds = ([b for b in (P['segs'] or [16, 32, 64]) if b < nstatic] if stamps else []) + [nstatic]
    for sg, b in enumerate(bounds):
        a.label(f"L_ld_tile{sg}")
        next_tile(False, True)
        I(f"s_cmp_lt_u32 s50, {b - 1}")
        I(f"s_cbranch_scc1 L_ld_tile{sg}")
        if sg < len(bounds) - 1: tstamp()
    I(f"""
    s_lshl_b32 s53, s29, 8
    s_add_u32 s53, s53, {WS_TK}
    v_mov_b32 v25, s53
    v_mov_b32 v26, 1
    """)
    for reg in TR:
        ticket(reg)
        next_tile(False, True, Dd)
    a.label("L_ld_kdyn")
    for reg in TR:
        decode(reg, "L_ld_kover")
        ticket(reg)
        next_tile(False, False, Dd, extra="tid")
    I("s_branch L_ld_kdyn")
    a.label("L_ld_kover")
    tstamp()
    I(f"""
    s_add_u32 s56, s50, 1
    v_mov_b32 v14, s56
    ds_write_b32 v12, v14 offset:4
    s_mul_i32 s46, s30, {128 * 8192}
    s_sub_u32 s46, s46, 8192
    s_add_u32 s58, s56, {S - LA - 1}
    """)
    a.label("L_ld_v")
    next_tile(True, True)
    I("s_cmp_lt_u32 s50, s58")
    I("s_cbranch_scc1 L_ld_v")
    tstamp()
    I(f"""
    v_add_u32 v25, 128, v25
    s_mul_i32 s53, s29, {NPOOL * 64}
    s_add_u32 s53, s53, {WS_SCX}
    s_add_u32 s40, s26, s53
    s_addc_u32 s41, s27, 0
    s_and_b32 s41, s41, 0xffff
    s_mov_b32 s42, {NPOOL * 64}
    s_mov_b32 s43, 0x20000
    v_lshlrev_b32 v28, 2, v1
    v_mov_b32 v30, {M['KALL']}
    """)
    for reg in TR:
        ticket(reg)
        next_tile(True, True, Dd)
    a.label("L_ld_kall")
    spin()
    I("""
    ds_read_b32 v31, v30
    s_waitcnt lgkmcnt(0)
    v_readfirstlane_b32 s53, v31
    s_cmp_lg_u32 s53, 0
    s_cbranch_scc0 L_ld_kall
    ds_read_b128 v[16:19], v13
    """)
    a.label("L_ld_vdyn")
    for reg in TR:
        decode(reg, "L_ld_pover")
        ticket(reg)
        next_tile(True, False, Dd, extra="scores")
    I("s_branch L_ld_vdyn")
    a.label("L_ld_pover")
    I("""
    s_add_u32 s56, s50, 1
    v_mov_b32 v14, s56
    ds_write_b32 v12, v14 offset:8
    """)
    a.label("L_ld_over")
    rem = 8 - u0 + Dp - 1
    while rem > 0:
        rem -= 8
        I(f"s_waitcnt vmcnt({rem})")
        I("s_add_u32 s49, s49, 1")
        I("v_mov_b32 v14, s49")
        I("ds_write_b32 v12, v14")
    assert rem == 0
    I("s_waitcnt lgkmcnt(0)")
    stamp(1)
    flush_stamps()
    if stamps:
        I("s_lshl_b32 s92, s2, 8")
        I(f"s_add_u32 s92, s92, {WS_STAMP + 20 * 8}")
        I("s_add_u32 s92, s26, s92")
        I("s_addc_u32 s93, s27, 0")
        I("v_mov_b32 v166, 0")
        I("s_mov_b64 exec, 1")
        for k in range(7):
            I(f"v_mov_b32 v164, s{60+2*k}")
            I(f"v_mov_b32 v165, s{61+2*k}")
            I(f"global_store_dwordx2 v166, v[164:165], s[92:93] offset:{8*k}")
        I("v_mov_b32 v164, s56")
        I("v_mov_b32 v165, 0")
        I(f"global_store_dwordx2 v166, v[164:165], s[92:93] offset:{8*7}")
    I("s_endpgm")

    def wave_sum(v, t):
        for r in (8, 4, 2, 1):
            I(f"v_add_f32_dpp v{v}, v{v}, v{v} row_ror:{r} row_mask:0xf bank_mask:0xf")
        I(f"v_mov_b32 v{t}, v{v}")
        I(f"v_permlane16_swap_b32 v{v}, v{t}")
        I(f"v_add_f32 v{v}, v{v}, v{t}")
        I(f"v_mov_b32 v{t}, v{v}")
        I(f"v_permlane32_swap_b32 v{v}, v{t}")
        I(f"v_add_f32 v{v}, v{v}, v{t}")
    def unpack8(src, dst):
        for j in range(4):
            I(f"v_lshlrev_b32 v{dst+2*j}, 16, v{src+j}")
            I(f"v_and_b32 v{dst+2*j+1}, s43, v{src+j}")
    def layernorm8(x, tmp):
        s, t, mb, den = tmp, tmp+1, tmp+2, tmp+3
        I(f"v_add_f32 v{s}, v{x}, v{x+1}")
        for j in range(2, 8): I(f"v_add_f32 v{s}, v{s}, v{x+j}")
        wave_sum(s, t)
        I(f"v_mul_f32 v{s}, 0x3b000000, v{s}")
        I(f"v_cvt_pk_bf16_f32 v{mb}, v{s}, v{s}")
        I(f"v_and_b32 v{mb}, s43, v{mb}")
        I(f"v_sub_f32 v{t}, v{x}, v{s}")
        I(f"v_mul_f32 v{den}, v{t}, v{t}")
        for j in range(1, 8):
            I(f"v_sub_f32 v{t}, v{x+j}, v{s}")
            I(f"v_fmac_f32 v{den}, v{t}, v{t}")
        wave_sum(den, t)
        I(f"v_mul_f32 v{den}, 0x3b000000, v{den}")
        I(f"v_cvt_pk_bf16_f32 v{den}, v{den}, v{den}")
        I(f"v_and_b32 v{den}, s43, v{den}")
        I(f"v_add_f32 v{den}, {hex(EPS)}, v{den}")
        I(f"v_cvt_pk_bf16_f32 v{den}, v{den}, v{den}")
        I(f"v_and_b32 v{den}, s43, v{den}")
        I(f"v_sqrt_f32 v{den}, v{den}")
        I(f"v_cvt_pk_bf16_f32 v{den}, v{den}, v{den}")
        I(f"v_and_b32 v{den}, s43, v{den}")
        I(f"v_rcp_f32 v{den}, v{den}")
        for j in range(0, 8, 2):
            I(f"v_sub_f32 v{x+j}, v{x+j}, v{mb}")
            I(f"v_sub_f32 v{x+j+1}, v{x+j+1}, v{mb}")
            I(f"v_cvt_pk_bf16_f32 v{t}, v{x+j}, v{x+j+1}")
            I(f"v_lshlrev_b32 v{x+j}, 16, v{t}")
            I(f"v_and_b32 v{x+j+1}, s43, v{t}")
            I(f"v_mul_f32 v{x+j}, v{x+j}, v{den}")
            I(f"v_mul_f32 v{x+j+1}, v{x+j+1}, v{den}")

    a.label("L_consumer")
    if P['cprio']: I(f"s_setprio {P['cprio']}")
    I("s_sub_u32 s40, s28, 1")
    I("s_mov_b32 s43, 0xffff0000")
    I("v_lshrrev_b32 v8, 4, v1")
    I("v_and_b32 v9, 15, v1")
    I("s_cmp_eq_u32 s40, 0")
    I("s_cbranch_scc1 L_c_q")
    I("s_barrier")
    I("s_branch L_c_qwait")
    a.label("L_c_q")
    I("""
    s_cmp_eq_u32 s2, 0
    s_cbranch_scc0 L_q_notag
    s_memrealtime s[56:57]
    s_waitcnt lgkmcnt(0)
    s_or_b32 s56, s56, 1
    s_or_b32 s57, s57, 0x40000000
    s_and_b32 s57, s57, 0x7fffffff
    v_mov_b32 v34, s56
    v_mov_b32 v35, s57
    v_mov_b32 v2, 0
    s_mov_b64 exec, 1
    global_store_dwordx2 v2, v[34:35], s[24:25] sc1
    s_mov_b64 exec, -1
    """)
    a.label("L_q_notag")
    I(f"""
    v_mov_b32 v2, 0
    global_load_dwordx2 v[34:35], v2, s[24:25] {"sc1" if P['tag_sc1'] else ""}
    s_mov_b32 s32, s10
    s_and_b32 s33, s11, 0xffff
    s_mov_b32 s34, 0x400000
    s_mov_b32 s35, 0x20000
    v_lshlrev_b32 v2, 4, v1
    global_load_dwordx4 v[30:33], v2, s[4:5]
    s_lshl_b32 s41, s30, 6
    v_add_u32 v3, s41, v8
    v_lshlrev_b32 v3, 13, v3
    v_lshlrev_b32 v4, 4, v9
    v_add_u32 v3, v3, v4
    s_lshl_b32 s41, s29, 8
    v_add_u32 v3, s41, v3
    """)
    for t in range(16):
        I(f"s_mov_b32 s42, {t * 32768}")
        I(f"buffer_load_dwordx4 v[{40+4*t}:{43+4*t}], v3, s[32:35], s42 offen {P['q_nt']}")
    if P['qst']: stamp(28)
    I("s_barrier")
    I("s_waitcnt vmcnt(16)")
    if P['qst']: stamp(29)
    unpack8(30, 10)
    layernorm8(10, 4)
    for e in range(8):
        I(f"v_cvt_pk_bf16_f32 v{18+e}, v{10+e}, v{10+e}")
    I(f"""
    v_lshrrev_b32 v4, 3, v1
    v_lshlrev_b32 v4, 8, v4
    v_and_b32 v5, 7, v1
    v_lshlrev_b32 v5, 3, v5
    v_add_u32 v4, v4, v5
    v_add_u32 v4, {M['XXT']}, v4
    """)
    for g in range(4):
        I(f"v_mov_b32 v26, v{18+g}")
        I(f"v_mov_b32 v27, v{18+g+4}")
        I(f"ds_write_b64 v4, v[26:27] offset:{g*64}")
    I(f"""
    v_and_b32 v5, 1, v9
    v_mov_b32 v6, 0xffff
    v_mov_b32 v7, s43
    v_cmp_eq_u32 vcc, 1, v5
    v_cndmask_b32 v5, v6, v7, vcc
    v_lshrrev_b32 v6, 1, v9
    """)
    for j in range(4):
        I(f"v_cmp_eq_u32 vcc, {j}, v6")
        I(f"v_cndmask_b32 v{10+j}, 0, v5, vcc")
    I(f"""
    s_lshl_b32 s41, s30, 8
    s_add_u32 s41, s41, {M['XXT']}
    v_lshlrev_b32 v4, 6, v8
    v_add_u32 v4, s41, v4
    s_waitcnt lgkmcnt(0)
    ds_read_b128 v[104:107], v4
    ds_read_b128 v[108:111], v4 offset:16
    ds_read_b128 v[112:115], v4 offset:32
    ds_read_b128 v[116:119], v4 offset:48
    s_waitcnt lgkmcnt(0)
    """)
    if P['qst']: stamp(31)
    for t in range(16):
        bb = 18 + 4 * (t % 2)
        for j in range(4):
            I(f"v_and_b32 v{bb+j}, v{104+t}, v{10+j}")
        I(f"s_waitcnt vmcnt({15 - t})")
        c = "0" if t == 0 else "v[26:29]"
        I(f"v_mfma_f32_16x16x32_bf16 v[26:29], v[{40+4*t}:{43+4*t}], v[{bb}:{bb+3}], {c}")
    if P['qst']: stamp(30)
    I("""
    v_readfirstlane_b32 s56, v34
    v_readfirstlane_b32 s57, v35
    s_cmp_lg_u32 s56, 0
    s_cbranch_scc1 L_q_havetag
    """)
    a.label("L_q_tagpoll")
    spin()
    I("""
    v_mov_b32 v2, 0
    global_load_dwordx2 v[34:35], v2, s[24:25] sc1
    s_waitcnt vmcnt(0)
    v_readfirstlane_b32 s56, v34
    v_readfirstlane_b32 s57, v35
    s_cmp_lg_u32 s56, 0
    s_cbranch_scc1 L_q_havetag
    s_sleep 2
    s_branch L_q_tagpoll
    """)
    a.label("L_q_havetag")
    I(f"v_mov_b32 v5, {M['CLEARED']}")
    lds_wait("L_q_clr", 5, 6, 1)
    I(f"""
    v_mov_b32_dpp v14, v28 row_ror:8 row_mask:0xf bank_mask:0xf
    v_mov_b32_dpp v16, v29 row_ror:8 row_mask:0xf bank_mask:0xf
    v_cmp_gt_u32 vcc, 8, v9
    v_mov_b32 v11, s56
    v_mov_b32 v13, s57
    v_cndmask_b32 v10, v14, v26, vcc
    v_cndmask_b32 v12, v16, v27, vcc
    v_mov_b32 v18, s56
    v_mov_b32 v19, s57
    v_mov_b32 v6, {M['NONCE']}
    ds_write_b64 v6, v[18:19]
    s_lshl_b32 s41, s3, 10
    s_add_u32 s41, s41, {WS_QX}
    v_and_b32 v4, 7, v9
    v_lshlrev_b32 v4, 1, v4
    v_lshrrev_b32 v5, 3, v9
    v_add_u32 v4, v4, v5
    v_lshlrev_b32 v5, 4, v8
    v_add_u32 v4, v4, v5
    v_lshlrev_b32 v4, 4, v4
    v_add_u32 v4, s41, v4
    global_store_dwordx4 v4, v[10:13], s[26:27] sc1
    v_mov_b32 v6, {M['QPUB']}
    v_mov_b32 v7, 1
    ds_write_b32 v6, v7
    s_mov_b64 exec, 1
    s_lshl_b32 s41, s3, 3
    s_add_u32 s41, s41, {WS_CLR}
    v_mov_b32 v4, s41
    global_store_dwordx2 v4, v[18:19], s[26:27] sc1
    s_mov_b64 exec, -1
    s_lshl_b32 s41, s29, 13
    s_add_u32 s41, s41, {WS_QX}
    v_lshlrev_b32 v4, 4, v1
    v_add_u32 v4, s41, v4
    v_add_u32 v5, 4096, v4
    """)
    stamp(5)
    if P['qdelay']: I(f"s_sleep {P['qdelay']}")
    a.label("L_q_poll")
    spin()
    for i in range(8):
        I(f"global_load_dwordx4 v[{40+4*i}:{43+4*i}], v{4 if i < 4 else 5}, s[26:27] offset:{1024*(i%4)} sc1")
    I("s_waitcnt vmcnt(0)")
    I("v_xor_b32 v6, s56, v41")
    I("v_xor_b32 v7, s57, v43")
    I("v_or_b32 v6, v6, v7")
    for i in range(1, 8):
        I(f"v_xor_b32 v7, s56, v{41+4*i}")
        I(f"v_or_b32 v6, v6, v7")
        I(f"v_xor_b32 v7, s57, v{43+4*i}")
        I(f"v_or_b32 v6, v6, v7")
    I("v_cmp_ne_u32 vcc, 0, v6")
    I("s_cbranch_vccz L_q_seen")
    if P['qsleep']: I(f"s_sleep {P['qsleep']}")
    I("s_branch L_q_poll")
    a.label("L_q_seen")
    stamp(6)
    for c in (0, 2):
        I(f"v_add_f32 v{40+c}, v{40+c}, v{44+c}")
        I(f"v_add_f32 v{48+c}, v{48+c}, v{52+c}")
        I(f"v_add_f32 v{56+c}, v{56+c}, v{60+c}")
        I(f"v_add_f32 v{64+c}, v{64+c}, v{68+c}")
    for c in (0, 2):
        I(f"v_add_f32 v{40+c}, v{40+c}, v{48+c}")
        I(f"v_add_f32 v{56+c}, v{56+c}, v{64+c}")
    for c in (0, 2):
        I(f"v_add_f32 v{40+c}, v{40+c}, v{56+c}")
    I(f"""
    v_cvt_pk_bf16_f32 v10, v40, v42
    v_lshrrev_b32 v11, 16, v10
    v_lshrrev_b32 v5, 1, v9
    v_and_b32 v6, 1, v1
    v_lshlrev_b32 v6, 4, v6
    v_add_u32 v5, v5, v6
    v_lshlrev_b32 v6, 5, v8
    v_add_u32 v5, v5, v6
    v_lshlrev_b32 v5, 1, v5
    v_add_u32 v5, {M['QB']}, v5
    ds_write_b16 v5, v10
    ds_write_b16 v5, v11 offset:16
    v_mov_b32 v6, {M['QREADY']}
    v_mov_b32 v7, 1
    s_waitcnt lgkmcnt(0)
    ds_write_b32 v6, v7
    """)
    flush_stamps()
    if P['dump']:
        I(f"""
        v_lshlrev_b32 v4, 2, v1
        v_add_u32 v5, {M['QB']}, v4
        ds_read_b32 v10, v5
        s_lshl_b32 s41, s3, 8
        s_add_u32 s41, s41, 0x100000
        v_add_u32 v4, s41, v4
        s_waitcnt lgkmcnt(0)
        global_store_dword v4, v10, s[26:27]
        """)
    a.label("L_c_qwait")
    I(f"v_mov_b32 v5, {M['QREADY']}")
    lds_wait("L_c_qw", 5, 6, 1)
    I(f"""
    v_lshlrev_b32 v5, 4, v8
    v_add_u32 v5, {M['QB']}, v5
    ds_read_b128 v[40:43], v5
    ds_read_b128 v[44:47], v5 offset:64
    ds_read_b128 v[48:51], v5 offset:128
    ds_read_b128 v[52:55], v5 offset:192
    """)
    I(f"""
    v_xor_b32 v2, v8, v9
    v_lshlrev_b32 v2, 4, v2
    v_lshlrev_b32 v10, 8, v9
    v_add_u32 v2, v2, v10
    v_lshrrev_b32 v10, 2, v9
    v_and_b32 v11, 3, v9
    v_lshlrev_b32 v12, 2, v8
    v_add_u32 v12, v12, v10
    v_and_b32 v13, 7, v12
    v_lshlrev_b32 v13, 1, v13
    v_lshrrev_b32 v14, 1, v11
    v_xor_b32 v13, v13, v14
    v_lshlrev_b32 v13, 4, v13
    v_and_b32 v14, 1, v11
    v_lshlrev_b32 v14, 3, v14
    v_lshlrev_b32 v3, 8, v12
    v_add_u32 v3, v3, v13
    v_add_u32 v3, v3, v14
    v_mov_b32 v4, 0xff800000
    v_mov_b32 v5, 0
    v_mov_b32 v6, 0
    v_mov_b32 v7, {M['FILLED']}
    s_lshl_b32 s41, s40, 2
    s_add_u32 s41, s41, {M['NEXT']}
    v_mov_b32 v38, s41
    s_mov_b32 s44, {hex(LOG2E)}
    s_mov_b32 s45, {hex(SCALE)}
    s_mov_b32 s46, s40
    s_lshl_b32 s47, s40, 13
    s_mov_b32 s48, -100
    s_mov_b32 s50, 0x7fffffff
    """)
    for r in range(56, 88): I(f"v_mov_b32 v{r}, 0")
    I(f"""
    s_lshl_b32 s41, s40, 9
    s_add_u32 s41, s41, {M['FINO']}
    v_lshlrev_b32 v120, 2, v9
    v_add_u32 v120, s41, v120
    s_lshl_b32 s41, s40, 3
    s_add_u32 s41, s41, {M['FINML']}
    v_mov_b32 v121, s41
    v_mov_b32 v122, {M['FINCNT']}
    v_mov_b32 v123, 1
    v_lshlrev_b32 v124, 3, v1
    s_mul_i32 s41, s3, {PREC}
    v_add_u32 v125, s41, v124
    v_add_u32 v124, {M['FINO']}, v124
    v_mov_b32 v126, {M['FINML']}
    v_mov_b32 v127, {M['TAILGO']}
    """)
    I("s_waitcnt lgkmcnt(0)")
    stamp(2)
    I(f"""
    v_lshlrev_b32 v39, 4, v8
    v_add_u32 v39, {M['SC']}, v39
    s_mov_b32 s60, 0x00010001
    s_mov_b32 s61, 0x00010001
    s_mul_i32 s41, s29, {8 * NP * 64}
    s_add_u32 s41, s41, {WS_SCX}
    v_lshlrev_b32 v128, 4, v8
    v_add_u32 v128, s41, v128
    v_lshlrev_b32 v129, 4, v8
    v_add_u32 v129, {M['SCF']}, v129
    s_mov_b32 s52, 0x7fffffff
    """)
    RS = 2 * R
    KF = 88
    SS = 18
    def wait_tile(lbl, kind):
        I(f"s_add_u32 s49, s46, 1")
        if kind != 'K':
            I(f"s_cmp_ge_i32 s48, s49")
            I(f"s_cbranch_scc1 {lbl}_ok")
        a.label(f"{lbl}_poll")
        spin()
        I("ds_read_b128 v[34:37], v7")
        I("s_waitcnt lgkmcnt(0)")
        I("v_readfirstlane_b32 s48, v34")
        if kind == 'K':
            I("v_readfirstlane_b32 s50, v35")
            I("s_cmp_ge_u32 s46, s50")
            I("s_cbranch_scc1 L_c_sw")
        if kind == 'P': I("v_readfirstlane_b32 s52, v36")
        I("s_cmp_ge_i32 s48, s49")
        I(f"s_cbranch_scc1 {lbl}_ok")
        if kind == 'P':
            I("s_cmp_ge_u32 s46, s52")
            I("s_cbranch_scc1 L_c_fin")
        elif kind != 'T':
            I(f"s_sleep {P['sleep_c']}")
        I(f"s_branch {lbl}_poll")
        a.label(f"{lbl}_ok")
    def advance():
        I(f"""
        s_add_u32 s47, s47, {4*8192}
        s_cmp_ge_u32 s47, {RS*8192}
        s_cselect_b32 s49, {RS*8192}, 0
        s_sub_u32 s47, s47, s49
        """)
    a.label("L_c_tile")
    I("s_cmp_ge_u32 s46, s50")
    I("s_cbranch_scc1 L_c_sw")
    wait_tile("L_c_k", 'K')
    I("v_add_u32 v10, s47, v2")
    for j in range(1, 4): I(f"v_xor_b32 v{10+j}, {j << 6}, v10")
    for j in range(4):
        I(f"ds_read_b128 v[{KF+4*j}:{KF+4*j+3}], v{10+j}")
        I(f"ds_read_b128 v[{KF+16+4*j}:{KF+16+4*j+3}], v{10+j} offset:4096")
    I(f"""
    s_lshr_b32 s49, s47, 11
    s_add_u32 s49, s49, {M['TID']}
    v_mov_b32 v14, s49
    ds_read_b32 v16, v14
    s_lshl_b32 s51, s46, 6
    s_add_u32 s46, s46, 4
    v_mov_b32 v15, s46
    """)
    for j in range(4):
        I(f"s_waitcnt lgkmcnt({7 - 2*j if j < 3 else 0})")
        if j == 3: I("ds_write_b32 v38, v15")
        c0 = "0" if j == 0 else "v[18:21]"
        c1 = "0" if j == 0 else "v[22:25]"
        I(f"v_mfma_f32_16x16x32_bf16 v[18:21], v[{KF+4*j}:{KF+4*j+3}], v[{40+4*j}:{43+4*j}], {c0}")
        I(f"v_mfma_f32_16x16x32_bf16 v[22:25], v[{KF+16+4*j}:{KF+16+4*j+3}], v[{40+4*j}:{43+4*j}], {c1}")
    advance()
    for p in range(4): I(f"v_cvt_pk_bf16_f32 v{30+p}, v{SS+2*p}, v{SS+2*p+1}")
    for p in range(4):
        I(f"v_lshlrev_b32 v{SS+2*p}, 16, v{30+p}")
        I(f"v_and_b32 v{SS+2*p+1}, s43, v{30+p}")
    for i in range(8): I(f"v_mul_f32 v{SS+i}, s45, v{SS+i}")
    for p in range(4): I(f"v_cvt_pk_bf16_f32 v{28+p}, v{SS+2*p}, v{SS+2*p+1}")
    I(f"""
    s_cmp_lt_u32 s51, {S * 64}
    s_cbranch_scc0 L_c_kpool
    v_add_u32 v14, s51, v39
    s_mov_b64 exec, s[60:61]
    ds_write_b128 v14, v[28:31]
    s_mov_b64 exec, -1
    s_branch L_c_kmax
    """)
    a.label("L_c_kpool")
    I(f"""
    v_lshlrev_b32 v16, 6, v16
    v_add_u32 v14, v16, v128
    s_mov_b64 exec, s[60:61]
    global_store_dwordx4 v14, v[28:31], s[26:27] sc1
    s_mov_b64 exec, -1
    """)
    a.label("L_c_kmax")
    for p in range(4):
        I(f"v_lshlrev_b32 v{SS+2*p}, 16, v{28+p}")
        I(f"v_and_b32 v{SS+2*p+1}, s43, v{28+p}")
    for p in range(4): I(f"v_max3_f32 v4, v4, v{SS+2*p}, v{SS+2*p+1}")
    I("s_branch L_c_tile")
    a.label("L_c_sw")
    I(f"""
    v_mov_b32 v30, v4
    s_lshl_b32 s41, s40, 2
    s_add_u32 s41, s41, {M['PMAX']}
    v_permlane32_swap_b32 v4, v30
    v_mov_b32 v31, s41
    v_max_f32 v4, v4, v30
    v_mov_b32 v32, {M['PCNT']}
    v_mov_b32 v30, v4
    v_mov_b32 v33, {M['PMAX']}
    s_nop 0
    v_permlane16_swap_b32 v4, v30
    v_max_f32 v4, v4, v30
    ds_write_b32 v31, v4
    s_waitcnt vmcnt(0) lgkmcnt(0)
    ds_add_u32 v32, v123
    """)
    a.label("L_c_sw_wait")
    spin()
    I("""
    ds_read_b32 v30, v32
    ds_read_b128 v[20:23], v33
    s_waitcnt lgkmcnt(0)
    v_readfirstlane_b32 s41, v30
    s_cmp_ge_u32 s41, 256
    s_cbranch_scc0 L_c_sw_wait
    """)
    I(f"""
    v_max3_f32 v4, v20, v21, v22
    v_max_f32 v4, v4, v23
    v_mul_f32 v6, s44, v4
    s_add_u32 s51, s50, {S}
    """)
    def softmax_part():
        for i in range(8): I(f"v_fma_f32 v{SS+i}, v{SS+i}, s44, -v6")
        for i in range(8): I(f"v_exp_f32 v{SS+i}, v{SS+i}")
        for p in range(4): I(f"v_cvt_pk_bf16_f32 v{26+p}, v{SS+2*p}, v{SS+2*p+1}")
        I(f"""
        v_add_f32 v30, v{SS}, v{SS+1}
        v_add_f32 v31, v{SS+2}, v{SS+3}
        v_add_f32 v32, v{SS+4}, v{SS+5}
        v_add_f32 v33, v{SS+6}, v{SS+7}
        v_add_f32 v30, v30, v31
        v_add_f32 v32, v32, v33
        v_add_f32 v30, v30, v32
        v_add_f32 v5, v5, v30
        """)
    def vread(nb):
        I(f"ds_read_b64_tr_b16 v[{KF+4*nb}:{KF+4*nb+1}], v{10+nb}")
        I(f"ds_read_b64_tr_b16 v[{KF+4*nb+2}:{KF+4*nb+3}], v{10+nb} offset:4096")
    def pv(nb):
        I(f"v_mfma_f32_16x16x32_bf16 v[{56+4*nb}:{59+4*nb}], v[26:29], v[{KF+4*nb}:{KF+4*nb+3}], v[{56+4*nb}:{59+4*nb}]")
    def pv_part():
        for nb in range(7): vread(nb)
        I("s_waitcnt lgkmcnt(6)")
        for nb in range(4): pv(nb)
        vread(7)
        I("s_waitcnt lgkmcnt(2)")
        for nb in range(4, 7): pv(nb)
        I("s_add_u32 s46, s46, 4")
        I("v_mov_b32 v30, s46")
        I("s_waitcnt lgkmcnt(0)")
        I("ds_write_b32 v38, v30")
        pv(7)
        advance()
    def vaddr():
        I("v_add_u32 v10, s47, v3")
        for nb in range(1, 8): I(f"v_xor_b32 v{10+nb}, {nb << 5}, v10")
    def unpack_scores():
        for p in range(4):
            I(f"v_lshlrev_b32 v{SS+2*p}, 16, v{28+p}")
            I(f"v_and_b32 v{SS+2*p+1}, s43, v{28+p}")
    a.label("L_c_vtile")
    I(f"""
    s_sub_u32 s49, s46, s50
    s_lshl_b32 s49, s49, 6
    v_add_u32 v14, s49, v39
    ds_read_b128 v[28:31], v14
    """)
    vaddr()
    I("s_waitcnt lgkmcnt(0)")
    unpack_scores()
    softmax_part()
    wait_tile("L_c_v", 'V')
    pv_part()
    I("s_cmp_lt_u32 s46, s51")
    I("s_cbranch_scc1 L_c_vtile")
    a.label("L_c_ptile")
    I("s_cmp_ge_u32 s46, s52")
    I("s_cbranch_scc1 L_c_fin")
    a.label("L_c_ps_poll")
    spin()
    I("""
    ds_read_b128 v[34:37], v7
    s_waitcnt lgkmcnt(0)
    v_readfirstlane_b32 s52, v36
    v_readfirstlane_b32 s48, v34
    s_cmp_ge_u32 s46, s52
    s_cbranch_scc1 L_c_fin
    s_cmp_ge_i32 s48, s46
    s_cbranch_scc0 L_c_ps_poll
    """)
    I(f"""
    s_lshr_b32 s49, s47, 7
    v_add_u32 v14, s49, v129
    ds_read_b128 v[28:31], v14
    """)
    vaddr()
    I("s_waitcnt lgkmcnt(0)")
    unpack_scores()
    I(f"""
    v_max3_f32 v34, v{SS}, v{SS+1}, v{SS+2}
    v_max3_f32 v35, v{SS+3}, v{SS+4}, v{SS+5}
    v_max3_f32 v34, v34, v{SS+6}, v{SS+7}
    v_max_f32 v34, v34, v35
    v_mov_b32 v35, v34
    v_permlane32_swap_b32 v34, v35
    v_max_f32 v34, v34, v35
    v_mov_b32 v35, v34
    v_permlane16_swap_b32 v34, v35
    v_max_f32 v34, v34, v35
    v_cmp_gt_f32 vcc, v34, v4
    s_cbranch_vccz L_c_norescale
    v_sub_f32 v35, v4, v34
    v_mul_f32 v35, s44, v35
    v_exp_f32 v35, v35
    v_mov_b32 v4, v34
    v_mul_f32 v6, s44, v34
    v_mul_f32 v5, v5, v35
    """)
    for r in range(56, 88): I(f"v_mul_f32 v{r}, v{r}, v35")
    a.label("L_c_norescale")
    softmax_part()
    wait_tile("L_c_pv", 'T')
    pv_part()
    I("s_branch L_c_ptile")
    a.label("L_c_fin")
    stamp(3)
    I(f"""
    v_mov_b32 v30, v5
    v_mov_b32 v4, v6
    ds_write_b32 v120, v56 offset:0
    v_permlane32_swap_b32 v5, v30
    ds_write_b32 v120, v60 offset:64
    ds_write_b32 v120, v64 offset:128
    v_add_f32 v5, v5, v30
    ds_write_b32 v120, v68 offset:192
    v_mov_b32 v30, v5
    ds_write_b32 v120, v72 offset:256
    ds_write_b32 v120, v76 offset:320
    v_permlane16_swap_b32 v5, v30
    ds_write_b32 v120, v80 offset:384
    ds_write_b32 v120, v84 offset:448
    v_add_f32 v5, v5, v30
    ds_write_b64 v121, v[4:5]
    s_mov_b64 exec, 1
    ds_add_rtn_u32 v32, v122, v123
    s_mov_b64 exec, -1
    ds_read_b128 v[20:23], v126
    ds_read_b128 v[24:27], v126 offset:16
    ds_read_b64 v[12:13], v124
    ds_read_b64 v[14:15], v124 offset:512
    ds_read_b64 v[16:17], v124 offset:1024
    ds_read_b64 v[18:19], v124 offset:1536
    s_waitcnt lgkmcnt(0)
    v_readfirstlane_b32 s41, v32
    v_max3_f32 v28, v20, v22, v24
    s_cmp_eq_u32 s41, 3
    s_cbranch_scc0 L_end
    ds_write_b32 v127, v123
    v_max_f32 v28, v28, v26
    v_sub_f32 v20, v20, v28
    v_sub_f32 v22, v22, v28
    v_sub_f32 v24, v24, v28
    v_sub_f32 v26, v26, v28
    v_exp_f32 v20, v20
    v_exp_f32 v22, v22
    v_exp_f32 v24, v24
    v_exp_f32 v26, v26
    v_pk_mul_f32 v[12:13], v[12:13], v[20:21] op_sel_hi:[1,0]
    v_mul_f32 v29, v21, v20
    v_pk_fma_f32 v[12:13], v[14:15], v[22:23], v[12:13] op_sel_hi:[1,0,1]
    v_fmac_f32 v29, v23, v22
    v_pk_fma_f32 v[12:13], v[16:17], v[24:25], v[12:13] op_sel_hi:[1,0,1]
    v_fmac_f32 v29, v25, v24
    v_pk_fma_f32 v[12:13], v[18:19], v[26:27], v[12:13] op_sel_hi:[1,0,1]
    v_fmac_f32 v29, v27, v26
    global_store_dwordx2 v125, v[12:13], s[26:27] sc1
    s_mov_b64 exec, 0xffff
    global_store_dwordx2 v125, v[28:29], s[26:27] offset:512 sc1
    s_mov_b64 exec, -1
    """)
    stamp(4)
    flush_stamps()
    I("s_endpgm")

    a.label("L_tail")
    I("s_sub_u32 s40, s28, 5")
    I("s_mov_b32 s43, 0xffff0000")
    if P['rolemap'] == "x01":
        I(f"""
        s_mov_b32 s54, 0
        s_mov_b32 s44, 0
        s_and_b32 s45, s2, 7
        s_cmp_lt_u32 s45, 2
        s_cbranch_scc0 L_t_x0
        s_mov_b32 s54, 1
        s_lshl_b32 s44, s29, 1
        s_add_u32 s44, s44, s45
        s_branch L_t_rdone
        """)
        a.label("L_t_x0")
        I(f"""
        s_mul_i32 s46, s29, 43
        s_lshr_b32 s46, s46, 8
        s_mul_i32 s46, s46, 6
        s_sub_u32 s46, s29, s46
        s_sub_u32 s45, s45, 2
        s_sub_u32 s45, s45, s46
        s_add_u32 s45, s45, 6
        s_cmp_ge_u32 s45, 6
        s_cselect_b32 s46, 6, 0
        s_sub_u32 s45, s45, s46
        s_cmp_eq_u32 s45, 0
        s_cbranch_scc0 L_t_x1
        s_mov_b32 s54, 2
        s_mov_b32 s44, s29
        s_branch L_t_rdone
        """)
        a.label("L_t_x1")
        I(f"""
        s_cmp_eq_u32 s45, 3
        s_cbranch_scc0 L_t_x2
        s_cmp_lt_u32 s29, 11
        s_cbranch_scc0 L_t_rdone
        s_mov_b32 s54, 2
        s_add_u32 s44, s29, 32
        s_branch L_t_rdone
        """)
        a.label("L_t_x2")
        I(f"""
        s_cmp_eq_u32 s45, 1
        s_cbranch_scc0 L_t_rdone
        s_cmp_lt_u32 s29, 16
        s_cbranch_scc0 L_t_rdone
        s_mov_b32 s54, 3
        s_mov_b32 s44, s29
        s_branch L_t_rdone
        """)
    I(f"""
    s_mov_b32 s54, 0
    s_mov_b32 s44, 0
    s_cmp_eq_u32 s31, 4
    s_cbranch_scc0 L_t_r0
    s_cmp_lt_u32 s29, 16
    s_cbranch_scc0 L_t_rdone
    s_mov_b32 s54, 3
    s_mov_b32 s44, s29
    s_branch L_t_rdone
    """)
    a.label("L_t_r0")
    I(f"""
    s_cmp_lt_u32 s29, 11
    s_cbranch_scc0 L_t_r1
    s_cmp_lt_u32 s31, 3
    s_cbranch_scc0 L_t_rdone
    s_mov_b32 s54, 1
    s_mov_b32 s44, s29
    s_cmp_eq_u32 s31, 0
    s_cbranch_scc1 L_t_rdone
    s_mov_b32 s54, 2
    s_lshl_b32 s44, s29, 1
    s_add_u32 s44, s44, s31
    s_sub_u32 s44, s44, 1
    s_branch L_t_rdone
    """)
    a.label("L_t_r1")
    I(f"""
    s_cmp_lt_u32 s29, 22
    s_cbranch_scc0 L_t_r2
    s_cmp_lt_u32 s31, 4
    s_cbranch_scc0 L_t_rdone
    s_mov_b32 s54, 2
    s_add_u32 s44, s29, 11
    s_cmp_eq_u32 s31, 3
    s_cbranch_scc1 L_t_rdone
    s_mov_b32 s54, 1
    s_mul_i32 s44, s29, 3
    s_add_u32 s44, s44, s31
    s_sub_u32 s44, s44, 22
    s_branch L_t_rdone
    """)
    a.label("L_t_r2")
    I(f"""
    s_cmp_lt_u32 s31, 3
    s_cbranch_scc0 L_t_rdone
    s_mov_b32 s54, 2
    s_add_u32 s44, s29, 11
    s_cmp_eq_u32 s31, 2
    s_cbranch_scc1 L_t_rdone
    s_mov_b32 s54, 1
    s_lshl_b32 s44, s29, 1
    s_add_u32 s44, s44, s31
    """)
    a.label("L_t_rdone")
    I("s_barrier")
    I(f"""
    v_lshrrev_b32 v8, 4, v1
    v_and_b32 v9, 15, v1
    s_cmp_eq_u32 s40, 0
    s_cbranch_scc0 L_t_noclear
    """)
    I(f"""
    v_mov_b32 v10, -1
    v_mov_b32 v11, -1
    v_mov_b32 v12, -1
    v_mov_b32 v13, -1
    s_mul_i32 s41, s3, {PREC}
    v_lshlrev_b32 v4, 3, v1
    v_add_u32 v4, s41, v4
    global_store_dwordx2 v4, v[10:11], s[26:27] sc1
    s_mov_b64 exec, 0xffff
    global_store_dwordx2 v4, v[10:11], s[26:27] offset:512 sc1
    s_mov_b64 exec, -1
    s_cmp_eq_u32 s30, 0
    s_cbranch_scc0 L_t_clr_tk
    s_lshl_b32 s41, s29, 8
    s_add_u32 s41, s41, {WS_TK}
    v_mov_b32 v4, s41
    v_mov_b32 v5, 0
    global_store_dword v4, v5, s[26:27] sc1
    global_store_dword v4, v5, s[26:27] offset:128 sc1
    """)
    a.label("L_t_clr_tk")
    I(f"""
    s_cmp_eq_u32 s54, 1
    s_cbranch_scc0 L_t_clr_f
    s_lshl_b32 s41, s44, 8
    s_add_u32 s41, s41, {WS_Y}
    v_lshlrev_b32 v4, 2, v1
    v_add_u32 v4, s41, v4
    global_store_dword v4, v10, s[26:27] sc1
    s_branch L_t_clr_done
    """)
    a.label("L_t_clr_f")
    I(f"""
    s_cmp_eq_u32 s54, 2
    s_cbranch_scc0 L_t_clr_done
    s_lshl_b32 s41, s44, 11
    s_add_u32 s41, s41, {WS_P}
    v_lshlrev_b32 v4, 4, v1
    v_add_u32 v4, s41, v4
    global_store_dwordx4 v4, v[10:13], s[26:27] sc1
    global_store_dwordx4 v4, v[10:13], s[26:27] offset:1024 sc1
    """)
    a.label("L_t_clr_done")
    I(f"""
    s_waitcnt vmcnt(0)
    v_mov_b32 v4, {M['CLEARED']}
    v_mov_b32 v5, 1
    ds_write_b32 v4, v5
    """)
    a.label("L_t_noclear")
    def kall(lbl):
        I(f"v_mov_b32 v4, {M['PCNT']}")
        a.label(f"{lbl}_pc")
        spin()
        I(f"""
        ds_read_b32 v5, v4
        s_waitcnt lgkmcnt(0)
        v_readfirstlane_b32 s42, v5
        s_cmp_ge_u32 s42, 256
        s_cbranch_scc1 {lbl}_pcok
        s_sleep 16
        s_branch {lbl}_pc
        """)
        a.label(f"{lbl}_pcok")
        I(f"""
        v_mov_b32 v4, {M['NONCE']}
        ds_read_b64 v[16:17], v4
        s_lshl_b32 s42, s3, 3
        s_add_u32 s42, s42, {WS_KD}
        v_mov_b32 v4, s42
        s_waitcnt lgkmcnt(0)
        s_mov_b64 exec, 1
        global_store_dwordx2 v4, v[16:17], s[26:27] sc1
        s_mov_b64 exec, -1
        s_lshl_b32 s42, s29, 6
        s_add_u32 s42, s42, {WS_KD}
        v_and_b32 v4, 7, v1
        v_lshlrev_b32 v4, 3, v4
        v_add_u32 v4, s42, v4
        """)
        a.label(f"{lbl}_kd")
        spin()
        I(f"""
        global_load_dwordx2 v[20:21], v4, s[26:27] sc1
        s_waitcnt vmcnt(0)
        v_xor_b32 v5, v16, v20
        v_xor_b32 v18, v17, v21
        v_or_b32 v5, v5, v18
        v_cmp_ne_u32 vcc, 0, v5
        s_cbranch_vccz {lbl}_kdok
        s_sleep 16
        s_branch {lbl}_kd
        """)
        a.label(f"{lbl}_kdok")
        I(f"""
        v_mov_b32 v4, {M['KALL']}
        v_mov_b32 v5, 1
        ds_write_b32 v4, v5
        """)
    if P['ptouch']:
        I("""
        s_cmp_eq_u32 s40, 1
        s_cbranch_scc0 L_t_notouch
        """)
        I(f"v_mov_b32 v4, {M['QREADY']}")
        lds_wait("L_t_tqw", 4, 5, 8)
        I("""
        s_lshl_b32 s41, s29, 23
        s_add_u32 s64, s6, s41
        s_addc_u32 s65, s7, 0
        s_add_u32 s66, s8, s41
        s_addc_u32 s67, s9, 0
        """)
        for p in range(4):
            I(f"s_mov_b32 s41, {p * 0x200000 + 0x100000}")
            I(f"s_load_dword s{68+p}, s[64:65], s41")
            I(f"s_load_dword s{72+p}, s[66:67], s41")
        I("s_waitcnt lgkmcnt(0)")
        a.label("L_t_notouch")
    I(f"""
    s_cmp_eq_u32 s54, 0
    s_cbranch_scc0 L_t_hasrole
    s_cmp_eq_u32 s40, 0
    s_cbranch_scc0 L_end
    """)
    kall("L_n_k")
    I("s_endpgm")
    a.label("L_t_hasrole")
    I(f"""
    s_cmp_eq_u32 s54, 3
    s_cbranch_scc0 L_t_wf
    s_cmp_eq_u32 s40, 0
    s_cbranch_scc1 L_t_o
    s_endpgm
    """)
    a.label("L_t_wf")
    if P['w_at_start']:
        I("s_cmp_eq_u32 s54, 1")
        I("s_cbranch_scc1 L_t_w")
    if P['stage_at'] != "start":
        I(f"v_mov_b32 v4, {M['QREADY'] if P['stage_at'] == 'ready' else M['QPUB']}")
        lds_wait("L_t_qw", 4, 5, 8)
    I("s_cmp_eq_u32 s54, 2")
    I("s_cbranch_scc1 L_t_f")

    STG = M['STAGE']
    SNT = P['stage_nt']
    def stage_setup():
        I(f"s_lshl_b32 s41, s40, 12")
        I(f"s_add_u32 s41, s41, {STG}")
    cur_role = [""]
    def dma(addr, u, step_bytes):
        if P['skip_stage'] or (cur_role[0] and cur_role[0] in P['skip_role']): return
        I(f"s_add_u32 m0, s41, {u*1024}")
        I(f"s_nop 0")
        I(f"global_load_lds_dwordx4 v[{addr}:{addr+1}], off {SNT}")
        if step_bytes:
            I(f"v_add_co_u32 v{addr}, vcc, {step_bytes}, v{addr}")
            I(f"v_addc_co_u32 v{addr+1}, vcc, 0, v{addr+1}, vcc")
    def tr_reads(trbase, offs, dst):
        I("s_waitcnt vmcnt(0)")
        d = dst
        for off in offs:
            I(f"ds_read_b64_tr_b16 v[{d}:{d+1}], v{trbase} offset:{off[0]}")
            I(f"ds_read_b64_tr_b16 v[{d+2}:{d+3}], v{trbase} offset:{off[1]}")
            d += 4
        I("s_waitcnt lgkmcnt(0)")
    def tr_addr(reg, rowstride):
        I(f"v_lshrrev_b32 v10, 2, v9")
        I(f"v_lshlrev_b32 v11, 3, v8")
        I(f"v_add_u32 v10, v10, v11")
        I(f"v_mul_u32_u24 v10, {rowstride}, v10")
        I(f"v_and_b32 v11, 3, v9")
        I(f"v_lshlrev_b32 v11, 3, v11")
        I(f"v_add_u32 v10, v10, v11")
        I(f"v_add_u32 v{reg}, s41, v10")
    def wait_flags_and_go(lbl, pre=None):
        I("s_cmp_eq_u32 s40, 0")
        I(f"s_cbranch_scc0 {lbl}_nok")
        kall(f"{lbl}_k")
        a.label(f"{lbl}_nok")
        if (P['stage_at'] != "ready" or (P['w_at_start'] and lbl == "L_w")) and lbl != "L_o":
            I(f"v_mov_b32 v4, {M['QREADY']}")
            lds_wait(f"{lbl}_qr", 4, 5, 8)
        I(f"""
        v_mov_b32 v4, {M['NONCE']}
        ds_read_b64 v[16:17], v4
        v_lshlrev_b32 v4, 4, v1
        v_add_u32 v4, {WS_CLR}, v4
        s_waitcnt lgkmcnt(0)
        """)
        a.label(f"{lbl}_clr")
        spin()
        I(f"""
        global_load_dwordx4 v[20:23], v4, s[26:27] sc1
        global_load_dwordx4 v[24:27], v4, s[26:27] offset:1024 sc1
        s_waitcnt vmcnt(0)
        """)
        I("v_xor_b32 v5, v16, v20")
        for r in (22, 24, 26):
            I(f"v_xor_b32 v18, v16, v{r}")
            I("v_or_b32 v5, v5, v18")
        for r in (21, 23, 25, 27):
            I(f"v_xor_b32 v18, v17, v{r}")
            I("v_or_b32 v5, v5, v18")
        I(f"""
        v_cmp_ne_u32 vcc, 0, v5
        s_cbranch_vccz {lbl}_go0
        s_sleep 32
        s_branch {lbl}_clr
        """)
        a.label(f"{lbl}_go0")
        if lbl == "L_o":
            I(f"""
            s_cmp_eq_u32 s44, 0
            s_cbranch_scc0 L_o_keep
            v_mov_b32 v4, 0
            v_mov_b32 v20, 0
            v_mov_b32 v21, 0
            s_mov_b64 exec, 1
            global_store_dwordx2 v4, v[20:21], s[24:25] sc1
            s_mov_b64 exec, -1
            """)
            a.label("L_o_keep")
        if pre:
            I(f"v_mov_b32 v4, {M['FILLED'] + 8}")
            a.label(f"{lbl}_fv")
            spin()
            I(f"""
            ds_read_b32 v5, v4
            s_waitcnt lgkmcnt(0)
            v_readfirstlane_b32 s42, v5
            s_cmp_lg_u32 s42, 0x7fffffff
            s_cbranch_scc1 {lbl}_fv_ok
            s_sleep 2
            s_branch {lbl}_fv
            """)
            a.label(f"{lbl}_fv_ok")
            pre()
        I(f"v_mov_b32 v4, {M['TAILGO']}")
        lds_wait(f"{lbl}_go", 4, 5, P['sleep_t'])
        if P['tprio']: I(f"s_setprio {P['tprio']}")
    def any_reset(regs, tmp):
        rs = list(regs)
        I(f"v_max3_u32 v{tmp}, v{rs[0]}, v{rs[1]}, v{rs[2]}")
        rs = rs[3:]
        while len(rs) >= 2:
            I(f"v_max3_u32 v{tmp}, v{tmp}, v{rs[0]}, v{rs[1]}"); rs = rs[2:]
        if rs: I(f"v_max_u32 v{tmp}, v{tmp}, v{rs[0]}")
        I(f"v_cmp_eq_u32 vcc, -1, v{tmp}")
    def poll2(lbl, issue, nloads, regsA, regsB, tmp, first, key, peel=None):
        if key not in P['dbl']:
            if peel:
                issue(regsA[0])
                I("s_waitcnt vmcnt(0)")
                peel()
                any_reset(regsA, tmp)
                I(f"s_cbranch_vccz {lbl}_got")
            a.label(f"{lbl}")
            spin()
            issue(regsA[0])
            I("s_waitcnt vmcnt(0)")
            any_reset(regsA, tmp)
            slp = {'W': P['wsleep'], 'F': P['fsleep'], 'O': P['osleep'], 'y': P['osleep']}[key]
            if slp:
                I(f"s_cbranch_vccz {lbl}_ok")
                I(f"s_sleep {slp}")
                I(f"s_branch {lbl}")
                a.label(f"{lbl}_ok")
            else:
                I(f"s_cbranch_vccnz {lbl}")
            if peel: a.label(f"{lbl}_got")
            first(regsA[0])
            return
        issue(regsA[0])
        if P['stag']: I(f"s_sleep {P['stag']}")
        a.label(f"{lbl}")
        spin()
        issue(regsB[0])
        I(f"s_waitcnt vmcnt({nloads})")
        any_reset(regsA, tmp)
        I(f"s_cbranch_vccz {lbl}_a")
        issue(regsA[0])
        I(f"s_waitcnt vmcnt({nloads})")
        any_reset(regsB, tmp)
        I(f"s_cbranch_vccnz {lbl}")
        first(regsB[0])
        I(f"s_branch {lbl}_join")
        a.label(f"{lbl}_a")
        first(regsA[0])
        a.label(f"{lbl}_join")
    def gemv_kslice(abase, wb, acc, tmp):
        for ks in range(4):
            I(f"ds_read_b128 v[{tmp+4*ks}:{tmp+4*ks+3}], v{abase} offset:{ks*64}")
        for ks in range(4):
            I(f"s_waitcnt lgkmcnt({3-ks})")
            for nb in range(4):
                c = "0" if ks == 0 else f"v[{acc+4*nb}:{acc+4*nb+3}]"
                I(f"v_mfma_f32_16x16x32_bf16 v[{acc+4*nb}:{acc+4*nb+3}], v[{tmp+4*ks}:{tmp+4*ks+3}], v[{wb+16*ks+4*nb}:{wb+16*ks+4*nb+3}], {c}")
    def part_to_lds(acc, waddr, raddr):
        for nb in range(4): I(f"ds_write_b32 v{waddr}, v{acc+4*nb} offset:{64*nb}")
        I(f"""
        s_waitcnt lgkmcnt(0)
        s_barrier
        ds_read_b32 v12, v{raddr}
        ds_read_b32 v13, v{raddr} offset:256
        ds_read_b32 v14, v{raddr} offset:512
        ds_read_b32 v15, v{raddr} offset:768
        s_waitcnt lgkmcnt(0)
        v_add_f32 v12, v12, v13
        v_add_f32 v14, v14, v15
        v_add_f32 v12, v12, v14
        """)
    def yp_addrs(waddr, raddr):
        I(f"""
        s_lshl_b32 s47, s40, 8
        s_add_u32 s47, s47, {M['YP']}
        v_lshlrev_b32 v{waddr}, 2, v9
        v_add_u32 v{waddr}, s47, v{waddr}
        v_lshlrev_b32 v{raddr}, 2, v1
        v_add_u32 v{raddr}, {M['YP']}, v{raddr}
        """)

    def wait_vphase(lbl):
        if not P['split']: return
        I(f"v_mov_b32 v4, {M['PCNT']}")
        a.label(lbl)
        spin()
        I(f"""
        ds_read_b32 v5, v4
        s_waitcnt lgkmcnt(0)
        v_readfirstlane_b32 s42, v5
        s_cmp_ge_u32 s42, 256
        s_cbranch_scc1 {lbl}_ok
        s_sleep 16
        s_branch {lbl}
        """)
        a.label(f"{lbl}_ok")
    WB = 64
    a.label("L_t_w")
    cur_role[0] = "W"
    if P['ptouch']:
        I("""
        s_lshr_b32 s45, s44, 3
        s_lshl_b32 s45, s45, 19
        s_load_dword s68, s[12:13], s45
        s_waitcnt lgkmcnt(0)
        """)
    stage_setup()
    tr_addr(14, 128)
    I(f"""
    s_lshr_b32 s45, s44, 3
    s_and_b32 s46, s44, 7
    s_lshl_b32 s47, s45, 19
    s_lshl_b32 s48, s40, 17
    s_add_u32 s47, s47, s48
    s_lshl_b32 s48, s46, 7
    s_add_u32 s47, s47, s48
    v_lshrrev_b32 v10, 3, v1
    v_lshlrev_b32 v10, 10, v10
    v_and_b32 v11, 7, v1
    v_lshlrev_b32 v11, 4, v11
    v_add_u32 v10, v10, v11
    v_add_u32 v10, s47, v10
    v_mov_b32 v13, s13
    v_add_co_u32 v12, vcc, s12, v10
    v_addc_co_u32 v13, vcc, 0, v13, vcc
    """)
    WL = P['w_late']
    WE = 4 - WL
    for ks in range(WE):
        if (WL == 0 and ks == 2) or (WL == 2 and ks == 1 and P['w_split']): wait_vphase("L_w_vp")
        for u in range(4): dma(12, u, 8 * 1024)
        tr_reads(14, [(nb * 32, 4 * 128 + nb * 32) for nb in range(4)], WB + 16 * ks)
    if WL:
        I(f"""
        s_mov_b32 s64, s12
        s_and_b32 s65, s13, 0xffff
        s_mov_b32 s66, 0x400000
        s_mov_b32 s67, 0x20000
        v_lshrrev_b32 v45, 3, v1
        v_lshlrev_b32 v45, 10, v45
        v_and_b32 v11, 7, v1
        v_lshlrev_b32 v11, 4, v11
        v_add_u32 v45, v45, v11
        s_lshl_b32 s55, s40, 14
        s_lshl_b32 s56, s45, 19
        s_lshl_b32 s57, s40, 17
        s_add_u32 s56, s56, s57
        s_lshl_b32 s57, s46, 7
        s_add_u32 s56, s56, s57
        s_mov_b32 s41, s55
        """)
        tr_addr(47, 128)
    stamp(8)
    I(f"""
    s_lshl_b32 s47, s45, 2
    s_add_u32 s47, s47, s40
    s_mul_i32 s48, s47, {8 * PREC}
    """)
    WPRE = P['pre'] and WL >= 1
    def w_pre():
        for u in range(4):
            I(f"s_add_u32 m0, s59, {u * 1024}")
            I(f"s_add_u32 s58, s56, {(32 * WE + 8 * u) * 1024}")
            I(f"buffer_load_dwordx4 v45, s[64:67], s58 offen {SNT} lds")
    if WPRE:
        I(f"s_lshl_b32 s59, s40, 12")
        I(f"s_add_u32 s59, s59, {STG}")
        I("s_mov_b32 s41, s59")
        tr_addr(46, 128)
    wait_flags_and_go("L_w", w_pre if WPRE else None)
    for ks in range(WE + (1 if WPRE else 0), 4):
        for u in range(4):
            I(f"s_add_u32 m0, s55, {ks * 4096 + u * 1024}")
            I(f"s_add_u32 s58, s56, {(32 * ks + 8 * u) * 1024}")
            I(f"buffer_load_dwordx4 v45, s[64:67], s58 offen {SNT} lds")
    I(f"""
    v_lshrrev_b32 v15, 5, v1
    v_mul_u32_u24 v15, {PREC}, v15
    v_add_u32 v15, s48, v15
    v_and_b32 v10, 31, v1
    v_lshlrev_b32 v14, 4, v10
    v_add_u32 v14, v15, v14
    v_add_u32 v15, 512, v15
    v_lshlrev_b32 v10, 3, v10
    s_lshl_b32 s47, s40, 8
    s_add_u32 s47, s47, {M['OALL']}
    v_add_u32 v7, s47, v10
    v_lshlrev_b32 v10, 4, v8
    v_add_u32 v10, s47, v10
    s_lshl_b32 s47, s44, 8
    s_add_u32 s47, s47, {WS_Y}
    v_lshlrev_b32 v6, 2, v1
    v_add_u32 v6, s47, v6
    """)
    yp_addrs(11, 5)
    def w_late_tr():
        d = WB + 16 * WE
        for ks in range(WE, 4):
            st = WPRE and ks == WE
            base, off = (46, 0) if st else (47, ks * 4096)
            for nb in range(4):
                I(f"ds_read_b64_tr_b16 v[{d}:{d+1}], v{base} offset:{off + nb * 32}")
                I(f"ds_read_b64_tr_b16 v[{d+2}:{d+3}], v{base} offset:{off + 4 * 128 + nb * 32}")
                d += 4
            I("s_waitcnt lgkmcnt(0)")
    if WL and not P['peel']:
        I("s_waitcnt vmcnt(0)")
        w_late_tr()
    stamp(9)
    def w_issue(b):
        for i in range(4): I(f"global_load_dwordx4 v[{b+4*i}:{b+4*i+3}], v14, s[26:27] offset:{2*PREC*i} sc1")
        for i in range(4): I(f"global_load_dwordx2 v[{b+16+2*i}:{b+17+2*i}], v15, s[26:27] offset:{2*PREC*i} sc1")
    def w_first(b):
        m = b + 16
        I(f"""
        v_max3_f32 v2, v{m}, v{m+2}, v{m+4}
        v_max_f32 v2, v2, v{m+6}
        v_mov_b32 v3, v2
        v_permlane32_swap_b32 v2, v3
        v_max_f32 v2, v2, v3
        v_sub_f32 v{m}, v{m}, v2
        v_sub_f32 v{m+2}, v{m+2}, v2
        v_sub_f32 v{m+4}, v{m+4}, v2
        v_sub_f32 v{m+6}, v{m+6}, v2
        v_exp_f32 v{m}, v{m}
        v_exp_f32 v{m+2}, v{m+2}
        v_exp_f32 v{m+4}, v{m+4}
        v_exp_f32 v{m+6}, v{m+6}
        v_pk_mul_f32 v[12:13], v[{b}:{b+1}], v[{m}:{m+1}] op_sel_hi:[1,0]
        v_pk_mul_f32 v[2:3], v[{b+2}:{b+3}], v[{m}:{m+1}] op_sel_hi:[1,0]
        v_mul_f32 v4, v{m}, v{m+1}
        """)
        for i in range(1, 4):
            I(f"v_pk_fma_f32 v[12:13], v[{b+4*i}:{b+4*i+1}], v[{m+2*i}:{m+2*i+1}], v[12:13] op_sel_hi:[1,0,1]")
            I(f"v_pk_fma_f32 v[2:3], v[{b+4*i+2}:{b+4*i+3}], v[{m+2*i}:{m+2*i+1}], v[2:3] op_sel_hi:[1,0,1]")
            I(f"v_fmac_f32 v4, v{m+2*i}, v{m+2*i+1}")
    poll2("L_w_poll", w_issue, 8, list(range(16, 40)), list(range(40, 64)), 13, w_first, 'W', peel=(w_late_tr if WL and P['peel'] else None))
    stamp(10)
    I("""
    v_mov_b32 v128, v12
    v_mov_b32 v129, v13
    v_mov_b32 v130, v2
    v_mov_b32 v131, v3
    v_mov_b32 v132, v4
    v_permlane32_swap_b32 v12, v128
    v_permlane32_swap_b32 v13, v129
    v_permlane32_swap_b32 v2, v130
    v_permlane32_swap_b32 v3, v131
    v_permlane32_swap_b32 v4, v132
    v_add_f32 v4, v4, v132
    v_pk_add_f32 v[12:13], v[12:13], v[128:129]
    v_rcp_f32 v132, v4
    v_pk_add_f32 v[2:3], v[2:3], v[130:131]
    v_pk_mul_f32 v[12:13], v[12:13], v[132:133] op_sel_hi:[1,0]
    v_pk_mul_f32 v[2:3], v[2:3], v[132:133] op_sel_hi:[1,0]
    v_cvt_pk_bf16_f32 v12, v12, v13
    v_cvt_pk_bf16_f32 v13, v2, v3
    ds_write_b64 v7, v[12:13]
    s_waitcnt lgkmcnt(0)
    """)
    gemv_kslice(10, WB, 144, 128)
    part_to_lds(144, 11, 5)
    I(f"""
    s_cmp_eq_u32 s40, 0
    s_cbranch_scc0 L_end
    global_store_dword v6, v12, s[26:27] sc1
    """)
    stamp(11)
    flush_stamps()
    I("s_endpgm")

    a.label("L_t_f")
    cur_role[0] = "F"
    if P['ptouch']:
        I("""
        s_load_dword s68, s[16:17], 0
        s_load_dword s69, s[18:19], 0
        s_load_dword s70, s[20:21], 0
        s_waitcnt lgkmcnt(0)
        """)
    stage_setup()
    tr_addr(14, 64)
    I(f"""
    s_lshl_b32 s46, s44, 6
    s_mul_i32 s47, s40, {128 * 2752}
    s_add_u32 s46, s46, s47
    v_lshrrev_b32 v10, 2, v1
    v_mul_u32_u24 v10, 2752, v10
    v_and_b32 v11, 3, v1
    v_lshlrev_b32 v11, 4, v11
    v_add_u32 v10, v10, v11
    v_add_u32 v10, s46, v10
    v_mov_b32 v13, s17
    v_add_co_u32 v12, vcc, s16, v10
    v_addc_co_u32 v13, vcc, 0, v13, vcc
    v_mov_b32 v17, s19
    v_add_co_u32 v16, vcc, s18, v10
    v_addc_co_u32 v17, vcc, 0, v17, vcc
    """)
    DB = WB + 64
    LATE_G = 'g' in P['f_late']; LATE_D = 'd' in P['f_late']
    GU_OFFS = [(0, 256), (32, 256 + 32), (2048, 2048 + 256), (2048 + 32, 2048 + 256 + 32)]
    D_OFFS = [(nb * 32, 4 * 128 + nb * 32) for nb in range(4)]
    GE = P['g_early'] if LATE_G else 4
    if LATE_G:
        for ks in range(GE):
            dma(12, 0, 16 * 2752); dma(12, 1, 16 * 2752)
            dma(16, 2, 16 * 2752); dma(16, 3, 16 * 2752)
            tr_reads(14, GU_OFFS, WB + 16 * ks)
    if not LATE_G:
        for ks in range(4):
            if ks == 3 and not LATE_D: wait_vphase("L_f_vp")
            if ks == 2 and LATE_D: wait_vphase("L_f_vp")
            dma(12, 0, 16 * 2752); dma(12, 1, 16 * 2752)
            dma(16, 2, 16 * 2752); dma(16, 3, 16 * 2752)
            tr_reads(14, GU_OFFS, WB + 16 * ks)
    if not LATE_D:
        tr_addr(14, 128)
        for rr in range(2):
            if LATE_G and rr == 1: wait_vphase("L_f_vp")
            I(f"""
            s_lshl_b32 s46, s44, 15
            s_lshl_b32 s47, s40, 8
            s_add_u32 s46, s46, s47
            s_add_u32 s46, s46, {128*rr}
            v_lshrrev_b32 v10, 3, v1
            v_lshlrev_b32 v10, 10, v10
            v_and_b32 v11, 7, v1
            v_lshlrev_b32 v11, 4, v11
            v_add_u32 v10, v10, v11
            v_add_u32 v10, s46, v10
            v_mov_b32 v13, s21
            v_add_co_u32 v12, vcc, s20, v10
            v_addc_co_u32 v13, vcc, 0, v13, vcc
            """)
            for u in range(4): dma(12, u, 8 * 1024)
            tr_reads(14, D_OFFS, DB + 16 * rr)
    if LATE_G or LATE_D:
        I(f"""
        s_mov_b32 s64, s16
        s_and_b32 s65, s17, 0xffff
        s_mov_b32 s66, {512 * 2752}
        s_mov_b32 s67, 0x20000
        s_mov_b32 s68, s18
        s_and_b32 s69, s19, 0xffff
        s_mov_b32 s70, {512 * 2752}
        s_mov_b32 s71, 0x20000
        s_mov_b32 s72, s20
        s_and_b32 s73, s21, 0xffff
        s_mov_b32 s74, {1376 * 1024}
        s_mov_b32 s75, 0x20000
        v_lshrrev_b32 v44, 2, v1
        v_mul_u32_u24 v44, 2752, v44
        v_and_b32 v11, 3, v1
        v_lshlrev_b32 v11, 4, v11
        v_add_u32 v44, v44, v11
        v_lshrrev_b32 v45, 3, v1
        v_lshlrev_b32 v45, 10, v45
        v_and_b32 v11, 7, v1
        v_lshlrev_b32 v11, 4, v11
        v_add_u32 v45, v45, v11
        s_mul_i32 s55, s40, 24576
        s_mul_i32 s56, s40, {128 * 2752}
        s_lshl_b32 s57, s44, 6
        s_add_u32 s56, s56, s57
        s_lshl_b32 s57, s44, 15
        s_lshl_b32 s58, s40, 8
        s_add_u32 s57, s57, s58
        s_mov_b32 s41, s55
        """)
        tr_addr(46, 64)
        I("s_add_u32 s41, s55, 16384")
        tr_addr(47, 128)
    I(f"""
    v_and_b32 v10, 31, v1
    v_lshlrev_b32 v11, 3, v10
    s_lshl_b32 s46, s40, 8
    v_add_u32 v11, s46, v11
    global_load_dwordx2 v[6:7], v11, s[4:5]
    s_waitcnt vmcnt(0)
    """)
    stamp(12)
    FPRE = P['pre'] and LATE_G and GE < 4
    def f_pre():
        for u in range(4):
            I(f"s_add_u32 m0, s59, {u * 1024}")
            I(f"s_add_u32 s58, s56, {(32 * GE + 16 * (u & 1)) * 2752}")
            I(f"buffer_load_dwordx4 v44, s[{64 if u < 2 else 68}:{67 if u < 2 else 71}], s58 offen {SNT} lds")
    if FPRE:
        I(f"s_lshl_b32 s59, s40, 12")
        I(f"s_add_u32 s59, s59, {STG}")
        I("s_mov_b32 s41, s59")
        tr_addr(43, 64)
    wait_flags_and_go("L_f", f_pre if FPRE else None)
    nlate_d = 0
    if LATE_G:
        for ks in range(GE + (1 if FPRE else 0), 4):
            for u in range(4):
                I(f"s_add_u32 m0, s55, {ks * 4096 + u * 1024}")
                I(f"s_add_u32 s58, s56, {(32 * ks + 16 * (u & 1)) * 2752}")
                I(f"buffer_load_dwordx4 v44, s[{64 if u < 2 else 68}:{67 if u < 2 else 71}], s58 offen {SNT} lds")
    if LATE_D:
        for rr in range(2):
            for u in range(4):
                I(f"s_add_u32 m0, s55, {16384 + rr * 4096 + u * 1024}")
                I(f"s_add_u32 s58, s57, {rr * 128 + u * 8192}")
                I(f"buffer_load_dwordx4 v45, s[72:75], s58 offen {SNT} lds")
                nlate_d += 1
    I(f"""
    v_lshlrev_b32 v48, 16, v6
    v_and_b32 v49, s43, v6
    v_lshlrev_b32 v50, 16, v7
    v_and_b32 v51, s43, v7
    v_and_b32 v10, 31, v1
    v_lshlrev_b32 v14, 4, v10
    v_lshrrev_b32 v11, 5, v1
    v_lshlrev_b32 v11, 11, v11
    v_add_u32 v14, v14, v11
    s_lshl_b32 s46, s40, 9
    s_add_u32 s46, s46, {WS_Y}
    v_add_u32 v14, s46, v14
    v_add_u32 v15, 4096, v14
    v_add_u32 v2, 8192, v14
    v_add_u32 v3, 12288, v14
    s_lshl_b32 s47, s40, 3
    s_add_u32 s47, s47, {M['OALL']}
    v_mov_b32 v52, s47
    v_mov_b32 v53, {M['OALL']}
    s_lshl_b32 s47, s40, 8
    s_add_u32 s47, s47, {M['XN2']}
    v_lshlrev_b32 v54, 3, v10
    v_add_u32 v54, s47, v54
    v_lshlrev_b32 v55, 4, v8
    v_add_u32 v55, s47, v55
    s_lshl_b32 s47, s40, 6
    s_add_u32 s47, s47, {M['HH']}
    v_lshlrev_b32 v58, 1, v10
    v_add_u32 v58, s47, v58
    v_lshlrev_b32 v59, 4, v8
    v_add_u32 v59, s47, v59
    s_lshl_b32 s47, s44, 11
    s_lshl_b32 s46, s40, 9
    s_add_u32 s47, s47, s46
    s_add_u32 s47, s47, {WS_P}
    v_lshlrev_b32 v60, 2, v1
    v_add_u32 v60, s47, v60
    s_mov_b32 s60, 0xffff0000
    s_mov_b32 s61, 0xffff0000
    s_mov_b32 s62, 0
    s_mov_b32 s63, -1
    """)
    yp_addrs(56, 57)
    def late_tr(base, offs_list, dst):
        d = dst; n = 0
        for off in offs_list:
            I(f"ds_read_b64_tr_b16 v[{d}:{d+1}], v{base} offset:{off[0]}")
            I(f"ds_read_b64_tr_b16 v[{d+2}:{d+3}], v{base} offset:{off[1]}")
            d += 4; n += 2
            if n % 8 == 0: I("s_waitcnt lgkmcnt(0)")
    def f_late_tr():
        if LATE_G: late_tr(46, [(o[0] + ks * 4096, o[1] + ks * 4096) for ks in range(GE, 4) for o in GU_OFFS], WB + 16 * GE)
        if LATE_D: late_tr(47, [(o[0] + rr * 4096, o[1] + rr * 4096) for rr in range(2) for o in D_OFFS], DB)
    FPEEL = (LATE_G or LATE_D) and P['peel']
    if not FPEEL:
        if LATE_G:
            I(f"s_waitcnt vmcnt({nlate_d})")
            if FPRE:
                late_tr(43, GU_OFFS, WB + 16 * GE)
                late_tr(46, [(o[0] + ks * 4096, o[1] + ks * 4096) for ks in range(GE + 1, 4) for o in GU_OFFS], WB + 16 * (GE + 1))
            else:
                late_tr(46, [(o[0] + ks * 4096, o[1] + ks * 4096) for ks in range(GE, 4) for o in GU_OFFS], WB + 16 * GE)
        if LATE_D:
            I("s_waitcnt vmcnt(0)")
            late_tr(47, [(o[0] + rr * 4096, o[1] + rr * 4096) for rr in range(2) for o in D_OFFS], DB)
    stamp(13)
    def f_issue(b):
        for i, ad in enumerate((14, 15, 2, 3)):
            I(f"global_load_dwordx4 v[{b+4*i}:{b+4*i+3}], v{ad}, s[26:27] sc1")
    def f_first(b):
        I(f"""
        v_pk_add_f32 v[4:5], v[{b}:{b+1}], v[{b+4}:{b+5}]
        v_pk_add_f32 v[6:7], v[{b+2}:{b+3}], v[{b+6}:{b+7}]
        v_pk_add_f32 v[10:11], v[{b+8}:{b+9}], v[{b+12}:{b+13}]
        v_pk_add_f32 v[12:13], v[{b+10}:{b+11}], v[{b+14}:{b+15}]
        v_pk_add_f32 v[4:5], v[4:5], v[10:11]
        v_pk_add_f32 v[6:7], v[6:7], v[12:13]
        """)
    poll2("L_f_poll", f_issue, 4, list(range(16, 32)), list(range(32, 48)), 61, f_first, 'F', peel=(f_late_tr if FPEEL else None))
    stamp(14)
    I(f"""
    v_mov_b32 v160, v4
    v_mov_b32 v161, v5
    v_mov_b32 v162, v6
    v_mov_b32 v163, v7
    v_permlane32_swap_b32 v4, v160
    v_permlane32_swap_b32 v5, v161
    v_permlane32_swap_b32 v6, v162
    v_permlane32_swap_b32 v7, v163
    v_pk_add_f32 v[4:5], v[4:5], v[160:161]
    v_pk_add_f32 v[6:7], v[6:7], v[162:163]
    v_cvt_pk_bf16_f32 v160, v4, v5
    v_cvt_pk_bf16_f32 v161, v6, v7
    v_lshlrev_b32 v4, 16, v160
    v_and_b32 v5, s43, v160
    v_lshlrev_b32 v6, 16, v161
    v_and_b32 v7, s43, v161
    v_pk_add_f32 v[4:5], v[4:5], v[48:49]
    v_pk_add_f32 v[6:7], v[6:7], v[50:51]
    v_cvt_pk_bf16_f32 v160, v4, v5
    v_cvt_pk_bf16_f32 v161, v6, v7
    v_lshlrev_b32 v4, 16, v160
    v_and_b32 v5, s43, v160
    v_lshlrev_b32 v6, 16, v161
    v_and_b32 v7, s43, v161
    v_add_f32 v8, v4, v5
    v_mul_f32 v9, v4, v4
    v_add_f32 v10, v6, v7
    v_fmac_f32 v9, v5, v5
    v_add_f32 v8, v8, v10
    v_fmac_f32 v9, v6, v6
    v_fmac_f32 v9, v7, v7
    """)
    for r in (8, 4, 2, 1):
        I(f"v_add_f32_dpp v8, v8, v8 row_ror:{r} row_mask:0xf bank_mask:0xf")
        I(f"v_add_f32_dpp v9, v9, v9 row_ror:{r} row_mask:0xf bank_mask:0xf")
    I(f"""
    v_mov_b32 v10, v8
    v_mov_b32 v11, v9
    s_nop 0
    v_permlane16_swap_b32 v8, v10
    v_permlane16_swap_b32 v9, v11
    v_add_f32 v8, v8, v10
    v_add_f32 v9, v9, v11
    ds_write_b64 v52, v[8:9]
    s_waitcnt lgkmcnt(0)
    s_barrier
    ds_read_b128 v[8:11], v53
    ds_read_b128 v[12:15], v53 offset:16
    s_waitcnt lgkmcnt(0)
    v_pk_add_f32 v[8:9], v[8:9], v[10:11]
    v_pk_add_f32 v[12:13], v[12:13], v[14:15]
    v_pk_add_f32 v[8:9], v[8:9], v[12:13]
    v_mul_f32 v8, 0x3b000000, v8
    v_mul_f32 v9, 0x3b000000, v9
    v_cvt_pk_bf16_f32 v10, v8, v8
    v_fma_f32 v9, -v8, v8, v9
    v_and_b32 v10, s43, v10
    v_max_f32 v9, 0, v9
    v_cvt_pk_bf16_f32 v9, v9, v9
    v_sub_f32 v4, v4, v10
    v_and_b32 v9, s43, v9
    v_sub_f32 v5, v5, v10
    v_add_f32 v9, {hex(EPS)}, v9
    v_sub_f32 v6, v6, v10
    v_cvt_pk_bf16_f32 v9, v9, v9
    v_sub_f32 v7, v7, v10
    v_and_b32 v9, s43, v9
    v_cvt_pk_bf16_f32 v160, v4, v5
    v_sqrt_f32 v9, v9
    v_cvt_pk_bf16_f32 v161, v6, v7
    v_lshlrev_b32 v4, 16, v160
    v_cvt_pk_bf16_f32 v9, v9, v9
    v_and_b32 v5, s43, v160
    v_and_b32 v12, s43, v9
    v_lshlrev_b32 v6, 16, v161
    v_rcp_f32 v12, v12
    v_and_b32 v7, s43, v161
    v_pk_mul_f32 v[4:5], v[4:5], v[12:13] op_sel_hi:[1,0]
    v_pk_mul_f32 v[6:7], v[6:7], v[12:13] op_sel_hi:[1,0]
    v_cvt_pk_bf16_f32 v160, v4, v5
    v_cvt_pk_bf16_f32 v161, v6, v7
    ds_write_b64 v54, v[160:161]
    s_waitcnt vmcnt(0) lgkmcnt(0)
    """)
    gemv_kslice(55, WB, 32, 16)
    part_to_lds(32, 56, 57)
    I(f"""
    v_cvt_pk_bf16_f32 v12, v12, v12
    v_and_b32 v12, s43, v12
    v_mov_b32 v13, v12
    v_permlane32_swap_b32 v12, v13
    v_mul_f32 v12, v12, v13
    v_cvt_pk_bf16_f32 v12, v12, v12
    ds_write_b16 v58, v12
    s_waitcnt lgkmcnt(0)
    ds_read_b128 v[16:19], v59
    s_waitcnt lgkmcnt(0)
    """)
    for nb in range(8):
        I(f"v_mfma_f32_16x16x32_bf16 v[{20+4*nb}:{23+4*nb}], v[16:19], v[{DB+4*nb}:{DB+4*nb+3}], 0")
    for j in range(2):
        b = 20 + 16 * j
        I(f"v_cndmask_b32 v{12+2*j}, v{b}, v{b+4}, s[60:61]")
        I(f"v_cndmask_b32 v{13+2*j}, v{b+8}, v{b+12}, s[60:61]")
        I(f"v_cndmask_b32 v{12+2*j}, v{12+2*j}, v{13+2*j}, s[62:63]")
        I(f"global_store_dword v60, v{12+2*j}, s[26:27] offset:{256*j} sc1")
    stamp(15)
    flush_stamps()
    I("s_endpgm")

    def resid(xr, out):
        I(f"""
        v_cvt_pk_bf16_f32 v16, v16, v17
        v_cvt_pk_bf16_f32 v17, v18, v19
        v_lshlrev_b32 v20, 16, v16
        v_and_b32 v21, s43, v16
        v_lshlrev_b32 v22, 16, v17
        v_and_b32 v23, s43, v17
        v_lshlrev_b32 v24, 16, v{xr}
        v_and_b32 v25, s43, v{xr}
        v_lshlrev_b32 v26, 16, v{xr+1}
        v_and_b32 v27, s43, v{xr+1}
        v_pk_add_f32 v[20:21], v[20:21], v[24:25]
        v_pk_add_f32 v[22:23], v[22:23], v[26:27]
        v_cvt_pk_bf16_f32 v{out}, v20, v21
        v_cvt_pk_bf16_f32 v{out+1}, v22, v23
        """)
    a.label("L_t_o")
    I(f"""
    v_and_b32 v10, 7, v1
    v_lshlrev_b32 v11, 3, v10
    s_lshl_b32 s46, s44, 6
    v_add_u32 v11, s46, v11
    global_load_dwordx2 v[6:7], v11, s[4:5]
    v_mov_b32 v3, v11
    v_lshlrev_b32 v14, 4, v10
    v_lshrrev_b32 v12, 3, v1
    v_lshlrev_b32 v12, 11, v12
    v_add_u32 v14, v14, v12
    s_lshl_b32 s46, s44, 7
    v_add_u32 v14, s46, v14
    v_add_u32 v15, {WS_Y}, v14
    s_add_u32 s32, s26, {WS_P}
    s_addc_u32 s33, s27, 0
    s_and_b32 s33, s33, 0xffff
    s_mov_b32 s34, {NF * 2048}
    s_mov_b32 s35, 0x20000
    v_mov_b32 v4, {M['QREADY']}
    s_waitcnt vmcnt(0)
    """)
    if P['touch_out']:
        I("""
        v_mov_b32 v16, 0
        v_mov_b32 v17, 0
        s_mov_b64 exec, 0xff
        global_store_dwordx2 v3, v[16:17], s[22:23]
        s_mov_b64 exec, -1
        """)
    lds_wait("L_o_qw", 4, 5, 8)
    wait_flags_and_go("L_o")
    stamp(16)
    def red_r8(base, tmp):
        for c in range(4): I(f"v_add_f32_dpp v{base+c}, v{base+c}, v{base+c} row_ror:8 row_mask:0xf bank_mask:0xf")
        for c in range(4): I(f"v_mov_b32 v{tmp+c}, v{base+c}")
        for c in range(4): I(f"v_permlane16_swap_b32 v{base+c}, v{tmp+c}")
        for c in range(4): I(f"v_add_f32 v{base+c}, v{base+c}, v{tmp+c}")
        for c in range(4): I(f"v_mov_b32 v{tmp+c}, v{base+c}")
        for c in range(4): I(f"v_permlane32_swap_b32 v{base+c}, v{tmp+c}")
        for c in range(4): I(f"v_add_f32 v{base+c}, v{base+c}, v{tmp+c}")
    I("v_mov_b32 v70, v3")
    def oy_issue(b): I(f"global_load_dwordx4 v[{b}:{b+3}], v15, s[26:27] sc1")
    def oy_first(b):
        for c in range(4): I(f"v_mov_b32 v{72+c}, v{b+c}")
    poll2("L_o_polly", oy_issue, 1, list(range(16, 20)), list(range(24, 28)), 28, oy_first, 'y')
    red_r8(72, 76)
    I(f"""
    v_cvt_pk_bf16_f32 v72, v72, v73
    v_cvt_pk_bf16_f32 v73, v74, v75
    v_lshlrev_b32 v76, 16, v72
    v_and_b32 v77, s43, v72
    v_lshlrev_b32 v78, 16, v73
    v_and_b32 v79, s43, v73
    v_lshlrev_b32 v80, 16, v6
    v_and_b32 v81, s43, v6
    v_lshlrev_b32 v82, 16, v7
    v_and_b32 v83, s43, v7
    v_pk_add_f32 v[76:77], v[76:77], v[80:81]
    v_pk_add_f32 v[78:79], v[78:79], v[82:83]
    v_cvt_pk_bf16_f32 v72, v76, v77
    v_cvt_pk_bf16_f32 v73, v78, v79
    v_lshlrev_b32 v66, 16, v72
    v_and_b32 v67, s43, v72
    v_lshlrev_b32 v68, 16, v73
    v_and_b32 v69, s43, v73
    s_waitcnt vmcnt(0)
    """)
    stamp(17)
    def op_issue(b):
        for u in range(6):
            I(f"s_mov_b32 s46, {u * 8 * 2048}")
            I(f"buffer_load_dwordx4 v[{b+4*u}:{b+4*u+3}], v14, s[32:35], s46 offen sc1")
    def op_first(b):
        I(f"""
        v_pk_add_f32 v[72:73], v[{b}:{b+1}], v[{b+4}:{b+5}]
        v_pk_add_f32 v[74:75], v[{b+2}:{b+3}], v[{b+6}:{b+7}]
        v_pk_add_f32 v[76:77], v[{b+8}:{b+9}], v[{b+12}:{b+13}]
        v_pk_add_f32 v[78:79], v[{b+10}:{b+11}], v[{b+14}:{b+15}]
        v_pk_add_f32 v[80:81], v[{b+16}:{b+17}], v[{b+20}:{b+21}]
        v_pk_add_f32 v[82:83], v[{b+18}:{b+19}], v[{b+22}:{b+23}]
        v_pk_add_f32 v[72:73], v[72:73], v[76:77]
        v_pk_add_f32 v[74:75], v[74:75], v[78:79]
        v_pk_add_f32 v[72:73], v[72:73], v[80:81]
        v_pk_add_f32 v[74:75], v[74:75], v[82:83]
        """)
    poll2("L_o_pollp", op_issue, 6, list(range(16, 40)), list(range(40, 64)), 71, op_first, 'O')
    stamp(18)
    red_r8(72, 76)
    I(f"""
    v_cvt_pk_bf16_f32 v72, v72, v73
    v_cvt_pk_bf16_f32 v73, v74, v75
    v_lshlrev_b32 v76, 16, v72
    v_and_b32 v77, s43, v72
    v_lshlrev_b32 v78, 16, v73
    v_and_b32 v79, s43, v73
    v_pk_add_f32 v[76:77], v[76:77], v[66:67]
    v_pk_add_f32 v[78:79], v[78:79], v[68:69]
    v_cvt_pk_bf16_f32 v72, v76, v77
    v_cvt_pk_bf16_f32 v73, v78, v79
    s_mov_b64 exec, 0xff
    global_store_dwordx2 v70, v[72:73], s[22:23] {P['out_sc']}
    s_mov_b64 exec, -1
    """)
    stamp(19)
    flush_stamps()
    a.label("L_end")
    I("s_endpgm")
    a.raw('.section .rodata,"a"')
    a.raw(".p2align 6")
    a.raw(f".amdhsa_kernel {KN}_kernel")
    a.raw("  .amdhsa_next_free_vgpr 168")
    a.raw("  .amdhsa_next_free_sgpr 96")
    a.raw("  .amdhsa_accum_offset 168")
    a.raw("  .amdhsa_group_segment_fixed_size 0")
    a.raw("  .amdhsa_kernarg_size 96")
    a.raw("  .amdhsa_user_sgpr_count 2")
    a.raw("  .amdhsa_user_sgpr_kernarg_segment_ptr 1")
    a.raw("  .amdhsa_system_sgpr_workgroup_id_x 1")
    a.raw(".end_amdhsa_kernel")
    return a.text()

if __name__ == "__main__":
    out = sys.argv[1]
    kw = json.loads(sys.argv[2]) if len(sys.argv) > 2 else {}
    open(out, "w").write(gen(**kw))
    print("wrote", out)
```

```python
import sys, json
from asmlib import Asm

KN = "sequential_preLN__gqa_block_cached__glu_gated_bilinear__decode"

DEF = dict(D=18, R=8, S=112, C=2, stamps=False, dump=False, nt="nt", sleep_c=1, sleep_t=1, prio=True,
           skip_stage=False, skip_role="", f_late="gd", g_early=0, w_late=3, w_split=False, peel=False, pre=True, w_reg=2, f_reg=1, segs=None, stage_nt="nt", qsleep=2, q_nt="nt", knt=None, vnt=None, tag_sc1=True, budget=0x40000, map="rot", out_sc="", aligned=True, stag=5, dbl="", wsleep=0, fsleep=0, osleep=0, cprio=0, tprio=0, qdelay=0, De=None, Te=8, stage_at="ready", rolemap="bal", w_at_start=False, Dd=24, qst=False, vtouch=True, ptouch=False, touch_out=False, hoist=True)

def lds_map(R, S):
    ring = R * 16384
    m = {}
    m['RING'] = 0
    m['STAGE'] = ring
    f = ring + 16384
    m['FILLED'] = f
    m['QPUB'] = f + 60
    m['PCNT'] = f + 12
    m['NEXT'] = f + 16
    m['FINCNT'] = f + 32
    m['CLEARED'] = f + 36
    m['TAILGO'] = f + 40
    m['QREADY'] = f + 44
    m['NONCE'] = f + 48
    m['KALL'] = f + 56
    m['TID'] = f + 128
    m['PMAX'] = f + 64
    m['XXT'] = f + 256
    m['FINO'] = m['XXT']
    m['QB'] = m['XXT'] + 2048
    m['FINML'] = m['QB'] + 256
    m['OALL'] = m['FINML'] + 64
    m['XN2'] = m['OALL'] + 1024
    m['HH'] = m['XN2'] + 1024
    m['YP'] = m['HH'] + 256
    m['SC'] = m['YP'] + 1024
    m['SCF'] = m['SC'] + S * 64
    m['END'] = m['SCF'] + 2 * R * 64
    return m

WS_PO = 0x0
PREC = 640
WS_Y = 0x29000
WS_P = 0x30000
WS_QX = 0x48000
WS_TK = 0x88000
WS_CLR = 0x8C000
WS_KD = 0x90000
WS_SCX = 0x100000
WS_STAMP = 0x20000000
NF = 43

LOG2E = 0x3fb8aa3b
SCALE = 0x3db504f3
EPS = 0x3727c5ac

def gen(**kw):
    P = dict(DEF); P.update(kw)
    D = P['D']; R = P['R']; NT = P['nt']; S = P['S']; NP = 128 - S
    M = lds_map(R, S)
    ldsz = (M['END'] + 255) // 256 * 256
    assert ldsz <= 163840, ldsz
    a = Asm(); I = a.I
    stamps = P['stamps']

    def spin():
        I("s_sub_u32 s89, s89, 1")
        I("s_cbranch_scc1 L_end")

    pend = []
    def stamp(slot):
        if not stamps: return
        k = len(pend); assert k < 6
        pend.append(slot)
        I(f"s_memrealtime s[{76+2*k}:{77+2*k}]")
    def flush_stamps(keep=0):
        if not stamps: return
        I("s_waitcnt lgkmcnt(0)")
        I("s_lshl_b32 s92, s2, 8")
        I(f"s_add_u32 s92, s92, {WS_STAMP}")
        I("s_add_u32 s92, s26, s92")
        I("s_addc_u32 s93, s27, 0")
        I("v_mov_b32 v166, 0")
        I("s_mov_b64 s[94:95], exec")
        I("s_mov_b64 exec, 1")
        for k, slot in enumerate(pend):
            I(f"v_mov_b32 v164, s{76+2*k}")
            I(f"v_mov_b32 v165, s{77+2*k}")
            I(f"global_store_dwordx2 v166, v[164:165], s[92:93] offset:{8*slot}")
        I("s_mov_b64 exec, s[94:95]")
        del pend[keep:]

    def lds_wait(lbl, addr_reg, tmp, sleep):
        a.label(lbl)
        spin()
        I(f"ds_read_b32 v{tmp}, v{addr_reg}")
        I("s_waitcnt lgkmcnt(0)")
        I(f"v_readfirstlane_b32 s42, v{tmp}")
        I("s_cmp_lg_u32 s42, 0")
        I(f"s_cbranch_scc1 {lbl}_ok")
        I(f"s_sleep {sleep}")
        I(f"s_branch {lbl}")
        a.label(f"{lbl}_ok")

    a.raw(f"; @launch grid=(256,1,1) block=(576,1,1) lds={ldsz}")
    for ln in """
Fused single-launch decode layer: h = x + Attn(LN(x)) ; out = h + Wd((LN(h) Wg) * (LN(h) Wu)).  One workgroup per CU, 9 waves.
Workgroup id -> head = id>>3, member = (id + head) & 7 : the 8 members of a head split its 32768 keys into tiles of 32 keys.
  wave 0      streams first the K tiles, then the V tiles HBM -> LDS ring (LDS-DMA, a fixed window of loads in flight); the whole
              chip reads one tensor at a time. Most tiles are assigned statically; the last 8 tiles of every member's range form a
              per-head pool that is handed out tile by tile through atomic tickets, once for K and once for V (load balance).
  waves 1-4   K phase: QK^T with MFMA, scores rounded to bf16 as the reference does; kept in LDS (own tiles) or published in d_ws
              (pool tiles). V phase: softmax against the true maximum (running maximum for pool tiles), PV with MFMA.
              Wave 1 first computes the workgroup's share of q = LN(x) Wq (64 of the 512 rows); the members exchange the shares.
  waves 5-8   fetch their slice of Wo / Wg,Wu,Wd into registers (part of it while the stream runs, part of it right after it, when HBM
              is idle), then run the tail:
              W (64 workgroups): combine the 32 partials of 4 heads, times a 512x64 tile of Wo ;
              F (43 workgroups): h, LayerNorm, 32 gate/up columns, their 32 rows of Wd ;  O (16 workgroups): sum, residual, store.
Hand-offs between workgroups go through d_ws with write-through (sc1) stores and sc1 polling loads. Words are either reset to all-ones by
their producer early in the launch (and validated word by word), or carry the launch tag that workgroup 0 puts into d_debug at its start.
Every polling loop is bounded.""".strip().split("\n"):
        a.raw("; " + ln)
    a.raw('.amdgcn_target "amdgcn-amd-amdhsa--gfx950"')
    a.raw(".text")
    a.raw(f".globl {KN}_kernel")
    a.raw(".p2align 8")
    a.raw(f".type {KN}_kernel,@function")
    a.raw(f"{KN}_kernel:")
    I("s_cmp_ge_u32 s2, 256")
    I("s_cbranch_scc1 L_end")
    I("s_load_dwordx16 s[4:19], s[0:1], 0")
    I("s_load_dwordx8 s[20:27], s[0:1], 64")
    I("v_lshrrev_b32 v2, 6, v0")
    I("v_and_b32 v1, 63, v0")
    I("v_readfirstlane_b32 s28, v2")
    if P['map'] == "rot":
        I("s_lshr_b32 s29, s2, 3")
        I("s_add_u32 s30, s2, s29")
        I("s_and_b32 s30, s30, 7")
    elif P['map'] == "div":
        I("s_lshr_b32 s29, s2, 3")
        I("s_and_b32 s30, s2, 7")
    else:
        I("s_and_b32 s29, s2, 31")
        I("s_lshr_b32 s30, s2, 5")
    I("s_lshl_b32 s3, s29, 3")
    I("s_add_u32 s3, s3, s30")
    if P['map'] == "rot":
        I("s_mov_b32 s31, s30")
    else:
        I("s_sub_u32 s31, s30, s29")
        I("s_and_b32 s31, s31, 7")
    I(f"s_mov_b32 s89, {P['budget']}")
    I("s_waitcnt lgkmcnt(0)")
    I("s_cmp_eq_u32 s28, 0")
    I("s_cbranch_scc1 L_loader")
    I("s_cmp_lt_u32 s28, 5")
    I("s_cbranch_scc1 L_consumer")
    I("s_branch L_tail")

    a.label("L_loader")
    if P['prio']: I("s_setprio 3")
    stamp(0)
    I(f"""
    s_mov_b32 s32, s6
    s_and_b32 s33, s7, 0xffff
    s_mov_b32 s34, 0x10000000
    s_mov_b32 s35, 0x20000
    s_mov_b32 s36, s8
    s_and_b32 s37, s9, 0xffff
    s_mov_b32 s38, 0x10000000
    s_mov_b32 s39, 0x20000
    s_lshl_b32 s44, s29, 23
    v_lshrrev_b32 v8, 4, v1
    v_and_b32 v9, 15, v1
    v_lshlrev_b32 v10, 8, v8
    v_add_u32 v10, s44, v10
    """)
    for tt in range(4):
        I(f"v_add_u32 v11, {4*tt}, v8")
        I("v_xor_b32 v11, v11, v9")
        I("v_lshlrev_b32 v11, 4, v11")
        I(f"v_add_u32 v{2+tt}, v10, v11")
    for tp in range(2):
        I(f"v_add_u32 v11, {4*tp}, v8")
        I("v_lshlrev_b32 v11, 1, v11")
        I("v_xor_b32 v11, v11, v9")
        I("v_lshlrev_b32 v11, 4, v11")
        I(f"v_add_u32 v{6+tp}, v10, v11")
    RS = 2 * R
    Dd = P['Dd'] or D
    Dp = max(D, Dd)
    u0 = (Dp - 1) % 8
    cnt0 = (u0 - Dp + 1) // 8 - 1
    I(f"""
    s_mul_i32 s46, s30, {128 * 8192}
    s_mov_b32 s48, 0
    s_mov_b32 s49, {cnt0}
    s_mov_b32 s50, 0
    v_mov_b32 v12, {M['FILLED']}
    v_mov_b32 v13, {M['NEXT']}
    """)
    KNT = NT if P['knt'] is None else P['knt']
    VNT = NT if P['vnt'] is None else P['vnt']
    def loads_of_tile(isv, first, Dw=None):
        Dw = Dw or D
        for u in range(8):
            if u % 4 == 0:
                I(f"s_add_u32 m0, s48, {(u // 4) * 4096}")
            I(f"s_waitcnt vmcnt({Dw-1})")
            if u == u0:
                I("s_add_u32 s49, s49, 1")
                I("v_mov_b32 v14, s49")
                if not first:
                    I("ds_write_b32 v12, v14")
            so = "s46" if u < 4 else "s47"
            if isv: I(f"buffer_load_dwordx4 v{6 + (u & 1)}, s[36:39], {so} offen offset:{(u % 4) * 1024} {VNT} lds")
            else:   I(f"buffer_load_dwordx4 v{2 + (u & 3)}, s[32:35], {so} offen offset:{(u % 4) * 1024} {KNT} lds")
    assert 16 <= D and Dp <= 24
    if P['vtouch']:
        I("buffer_load_dword v31, v6, s[36:39], s46 offen nt")
    I("s_add_u32 s47, s46, 4096")
    loads_of_tile(False, True)
    I("""
    s_add_u32 s50, s50, 1
    s_add_u32 s46, s46, 8192
    s_add_u32 s47, s46, 4096
    s_add_u32 s48, s48, 8192
    """)
    loads_of_tile(False, True)
    I(f"""
    v_mov_b32 v16, 0
    v_mov_b32 v17, 1
    v_mov_b32 v18, 2
    v_mov_b32 v19, 3
    v_mov_b32 v20, 0
    v_mov_b32 v21, 0
    v_mov_b32 v22, 0
    v_mov_b32 v23, 0
    v_mov_b32 v14, s49
    v_mov_b32 v15, 0x7fffffff
    ds_write_b64 v12, v[14:15]
    v_mov_b32 v24, 0x7fffffff
    v_mov_b32 v25, 0
    ds_write_b64 v12, v[24:25] offset:8
    ds_write_b128 v13, v[16:19]
    ds_write_b128 v13, v[20:23] offset:16
    ds_write_b128 v13, v[20:23] offset:32
    s_waitcnt lgkmcnt(0)
    s_barrier
    """)
    I("ds_read_b128 v[16:19], v13")
    lab = [0]
    def next_tile(isv, advance, Dw=None, extra=None):
        k = lab[0]; lab[0] += 1
        I("s_add_u32 s50, s50, 1")
        if advance: I("s_add_u32 s46, s46, 8192")
        I(f"""
        s_add_u32 s47, s46, 4096
        s_add_u32 s48, s48, 8192
        s_cmp_ge_u32 s48, {RS*8192}
        s_cselect_b32 s48, 0, s48
        s_sub_u32 s52, s50, {RS-1}
        """)
        a.label(f"L_ld_free{k}")
        spin()
        I(f"""
        s_waitcnt lgkmcnt(0)
        v_min3_u32 v20, v16, v17, v18
        v_min_u32 v20, v20, v19
        v_readfirstlane_b32 s51, v20
        ds_read_b128 v[16:19], v13
        s_cmp_ge_i32 s51, s52
        s_cbranch_scc0 L_ld_free{k}
        """)
        if extra == "tid":
            I(f"""
            s_lshr_b32 s53, s48, 11
            s_add_u32 s53, s53, {M['TID']}
            v_mov_b32 v21, s53
            v_mov_b32 v22, s59
            ds_write_b32 v21, v22
            """)
        if extra == "scores":
            I(f"""
            s_lshr_b32 s53, s48, 7
            s_add_u32 m0, s53, {M['SCF']}
            s_lshl_b32 s59, s59, 6
            s_mov_b64 exec, 0xffff
            buffer_load_dword v28, s[40:43], s59 offen sc1 lds
            s_mov_b64 exec, -1
            """)
        loads_of_tile(isv, False, Dw)
    LA = 3
    assert 9 * LA - 1 >= Dp
    assert Dp - u0 <= 21
    NPOOL = 8 * NP
    nst = [0]
    def tstamp():
        if stamps and nst[0] < 7:
            I(f"s_memrealtime s[{60+2*nst[0]}:{61+2*nst[0]}]"); nst[0] += 1
    def ticket(reg):
        I("s_mov_b64 exec, 1")
        I(f"global_atomic_add v{reg}, v25, v26, s[26:27] sc0 sc1")
        I("s_mov_b64 exec, -1")
    def decode(reg, over):
        I(f"""
        v_readfirstlane_b32 s53, v{reg}
        s_and_b32 s55, s53, 7
        s_lshr_b32 s57, s53, 3
        s_lshl_b32 s46, s55, 7
        s_add_u32 s46, s46, s57
        s_add_u32 s46, s46, {S}
        s_lshl_b32 s46, s46, 13
        s_cmp_lt_u32 s53, {NPOOL}
        s_cbranch_scc0 {over}
        s_mov_b32 s59, s53
        """)
    TR = (24, 27, 29)
    nstatic = S - LA
    bounds = ([b for b in (P['segs'] or [16, 32, 64]) if b < nstatic] if stamps else []) + [nstatic]
    for sg, b in enumerate(bounds):
        a.label(f"L_ld_tile{sg}")
        next_tile(False, True)
        I(f"s_cmp_lt_u32 s50, {b - 1}")
        I(f"s_cbranch_scc1 L_ld_tile{sg}")
        if sg < len(bounds) - 1: tstamp()
    I(f"""
    s_lshl_b32 s53, s29, 8
    s_add_u32 s53, s53, {WS_TK}
    v_mov_b32 v25, s53
    v_mov_b32 v26, 1
    """)
    for reg in TR:
        ticket(reg)
        next_tile(False, True, Dd)
    a.label("L_ld_kdyn")
    for reg in TR:
        decode(reg, "L_ld_kover")
        ticket(reg)
        next_tile(False, False, Dd, extra="tid")
    I("s_branch L_ld_kdyn")
    a.label("L_ld_kover")
    tstamp()
    I(f"""
    s_add_u32 s56, s50, 1
    v_mov_b32 v14, s56
    ds_write_b32 v12, v14 offset:4
    s_mul_i32 s46, s30, {128 * 8192}
    s_sub_u32 s46, s46, 8192
    s_add_u32 s58, s56, {S - LA - 1}
    """)
    a.label("L_ld_v")
    next_tile(True, True)
    I("s_cmp_lt_u32 s50, s58")
    I("s_cbranch_scc1 L_ld_v")
    tstamp()
    I(f"""
    v_add_u32 v25, 128, v25
    s_mul_i32 s53, s29, {NPOOL * 64}
    s_add_u32 s53, s53, {WS_SCX}
    s_add_u32 s40, s26, s53
    s_addc_u32 s41, s27, 0
    s_and_b32 s41, s41, 0xffff
    s_mov_b32 s42, {NPOOL * 64}
    s_mov_b32 s43, 0x20000
    v_lshlrev_b32 v28, 2, v1
    v_mov_b32 v30, {M['KALL']}
    """)
    for reg in TR:
        ticket(reg)
        next_tile(True, True, Dd)
    a.label("L_ld_kall")
    spin()
    I("""
    ds_read_b32 v31, v30
    s_waitcnt lgkmcnt(0)
    v_readfirstlane_b32 s53, v31
    s_cmp_lg_u32 s53, 0
    s_cbranch_scc0 L_ld_kall
    ds_read_b128 v[16:19], v13
    """)
    a.label("L_ld_vdyn")
    for reg in TR:
        decode(reg, "L_ld_pover")
        ticket(reg)
        next_tile(True, False, Dd, extra="scores")
    I("s_branch L_ld_vdyn")
    a.label("L_ld_pover")
    I("""
    s_add_u32 s56, s50, 1
    v_mov_b32 v14, s56
    ds_write_b32 v12, v14 offset:8
    """)
    a.label("L_ld_over")
    rem = 8 - u0 + Dp - 1
    while rem > 0:
        rem -= 8
        I(f"s_waitcnt vmcnt({rem})")
        I("s_add_u32 s49, s49, 1")
        I("v_mov_b32 v14, s49")
        I("ds_write_b32 v12, v14")
    assert rem == 0
    I("s_waitcnt lgkmcnt(0)")
    stamp(1)
    flush_stamps()
    if stamps:
        I("s_lshl_b32 s92, s2, 8")
        I(f"s_add_u32 s92, s92, {WS_STAMP + 20 * 8}")
        I("s_add_u32 s92, s26, s92")
        I("s_addc_u32 s93, s27, 0")
        I("v_mov_b32 v166, 0")
        I("s_mov_b64 exec, 1")
        for k in range(7):
            I(f"v_mov_b32 v164, s{60+2*k}")
            I(f"v_mov_b32 v165, s{61+2*k}")
            I(f"global_store_dwordx2 v166, v[164:165], s[92:93] offset:{8*k}")
        I("v_mov_b32 v164, s56")
        I("v_mov_b32 v165, 0")
        I(f"global_store_dwordx2 v166, v[164:165], s[92:93] offset:{8*7}")
    I("s_endpgm")

    def wave_sum(v, t):
        for r in (8, 4, 2, 1):
            I(f"v_add_f32_dpp v{v}, v{v}, v{v} row_ror:{r} row_mask:0xf bank_mask:0xf")
        I(f"v_mov_b32 v{t}, v{v}")
        I(f"v_permlane16_swap_b32 v{v}, v{t}")
        I(f"v_add_f32 v{v}, v{v}, v{t}")
        I(f"v_mov_b32 v{t}, v{v}")
        I(f"v_permlane32_swap_b32 v{v}, v{t}")
        I(f"v_add_f32 v{v}, v{v}, v{t}")
    def unpack8(src, dst):
        for j in range(4):
            I(f"v_lshlrev_b32 v{dst+2*j}, 16, v{src+j}")
            I(f"v_and_b32 v{dst+2*j+1}, s43, v{src+j}")
    def layernorm8(x, tmp):
        s, t, mb, den = tmp, tmp+1, tmp+2, tmp+3
        I(f"v_add_f32 v{s}, v{x}, v{x+1}")
        for j in range(2, 8): I(f"v_add_f32 v{s}, v{s}, v{x+j}")
        wave_sum(s, t)
        I(f"v_mul_f32 v{s}, 0x3b000000, v{s}")
        I(f"v_cvt_pk_bf16_f32 v{mb}, v{s}, v{s}")
        I(f"v_and_b32 v{mb}, s43, v{mb}")
        I(f"v_sub_f32 v{t}, v{x}, v{s}")
        I(f"v_mul_f32 v{den}, v{t}, v{t}")
        for j in range(1, 8):
            I(f"v_sub_f32 v{t}, v{x+j}, v{s}")
            I(f"v_fmac_f32 v{den}, v{t}, v{t}")
        wave_sum(den, t)
        I(f"v_mul_f32 v{den}, 0x3b000000, v{den}")
        I(f"v_cvt_pk_bf16_f32 v{den}, v{den}, v{den}")
        I(f"v_and_b32 v{den}, s43, v{den}")
        I(f"v_add_f32 v{den}, {hex(EPS)}, v{den}")
        I(f"v_cvt_pk_bf16_f32 v{den}, v{den}, v{den}")
        I(f"v_and_b32 v{den}, s43, v{den}")
        I(f"v_sqrt_f32 v{den}, v{den}")
        I(f"v_cvt_pk_bf16_f32 v{den}, v{den}, v{den}")
        I(f"v_and_b32 v{den}, s43, v{den}")
        I(f"v_rcp_f32 v{den}, v{den}")
        for j in range(0, 8, 2):
            I(f"v_sub_f32 v{x+j}, v{x+j}, v{mb}")
            I(f"v_sub_f32 v{x+j+1}, v{x+j+1}, v{mb}")
            I(f"v_cvt_pk_bf16_f32 v{t}, v{x+j}, v{x+j+1}")
            I(f"v_lshlrev_b32 v{x+j}, 16, v{t}")
            I(f"v_and_b32 v{x+j+1}, s43, v{t}")
            I(f"v_mul_f32 v{x+j}, v{x+j}, v{den}")
            I(f"v_mul_f32 v{x+j+1}, v{x+j+1}, v{den}")

    a.label("L_consumer")
    if P['cprio']: I(f"s_setprio {P['cprio']}")
    I("s_sub_u32 s40, s28, 1")
    I("s_mov_b32 s43, 0xffff0000")
    I("v_lshrrev_b32 v8, 4, v1")
    I("v_and_b32 v9, 15, v1")
    I("s_cmp_eq_u32 s40, 0")
    I("s_cbranch_scc1 L_c_q")
    I("s_barrier")
    I("s_branch L_c_qwait")
    a.label("L_c_q")
    I("""
    s_cmp_eq_u32 s2, 0
    s_cbranch_scc0 L_q_notag
    s_memrealtime s[56:57]
    s_waitcnt lgkmcnt(0)
    s_or_b32 s56, s56, 1
    s_or_b32 s57, s57, 0x40000000
    s_and_b32 s57, s57, 0x7fffffff
    v_mov_b32 v34, s56
    v_mov_b32 v35, s57
    v_mov_b32 v2, 0
    s_mov_b64 exec, 1
    global_store_dwordx2 v2, v[34:35], s[24:25] sc1
    s_mov_b64 exec, -1
    """)
    a.label("L_q_notag")
    I(f"""
    v_mov_b32 v2, 0
    global_load_dwordx2 v[34:35], v2, s[24:25] {"sc1" if P['tag_sc1'] else ""}
    s_mov_b32 s32, s10
    s_and_b32 s33, s11, 0xffff
    s_mov_b32 s34, 0x400000
    s_mov_b32 s35, 0x20000
    v_lshlrev_b32 v2, 4, v1
    global_load_dwordx4 v[30:33], v2, s[4:5]
    s_lshl_b32 s41, s30, 6
    v_add_u32 v3, s41, v8
    v_lshlrev_b32 v3, 13, v3
    v_lshlrev_b32 v4, 4, v9
    v_add_u32 v3, v3, v4
    s_lshl_b32 s41, s29, 8
    v_add_u32 v3, s41, v3
    """)
    for t in range(16):
        I(f"s_mov_b32 s42, {t * 32768}")
        I(f"buffer_load_dwordx4 v[{40+4*t}:{43+4*t}], v3, s[32:35], s42 offen {P['q_nt']}")
    if P['qst']: stamp(28)
    I("s_barrier")
    I("s_waitcnt vmcnt(16)")
    if P['qst']: stamp(29)
    unpack8(30, 10)
    layernorm8(10, 4)
    for e in range(8):
        I(f"v_cvt_pk_bf16_f32 v{18+e}, v{10+e}, v{10+e}")
    I(f"""
    v_lshrrev_b32 v4, 3, v1
    v_lshlrev_b32 v4, 8, v4
    v_and_b32 v5, 7, v1
    v_lshlrev_b32 v5, 3, v5
    v_add_u32 v4, v4, v5
    v_add_u32 v4, {M['XXT']}, v4
    """)
    for g in range(4):
        I(f"v_mov_b32 v26, v{18+g}")
        I(f"v_mov_b32 v27, v{18+g+4}")
        I(f"ds_write_b64 v4, v[26:27] offset:{g*64}")
    I(f"""
    v_and_b32 v5, 1, v9
    v_mov_b32 v6, 0xffff
    v_mov_b32 v7, s43
    v_cmp_eq_u32 vcc, 1, v5
    v_cndmask_b32 v5, v6, v7, vcc
    v_lshrrev_b32 v6, 1, v9
    """)
    for j in range(4):
        I(f"v_cmp_eq_u32 vcc, {j}, v6")
        I(f"v_cndmask_b32 v{10+j}, 0, v5, vcc")
    I(f"""
    s_lshl_b32 s41, s30, 8
    s_add_u32 s41, s41, {M['XXT']}
    v_lshlrev_b32 v4, 6, v8
    v_add_u32 v4, s41, v4
    s_waitcnt lgkmcnt(0)
    ds_read_b128 v[104:107], v4
    ds_read_b128 v[108:111], v4 offset:16
    ds_read_b128 v[112:115], v4 offset:32
    ds_read_b128 v[116:119], v4 offset:48
    s_waitcnt lgkmcnt(0)
    """)
    if P['qst']: stamp(31)
    for t in range(16):
        bb = 18 + 4 * (t % 2)
        for j in range(4):
            I(f"v_and_b32 v{bb+j}, v{104+t}, v{10+j}")
        I(f"s_waitcnt vmcnt({15 - t})")
        c = "0" if t == 0 else "v[26:29]"
        I(f"v_mfma_f32_16x16x32_bf16 v[26:29], v[{40+4*t}:{43+4*t}], v[{bb}:{bb+3}], {c}")
    if P['qst']: stamp(30)
    I("""
    v_readfirstlane_b32 s56, v34
    v_readfirstlane_b32 s57, v35
    s_cmp_lg_u32 s56, 0
    s_cbranch_scc1 L_q_havetag
    """)
    a.label("L_q_tagpoll")
    spin()
    I("""
    v_mov_b32 v2, 0
    global_load_dwordx2 v[34:35], v2, s[24:25] sc1
    s_waitcnt vmcnt(0)
    v_readfirstlane_b32 s56, v34
    v_readfirstlane_b32 s57, v35
    s_cmp_lg_u32 s56, 0
    s_cbranch_scc1 L_q_havetag
    s_sleep 2
    s_branch L_q_tagpoll
    """)
    a.label("L_q_havetag")
    I(f"v_mov_b32 v5, {M['CLEARED']}")
    lds_wait("L_q_clr", 5, 6, 1)
    I(f"""
    v_mov_b32_dpp v14, v28 row_ror:8 row_mask:0xf bank_mask:0xf
    v_mov_b32_dpp v16, v29 row_ror:8 row_mask:0xf bank_mask:0xf
    v_cmp_gt_u32 vcc, 8, v9
    v_mov_b32 v11, s56
    v_mov_b32 v13, s57
    v_cndmask_b32 v10, v14, v26, vcc
    v_cndmask_b32 v12, v16, v27, vcc
    v_mov_b32 v18, s56
    v_mov_b32 v19, s57
    v_mov_b32 v6, {M['NONCE']}
    ds_write_b64 v6, v[18:19]
    s_lshl_b32 s41, s3, 10
    s_add_u32 s41, s41, {WS_QX}
    v_and_b32 v4, 7, v9
    v_lshlrev_b32 v4, 1, v4
    v_lshrrev_b32 v5, 3, v9
    v_add_u32 v4, v4, v5
    v_lshlrev_b32 v5, 4, v8
    v_add_u32 v4, v4, v5
    v_lshlrev_b32 v4, 4, v4
    v_add_u32 v4, s41, v4
    global_store_dwordx4 v4, v[10:13], s[26:27] sc1
    v_mov_b32 v6, {M['QPUB']}
    v_mov_b32 v7, 1
    ds_write_b32 v6, v7
    s_mov_b64 exec, 1
    s_lshl_b32 s41, s3, 3
    s_add_u32 s41, s41, {WS_CLR}
    v_mov_b32 v4, s41
    global_store_dwordx2 v4, v[18:19], s[26:27] sc1
    s_mov_b64 exec, -1
    s_lshl_b32 s41, s29, 13
    s_add_u32 s41, s41, {WS_QX}
    v_lshlrev_b32 v4, 4, v1
    v_add_u32 v4, s41, v4
    v_add_u32 v5, 4096, v4
    """)
    stamp(5)
    if P['qdelay']: I(f"s_sleep {P['qdelay']}")
    a.label("L_q_poll")
    spin()
    for i in range(8):
        I(f"global_load_dwordx4 v[{40+4*i}:{43+4*i}], v{4 if i < 4 else 5}, s[26:27] offset:{1024*(i%4)} sc1")
    I("s_waitcnt vmcnt(0)")
    I("v_xor_b32 v6, s56, v41")
    I("v_xor_b32 v7, s57, v43")
    I("v_or_b32 v6, v6, v7")
    for i in range(1, 8):
        I(f"v_xor_b32 v7, s56, v{41+4*i}")
        I(f"v_or_b32 v6, v6, v7")
        I(f"v_xor_b32 v7, s57, v{43+4*i}")
        I(f"v_or_b32 v6, v6, v7")
    I("v_cmp_ne_u32 vcc, 0, v6")
    I("s_cbranch_vccz L_q_seen")
    if P['qsleep']: I(f"s_sleep {P['qsleep']}")
    I("s_branch L_q_poll")
    a.label("L_q_seen")
    stamp(6)
    for c in (0, 2):
        I(f"v_add_f32 v{40+c}, v{40+c}, v{44+c}")
        I(f"v_add_f32 v{48+c}, v{48+c}, v{52+c}")
        I(f"v_add_f32 v{56+c}, v{56+c}, v{60+c}")
        I(f"v_add_f32 v{64+c}, v{64+c}, v{68+c}")
    for c in (0, 2):
        I(f"v_add_f32 v{40+c}, v{40+c}, v{48+c}")
        I(f"v_add_f32 v{56+c}, v{56+c}, v{64+c}")
    for c in (0, 2):
        I(f"v_add_f32 v{40+c}, v{40+c}, v{56+c}")
    I(f"""
    v_cvt_pk_bf16_f32 v10, v40, v42
    v_lshrrev_b32 v11, 16, v10
    v_lshrrev_b32 v5, 1, v9
    v_and_b32 v6, 1, v1
    v_lshlrev_b32 v6, 4, v6
    v_add_u32 v5, v5, v6
    v_lshlrev_b32 v6, 5, v8
    v_add_u32 v5, v5, v6
    v_lshlrev_b32 v5, 1, v5
    v_add_u32 v5, {M['QB']}, v5
    ds_write_b16 v5, v10
    ds_write_b16 v5, v11 offset:16
    v_mov_b32 v6, {M['QREADY']}
    v_mov_b32 v7, 1
    s_waitcnt lgkmcnt(0)
    ds_write_b32 v6, v7
    """)
    flush_stamps()
    if P['dump']:
        I(f"""
        v_lshlrev_b32 v4, 2, v1
        v_add_u32 v5, {M['QB']}, v4
        ds_read_b32 v10, v5
        s_lshl_b32 s41, s3, 8
        s_add_u32 s41, s41, 0x100000
        v_add_u32 v4, s41, v4
        s_waitcnt lgkmcnt(0)
        global_store_dword v4, v10, s[26:27]
        """)
    a.label("L_c_qwait")
    I(f"v_mov_b32 v5, {M['QREADY']}")
    lds_wait("L_c_qw", 5, 6, 1)
    I(f"""
    v_lshlrev_b32 v5, 4, v8
    v_add_u32 v5, {M['QB']}, v5
    ds_read_b128 v[40:43], v5
    ds_read_b128 v[44:47], v5 offset:64
    ds_read_b128 v[48:51], v5 offset:128
    ds_read_b128 v[52:55], v5 offset:192
    """)
    I(f"""
    v_xor_b32 v2, v8, v9
    v_lshlrev_b32 v2, 4, v2
    v_lshlrev_b32 v10, 8, v9
    v_add_u32 v2, v2, v10
    v_lshrrev_b32 v10, 2, v9
    v_and_b32 v11, 3, v9
    v_lshlrev_b32 v12, 2, v8
    v_add_u32 v12, v12, v10
    v_and_b32 v13, 7, v12
    v_lshlrev_b32 v13, 1, v13
    v_lshrrev_b32 v14, 1, v11
    v_xor_b32 v13, v13, v14
    v_lshlrev_b32 v13, 4, v13
    v_and_b32 v14, 1, v11
    v_lshlrev_b32 v14, 3, v14
    v_lshlrev_b32 v3, 8, v12
    v_add_u32 v3, v3, v13
    v_add_u32 v3, v3, v14
    v_mov_b32 v4, 0xff800000
    v_mov_b32 v5, 0
    v_mov_b32 v6, 0
    v_mov_b32 v7, {M['FILLED']}
    s_lshl_b32 s41, s40, 2
    s_add_u32 s41, s41, {M['NEXT']}
    v_mov_b32 v38, s41
    s_mov_b32 s44, {hex(LOG2E)}
    s_mov_b32 s45, {hex(SCALE)}
    s_mov_b32 s46, s40
    s_lshl_b32 s47, s40, 13
    s_mov_b32 s48, -100
    s_mov_b32 s50, 0x7fffffff
    """)
    for r in range(56, 88): I(f"v_mov_b32 v{r}, 0")
    I(f"""
    s_lshl_b32 s41, s40, 9
    s_add_u32 s41, s41, {M['FINO']}
    v_lshlrev_b32 v120, 2, v9
    v_add_u32 v120, s41, v120
    s_lshl_b32 s41, s40, 3
    s_add_u32 s41, s41, {M['FINML']}
    v_mov_b32 v121, s41
    v_mov_b32 v122, {M['FINCNT']}
    v_mov_b32 v123, 1
    v_lshlrev_b32 v124, 3, v1
    s_mul_i32 s41, s3, {PREC}
    v_add_u32 v125, s41, v124
    v_add_u32 v124, {M['FINO']}, v124
    v_mov_b32 v126, {M['FINML']}
    v_mov_b32 v127, {M['TAILGO']}
    """)
    I("s_waitcnt lgkmcnt(0)")
    stamp(2)
    I(f"""
    v_lshlrev_b32 v39, 4, v8
    v_add_u32 v39, {M['SC']}, v39
    s_mov_b32 s60, 0x00010001
    s_mov_b32 s61, 0x00010001
    s_mul_i32 s41, s29, {8 * NP * 64}
    s_add_u32 s41, s41, {WS_SCX}
    v_lshlrev_b32 v128, 4, v8
    v_add_u32 v128, s41, v128
    v_lshlrev_b32 v129, 4, v8
    v_add_u32 v129, {M['SCF']}, v129
    s_mov_b32 s52, 0x7fffffff
    """)
    RS = 2 * R
    KF = 88
    SS = 18
    def wait_tile(lbl, kind):
        I(f"s_add_u32 s49, s46, 1")
        if kind != 'K':
            I(f"s_cmp_ge_i32 s48, s49")
            I(f"s_cbranch_scc1 {lbl}_ok")
        a.label(f"{lbl}_poll")
        spin()
        I("ds_read_b128 v[34:37], v7")
        I("s_waitcnt lgkmcnt(0)")
        I("v_readfirstlane_b32 s48, v34")
        if kind == 'K':
            I("v_readfirstlane_b32 s50, v35")
            I("s_cmp_ge_u32 s46, s50")
            I("s_cbranch_scc1 L_c_sw")
        if kind == 'P': I("v_readfirstlane_b32 s52, v36")
        I("s_cmp_ge_i32 s48, s49")
        I(f"s_cbranch_scc1 {lbl}_ok")
        if kind == 'P':
            I("s_cmp_ge_u32 s46, s52")
            I("s_cbranch_scc1 L_c_fin")
        elif kind != 'T':
            I(f"s_sleep {P['sleep_c']}")
        I(f"s_branch {lbl}_poll")
        a.label(f"{lbl}_ok")
    def advance():
        I(f"""
        s_add_u32 s47, s47, {4*8192}
        s_cmp_ge_u32 s47, {RS*8192}
        s_cselect_b32 s49, {RS*8192}, 0
        s_sub_u32 s47, s47, s49
        """)
    a.label("L_c_tile")
    I("s_cmp_ge_u32 s46, s50")
    I("s_cbranch_scc1 L_c_sw")
    wait_tile("L_c_k", 'K')
    I("v_add_u32 v10, s47, v2")
    for j in range(1, 4): I(f"v_xor_b32 v{10+j}, {j << 6}, v10")
    for j in range(4):
        I(f"ds_read_b128 v[{KF+4*j}:{KF+4*j+3}], v{10+j}")
        I(f"ds_read_b128 v[{KF+16+4*j}:{KF+16+4*j+3}], v{10+j} offset:4096")
    I(f"""
    s_lshr_b32 s49, s47, 11
    s_add_u32 s49, s49, {M['TID']}
    v_mov_b32 v14, s49
    ds_read_b32 v16, v14
    s_lshl_b32 s51, s46, 6
    s_add_u32 s46, s46, 4
    v_mov_b32 v15, s46
    """)
    for j in range(4):
        I(f"s_waitcnt lgkmcnt({7 - 2*j if j < 3 else 0})")
        if j == 3: I("ds_write_b32 v38, v15")
        c0 = "0" if j == 0 else "v[18:21]"
        c1 = "0" if j == 0 else "v[22:25]"
        I(f"v_mfma_f32_16x16x32_bf16 v[18:21], v[{KF+4*j}:{KF+4*j+3}], v[{40+4*j}:{43+4*j}], {c0}")
        I(f"v_mfma_f32_16x16x32_bf16 v[22:25], v[{KF+16+4*j}:{KF+16+4*j+3}], v[{40+4*j}:{43+4*j}], {c1}")
    advance()
    for p in range(4): I(f"v_cvt_pk_bf16_f32 v{30+p}, v{SS+2*p}, v{SS+2*p+1}")
    for p in range(4):
        I(f"v_lshlrev_b32 v{SS+2*p}, 16, v{30+p}")
        I(f"v_and_b32 v{SS+2*p+1}, s43, v{30+p}")
    for i in range(8): I(f"v_mul_f32 v{SS+i}, s45, v{SS+i}")
    for p in range(4): I(f"v_cvt_pk_bf16_f32 v{28+p}, v{SS+2*p}, v{SS+2*p+1}")
    I(f"""
    s_cmp_lt_u32 s51, {S * 64}
    s_cbranch_scc0 L_c_kpool
    v_add_u32 v14, s51, v39
    s_mov_b64 exec, s[60:61]
    ds_write_b128 v14, v[28:31]
    s_mov_b64 exec, -1
    s_branch L_c_kmax
    """)
    a.label("L_c_kpool")
    I(f"""
    v_lshlrev_b32 v16, 6, v16
    v_add_u32 v14, v16, v128
    s_mov_b64 exec, s[60:61]
    global_store_dwordx4 v14, v[28:31], s[26:27] sc1
    s_mov_b64 exec, -1
    """)
    a.label("L_c_kmax")
    for p in range(4):
        I(f"v_lshlrev_b32 v{SS+2*p}, 16, v{28+p}")
        I(f"v_and_b32 v{SS+2*p+1}, s43, v{28+p}")
    for p in range(4): I(f"v_max3_f32 v4, v4, v{SS+2*p}, v{SS+2*p+1}")
    I("s_branch L_c_tile")
    a.label("L_c_sw")
    I(f"""
    v_mov_b32 v30, v4
    s_lshl_b32 s41, s40, 2
    s_add_u32 s41, s41, {M['PMAX']}
    v_permlane32_swap_b32 v4, v30
    v_mov_b32 v31, s41
    v_max_f32 v4, v4, v30
    v_mov_b32 v32, {M['PCNT']}
    v_mov_b32 v30, v4
    v_mov_b32 v33, {M['PMAX']}
    s_nop 0
    v_permlane16_swap_b32 v4, v30
    v_max_f32 v4, v4, v30
    ds_write_b32 v31, v4
    s_waitcnt vmcnt(0) lgkmcnt(0)
    ds_add_u32 v32, v123
    """)
    a.label("L_c_sw_wait")
    spin()
    I("""
    ds_read_b32 v30, v32
    ds_read_b128 v[20:23], v33
    s_waitcnt lgkmcnt(0)
    v_readfirstlane_b32 s41, v30
    s_cmp_ge_u32 s41, 256
    s_cbranch_scc0 L_c_sw_wait
    """)
    I(f"""
    v_max3_f32 v4, v20, v21, v22
    v_max_f32 v4, v4, v23
    v_mul_f32 v6, s44, v4
    s_add_u32 s51, s50, {S}
    """)
    def softmax_part():
        for i in range(8): I(f"v_fma_f32 v{SS+i}, v{SS+i}, s44, -v6")
        for i in range(8): I(f"v_exp_f32 v{SS+i}, v{SS+i}")
        for p in range(4): I(f"v_cvt_pk_bf16_f32 v{26+p}, v{SS+2*p}, v{SS+2*p+1}")
        I(f"""
        v_add_f32 v30, v{SS}, v{SS+1}
        v_add_f32 v31, v{SS+2}, v{SS+3}
        v_add_f32 v32, v{SS+4}, v{SS+5}
        v_add_f32 v33, v{SS+6}, v{SS+7}
        v_add_f32 v30, v30, v31
        v_add_f32 v32, v32, v33
        v_add_f32 v30, v30, v32
        v_add_f32 v5, v5, v30
        """)
    def vread(nb):
        I(f"ds_read_b64_tr_b16 v[{KF+4*nb}:{KF+4*nb+1}], v{10+nb}")
        I(f"ds_read_b64_tr_b16 v[{KF+4*nb+2}:{KF+4*nb+3}], v{10+nb} offset:4096")
    def pv(nb):
        I(f"v_mfma_f32_16x16x32_bf16 v[{56+4*nb}:{59+4*nb}], v[26:29], v[{KF+4*nb}:{KF+4*nb+3}], v[{56+4*nb}:{59+4*nb}]")
    def pv_part():
        for nb in range(7): vread(nb)
        I("s_waitcnt lgkmcnt(6)")
        for nb in range(4): pv(nb)
        vread(7)
        I("s_waitcnt lgkmcnt(2)")
        for nb in range(4, 7): pv(nb)
        I("s_add_u32 s46, s46, 4")
        I("v_mov_b32 v30, s46")
        I("s_waitcnt lgkmcnt(0)")
        I("ds_write_b32 v38, v30")
        pv(7)
        advance()
    def vaddr():
        I("v_add_u32 v10, s47, v3")
        for nb in range(1, 8): I(f"v_xor_b32 v{10+nb}, {nb << 5}, v10")
    def unpack_scores():
        for p in range(4):
            I(f"v_lshlrev_b32 v{SS+2*p}, 16, v{28+p}")
            I(f"v_and_b32 v{SS+2*p+1}, s43, v{28+p}")
    a.label("L_c_vtile")
    I(f"""
    s_sub_u32 s49, s46, s50
    s_lshl_b32 s49, s49, 6
    v_add_u32 v14, s49, v39
    ds_read_b128 v[28:31], v14
    """)
    vaddr()
    I("s_waitcnt lgkmcnt(0)")
    unpack_scores()
    softmax_part()
    wait_tile("L_c_v", 'V')
    pv_part()
    I("s_cmp_lt_u32 s46, s51")
    I("s_cbranch_scc1 L_c_vtile")
    a.label("L_c_ptile")
    I("s_cmp_ge_u32 s46, s52")
    I("s_cbranch_scc1 L_c_fin")
    a.label("L_c_ps_poll")
    spin()
    I("""
    ds_read_b128 v[34:37], v7
    s_waitcnt lgkmcnt(0)
    v_readfirstlane_b32 s52, v36
    v_readfirstlane_b32 s48, v34
    s_cmp_ge_u32 s46, s52
    s_cbranch_scc1 L_c_fin
    s_cmp_ge_i32 s48, s46
    s_cbranch_scc0 L_c_ps_poll
    """)
    I(f"""
    s_lshr_b32 s49, s47, 7
    v_add_u32 v14, s49, v129
    ds_read_b128 v[28:31], v14
    """)
    vaddr()
    I("s_waitcnt lgkmcnt(0)")
    unpack_scores()
    I(f"""
    v_max3_f32 v34, v{SS}, v{SS+1}, v{SS+2}
    v_max3_f32 v35, v{SS+3}, v{SS+4}, v{SS+5}
    v_max3_f32 v34, v34, v{SS+6}, v{SS+7}
    v_max_f32 v34, v34, v35
    v_mov_b32 v35, v34
    v_permlane32_swap_b32 v34, v35
    v_max_f32 v34, v34, v35
    v_mov_b32 v35, v34
    v_permlane16_swap_b32 v34, v35
    v_max_f32 v34, v34, v35
    v_cmp_gt_f32 vcc, v34, v4
    s_cbranch_vccz L_c_norescale
    v_sub_f32 v35, v4, v34
    v_mul_f32 v35, s44, v35
    v_exp_f32 v35, v35
    v_mov_b32 v4, v34
    v_mul_f32 v6, s44, v34
    v_mul_f32 v5, v5, v35
    """)
    for r in range(56, 88): I(f"v_mul_f32 v{r}, v{r}, v35")
    a.label("L_c_norescale")
    softmax_part()
    wait_tile("L_c_pv", 'T')
    pv_part()
    I("s_branch L_c_ptile")
    a.label("L_c_fin")
    stamp(3)
    I(f"""
    v_mov_b32 v30, v5
    v_mov_b32 v4, v6
    ds_write_b32 v120, v56 offset:0
    v_permlane32_swap_b32 v5, v30
    ds_write_b32 v120, v60 offset:64
    ds_write_b32 v120, v64 offset:128
    v_add_f32 v5, v5, v30
    ds_write_b32 v120, v68 offset:192
    v_mov_b32 v30, v5
    ds_write_b32 v120, v72 offset:256
    ds_write_b32 v120, v76 offset:320
    v_permlane16_swap_b32 v5, v30
    ds_write_b32 v120, v80 offset:384
    ds_write_b32 v120, v84 offset:448
    v_add_f32 v5, v5, v30
    ds_write_b64 v121, v[4:5]
    s_mov_b64 exec, 1
    ds_add_rtn_u32 v32, v122, v123
    s_mov_b64 exec, -1
    ds_read_b128 v[20:23], v126
    ds_read_b128 v[24:27], v126 offset:16
    ds_read_b64 v[12:13], v124
    ds_read_b64 v[14:15], v124 offset:512
    ds_read_b64 v[16:17], v124 offset:1024
    ds_read_b64 v[18:19], v124 offset:1536
    s_waitcnt lgkmcnt(0)
    v_readfirstlane_b32 s41, v32
    v_max3_f32 v28, v20, v22, v24
    s_cmp_eq_u32 s41, 3
    s_cbranch_scc0 L_end
    ds_write_b32 v127, v123
    v_max_f32 v28, v28, v26
    v_sub_f32 v20, v20, v28
    v_sub_f32 v22, v22, v28
    v_sub_f32 v24, v24, v28
    v_sub_f32 v26, v26, v28
    v_exp_f32 v20, v20
    v_exp_f32 v22, v22
    v_exp_f32 v24, v24
    v_exp_f32 v26, v26
    v_pk_mul_f32 v[12:13], v[12:13], v[20:21] op_sel_hi:[1,0]
    v_mul_f32 v29, v21, v20
    v_pk_fma_f32 v[12:13], v[14:15], v[22:23], v[12:13] op_sel_hi:[1,0,1]
    v_fmac_f32 v29, v23, v22
    v_pk_fma_f32 v[12:13], v[16:17], v[24:25], v[12:13] op_sel_hi:[1,0,1]
    v_fmac_f32 v29, v25, v24
    v_pk_fma_f32 v[12:13], v[18:19], v[26:27], v[12:13] op_sel_hi:[1,0,1]
    v_fmac_f32 v29, v27, v26
    global_store_dwordx2 v125, v[12:13], s[26:27] sc1
    s_mov_b64 exec, 0xffff
    global_store_dwordx2 v125, v[28:29], s[26:27] offset:512 sc1
    s_mov_b64 exec, -1
    """)
    stamp(4)
    flush_stamps()
    I("s_endpgm")

    a.label("L_tail")
    I("s_sub_u32 s40, s28, 5")
    I("s_mov_b32 s43, 0xffff0000")
    if P['rolemap'] == "x01":
        I(f"""
        s_mov_b32 s54, 0
        s_mov_b32 s44, 0
        s_and_b32 s45, s2, 7
        s_cmp_lt_u32 s45, 2
        s_cbranch_scc0 L_t_x0
        s_mov_b32 s54, 1
        s_lshl_b32 s44, s29, 1
        s_add_u32 s44, s44, s45
        s_branch L_t_rdone
        """)
        a.label("L_t_x0")
        I(f"""
        s_mul_i32 s46, s29, 43
        s_lshr_b32 s46, s46, 8
        s_mul_i32 s46, s46, 6
        s_sub_u32 s46, s29, s46
        s_sub_u32 s45, s45, 2
        s_sub_u32 s45, s45, s46
        s_add_u32 s45, s45, 6
        s_cmp_ge_u32 s45, 6
        s_cselect_b32 s46, 6, 0
        s_sub_u32 s45, s45, s46
        s_cmp_eq_u32 s45, 0
        s_cbranch_scc0 L_t_x1
        s_mov_b32 s54, 2
        s_mov_b32 s44, s29
        s_branch L_t_rdone
        """)
        a.label("L_t_x1")
        I(f"""
        s_cmp_eq_u32 s45, 3
        s_cbranch_scc0 L_t_x2
        s_cmp_lt_u32 s29, 11
        s_cbranch_scc0 L_t_rdone
        s_mov_b32 s54, 2
        s_add_u32 s44, s29, 32
        s_branch L_t_rdone
        """)
        a.label("L_t_x2")
        I(f"""
        s_cmp_eq_u32 s45, 1
        s_cbranch_scc0 L_t_rdone
        s_cmp_lt_u32 s29, 16
        s_cbranch_scc0 L_t_rdone
        s_mov_b32 s54, 3
        s_mov_b32 s44, s29
        s_branch L_t_rdone
        """)
    I(f"""
    s_mov_b32 s54, 0
    s_mov_b32 s44, 0
    s_cmp_eq_u32 s31, 4
    s_cbranch_scc0 L_t_r0
    s_cmp_lt_u32 s29, 16
    s_cbranch_scc0 L_t_rdone
    s_mov_b32 s54, 3
    s_mov_b32 s44, s29
    s_branch L_t_rdone
    """)
    a.label("L_t_r0")
    I(f"""
    s_cmp_lt_u32 s29, 11
    s_cbranch_scc0 L_t_r1
    s_cmp_lt_u32 s31, 3
    s_cbranch_scc0 L_t_rdone
    s_mov_b32 s54, 1
    s_mov_b32 s44, s29
    s_cmp_eq_u32 s31, 0
    s_cbranch_scc1 L_t_rdone
    s_mov_b32 s54, 2
    s_lshl_b32 s44, s29, 1
    s_add_u32 s44, s44, s31
    s_sub_u32 s44, s44, 1
    s_branch L_t_rdone
    """)
    a.label("L_t_r1")
    I(f"""
    s_cmp_lt_u32 s29, 22
    s_cbranch_scc0 L_t_r2
    s_cmp_lt_u32 s31, 4
    s_cbranch_scc0 L_t_rdone
    s_mov_b32 s54, 2
    s_add_u32 s44, s29, 11
    s_cmp_eq_u32 s31, 3
    s_cbranch_scc1 L_t_rdone
    s_mov_b32 s54, 1
    s_mul_i32 s44, s29, 3
    s_add_u32 s44, s44, s31
    s_sub_u32 s44, s44, 22
    s_branch L_t_rdone
    """)
    a.label("L_t_r2")
    I(f"""
    s_cmp_lt_u32 s31, 3
    s_cbranch_scc0 L_t_rdone
    s_mov_b32 s54, 2
    s_add_u32 s44, s29, 11
    s_cmp_eq_u32 s31, 2
    s_cbranch_scc1 L_t_rdone
    s_mov_b32 s54, 1
    s_lshl_b32 s44, s29, 1
    s_add_u32 s44, s44, s31
    """)
    a.label("L_t_rdone")
    I("s_barrier")
    I(f"""
    v_lshrrev_b32 v8, 4, v1
    v_and_b32 v9, 15, v1
    s_cmp_eq_u32 s40, 0
    s_cbranch_scc0 L_t_noclear
    """)
    I(f"""
    v_mov_b32 v10, -1
    v_mov_b32 v11, -1
    v_mov_b32 v12, -1
    v_mov_b32 v13, -1
    s_mul_i32 s41, s3, {PREC}
    v_lshlrev_b32 v4, 3, v1
    v_add_u32 v4, s41, v4
    global_store_dwordx2 v4, v[10:11], s[26:27] sc1
    s_mov_b64 exec, 0xffff
    global_store_dwordx2 v4, v[10:11], s[26:27] offset:512 sc1
    s_mov_b64 exec, -1
    s_cmp_eq_u32 s30, 0
    s_cbranch_scc0 L_t_clr_tk
    s_lshl_b32 s41, s29, 8
    s_add_u32 s41, s41, {WS_TK}
    v_mov_b32 v4, s41
    v_mov_b32 v5, 0
    global_store_dword v4, v5, s[26:27] sc1
    global_store_dword v4, v5, s[26:27] offset:128 sc1
    """)
    a.label("L_t_clr_tk")
    I(f"""
    s_cmp_eq_u32 s54, 1
    s_cbranch_scc0 L_t_clr_f
    s_lshl_b32 s41, s44, 8
    s_add_u32 s41, s41, {WS_Y}
    v_lshlrev_b32 v4, 2, v1
    v_add_u32 v4, s41, v4
    global_store_dword v4, v10, s[26:27] sc1
    s_branch L_t_clr_done
    """)
    a.label("L_t_clr_f")
    I(f"""
    s_cmp_eq_u32 s54, 2
    s_cbranch_scc0 L_t_clr_done
    s_lshl_b32 s41, s44, 11
    s_add_u32 s41, s41, {WS_P}
    v_lshlrev_b32 v4, 4, v1
    v_add_u32 v4, s41, v4
    global_store_dwordx4 v4, v[10:13], s[26:27] sc1
    global_store_dwordx4 v4, v[10:13], s[26:27] offset:1024 sc1
    """)
    a.label("L_t_clr_done")
    I(f"""
    s_waitcnt vmcnt(0)
    v_mov_b32 v4, {M['CLEARED']}
    v_mov_b32 v5, 1
    ds_write_b32 v4, v5
    """)
    a.label("L_t_noclear")
    def kall(lbl):
        I(f"v_mov_b32 v4, {M['PCNT']}")
        a.label(f"{lbl}_pc")
        spin()
        I(f"""
        ds_read_b32 v5, v4
        s_waitcnt lgkmcnt(0)
        v_readfirstlane_b32 s42, v5
        s_cmp_ge_u32 s42, 256
        s_cbranch_scc1 {lbl}_pcok
        s_sleep 16
        s_branch {lbl}_pc
        """)
        a.label(f"{lbl}_pcok")
        I(f"""
        v_mov_b32 v4, {M['NONCE']}
        ds_read_b64 v[16:17], v4
        s_lshl_b32 s42, s3, 3
        s_add_u32 s42, s42, {WS_KD}
        v_mov_b32 v4, s42
        s_waitcnt lgkmcnt(0)
        s_mov_b64 exec, 1
        global_store_dwordx2 v4, v[16:17], s[26:27] sc1
        s_mov_b64 exec, -1
        s_lshl_b32 s42, s29, 6
        s_add_u32 s42, s42, {WS_KD}
        v_and_b32 v4, 7, v1
        v_lshlrev_b32 v4, 3, v4
        v_add_u32 v4, s42, v4
        """)
        a.label(f"{lbl}_kd")
        spin()
        I(f"""
        global_load_dwordx2 v[20:21], v4, s[26:27] sc1
        s_waitcnt vmcnt(0)
        v_xor_b32 v5, v16, v20
        v_xor_b32 v18, v17, v21
        v_or_b32 v5, v5, v18
        v_cmp_ne_u32 vcc, 0, v5
        s_cbranch_vccz {lbl}_kdok
        s_sleep 16
        s_branch {lbl}_kd
        """)
        a.label(f"{lbl}_kdok")
        I(f"""
        v_mov_b32 v4, {M['KALL']}
        v_mov_b32 v5, 1
        ds_write_b32 v4, v5
        """)
    if P['ptouch']:
        I("""
        s_cmp_eq_u32 s40, 1
        s_cbranch_scc0 L_t_notouch
        """)
        I(f"v_mov_b32 v4, {M['QREADY']}")
        lds_wait("L_t_tqw", 4, 5, 8)
        I("""
        s_lshl_b32 s41, s29, 23
        s_add_u32 s64, s6, s41
        s_addc_u32 s65, s7, 0
        s_add_u32 s66, s8, s41
        s_addc_u32 s67, s9, 0
        """)
        for p in range(4):
            I(f"s_mov_b32 s41, {p * 0x200000 + 0x100000}")
            I(f"s_load_dword s{68+p}, s[64:65], s41")
            I(f"s_load_dword s{72+p}, s[66:67], s41")
        I("s_waitcnt lgkmcnt(0)")
        a.label("L_t_notouch")
    I(f"""
    s_cmp_eq_u32 s54, 0
    s_cbranch_scc0 L_t_hasrole
    s_cmp_eq_u32 s40, 0
    s_cbranch_scc0 L_end
    """)
    kall("L_n_k")
    I("s_endpgm")
    a.label("L_t_hasrole")
    I(f"""
    s_cmp_eq_u32 s54, 3
    s_cbranch_scc0 L_t_wf
    s_cmp_eq_u32 s40, 0
    s_cbranch_scc1 L_t_o
    s_endpgm
    """)
    a.label("L_t_wf")
    if P['w_at_start']:
        I("s_cmp_eq_u32 s54, 1")
        I("s_cbranch_scc1 L_t_w")
    if P['stage_at'] != "start":
        I(f"v_mov_b32 v4, {M['QREADY'] if P['stage_at'] == 'ready' else M['QPUB']}")
        lds_wait("L_t_qw", 4, 5, 8)
    I("s_cmp_eq_u32 s54, 2")
    I("s_cbranch_scc1 L_t_f")

    STG = M['STAGE']
    SNT = P['stage_nt']
    def stage_setup():
        I(f"s_lshl_b32 s41, s40, 12")
        I(f"s_add_u32 s41, s41, {STG}")
    cur_role = [""]
    def dma(addr, u, step_bytes):
        if P['skip_stage'] or (cur_role[0] and cur_role[0] in P['skip_role']): return
        I(f"s_add_u32 m0, s41, {u*1024}")
        I(f"s_nop 0")
        I(f"global_load_lds_dwordx4 v[{addr}:{addr+1}], off {SNT}")
        if step_bytes:
            I(f"v_add_co_u32 v{addr}, vcc, {step_bytes}, v{addr}")
            I(f"v_addc_co_u32 v{addr+1}, vcc, 0, v{addr+1}, vcc")
    def tr_reads(trbase, offs, dst):
        I("s_waitcnt vmcnt(0)")
        d = dst
        for off in offs:
            I(f"ds_read_b64_tr_b16 v[{d}:{d+1}], v{trbase} offset:{off[0]}")
            I(f"ds_read_b64_tr_b16 v[{d+2}:{d+3}], v{trbase} offset:{off[1]}")
            d += 4
        I("s_waitcnt lgkmcnt(0)")
    def tr_addr(reg, rowstride):
        I(f"v_lshrrev_b32 v10, 2, v9")
        I(f"v_lshlrev_b32 v11, 3, v8")
        I(f"v_add_u32 v10, v10, v11")
        I(f"v_mul_u32_u24 v10, {rowstride}, v10")
        I(f"v_and_b32 v11, 3, v9")
        I(f"v_lshlrev_b32 v11, 3, v11")
        I(f"v_add_u32 v10, v10, v11")
        I(f"v_add_u32 v{reg}, s41, v10")
    def wait_flags_and_go(lbl, pre=None):
        I("s_cmp_eq_u32 s40, 0")
        I(f"s_cbranch_scc0 {lbl}_nok")
        kall(f"{lbl}_k")
        a.label(f"{lbl}_nok")
        if (P['stage_at'] != "ready" or (P['w_at_start'] and lbl == "L_w")) and lbl != "L_o":
            I(f"v_mov_b32 v4, {M['QREADY']}")
            lds_wait(f"{lbl}_qr", 4, 5, 8)
        I(f"""
        v_mov_b32 v4, {M['NONCE']}
        ds_read_b64 v[16:17], v4
        v_lshlrev_b32 v4, 4, v1
        v_add_u32 v4, {WS_CLR}, v4
        s_waitcnt lgkmcnt(0)
        """)
        a.label(f"{lbl}_clr")
        spin()
        I(f"""
        global_load_dwordx4 v[20:23], v4, s[26:27] sc1
        global_load_dwordx4 v[24:27], v4, s[26:27] offset:1024 sc1
        s_waitcnt vmcnt(0)
        """)
        I("v_xor_b32 v5, v16, v20")
        for r in (22, 24, 26):
            I(f"v_xor_b32 v18, v16, v{r}")
            I("v_or_b32 v5, v5, v18")
        for r in (21, 23, 25, 27):
            I(f"v_xor_b32 v18, v17, v{r}")
            I("v_or_b32 v5, v5, v18")
        I(f"""
        v_cmp_ne_u32 vcc, 0, v5
        s_cbranch_vccz {lbl}_go0
        s_sleep 32
        s_branch {lbl}_clr
        """)
        a.label(f"{lbl}_go0")
        if lbl == "L_o":
            I(f"""
            s_cmp_eq_u32 s44, 0
            s_cbranch_scc0 L_o_keep
            v_mov_b32 v4, 0
            v_mov_b32 v20, 0
            v_mov_b32 v21, 0
            s_mov_b64 exec, 1
            global_store_dwordx2 v4, v[20:21], s[24:25] sc1
            s_mov_b64 exec, -1
            """)
            a.label("L_o_keep")
        if pre:
            I(f"v_mov_b32 v4, {M['FILLED'] + 8}")
            a.label(f"{lbl}_fv")
            spin()
            I(f"""
            ds_read_b32 v5, v4
            s_waitcnt lgkmcnt(0)
            v_readfirstlane_b32 s42, v5
            s_cmp_lg_u32 s42, 0x7fffffff
            s_cbranch_scc1 {lbl}_fv_ok
            s_sleep 2
            s_branch {lbl}_fv
            """)
            a.label(f"{lbl}_fv_ok")
            pre()
        I(f"v_mov_b32 v4, {M['TAILGO']}")
        lds_wait(f"{lbl}_go", 4, 5, P['sleep_t'])
        if P['tprio']: I(f"s_setprio {P['tprio']}")
    def any_reset(regs, tmp):
        rs = list(regs)
        I(f"v_max3_u32 v{tmp}, v{rs[0]}, v{rs[1]}, v{rs[2]}")
        rs = rs[3:]
        while len(rs) >= 2:
            I(f"v_max3_u32 v{tmp}, v{tmp}, v{rs[0]}, v{rs[1]}"); rs = rs[2:]
        if rs: I(f"v_max_u32 v{tmp}, v{tmp}, v{rs[0]}")
        I(f"v_cmp_eq_u32 vcc, -1, v{tmp}")
    def poll2(lbl, issue, nloads, regsA, regsB, tmp, first, key, peel=None):
        if key not in P['dbl']:
            if peel:
                issue(regsA[0])
                I("s_waitcnt vmcnt(0)")
                peel()
                any_reset(regsA, tmp)
                I(f"s_cbranch_vccz {lbl}_got")
            a.label(f"{lbl}")
            spin()
            issue(regsA[0])
            I("s_waitcnt vmcnt(0)")
            any_reset(regsA, tmp)
            slp = {'W': P['wsleep'], 'F': P['fsleep'], 'O': P['osleep'], 'y': P['osleep']}[key]
            if slp:
                I(f"s_cbranch_vccz {lbl}_ok")
                I(f"s_sleep {slp}")
                I(f"s_branch {lbl}")
                a.label(f"{lbl}_ok")
            else:
                I(f"s_cbranch_vccnz {lbl}")
            if peel: a.label(f"{lbl}_got")
            first(regsA[0])
            return
        issue(regsA[0])
        if P['stag']: I(f"s_sleep {P['stag']}")
        a.label(f"{lbl}")
        spin()
        issue(regsB[0])
        I(f"s_waitcnt vmcnt({nloads})")
        any_reset(regsA, tmp)
        I(f"s_cbranch_vccz {lbl}_a")
        issue(regsA[0])
        I(f"s_waitcnt vmcnt({nloads})")
        any_reset(regsB, tmp)
        I(f"s_cbranch_vccnz {lbl}")
        first(regsB[0])
        I(f"s_branch {lbl}_join")
        a.label(f"{lbl}_a")
        first(regsA[0])
        a.label(f"{lbl}_join")
    def gemv_kslice(abase, wb, acc, tmp):
        for ks in range(4):
            I(f"ds_read_b128 v[{tmp+4*ks}:{tmp+4*ks+3}], v{abase} offset:{ks*64}")
        for ks in range(4):
            I(f"s_waitcnt lgkmcnt({3-ks})")
            for nb in range(4):
                c = "0" if ks == 0 else f"v[{acc+4*nb}:{acc+4*nb+3}]"
                I(f"v_mfma_f32_16x16x32_bf16 v[{acc+4*nb}:{acc+4*nb+3}], v[{tmp+4*ks}:{tmp+4*ks+3}], v[{wb+16*ks+4*nb}:{wb+16*ks+4*nb+3}], {c}")
    def part_to_lds(acc, waddr, raddr):
        for nb in range(4): I(f"ds_write_b32 v{waddr}, v{acc+4*nb} offset:{64*nb}")
        I(f"""
        s_waitcnt lgkmcnt(0)
        s_barrier
        ds_read_b32 v12, v{raddr}
        ds_read_b32 v13, v{raddr} offset:256
        ds_read_b32 v14, v{raddr} offset:512
        ds_read_b32 v15, v{raddr} offset:768
        s_waitcnt lgkmcnt(0)
        v_add_f32 v12, v12, v13
        v_add_f32 v14, v14, v15
        v_add_f32 v12, v12, v14
        """)
    def yp_addrs(waddr, raddr):
        I(f"""
        s_lshl_b32 s47, s40, 8
        s_add_u32 s47, s47, {M['YP']}
        v_lshlrev_b32 v{waddr}, 2, v9
        v_add_u32 v{waddr}, s47, v{waddr}
        v_lshlrev_b32 v{raddr}, 2, v1
        v_add_u32 v{raddr}, {M['YP']}, v{raddr}
        """)

    def wait_vphase(lbl):
        if not P['split']: return
        I(f"v_mov_b32 v4, {M['PCNT']}")
        a.label(lbl)
        spin()
        I(f"""
        ds_read_b32 v5, v4
        s_waitcnt lgkmcnt(0)
        v_readfirstlane_b32 s42, v5
        s_cmp_ge_u32 s42, 256
        s_cbranch_scc1 {lbl}_ok
        s_sleep 16
        s_branch {lbl}
        """)
        a.label(f"{lbl}_ok")
    WB = 64
    a.label("L_t_w")
    cur_role[0] = "W"
    if P['ptouch']:
        I("""
        s_lshr_b32 s45, s44, 3
        s_lshl_b32 s45, s45, 19
        s_load_dword s68, s[12:13], s45
        s_waitcnt lgkmcnt(0)
        """)
    stage_setup()
    tr_addr(14, 128)
    I(f"""
    s_lshr_b32 s45, s44, 3
    s_and_b32 s46, s44, 7
    s_lshl_b32 s47, s45, 19
    s_lshl_b32 s48, s40, 17
    s_add_u32 s47, s47, s48
    s_lshl_b32 s48, s46, 7
    s_add_u32 s47, s47, s48
    v_lshrrev_b32 v10, 3, v1
    v_lshlrev_b32 v10, 10, v10
    v_and_b32 v11, 7, v1
    v_lshlrev_b32 v11, 4, v11
    v_add_u32 v10, v10, v11
    v_add_u32 v10, s47, v10
    v_mov_b32 v13, s13
    v_add_co_u32 v12, vcc, s12, v10
    v_addc_co_u32 v13, vcc, 0, v13, vcc
    """)
    WL = P['w_late']
    WE = 4 - WL
    for ks in range(WE):
        if (WL == 0 and ks == 2) or (WL == 2 and ks == 1 and P['w_split']): wait_vphase("L_w_vp")
        for u in range(4): dma(12, u, 8 * 1024)
        tr_reads(14, [(nb * 32, 4 * 128 + nb * 32) for nb in range(4)], WB + 16 * ks)
    if WL:
        I(f"""
        s_mov_b32 s64, s12
        s_and_b32 s65, s13, 0xffff
        s_mov_b32 s66, 0x400000
        s_mov_b32 s67, 0x20000
        v_lshrrev_b32 v45, 3, v1
        v_lshlrev_b32 v45, 10, v45
        v_and_b32 v11, 7, v1
        v_lshlrev_b32 v11, 4, v11
        v_add_u32 v45, v45, v11
        s_lshl_b32 s55, s40, 14
        s_lshl_b32 s56, s45, 19
        s_lshl_b32 s57, s40, 17
        s_add_u32 s56, s56, s57
        s_lshl_b32 s57, s46, 7
        s_add_u32 s56, s56, s57
        s_mov_b32 s41, s55
        """)
        tr_addr(47, 128)
    stamp(8)
    I(f"""
    s_lshl_b32 s47, s45, 2
    s_add_u32 s47, s47, s40
    s_mul_i32 s48, s47, {8 * PREC}
    """)
    WPRE = P['pre'] and WL >= 1
    WR = P['w_reg']
    assert WE + (1 if WPRE else 0) + WR <= 4
    WREGS = (128, 144, 28)[:WR]
    def w_pre():
        for u in range(4):
            I(f"s_add_u32 m0, s59, {u * 1024}")
            I(f"s_add_u32 s58, s56, {(32 * WE + 8 * u) * 1024}")
            I(f"buffer_load_dwordx4 v45, s[64:67], s58 offen {SNT} lds")
        for i, rb in enumerate(WREGS):
            ks = WE + 1 + i
            for u in range(4):
                I(f"s_add_u32 s58, s56, {(32 * ks + 8 * u) * 1024}")
                I(f"buffer_load_dwordx4 v[{rb+4*u}:{rb+4*u+3}], v45, s[64:67], s58 offen {SNT}")
    if WPRE:
        I(f"s_lshl_b32 s59, s40, 12")
        I(f"s_add_u32 s59, s59, {STG}")
        I("s_mov_b32 s41, s59")
        tr_addr(46, 128)
        I("v_lshlrev_b32 v44, 4, v1")
        I("v_add_u32 v44, s55, v44")
    wait_flags_and_go("L_w", w_pre if WPRE else None)
    for ks in range(WE + (1 if WPRE else 0) + WR, 4):
        for u in range(4):
            I(f"s_add_u32 m0, s55, {ks * 4096 + u * 1024}")
            I(f"s_add_u32 s58, s56, {(32 * ks + 8 * u) * 1024}")
            I(f"buffer_load_dwordx4 v45, s[64:67], s58 offen {SNT} lds")
    if WR:
        I(f"s_waitcnt vmcnt({4 * (4 - WE - 1 - WR)})")
        for i, rb in enumerate(WREGS):
            ks = WE + 1 + i
            for u in range(4):
                I(f"ds_write_b128 v44, v[{rb+4*u}:{rb+4*u+3}] offset:{ks * 4096 + u * 1024}")
        I("s_waitcnt lgkmcnt(0)")
    I(f"""
    v_lshrrev_b32 v15, 5, v1
    v_mul_u32_u24 v15, {PREC}, v15
    v_add_u32 v15, s48, v15
    v_and_b32 v10, 31, v1
    v_lshlrev_b32 v14, 4, v10
    v_add_u32 v14, v15, v14
    v_add_u32 v15, 512, v15
    v_lshlrev_b32 v10, 3, v10
    s_lshl_b32 s47, s40, 8
    s_add_u32 s47, s47, {M['OALL']}
    v_add_u32 v7, s47, v10
    v_lshlrev_b32 v10, 4, v8
    v_add_u32 v10, s47, v10
    s_lshl_b32 s47, s44, 8
    s_add_u32 s47, s47, {WS_Y}
    v_lshlrev_b32 v6, 2, v1
    v_add_u32 v6, s47, v6
    """)
    yp_addrs(11, 5)
    def w_late_tr():
        d = WB + 16 * WE
        for ks in range(WE, 4):
            st = WPRE and ks == WE
            base, off = (46, 0) if st else (47, ks * 4096)
            for nb in range(4):
                I(f"ds_read_b64_tr_b16 v[{d}:{d+1}], v{base} offset:{off + nb * 32}")
                I(f"ds_read_b64_tr_b16 v[{d+2}:{d+3}], v{base} offset:{off + 4 * 128 + nb * 32}")
                d += 4
            I("s_waitcnt lgkmcnt(0)")
    if WL and not P['peel']:
        I("s_waitcnt vmcnt(0)")
        w_late_tr()
    stamp(9)
    def w_issue(b):
        for i in range(4): I(f"global_load_dwordx4 v[{b+4*i}:{b+4*i+3}], v14, s[26:27] offset:{2*PREC*i} sc1")
        for i in range(4): I(f"global_load_dwordx2 v[{b+16+2*i}:{b+17+2*i}], v15, s[26:27] offset:{2*PREC*i} sc1")
    def w_first(b):
        m = b + 16
        I(f"""
        v_max3_f32 v2, v{m}, v{m+2}, v{m+4}
        v_max_f32 v2, v2, v{m+6}
        v_mov_b32 v3, v2
        v_permlane32_swap_b32 v2, v3
        v_max_f32 v2, v2, v3
        v_sub_f32 v{m}, v{m}, v2
        v_sub_f32 v{m+2}, v{m+2}, v2
        v_sub_f32 v{m+4}, v{m+4}, v2
        v_sub_f32 v{m+6}, v{m+6}, v2
        v_exp_f32 v{m}, v{m}
        v_exp_f32 v{m+2}, v{m+2}
        v_exp_f32 v{m+4}, v{m+4}
        v_exp_f32 v{m+6}, v{m+6}
        v_pk_mul_f32 v[12:13], v[{b}:{b+1}], v[{m}:{m+1}] op_sel_hi:[1,0]
        v_pk_mul_f32 v[2:3], v[{b+2}:{b+3}], v[{m}:{m+1}] op_sel_hi:[1,0]
        v_mul_f32 v4, v{m}, v{m+1}
        """)
        for i in range(1, 4):
            I(f"v_pk_fma_f32 v[12:13], v[{b+4*i}:{b+4*i+1}], v[{m+2*i}:{m+2*i+1}], v[12:13] op_sel_hi:[1,0,1]")
            I(f"v_pk_fma_f32 v[2:3], v[{b+4*i+2}:{b+4*i+3}], v[{m+2*i}:{m+2*i+1}], v[2:3] op_sel_hi:[1,0,1]")
            I(f"v_fmac_f32 v4, v{m+2*i}, v{m+2*i+1}")
    poll2("L_w_poll", w_issue, 8, list(range(16, 40)), list(range(40, 64)), 13, w_first, 'W', peel=(w_late_tr if WL and P['peel'] else None))
    stamp(10)
    I("""
    v_mov_b32 v128, v12
    v_mov_b32 v129, v13
    v_mov_b32 v130, v2
    v_mov_b32 v131, v3
    v_mov_b32 v132, v4
    v_permlane32_swap_b32 v12, v128
    v_permlane32_swap_b32 v13, v129
    v_permlane32_swap_b32 v2, v130
    v_permlane32_swap_b32 v3, v131
    v_permlane32_swap_b32 v4, v132
    v_add_f32 v4, v4, v132
    v_pk_add_f32 v[12:13], v[12:13], v[128:129]
    v_rcp_f32 v132, v4
    v_pk_add_f32 v[2:3], v[2:3], v[130:131]
    v_pk_mul_f32 v[12:13], v[12:13], v[132:133] op_sel_hi:[1,0]
    v_pk_mul_f32 v[2:3], v[2:3], v[132:133] op_sel_hi:[1,0]
    v_cvt_pk_bf16_f32 v12, v12, v13
    v_cvt_pk_bf16_f32 v13, v2, v3
    ds_write_b64 v7, v[12:13]
    s_waitcnt lgkmcnt(0)
    """)
    gemv_kslice(10, WB, 144, 128)
    part_to_lds(144, 11, 5)
    I(f"""
    s_cmp_eq_u32 s40, 0
    s_cbranch_scc0 L_end
    global_store_dword v6, v12, s[26:27] sc1
    """)
    stamp(11)
    flush_stamps()
    I("s_endpgm")

    a.label("L_t_f")
    cur_role[0] = "F"
    if P['ptouch']:
        I("""
        s_load_dword s68, s[16:17], 0
        s_load_dword s69, s[18:19], 0
        s_load_dword s70, s[20:21], 0
        s_waitcnt lgkmcnt(0)
        """)
    stage_setup()
    tr_addr(14, 64)
    I(f"""
    s_lshl_b32 s46, s44, 6
    s_mul_i32 s47, s40, {128 * 2752}
    s_add_u32 s46, s46, s47
    v_lshrrev_b32 v10, 2, v1
    v_mul_u32_u24 v10, 2752, v10
    v_and_b32 v11, 3, v1
    v_lshlrev_b32 v11, 4, v11
    v_add_u32 v10, v10, v11
    v_add_u32 v10, s46, v10
    v_mov_b32 v13, s17
    v_add_co_u32 v12, vcc, s16, v10
    v_addc_co_u32 v13, vcc, 0, v13, vcc
    v_mov_b32 v17, s19
    v_add_co_u32 v16, vcc, s18, v10
    v_addc_co_u32 v17, vcc, 0, v17, vcc
    """)
    DB = WB + 64
    LATE_G = 'g' in P['f_late']; LATE_D = 'd' in P['f_late']
    GU_OFFS = [(0, 256), (32, 256 + 32), (2048, 2048 + 256), (2048 + 32, 2048 + 256 + 32)]
    D_OFFS = [(nb * 32, 4 * 128 + nb * 32) for nb in range(4)]
    GE = P['g_early'] if LATE_G else 4
    if LATE_G:
        for ks in range(GE):
            dma(12, 0, 16 * 2752); dma(12, 1, 16 * 2752)
            dma(16, 2, 16 * 2752); dma(16, 3, 16 * 2752)
            tr_reads(14, GU_OFFS, WB + 16 * ks)
    if not LATE_G:
        for ks in range(4):
            if ks == 3 and not LATE_D: wait_vphase("L_f_vp")
            if ks == 2 and LATE_D: wait_vphase("L_f_vp")
            dma(12, 0, 16 * 2752); dma(12, 1, 16 * 2752)
            dma(16, 2, 16 * 2752); dma(16, 3, 16 * 2752)
            tr_reads(14, GU_OFFS, WB + 16 * ks)
    if not LATE_D:
        tr_addr(14, 128)
        for rr in range(2):
            if LATE_G and rr == 1: wait_vphase("L_f_vp")
            I(f"""
            s_lshl_b32 s46, s44, 15
            s_lshl_b32 s47, s40, 8
            s_add_u32 s46, s46, s47
            s_add_u32 s46, s46, {128*rr}
            v_lshrrev_b32 v10, 3, v1
            v_lshlrev_b32 v10, 10, v10
            v_and_b32 v11, 7, v1
            v_lshlrev_b32 v11, 4, v11
            v_add_u32 v10, v10, v11
            v_add_u32 v10, s46, v10
            v_mov_b32 v13, s21
            v_add_co_u32 v12, vcc, s20, v10
            v_addc_co_u32 v13, vcc, 0, v13, vcc
            """)
            for u in range(4): dma(12, u, 8 * 1024)
            tr_reads(14, D_OFFS, DB + 16 * rr)
    if LATE_G or LATE_D:
        I(f"""
        s_mov_b32 s64, s16
        s_and_b32 s65, s17, 0xffff
        s_mov_b32 s66, {512 * 2752}
        s_mov_b32 s67, 0x20000
        s_mov_b32 s68, s18
        s_and_b32 s69, s19, 0xffff
        s_mov_b32 s70, {512 * 2752}
        s_mov_b32 s71, 0x20000
        s_mov_b32 s72, s20
        s_and_b32 s73, s21, 0xffff
        s_mov_b32 s74, {1376 * 1024}
        s_mov_b32 s75, 0x20000
        v_lshrrev_b32 v44, 2, v1
        v_mul_u32_u24 v44, 2752, v44
        v_and_b32 v11, 3, v1
        v_lshlrev_b32 v11, 4, v11
        v_add_u32 v44, v44, v11
        v_lshrrev_b32 v45, 3, v1
        v_lshlrev_b32 v45, 10, v45
        v_and_b32 v11, 7, v1
        v_lshlrev_b32 v11, 4, v11
        v_add_u32 v45, v45, v11
        s_mul_i32 s55, s40, 24576
        s_mul_i32 s56, s40, {128 * 2752}
        s_lshl_b32 s57, s44, 6
        s_add_u32 s56, s56, s57
        s_lshl_b32 s57, s44, 15
        s_lshl_b32 s58, s40, 8
        s_add_u32 s57, s57, s58
        s_mov_b32 s41, s55
        """)
        tr_addr(46, 64)
        I("s_add_u32 s41, s55, 16384")
        tr_addr(47, 128)
    I(f"""
    v_and_b32 v10, 31, v1
    v_lshlrev_b32 v11, 3, v10
    s_lshl_b32 s46, s40, 8
    v_add_u32 v11, s46, v11
    global_load_dwordx2 v[6:7], v11, s[4:5]
    s_waitcnt vmcnt(0)
    """)
    stamp(12)
    FPRE = P['pre'] and LATE_G and GE < 4
    FR = P['f_reg'] if FPRE else 0
    assert GE + (1 if FPRE else 0) + FR <= 4
    FREGS = (16, 128 + 32)[:FR] if FR <= 1 else None
    assert FR <= 1
    def f_pre():
        for u in range(4):
            I(f"s_add_u32 m0, s59, {u * 1024}")
            I(f"s_add_u32 s58, s56, {(32 * GE + 16 * (u & 1)) * 2752}")
            I(f"buffer_load_dwordx4 v44, s[{64 if u < 2 else 68}:{67 if u < 2 else 71}], s58 offen {SNT} lds")
        for i, rb in enumerate(FREGS):
            ks = GE + 1 + i
            for u in range(4):
                I(f"s_add_u32 s58, s56, {(32 * ks + 16 * (u & 1)) * 2752}")
                I(f"buffer_load_dwordx4 v[{rb+12+4*u}:{rb+12+4*u+3}], v44, s[{64 if u < 2 else 68}:{67 if u < 2 else 71}], s58 offen {SNT}")
    if FPRE:
        I(f"s_lshl_b32 s59, s40, 12")
        I(f"s_add_u32 s59, s59, {STG}")
        I("s_mov_b32 s41, s59")
        tr_addr(62, 64)
        I("v_lshlrev_b32 v63, 4, v1")
        I("v_add_u32 v63, s55, v63")
    wait_flags_and_go("L_f", f_pre if FPRE else None)
    nlate_d = 0
    if LATE_G:
        for ks in range(GE + (1 if FPRE else 0) + FR, 4):
            for u in range(4):
                I(f"s_add_u32 m0, s55, {ks * 4096 + u * 1024}")
                I(f"s_add_u32 s58, s56, {(32 * ks + 16 * (u & 1)) * 2752}")
                I(f"buffer_load_dwordx4 v44, s[{64 if u < 2 else 68}:{67 if u < 2 else 71}], s58 offen {SNT} lds")
    if LATE_D:
        for rr in range(2):
            for u in range(4):
                I(f"s_add_u32 m0, s55, {16384 + rr * 4096 + u * 1024}")
                I(f"s_add_u32 s58, s57, {rr * 128 + u * 8192}")
                I(f"buffer_load_dwordx4 v45, s[72:75], s58 offen {SNT} lds")
                nlate_d += 1
    if FR:
        nafter = 4 * (4 - GE - 1 - FR) + nlate_d
        I(f"s_waitcnt vmcnt({nafter})")
        for i, rb in enumerate(FREGS):
            ks = GE + 1 + i
            for u in range(4):
                I(f"ds_write_b128 v63, v[{rb+12+4*u}:{rb+12+4*u+3}] offset:{ks * 4096 + u * 1024}")
        I("s_waitcnt lgkmcnt(0)")
    I(f"""
    v_lshlrev_b32 v48, 16, v6
    v_and_b32 v49, s43, v6
    v_lshlrev_b32 v50, 16, v7
    v_and_b32 v51, s43, v7
    v_and_b32 v10, 31, v1
    v_lshlrev_b32 v14, 4, v10
    v_lshrrev_b32 v11, 5, v1
    v_lshlrev_b32 v11, 11, v11
    v_add_u32 v14, v14, v11
    s_lshl_b32 s46, s40, 9
    s_add_u32 s46, s46, {WS_Y}
    v_add_u32 v14, s46, v14
    v_add_u32 v15, 4096, v14
    v_add_u32 v2, 8192, v14
    v_add_u32 v3, 12288, v14
    s_lshl_b32 s47, s40, 3
    s_add_u32 s47, s47, {M['OALL']}
    v_mov_b32 v52, s47
    v_mov_b32 v53, {M['OALL']}
    s_lshl_b32 s47, s40, 8
    s_add_u32 s47, s47, {M['XN2']}
    v_lshlrev_b32 v54, 3, v10
    v_add_u32 v54, s47, v54
    v_lshlrev_b32 v55, 4, v8
    v_add_u32 v55, s47, v55
    s_lshl_b32 s47, s40, 6
    s_add_u32 s47, s47, {M['HH']}
    v_lshlrev_b32 v58, 1, v10
    v_add_u32 v58, s47, v58
    v_lshlrev_b32 v59, 4, v8
    v_add_u32 v59, s47, v59
    s_lshl_b32 s47, s44, 11
    s_lshl_b32 s46, s40, 9
    s_add_u32 s47, s47, s46
    s_add_u32 s47, s47, {WS_P}
    v_lshlrev_b32 v60, 2, v1
    v_add_u32 v60, s47, v60
    s_mov_b32 s60, 0xffff0000
    s_mov_b32 s61, 0xffff0000
    s_mov_b32 s62, 0
    s_mov_b32 s63, -1
    """)
    yp_addrs(56, 57)
    def late_tr(base, offs_list, dst):
        d = dst; n = 0
        for off in offs_list:
            I(f"ds_read_b64_tr_b16 v[{d}:{d+1}], v{base} offset:{off[0]}")
            I(f"ds_read_b64_tr_b16 v[{d+2}:{d+3}], v{base} offset:{off[1]}")
            d += 4; n += 2
            if n % 8 == 0: I("s_waitcnt lgkmcnt(0)")
    def f_late_tr():
        if LATE_G: late_tr(46, [(o[0] + ks * 4096, o[1] + ks * 4096) for ks in range(GE, 4) for o in GU_OFFS], WB + 16 * GE)
        if LATE_D: late_tr(47, [(o[0] + rr * 4096, o[1] + rr * 4096) for rr in range(2) for o in D_OFFS], DB)
    FPEEL = (LATE_G or LATE_D) and P['peel']
    if not FPEEL:
        if LATE_G:
            I(f"s_waitcnt vmcnt({nlate_d})")
            if FPRE:
                late_tr(62, GU_OFFS, WB + 16 * GE)
                late_tr(46, [(o[0] + ks * 4096, o[1] + ks * 4096) for ks in range(GE + 1, 4) for o in GU_OFFS], WB + 16 * (GE + 1))
            else:
                late_tr(46, [(o[0] + ks * 4096, o[1] + ks * 4096) for ks in range(GE, 4) for o in GU_OFFS], WB + 16 * GE)
        if LATE_D:
            I("s_waitcnt vmcnt(0)")
            late_tr(47, [(o[0] + rr * 4096, o[1] + rr * 4096) for rr in range(2) for o in D_OFFS], DB)
    stamp(13)
    def f_issue(b):
        for i, ad in enumerate((14, 15, 2, 3)):
            I(f"global_load_dwordx4 v[{b+4*i}:{b+4*i+3}], v{ad}, s[26:27] sc1")
    def f_first(b):
        I(f"""
        v_pk_add_f32 v[4:5], v[{b}:{b+1}], v[{b+4}:{b+5}]
        v_pk_add_f32 v[6:7], v[{b+2}:{b+3}], v[{b+6}:{b+7}]
        v_pk_add_f32 v[10:11], v[{b+8}:{b+9}], v[{b+12}:{b+13}]
        v_pk_add_f32 v[12:13], v[{b+10}:{b+11}], v[{b+14}:{b+15}]
        v_pk_add_f32 v[4:5], v[4:5], v[10:11]
        v_pk_add_f32 v[6:7], v[6:7], v[12:13]
        """)
    poll2("L_f_poll", f_issue, 4, list(range(16, 32)), list(range(32, 48)), 61, f_first, 'F', peel=(f_late_tr if FPEEL else None))
    stamp(14)
    I(f"""
    v_mov_b32 v160, v4
    v_mov_b32 v161, v5
    v_mov_b32 v162, v6
    v_mov_b32 v163, v7
    v_permlane32_swap_b32 v4, v160
    v_permlane32_swap_b32 v5, v161
    v_permlane32_swap_b32 v6, v162
    v_permlane32_swap_b32 v7, v163
    v_pk_add_f32 v[4:5], v[4:5], v[160:161]
    v_pk_add_f32 v[6:7], v[6:7], v[162:163]
    v_cvt_pk_bf16_f32 v160, v4, v5
    v_cvt_pk_bf16_f32 v161, v6, v7
    v_lshlrev_b32 v4, 16, v160
    v_and_b32 v5, s43, v160
    v_lshlrev_b32 v6, 16, v161
    v_and_b32 v7, s43, v161
    v_pk_add_f32 v[4:5], v[4:5], v[48:49]
    v_pk_add_f32 v[6:7], v[6:7], v[50:51]
    v_cvt_pk_bf16_f32 v160, v4, v5
    v_cvt_pk_bf16_f32 v161, v6, v7
    v_lshlrev_b32 v4, 16, v160
    v_and_b32 v5, s43, v160
    v_lshlrev_b32 v6, 16, v161
    v_and_b32 v7, s43, v161
    v_add_f32 v8, v4, v5
    v_mul_f32 v9, v4, v4
    v_add_f32 v10, v6, v7
    v_fmac_f32 v9, v5, v5
    v_add_f32 v8, v8, v10
    v_fmac_f32 v9, v6, v6
    v_fmac_f32 v9, v7, v7
    """)
    for r in (8, 4, 2, 1):
        I(f"v_add_f32_dpp v8, v8, v8 row_ror:{r} row_mask:0xf bank_mask:0xf")
        I(f"v_add_f32_dpp v9, v9, v9 row_ror:{r} row_mask:0xf bank_mask:0xf")
    I(f"""
    v_mov_b32 v10, v8
    v_mov_b32 v11, v9
    s_nop 0
    v_permlane16_swap_b32 v8, v10
    v_permlane16_swap_b32 v9, v11
    v_add_f32 v8, v8, v10
    v_add_f32 v9, v9, v11
    ds_write_b64 v52, v[8:9]
    s_waitcnt lgkmcnt(0)
    s_barrier
    ds_read_b128 v[8:11], v53
    ds_read_b128 v[12:15], v53 offset:16
    s_waitcnt lgkmcnt(0)
    v_pk_add_f32 v[8:9], v[8:9], v[10:11]
    v_pk_add_f32 v[12:13], v[12:13], v[14:15]
    v_pk_add_f32 v[8:9], v[8:9], v[12:13]
    v_mul_f32 v8, 0x3b000000, v8
    v_mul_f32 v9, 0x3b000000, v9
    v_cvt_pk_bf16_f32 v10, v8, v8
    v_fma_f32 v9, -v8, v8, v9
    v_and_b32 v10, s43, v10
    v_max_f32 v9, 0, v9
    v_cvt_pk_bf16_f32 v9, v9, v9
    v_sub_f32 v4, v4, v10
    v_and_b32 v9, s43, v9
    v_sub_f32 v5, v5, v10
    v_add_f32 v9, {hex(EPS)}, v9
    v_sub_f32 v6, v6, v10
    v_cvt_pk_bf16_f32 v9, v9, v9
    v_sub_f32 v7, v7, v10
    v_and_b32 v9, s43, v9
    v_cvt_pk_bf16_f32 v160, v4, v5
    v_sqrt_f32 v9, v9
    v_cvt_pk_bf16_f32 v161, v6, v7
    v_lshlrev_b32 v4, 16, v160
    v_cvt_pk_bf16_f32 v9, v9, v9
    v_and_b32 v5, s43, v160
    v_and_b32 v12, s43, v9
    v_lshlrev_b32 v6, 16, v161
    v_rcp_f32 v12, v12
    v_and_b32 v7, s43, v161
    v_pk_mul_f32 v[4:5], v[4:5], v[12:13] op_sel_hi:[1,0]
    v_pk_mul_f32 v[6:7], v[6:7], v[12:13] op_sel_hi:[1,0]
    v_cvt_pk_bf16_f32 v160, v4, v5
    v_cvt_pk_bf16_f32 v161, v6, v7
    ds_write_b64 v54, v[160:161]
    s_waitcnt vmcnt(0) lgkmcnt(0)
    """)
    gemv_kslice(55, WB, 32, 16)
    part_to_lds(32, 56, 57)
    I(f"""
    v_cvt_pk_bf16_f32 v12, v12, v12
    v_and_b32 v12, s43, v12
    v_mov_b32 v13, v12
    v_permlane32_swap_b32 v12, v13
    v_mul_f32 v12, v12, v13
    v_cvt_pk_bf16_f32 v12, v12, v12
    ds_write_b16 v58, v12
    s_waitcnt lgkmcnt(0)
    ds_read_b128 v[16:19], v59
    s_waitcnt lgkmcnt(0)
    """)
    for nb in range(8):
        I(f"v_mfma_f32_16x16x32_bf16 v[{20+4*nb}:{23+4*nb}], v[16:19], v[{DB+4*nb}:{DB+4*nb+3}], 0")
    for j in range(2):
        b = 20 + 16 * j
        I(f"v_cndmask_b32 v{12+2*j}, v{b}, v{b+4}, s[60:61]")
        I(f"v_cndmask_b32 v{13+2*j}, v{b+8}, v{b+12}, s[60:61]")
        I(f"v_cndmask_b32 v{12+2*j}, v{12+2*j}, v{13+2*j}, s[62:63]")
        I(f"global_store_dword v60, v{12+2*j}, s[26:27] offset:{256*j} sc1")
    stamp(15)
    flush_stamps()
    I("s_endpgm")

    def resid(xr, out):
        I(f"""
        v_cvt_pk_bf16_f32 v16, v16, v17
        v_cvt_pk_bf16_f32 v17, v18, v19
        v_lshlrev_b32 v20, 16, v16
        v_and_b32 v21, s43, v16
        v_lshlrev_b32 v22, 16, v17
        v_and_b32 v23, s43, v17
        v_lshlrev_b32 v24, 16, v{xr}
        v_and_b32 v25, s43, v{xr}
        v_lshlrev_b32 v26, 16, v{xr+1}
        v_and_b32 v27, s43, v{xr+1}
        v_pk_add_f32 v[20:21], v[20:21], v[24:25]
        v_pk_add_f32 v[22:23], v[22:23], v[26:27]
        v_cvt_pk_bf16_f32 v{out}, v20, v21
        v_cvt_pk_bf16_f32 v{out+1}, v22, v23
        """)
    a.label("L_t_o")
    I(f"""
    v_and_b32 v10, 7, v1
    v_lshlrev_b32 v11, 3, v10
    s_lshl_b32 s46, s44, 6
    v_add_u32 v11, s46, v11
    global_load_dwordx2 v[6:7], v11, s[4:5]
    v_mov_b32 v3, v11
    v_lshlrev_b32 v14, 4, v10
    v_lshrrev_b32 v12, 3, v1
    v_lshlrev_b32 v12, 11, v12
    v_add_u32 v14, v14, v12
    s_lshl_b32 s46, s44, 7
    v_add_u32 v14, s46, v14
    v_add_u32 v15, {WS_Y}, v14
    s_add_u32 s32, s26, {WS_P}
    s_addc_u32 s33, s27, 0
    s_and_b32 s33, s33, 0xffff
    s_mov_b32 s34, {NF * 2048}
    s_mov_b32 s35, 0x20000
    v_mov_b32 v4, {M['QREADY']}
    s_waitcnt vmcnt(0)
    """)
    if P['touch_out']:
        I("""
        v_mov_b32 v16, 0
        v_mov_b32 v17, 0
        s_mov_b64 exec, 0xff
        global_store_dwordx2 v3, v[16:17], s[22:23]
        s_mov_b64 exec, -1
        """)
    lds_wait("L_o_qw", 4, 5, 8)
    wait_flags_and_go("L_o")
    stamp(16)
    def red_r8(base, tmp):
        for c in range(4): I(f"v_add_f32_dpp v{base+c}, v{base+c}, v{base+c} row_ror:8 row_mask:0xf bank_mask:0xf")
        for c in range(4): I(f"v_mov_b32 v{tmp+c}, v{base+c}")
        for c in range(4): I(f"v_permlane16_swap_b32 v{base+c}, v{tmp+c}")
        for c in range(4): I(f"v_add_f32 v{base+c}, v{base+c}, v{tmp+c}")
        for c in range(4): I(f"v_mov_b32 v{tmp+c}, v{base+c}")
        for c in range(4): I(f"v_permlane32_swap_b32 v{base+c}, v{tmp+c}")
        for c in range(4): I(f"v_add_f32 v{base+c}, v{base+c}, v{tmp+c}")
    I("v_mov_b32 v70, v3")
    def oy_issue(b): I(f"global_load_dwordx4 v[{b}:{b+3}], v15, s[26:27] sc1")
    def oy_first(b):
        for c in range(4): I(f"v_mov_b32 v{72+c}, v{b+c}")
    poll2("L_o_polly", oy_issue, 1, list(range(16, 20)), list(range(24, 28)), 28, oy_first, 'y')
    red_r8(72, 76)
    I(f"""
    v_cvt_pk_bf16_f32 v72, v72, v73
    v_cvt_pk_bf16_f32 v73, v74, v75
    v_lshlrev_b32 v76, 16, v72
    v_and_b32 v77, s43, v72
    v_lshlrev_b32 v78, 16, v73
    v_and_b32 v79, s43, v73
    v_lshlrev_b32 v80, 16, v6
    v_and_b32 v81, s43, v6
    v_lshlrev_b32 v82, 16, v7
    v_and_b32 v83, s43, v7
    v_pk_add_f32 v[76:77], v[76:77], v[80:81]
    v_pk_add_f32 v[78:79], v[78:79], v[82:83]
    v_cvt_pk_bf16_f32 v72, v76, v77
    v_cvt_pk_bf16_f32 v73, v78, v79
    v_lshlrev_b32 v66, 16, v72
    v_and_b32 v67, s43, v72
    v_lshlrev_b32 v68, 16, v73
    v_and_b32 v69, s43, v73
    s_waitcnt vmcnt(0)
    """)
    stamp(17)
    def op_issue(b):
        for u in range(6):
            I(f"s_mov_b32 s46, {u * 8 * 2048}")
            I(f"buffer_load_dwordx4 v[{b+4*u}:{b+4*u+3}], v14, s[32:35], s46 offen sc1")
    def op_first(b):
        I(f"""
        v_pk_add_f32 v[72:73], v[{b}:{b+1}], v[{b+4}:{b+5}]
        v_pk_add_f32 v[74:75], v[{b+2}:{b+3}], v[{b+6}:{b+7}]
        v_pk_add_f32 v[76:77], v[{b+8}:{b+9}], v[{b+12}:{b+13}]
        v_pk_add_f32 v[78:79], v[{b+10}:{b+11}], v[{b+14}:{b+15}]
        v_pk_add_f32 v[80:81], v[{b+16}:{b+17}], v[{b+20}:{b+21}]
        v_pk_add_f32 v[82:83], v[{b+18}:{b+19}], v[{b+22}:{b+23}]
        v_pk_add_f32 v[72:73], v[72:73], v[76:77]
        v_pk_add_f32 v[74:75], v[74:75], v[78:79]
        v_pk_add_f32 v[72:73], v[72:73], v[80:81]
        v_pk_add_f32 v[74:75], v[74:75], v[82:83]
        """)
    poll2("L_o_pollp", op_issue, 6, list(range(16, 40)), list(range(40, 64)), 71, op_first, 'O')
    stamp(18)
    red_r8(72, 76)
    I(f"""
    v_cvt_pk_bf16_f32 v72, v72, v73
    v_cvt_pk_bf16_f32 v73, v74, v75
    v_lshlrev_b32 v76, 16, v72
    v_and_b32 v77, s43, v72
    v_lshlrev_b32 v78, 16, v73
    v_and_b32 v79, s43, v73
    v_pk_add_f32 v[76:77], v[76:77], v[66:67]
    v_pk_add_f32 v[78:79], v[78:79], v[68:69]
    v_cvt_pk_bf16_f32 v72, v76, v77
    v_cvt_pk_bf16_f32 v73, v78, v79
    s_mov_b64 exec, 0xff
    global_store_dwordx2 v70, v[72:73], s[22:23] {P['out_sc']}
    s_mov_b64 exec, -1
    """)
    stamp(19)
    flush_stamps()
    a.label("L_end")
    I("s_endpgm")
    a.raw('.section .rodata,"a"')
    a.raw(".p2align 6")
    a.raw(f".amdhsa_kernel {KN}_kernel")
    a.raw("  .amdhsa_next_free_vgpr 168")
    a.raw("  .amdhsa_next_free_sgpr 96")
    a.raw("  .amdhsa_accum_offset 168")
    a.raw("  .amdhsa_group_segment_fixed_size 0")
    a.raw("  .amdhsa_kernarg_size 96")
    a.raw("  .amdhsa_user_sgpr_count 2")
    a.raw("  .amdhsa_user_sgpr_kernarg_segment_ptr 1")
    a.raw("  .amdhsa_system_sgpr_workgroup_id_x 1")
    a.raw(".end_amdhsa_kernel")
    return a.text()

if __name__ == "__main__":
    out = sys.argv[1]
    kw = json.loads(sys.argv[2]) if len(sys.argv) > 2 else {}
    open(out, "w").write(gen(**kw))
    print("wrote", out)
```

```python
import sys, json
from asmlib import Asm

KN = "sequential_preLN__gqa_block_cached__glu_gated_bilinear__decode"

DEF = dict(D=18, R=8, S=112, C=2, stamps=False, dump=False, nt="nt", sleep_c=1, sleep_t=1, prio=True,
           skip_stage=False, skip_role="", f_late="gd", g_early=0, w_late=3, w_split=False, peel=False, pre=True, w_reg=2, f_reg=1, wtouch=True, segs=None, stage_nt="nt", qsleep=2, q_nt="nt", knt=None, vnt=None, tag_sc1=True, budget=0x40000, map="rot", out_sc="", aligned=True, stag=5, dbl="", wsleep=0, fsleep=0, osleep=0, cprio=0, tprio=0, qdelay=0, De=None, Te=8, stage_at="ready", rolemap="bal", w_at_start=False, Dd=24, qst=False, vtouch=True, ptouch=False, touch_out=False, hoist=True)

def lds_map(R, S):
    ring = R * 16384
    m = {}
    m['RING'] = 0
    m['STAGE'] = ring
    f = ring + 16384
    m['FILLED'] = f
    m['QPUB'] = f + 60
    m['PCNT'] = f + 12
    m['NEXT'] = f + 16
    m['FINCNT'] = f + 32
    m['CLEARED'] = f + 36
    m['TAILGO'] = f + 40
    m['QREADY'] = f + 44
    m['NONCE'] = f + 48
    m['KALL'] = f + 56
    m['TID'] = f + 128
    m['PMAX'] = f + 64
    m['XXT'] = f + 256
    m['FINO'] = m['XXT']
    m['QB'] = m['XXT'] + 2048
    m['FINML'] = m['QB'] + 256
    m['OALL'] = m['FINML'] + 64
    m['XN2'] = m['OALL'] + 1024
    m['HH'] = m['XN2'] + 1024
    m['YP'] = m['HH'] + 256
    m['SC'] = m['YP'] + 1024
    m['SCF'] = m['SC'] + S * 64
    m['END'] = m['SCF'] + 2 * R * 64
    return m

WS_PO = 0x0
PREC = 640
WS_Y = 0x29000
WS_P = 0x30000
WS_QX = 0x48000
WS_TK = 0x88000
WS_CLR = 0x8C000
WS_KD = 0x90000
WS_SCX = 0x100000
WS_STAMP = 0x20000000
NF = 43

LOG2E = 0x3fb8aa3b
SCALE = 0x3db504f3
EPS = 0x3727c5ac

def gen(**kw):
    P = dict(DEF); P.update(kw)
    D = P['D']; R = P['R']; NT = P['nt']; S = P['S']; NP = 128 - S
    M = lds_map(R, S)
    ldsz = (M['END'] + 255) // 256 * 256
    assert ldsz <= 163840, ldsz
    a = Asm(); I = a.I
    stamps = P['stamps']

    def spin():
        I("s_sub_u32 s89, s89, 1")
        I("s_cbranch_scc1 L_end")

    pend = []
    def stamp(slot):
        if not stamps: return
        k = len(pend); assert k < 6
        pend.append(slot)
        I(f"s_memrealtime s[{76+2*k}:{77+2*k}]")
    def flush_stamps(keep=0):
        if not stamps: return
        I("s_waitcnt lgkmcnt(0)")
        I("s_lshl_b32 s92, s2, 8")
        I(f"s_add_u32 s92, s92, {WS_STAMP}")
        I("s_add_u32 s92, s26, s92")
        I("s_addc_u32 s93, s27, 0")
        I("v_mov_b32 v166, 0")
        I("s_mov_b64 s[94:95], exec")
        I("s_mov_b64 exec, 1")
        for k, slot in enumerate(pend):
            I(f"v_mov_b32 v164, s{76+2*k}")
            I(f"v_mov_b32 v165, s{77+2*k}")
            I(f"global_store_dwordx2 v166, v[164:165], s[92:93] offset:{8*slot}")
        I("s_mov_b64 exec, s[94:95]")
        del pend[keep:]

    def lds_wait(lbl, addr_reg, tmp, sleep):
        a.label(lbl)
        spin()
        I(f"ds_read_b32 v{tmp}, v{addr_reg}")
        I("s_waitcnt lgkmcnt(0)")
        I(f"v_readfirstlane_b32 s42, v{tmp}")
        I("s_cmp_lg_u32 s42, 0")
        I(f"s_cbranch_scc1 {lbl}_ok")
        I(f"s_sleep {sleep}")
        I(f"s_branch {lbl}")
        a.label(f"{lbl}_ok")

    a.raw(f"; @launch grid=(256,1,1) block=(576,1,1) lds={ldsz}")
    for ln in """
Fused single-launch decode layer: h = x + Attn(LN(x)) ; out = h + Wd((LN(h) Wg) * (LN(h) Wu)).  One workgroup per CU, 9 waves.
Workgroup id -> head = id>>3, member = (id + head) & 7 : the 8 members of a head split its 32768 keys into tiles of 32 keys.
  wave 0      streams first the K tiles, then the V tiles HBM -> LDS ring (LDS-DMA, a fixed window of loads in flight); the whole
              chip reads one tensor at a time. Most tiles are assigned statically; the last 8 tiles of every member's range form a
              per-head pool that is handed out tile by tile through atomic tickets, once for K and once for V (load balance).
  waves 1-4   K phase: QK^T with MFMA, scores rounded to bf16 as the reference does; kept in LDS (own tiles) or published in d_ws
              (pool tiles). V phase: softmax against the true maximum (running maximum for pool tiles), PV with MFMA.
              Wave 1 first computes the workgroup's share of q = LN(x) Wq (64 of the 512 rows); the members exchange the shares.
  waves 5-8   fetch their slice of Wo / Wg,Wu,Wd into registers (part of it while the stream runs, part of it right after it, when HBM
              is idle), then run the tail:
              W (64 workgroups): combine the 32 partials of 4 heads, times a 512x64 tile of Wo ;
              F (43 workgroups): h, LayerNorm, 32 gate/up columns, their 32 rows of Wd ;  O (16 workgroups): sum, residual, store.
Hand-offs between workgroups go through d_ws with write-through (sc1) stores and sc1 polling loads. Words are either reset to all-ones by
their producer early in the launch (and validated word by word), or carry the launch tag that workgroup 0 puts into d_debug at its start.
Every polling loop is bounded.""".strip().split("\n"):
        a.raw("; " + ln)
    a.raw('.amdgcn_target "amdgcn-amd-amdhsa--gfx950"')
    a.raw(".text")
    a.raw(f".globl {KN}_kernel")
    a.raw(".p2align 8")
    a.raw(f".type {KN}_kernel,@function")
    a.raw(f"{KN}_kernel:")
    I("s_cmp_ge_u32 s2, 256")
    I("s_cbranch_scc1 L_end")
    I("s_load_dwordx16 s[4:19], s[0:1], 0")
    I("s_load_dwordx8 s[20:27], s[0:1], 64")
    I("v_lshrrev_b32 v2, 6, v0")
    I("v_and_b32 v1, 63, v0")
    I("v_readfirstlane_b32 s28, v2")
    if P['map'] == "rot":
        I("s_lshr_b32 s29, s2, 3")
        I("s_add_u32 s30, s2, s29")
        I("s_and_b32 s30, s30, 7")
    elif P['map'] == "div":
        I("s_lshr_b32 s29, s2, 3")
        I("s_and_b32 s30, s2, 7")
    else:
        I("s_and_b32 s29, s2, 31")
        I("s_lshr_b32 s30, s2, 5")
    I("s_lshl_b32 s3, s29, 3")
    I("s_add_u32 s3, s3, s30")
    if P['map'] == "rot":
        I("s_mov_b32 s31, s30")
    else:
        I("s_sub_u32 s31, s30, s29")
        I("s_and_b32 s31, s31, 7")
    I(f"s_mov_b32 s89, {P['budget']}")
    I("s_waitcnt lgkmcnt(0)")
    I("s_cmp_eq_u32 s28, 0")
    I("s_cbranch_scc1 L_loader")
    I("s_cmp_lt_u32 s28, 5")
    I("s_cbranch_scc1 L_consumer")
    I("s_branch L_tail")

    a.label("L_loader")
    if P['prio']: I("s_setprio 3")
    stamp(0)
    I(f"""
    s_mov_b32 s32, s6
    s_and_b32 s33, s7, 0xffff
    s_mov_b32 s34, 0x10000000
    s_mov_b32 s35, 0x20000
    s_mov_b32 s36, s8
    s_and_b32 s37, s9, 0xffff
    s_mov_b32 s38, 0x10000000
    s_mov_b32 s39, 0x20000
    s_lshl_b32 s44, s29, 23
    v_lshrrev_b32 v8, 4, v1
    v_and_b32 v9, 15, v1
    v_lshlrev_b32 v10, 8, v8
    v_add_u32 v10, s44, v10
    """)
    for tt in range(4):
        I(f"v_add_u32 v11, {4*tt}, v8")
        I("v_xor_b32 v11, v11, v9")
        I("v_lshlrev_b32 v11, 4, v11")
        I(f"v_add_u32 v{2+tt}, v10, v11")
    for tp in range(2):
        I(f"v_add_u32 v11, {4*tp}, v8")
        I("v_lshlrev_b32 v11, 1, v11")
        I("v_xor_b32 v11, v11, v9")
        I("v_lshlrev_b32 v11, 4, v11")
        I(f"v_add_u32 v{6+tp}, v10, v11")
    RS = 2 * R
    Dd = P['Dd'] or D
    Dp = max(D, Dd)
    u0 = (Dp - 1) % 8
    cnt0 = (u0 - Dp + 1) // 8 - 1
    I(f"""
    s_mul_i32 s46, s30, {128 * 8192}
    s_mov_b32 s48, 0
    s_mov_b32 s49, {cnt0}
    s_mov_b32 s50, 0
    v_mov_b32 v12, {M['FILLED']}
    v_mov_b32 v13, {M['NEXT']}
    """)
    KNT = NT if P['knt'] is None else P['knt']
    VNT = NT if P['vnt'] is None else P['vnt']
    def loads_of_tile(isv, first, Dw=None):
        Dw = Dw or D
        for u in range(8):
            if u % 4 == 0:
                I(f"s_add_u32 m0, s48, {(u // 4) * 4096}")
            I(f"s_waitcnt vmcnt({Dw-1})")
            if u == u0:
                I("s_add_u32 s49, s49, 1")
                I("v_mov_b32 v14, s49")
                if not first:
                    I("ds_write_b32 v12, v14")
            so = "s46" if u < 4 else "s47"
            if isv: I(f"buffer_load_dwordx4 v{6 + (u & 1)}, s[36:39], {so} offen offset:{(u % 4) * 1024} {VNT} lds")
            else:   I(f"buffer_load_dwordx4 v{2 + (u & 3)}, s[32:35], {so} offen offset:{(u % 4) * 1024} {KNT} lds")
    assert 16 <= D and Dp <= 24
    if P['vtouch']:
        I("buffer_load_dword v31, v6, s[36:39], s46 offen nt")
    I("s_add_u32 s47, s46, 4096")
    loads_of_tile(False, True)
    I("""
    s_add_u32 s50, s50, 1
    s_add_u32 s46, s46, 8192
    s_add_u32 s47, s46, 4096
    s_add_u32 s48, s48, 8192
    """)
    loads_of_tile(False, True)
    I(f"""
    v_mov_b32 v16, 0
    v_mov_b32 v17, 1
    v_mov_b32 v18, 2
    v_mov_b32 v19, 3
    v_mov_b32 v20, 0
    v_mov_b32 v21, 0
    v_mov_b32 v22, 0
    v_mov_b32 v23, 0
    v_mov_b32 v14, s49
    v_mov_b32 v15, 0x7fffffff
    ds_write_b64 v12, v[14:15]
    v_mov_b32 v24, 0x7fffffff
    v_mov_b32 v25, 0
    ds_write_b64 v12, v[24:25] offset:8
    ds_write_b128 v13, v[16:19]
    ds_write_b128 v13, v[20:23] offset:16
    ds_write_b128 v13, v[20:23] offset:32
    s_waitcnt lgkmcnt(0)
    s_barrier
    """)
    I("ds_read_b128 v[16:19], v13")
    lab = [0]
    def next_tile(isv, advance, Dw=None, extra=None):
        k = lab[0]; lab[0] += 1
        I("s_add_u32 s50, s50, 1")
        if advance: I("s_add_u32 s46, s46, 8192")
        I(f"""
        s_add_u32 s47, s46, 4096
        s_add_u32 s48, s48, 8192
        s_cmp_ge_u32 s48, {RS*8192}
        s_cselect_b32 s48, 0, s48
        s_sub_u32 s52, s50, {RS-1}
        """)
        a.label(f"L_ld_free{k}")
        spin()
        I(f"""
        s_waitcnt lgkmcnt(0)
        v_min3_u32 v20, v16, v17, v18
        v_min_u32 v20, v20, v19
        v_readfirstlane_b32 s51, v20
        ds_read_b128 v[16:19], v13
        s_cmp_ge_i32 s51, s52
        s_cbranch_scc0 L_ld_free{k}
        """)
        if extra == "tid":
            I(f"""
            s_lshr_b32 s53, s48, 11
            s_add_u32 s53, s53, {M['TID']}
            v_mov_b32 v21, s53
            v_mov_b32 v22, s59
            ds_write_b32 v21, v22
            """)
        if extra == "scores":
            I(f"""
            s_lshr_b32 s53, s48, 7
            s_add_u32 m0, s53, {M['SCF']}
            s_lshl_b32 s59, s59, 6
            s_mov_b64 exec, 0xffff
            buffer_load_dword v28, s[40:43], s59 offen sc1 lds
            s_mov_b64 exec, -1
            """)
        loads_of_tile(isv, False, Dw)
    LA = 3
    assert 9 * LA - 1 >= Dp
    assert Dp - u0 <= 21
    NPOOL = 8 * NP
    nst = [0]
    def tstamp():
        if stamps and nst[0] < 7:
            I(f"s_memrealtime s[{60+2*nst[0]}:{61+2*nst[0]}]"); nst[0] += 1
    def ticket(reg):
        I("s_mov_b64 exec, 1")
        I(f"global_atomic_add v{reg}, v25, v26, s[26:27] sc0 sc1")
        I("s_mov_b64 exec, -1")
    def decode(reg, over):
        I(f"""
        v_readfirstlane_b32 s53, v{reg}
        s_and_b32 s55, s53, 7
        s_lshr_b32 s57, s53, 3
        s_lshl_b32 s46, s55, 7
        s_add_u32 s46, s46, s57
        s_add_u32 s46, s46, {S}
        s_lshl_b32 s46, s46, 13
        s_cmp_lt_u32 s53, {NPOOL}
        s_cbranch_scc0 {over}
        s_mov_b32 s59, s53
        """)
    TR = (24, 27, 29)
    nstatic = S - LA
    bounds = ([b for b in (P['segs'] or [16, 32, 64]) if b < nstatic] if stamps else []) + [nstatic]
    for sg, b in enumerate(bounds):
        a.label(f"L_ld_tile{sg}")
        next_tile(False, True)
        I(f"s_cmp_lt_u32 s50, {b - 1}")
        I(f"s_cbranch_scc1 L_ld_tile{sg}")
        if sg < len(bounds) - 1: tstamp()
    I(f"""
    s_lshl_b32 s53, s29, 8
    s_add_u32 s53, s53, {WS_TK}
    v_mov_b32 v25, s53
    v_mov_b32 v26, 1
    """)
    for reg in TR:
        ticket(reg)
        next_tile(False, True, Dd)
    a.label("L_ld_kdyn")
    for reg in TR:
        decode(reg, "L_ld_kover")
        ticket(reg)
        next_tile(False, False, Dd, extra="tid")
    I("s_branch L_ld_kdyn")
    a.label("L_ld_kover")
    tstamp()
    I(f"""
    s_add_u32 s56, s50, 1
    v_mov_b32 v14, s56
    ds_write_b32 v12, v14 offset:4
    s_mul_i32 s46, s30, {128 * 8192}
    s_sub_u32 s46, s46, 8192
    s_add_u32 s58, s56, {S - LA - 1}
    """)
    a.label("L_ld_v")
    next_tile(True, True)
    I("s_cmp_lt_u32 s50, s58")
    I("s_cbranch_scc1 L_ld_v")
    tstamp()
    I(f"""
    v_add_u32 v25, 128, v25
    s_mul_i32 s53, s29, {NPOOL * 64}
    s_add_u32 s53, s53, {WS_SCX}
    s_add_u32 s40, s26, s53
    s_addc_u32 s41, s27, 0
    s_and_b32 s41, s41, 0xffff
    s_mov_b32 s42, {NPOOL * 64}
    s_mov_b32 s43, 0x20000
    v_lshlrev_b32 v28, 2, v1
    v_mov_b32 v30, {M['KALL']}
    """)
    for reg in TR:
        ticket(reg)
        next_tile(True, True, Dd)
    a.label("L_ld_kall")
    spin()
    I("""
    ds_read_b32 v31, v30
    s_waitcnt lgkmcnt(0)
    v_readfirstlane_b32 s53, v31
    s_cmp_lg_u32 s53, 0
    s_cbranch_scc0 L_ld_kall
    ds_read_b128 v[16:19], v13
    """)
    a.label("L_ld_vdyn")
    for reg in TR:
        decode(reg, "L_ld_pover")
        ticket(reg)
        next_tile(True, False, Dd, extra="scores")
    I("s_branch L_ld_vdyn")
    a.label("L_ld_pover")
    I("""
    s_add_u32 s56, s50, 1
    v_mov_b32 v14, s56
    ds_write_b32 v12, v14 offset:8
    """)
    a.label("L_ld_over")
    rem = 8 - u0 + Dp - 1
    while rem > 0:
        rem -= 8
        I(f"s_waitcnt vmcnt({rem})")
        I("s_add_u32 s49, s49, 1")
        I("v_mov_b32 v14, s49")
        I("ds_write_b32 v12, v14")
    assert rem == 0
    I("s_waitcnt lgkmcnt(0)")
    stamp(1)
    flush_stamps()
    if stamps:
        I("s_lshl_b32 s92, s2, 8")
        I(f"s_add_u32 s92, s92, {WS_STAMP + 20 * 8}")
        I("s_add_u32 s92, s26, s92")
        I("s_addc_u32 s93, s27, 0")
        I("v_mov_b32 v166, 0")
        I("s_mov_b64 exec, 1")
        for k in range(7):
            I(f"v_mov_b32 v164, s{60+2*k}")
            I(f"v_mov_b32 v165, s{61+2*k}")
            I(f"global_store_dwordx2 v166, v[164:165], s[92:93] offset:{8*k}")
        I("v_mov_b32 v164, s56")
        I("v_mov_b32 v165, 0")
        I(f"global_store_dwordx2 v166, v[164:165], s[92:93] offset:{8*7}")
    I("s_endpgm")

    def wave_sum(v, t):
        for r in (8, 4, 2, 1):
            I(f"v_add_f32_dpp v{v}, v{v}, v{v} row_ror:{r} row_mask:0xf bank_mask:0xf")
        I(f"v_mov_b32 v{t}, v{v}")
        I(f"v_permlane16_swap_b32 v{v}, v{t}")
        I(f"v_add_f32 v{v}, v{v}, v{t}")
        I(f"v_mov_b32 v{t}, v{v}")
        I(f"v_permlane32_swap_b32 v{v}, v{t}")
        I(f"v_add_f32 v{v}, v{v}, v{t}")
    def unpack8(src, dst):
        for j in range(4):
            I(f"v_lshlrev_b32 v{dst+2*j}, 16, v{src+j}")
            I(f"v_and_b32 v{dst+2*j+1}, s43, v{src+j}")
    def layernorm8(x, tmp):
        s, t, mb, den = tmp, tmp+1, tmp+2, tmp+3
        I(f"v_add_f32 v{s}, v{x}, v{x+1}")
        for j in range(2, 8): I(f"v_add_f32 v{s}, v{s}, v{x+j}")
        wave_sum(s, t)
        I(f"v_mul_f32 v{s}, 0x3b000000, v{s}")
        I(f"v_cvt_pk_bf16_f32 v{mb}, v{s}, v{s}")
        I(f"v_and_b32 v{mb}, s43, v{mb}")
        I(f"v_sub_f32 v{t}, v{x}, v{s}")
        I(f"v_mul_f32 v{den}, v{t}, v{t}")
        for j in range(1, 8):
            I(f"v_sub_f32 v{t}, v{x+j}, v{s}")
            I(f"v_fmac_f32 v{den}, v{t}, v{t}")
        wave_sum(den, t)
        I(f"v_mul_f32 v{den}, 0x3b000000, v{den}")
        I(f"v_cvt_pk_bf16_f32 v{den}, v{den}, v{den}")
        I(f"v_and_b32 v{den}, s43, v{den}")
        I(f"v_add_f32 v{den}, {hex(EPS)}, v{den}")
        I(f"v_cvt_pk_bf16_f32 v{den}, v{den}, v{den}")
        I(f"v_and_b32 v{den}, s43, v{den}")
        I(f"v_sqrt_f32 v{den}, v{den}")
        I(f"v_cvt_pk_bf16_f32 v{den}, v{den}, v{den}")
        I(f"v_and_b32 v{den}, s43, v{den}")
        I(f"v_rcp_f32 v{den}, v{den}")
        for j in range(0, 8, 2):
            I(f"v_sub_f32 v{x+j}, v{x+j}, v{mb}")
            I(f"v_sub_f32 v{x+j+1}, v{x+j+1}, v{mb}")
            I(f"v_cvt_pk_bf16_f32 v{t}, v{x+j}, v{x+j+1}")
            I(f"v_lshlrev_b32 v{x+j}, 16, v{t}")
            I(f"v_and_b32 v{x+j+1}, s43, v{t}")
            I(f"v_mul_f32 v{x+j}, v{x+j}, v{den}")
            I(f"v_mul_f32 v{x+j+1}, v{x+j+1}, v{den}")

    a.label("L_consumer")
    if P['cprio']: I(f"s_setprio {P['cprio']}")
    I("s_sub_u32 s40, s28, 1")
    I("s_mov_b32 s43, 0xffff0000")
    I("v_lshrrev_b32 v8, 4, v1")
    I("v_and_b32 v9, 15, v1")
    I("s_cmp_eq_u32 s40, 0")
    I("s_cbranch_scc1 L_c_q")
    I("s_barrier")
    I("s_branch L_c_qwait")
    a.label("L_c_q")
    I("""
    s_cmp_eq_u32 s2, 0
    s_cbranch_scc0 L_q_notag
    s_memrealtime s[56:57]
    s_waitcnt lgkmcnt(0)
    s_or_b32 s56, s56, 1
    s_or_b32 s57, s57, 0x40000000
    s_and_b32 s57, s57, 0x7fffffff
    v_mov_b32 v34, s56
    v_mov_b32 v35, s57
    v_mov_b32 v2, 0
    s_mov_b64 exec, 1
    global_store_dwordx2 v2, v[34:35], s[24:25] sc1
    s_mov_b64 exec, -1
    """)
    a.label("L_q_notag")
    I(f"""
    v_mov_b32 v2, 0
    global_load_dwordx2 v[34:35], v2, s[24:25] {"sc1" if P['tag_sc1'] else ""}
    s_mov_b32 s32, s10
    s_and_b32 s33, s11, 0xffff
    s_mov_b32 s34, 0x400000
    s_mov_b32 s35, 0x20000
    v_lshlrev_b32 v2, 4, v1
    global_load_dwordx4 v[30:33], v2, s[4:5]
    s_lshl_b32 s41, s30, 6
    v_add_u32 v3, s41, v8
    v_lshlrev_b32 v3, 13, v3
    v_lshlrev_b32 v4, 4, v9
    v_add_u32 v3, v3, v4
    s_lshl_b32 s41, s29, 8
    v_add_u32 v3, s41, v3
    """)
    for t in range(16):
        I(f"s_mov_b32 s42, {t * 32768}")
        I(f"buffer_load_dwordx4 v[{40+4*t}:{43+4*t}], v3, s[32:35], s42 offen {P['q_nt']}")
    if P['qst']: stamp(28)
    I("s_barrier")
    I("s_waitcnt vmcnt(16)")
    if P['qst']: stamp(29)
    unpack8(30, 10)
    layernorm8(10, 4)
    for e in range(8):
        I(f"v_cvt_pk_bf16_f32 v{18+e}, v{10+e}, v{10+e}")
    I(f"""
    v_lshrrev_b32 v4, 3, v1
    v_lshlrev_b32 v4, 8, v4
    v_and_b32 v5, 7, v1
    v_lshlrev_b32 v5, 3, v5
    v_add_u32 v4, v4, v5
    v_add_u32 v4, {M['XXT']}, v4
    """)
    for g in range(4):
        I(f"v_mov_b32 v26, v{18+g}")
        I(f"v_mov_b32 v27, v{18+g+4}")
        I(f"ds_write_b64 v4, v[26:27] offset:{g*64}")
    I(f"""
    v_and_b32 v5, 1, v9
    v_mov_b32 v6, 0xffff
    v_mov_b32 v7, s43
    v_cmp_eq_u32 vcc, 1, v5
    v_cndmask_b32 v5, v6, v7, vcc
    v_lshrrev_b32 v6, 1, v9
    """)
    for j in range(4):
        I(f"v_cmp_eq_u32 vcc, {j}, v6")
        I(f"v_cndmask_b32 v{10+j}, 0, v5, vcc")
    I(f"""
    s_lshl_b32 s41, s30, 8
    s_add_u32 s41, s41, {M['XXT']}
    v_lshlrev_b32 v4, 6, v8
    v_add_u32 v4, s41, v4
    s_waitcnt lgkmcnt(0)
    ds_read_b128 v[104:107], v4
    ds_read_b128 v[108:111], v4 offset:16
    ds_read_b128 v[112:115], v4 offset:32
    ds_read_b128 v[116:119], v4 offset:48
    s_waitcnt lgkmcnt(0)
    """)
    if P['qst']: stamp(31)
    for t in range(16):
        bb = 18 + 4 * (t % 2)
        for j in range(4):
            I(f"v_and_b32 v{bb+j}, v{104+t}, v{10+j}")
        I(f"s_waitcnt vmcnt({15 - t})")
        c = "0" if t == 0 else "v[26:29]"
        I(f"v_mfma_f32_16x16x32_bf16 v[26:29], v[{40+4*t}:{43+4*t}], v[{bb}:{bb+3}], {c}")
    if P['qst']: stamp(30)
    I("""
    v_readfirstlane_b32 s56, v34
    v_readfirstlane_b32 s57, v35
    s_cmp_lg_u32 s56, 0
    s_cbranch_scc1 L_q_havetag
    """)
    a.label("L_q_tagpoll")
    spin()
    I("""
    v_mov_b32 v2, 0
    global_load_dwordx2 v[34:35], v2, s[24:25] sc1
    s_waitcnt vmcnt(0)
    v_readfirstlane_b32 s56, v34
    v_readfirstlane_b32 s57, v35
    s_cmp_lg_u32 s56, 0
    s_cbranch_scc1 L_q_havetag
    s_sleep 2
    s_branch L_q_tagpoll
    """)
    a.label("L_q_havetag")
    I(f"v_mov_b32 v5, {M['CLEARED']}")
    lds_wait("L_q_clr", 5, 6, 1)
    I(f"""
    v_mov_b32_dpp v14, v28 row_ror:8 row_mask:0xf bank_mask:0xf
    v_mov_b32_dpp v16, v29 row_ror:8 row_mask:0xf bank_mask:0xf
    v_cmp_gt_u32 vcc, 8, v9
    v_mov_b32 v11, s56
    v_mov_b32 v13, s57
    v_cndmask_b32 v10, v14, v26, vcc
    v_cndmask_b32 v12, v16, v27, vcc
    v_mov_b32 v18, s56
    v_mov_b32 v19, s57
    v_mov_b32 v6, {M['NONCE']}
    ds_write_b64 v6, v[18:19]
    s_lshl_b32 s41, s3, 10
    s_add_u32 s41, s41, {WS_QX}
    v_and_b32 v4, 7, v9
    v_lshlrev_b32 v4, 1, v4
    v_lshrrev_b32 v5, 3, v9
    v_add_u32 v4, v4, v5
    v_lshlrev_b32 v5, 4, v8
    v_add_u32 v4, v4, v5
    v_lshlrev_b32 v4, 4, v4
    v_add_u32 v4, s41, v4
    global_store_dwordx4 v4, v[10:13], s[26:27] sc1
    v_mov_b32 v6, {M['QPUB']}
    v_mov_b32 v7, 1
    ds_write_b32 v6, v7
    s_mov_b64 exec, 1
    s_lshl_b32 s41, s3, 3
    s_add_u32 s41, s41, {WS_CLR}
    v_mov_b32 v4, s41
    global_store_dwordx2 v4, v[18:19], s[26:27] sc1
    s_mov_b64 exec, -1
    s_lshl_b32 s41, s29, 13
    s_add_u32 s41, s41, {WS_QX}
    v_lshlrev_b32 v4, 4, v1
    v_add_u32 v4, s41, v4
    v_add_u32 v5, 4096, v4
    """)
    stamp(5)
    if P['qdelay']: I(f"s_sleep {P['qdelay']}")
    a.label("L_q_poll")
    spin()
    for i in range(8):
        I(f"global_load_dwordx4 v[{40+4*i}:{43+4*i}], v{4 if i < 4 else 5}, s[26:27] offset:{1024*(i%4)} sc1")
    I("s_waitcnt vmcnt(0)")
    I("v_xor_b32 v6, s56, v41")
    I("v_xor_b32 v7, s57, v43")
    I("v_or_b32 v6, v6, v7")
    for i in range(1, 8):
        I(f"v_xor_b32 v7, s56, v{41+4*i}")
        I(f"v_or_b32 v6, v6, v7")
        I(f"v_xor_b32 v7, s57, v{43+4*i}")
        I(f"v_or_b32 v6, v6, v7")
    I("v_cmp_ne_u32 vcc, 0, v6")
    I("s_cbranch_vccz L_q_seen")
    if P['qsleep']: I(f"s_sleep {P['qsleep']}")
    I("s_branch L_q_poll")
    a.label("L_q_seen")
    stamp(6)
    for c in (0, 2):
        I(f"v_add_f32 v{40+c}, v{40+c}, v{44+c}")
        I(f"v_add_f32 v{48+c}, v{48+c}, v{52+c}")
        I(f"v_add_f32 v{56+c}, v{56+c}, v{60+c}")
        I(f"v_add_f32 v{64+c}, v{64+c}, v{68+c}")
    for c in (0, 2):
        I(f"v_add_f32 v{40+c}, v{40+c}, v{48+c}")
        I(f"v_add_f32 v{56+c}, v{56+c}, v{64+c}")
    for c in (0, 2):
        I(f"v_add_f32 v{40+c}, v{40+c}, v{56+c}")
    I(f"""
    v_cvt_pk_bf16_f32 v10, v40, v42
    v_lshrrev_b32 v11, 16, v10
    v_lshrrev_b32 v5, 1, v9
    v_and_b32 v6, 1, v1
    v_lshlrev_b32 v6, 4, v6
    v_add_u32 v5, v5, v6
    v_lshlrev_b32 v6, 5, v8
    v_add_u32 v5, v5, v6
    v_lshlrev_b32 v5, 1, v5
    v_add_u32 v5, {M['QB']}, v5
    ds_write_b16 v5, v10
    ds_write_b16 v5, v11 offset:16
    v_mov_b32 v6, {M['QREADY']}
    v_mov_b32 v7, 1
    s_waitcnt lgkmcnt(0)
    ds_write_b32 v6, v7
    """)
    flush_stamps()
    if P['dump']:
        I(f"""
        v_lshlrev_b32 v4, 2, v1
        v_add_u32 v5, {M['QB']}, v4
        ds_read_b32 v10, v5
        s_lshl_b32 s41, s3, 8
        s_add_u32 s41, s41, 0x100000
        v_add_u32 v4, s41, v4
        s_waitcnt lgkmcnt(0)
        global_store_dword v4, v10, s[26:27]
        """)
    a.label("L_c_qwait")
    I(f"v_mov_b32 v5, {M['QREADY']}")
    lds_wait("L_c_qw", 5, 6, 1)
    I(f"""
    v_lshlrev_b32 v5, 4, v8
    v_add_u32 v5, {M['QB']}, v5
    ds_read_b128 v[40:43], v5
    ds_read_b128 v[44:47], v5 offset:64
    ds_read_b128 v[48:51], v5 offset:128
    ds_read_b128 v[52:55], v5 offset:192
    """)
    I(f"""
    v_xor_b32 v2, v8, v9
    v_lshlrev_b32 v2, 4, v2
    v_lshlrev_b32 v10, 8, v9
    v_add_u32 v2, v2, v10
    v_lshrrev_b32 v10, 2, v9
    v_and_b32 v11, 3, v9
    v_lshlrev_b32 v12, 2, v8
    v_add_u32 v12, v12, v10
    v_and_b32 v13, 7, v12
    v_lshlrev_b32 v13, 1, v13
    v_lshrrev_b32 v14, 1, v11
    v_xor_b32 v13, v13, v14
    v_lshlrev_b32 v13, 4, v13
    v_and_b32 v14, 1, v11
    v_lshlrev_b32 v14, 3, v14
    v_lshlrev_b32 v3, 8, v12
    v_add_u32 v3, v3, v13
    v_add_u32 v3, v3, v14
    v_mov_b32 v4, 0xff800000
    v_mov_b32 v5, 0
    v_mov_b32 v6, 0
    v_mov_b32 v7, {M['FILLED']}
    s_lshl_b32 s41, s40, 2
    s_add_u32 s41, s41, {M['NEXT']}
    v_mov_b32 v38, s41
    s_mov_b32 s44, {hex(LOG2E)}
    s_mov_b32 s45, {hex(SCALE)}
    s_mov_b32 s46, s40
    s_lshl_b32 s47, s40, 13
    s_mov_b32 s48, -100
    s_mov_b32 s50, 0x7fffffff
    """)
    for r in range(56, 88): I(f"v_mov_b32 v{r}, 0")
    I(f"""
    s_lshl_b32 s41, s40, 9
    s_add_u32 s41, s41, {M['FINO']}
    v_lshlrev_b32 v120, 2, v9
    v_add_u32 v120, s41, v120
    s_lshl_b32 s41, s40, 3
    s_add_u32 s41, s41, {M['FINML']}
    v_mov_b32 v121, s41
    v_mov_b32 v122, {M['FINCNT']}
    v_mov_b32 v123, 1
    v_lshlrev_b32 v124, 3, v1
    s_mul_i32 s41, s3, {PREC}
    v_add_u32 v125, s41, v124
    v_add_u32 v124, {M['FINO']}, v124
    v_mov_b32 v126, {M['FINML']}
    v_mov_b32 v127, {M['TAILGO']}
    """)
    I("s_waitcnt lgkmcnt(0)")
    stamp(2)
    I(f"""
    v_lshlrev_b32 v39, 4, v8
    v_add_u32 v39, {M['SC']}, v39
    s_mov_b32 s60, 0x00010001
    s_mov_b32 s61, 0x00010001
    s_mul_i32 s41, s29, {8 * NP * 64}
    s_add_u32 s41, s41, {WS_SCX}
    v_lshlrev_b32 v128, 4, v8
    v_add_u32 v128, s41, v128
    v_lshlrev_b32 v129, 4, v8
    v_add_u32 v129, {M['SCF']}, v129
    s_mov_b32 s52, 0x7fffffff
    """)
    RS = 2 * R
    KF = 88
    SS = 18
    def wait_tile(lbl, kind):
        I(f"s_add_u32 s49, s46, 1")
        if kind != 'K':
            I(f"s_cmp_ge_i32 s48, s49")
            I(f"s_cbranch_scc1 {lbl}_ok")
        a.label(f"{lbl}_poll")
        spin()
        I("ds_read_b128 v[34:37], v7")
        I("s_waitcnt lgkmcnt(0)")
        I("v_readfirstlane_b32 s48, v34")
        if kind == 'K':
            I("v_readfirstlane_b32 s50, v35")
            I("s_cmp_ge_u32 s46, s50")
            I("s_cbranch_scc1 L_c_sw")
        if kind == 'P': I("v_readfirstlane_b32 s52, v36")
        I("s_cmp_ge_i32 s48, s49")
        I(f"s_cbranch_scc1 {lbl}_ok")
        if kind == 'P':
            I("s_cmp_ge_u32 s46, s52")
            I("s_cbranch_scc1 L_c_fin")
        elif kind != 'T':
            I(f"s_sleep {P['sleep_c']}")
        I(f"s_branch {lbl}_poll")
        a.label(f"{lbl}_ok")
    def advance():
        I(f"""
        s_add_u32 s47, s47, {4*8192}
        s_cmp_ge_u32 s47, {RS*8192}
        s_cselect_b32 s49, {RS*8192}, 0
        s_sub_u32 s47, s47, s49
        """)
    a.label("L_c_tile")
    I("s_cmp_ge_u32 s46, s50")
    I("s_cbranch_scc1 L_c_sw")
    wait_tile("L_c_k", 'K')
    I("v_add_u32 v10, s47, v2")
    for j in range(1, 4): I(f"v_xor_b32 v{10+j}, {j << 6}, v10")
    for j in range(4):
        I(f"ds_read_b128 v[{KF+4*j}:{KF+4*j+3}], v{10+j}")
        I(f"ds_read_b128 v[{KF+16+4*j}:{KF+16+4*j+3}], v{10+j} offset:4096")
    I(f"""
    s_lshr_b32 s49, s47, 11
    s_add_u32 s49, s49, {M['TID']}
    v_mov_b32 v14, s49
    ds_read_b32 v16, v14
    s_lshl_b32 s51, s46, 6
    s_add_u32 s46, s46, 4
    v_mov_b32 v15, s46
    """)
    for j in range(4):
        I(f"s_waitcnt lgkmcnt({7 - 2*j if j < 3 else 0})")
        if j == 3: I("ds_write_b32 v38, v15")
        c0 = "0" if j == 0 else "v[18:21]"
        c1 = "0" if j == 0 else "v[22:25]"
        I(f"v_mfma_f32_16x16x32_bf16 v[18:21], v[{KF+4*j}:{KF+4*j+3}], v[{40+4*j}:{43+4*j}], {c0}")
        I(f"v_mfma_f32_16x16x32_bf16 v[22:25], v[{KF+16+4*j}:{KF+16+4*j+3}], v[{40+4*j}:{43+4*j}], {c1}")
    advance()
    for p in range(4): I(f"v_cvt_pk_bf16_f32 v{30+p}, v{SS+2*p}, v{SS+2*p+1}")
    for p in range(4):
        I(f"v_lshlrev_b32 v{SS+2*p}, 16, v{30+p}")
        I(f"v_and_b32 v{SS+2*p+1}, s43, v{30+p}")
    for i in range(8): I(f"v_mul_f32 v{SS+i}, s45, v{SS+i}")
    for p in range(4): I(f"v_cvt_pk_bf16_f32 v{28+p}, v{SS+2*p}, v{SS+2*p+1}")
    I(f"""
    s_cmp_lt_u32 s51, {S * 64}
    s_cbranch_scc0 L_c_kpool
    v_add_u32 v14, s51, v39
    s_mov_b64 exec, s[60:61]
    ds_write_b128 v14, v[28:31]
    s_mov_b64 exec, -1
    s_branch L_c_kmax
    """)
    a.label("L_c_kpool")
    I(f"""
    v_lshlrev_b32 v16, 6, v16
    v_add_u32 v14, v16, v128
    s_mov_b64 exec, s[60:61]
    global_store_dwordx4 v14, v[28:31], s[26:27] sc1
    s_mov_b64 exec, -1
    """)
    a.label("L_c_kmax")
    for p in range(4):
        I(f"v_lshlrev_b32 v{SS+2*p}, 16, v{28+p}")
        I(f"v_and_b32 v{SS+2*p+1}, s43, v{28+p}")
    for p in range(4): I(f"v_max3_f32 v4, v4, v{SS+2*p}, v{SS+2*p+1}")
    I("s_branch L_c_tile")
    a.label("L_c_sw")
    I(f"""
    v_mov_b32 v30, v4
    s_lshl_b32 s41, s40, 2
    s_add_u32 s41, s41, {M['PMAX']}
    v_permlane32_swap_b32 v4, v30
    v_mov_b32 v31, s41
    v_max_f32 v4, v4, v30
    v_mov_b32 v32, {M['PCNT']}
    v_mov_b32 v30, v4
    v_mov_b32 v33, {M['PMAX']}
    s_nop 0
    v_permlane16_swap_b32 v4, v30
    v_max_f32 v4, v4, v30
    ds_write_b32 v31, v4
    s_waitcnt vmcnt(0) lgkmcnt(0)
    ds_add_u32 v32, v123
    """)
    a.label("L_c_sw_wait")
    spin()
    I("""
    ds_read_b32 v30, v32
    ds_read_b128 v[20:23], v33
    s_waitcnt lgkmcnt(0)
    v_readfirstlane_b32 s41, v30
    s_cmp_ge_u32 s41, 256
    s_cbranch_scc0 L_c_sw_wait
    """)
    I(f"""
    v_max3_f32 v4, v20, v21, v22
    v_max_f32 v4, v4, v23
    v_mul_f32 v6, s44, v4
    s_add_u32 s51, s50, {S}
    """)
    def softmax_part():
        for i in range(8): I(f"v_fma_f32 v{SS+i}, v{SS+i}, s44, -v6")
        for i in range(8): I(f"v_exp_f32 v{SS+i}, v{SS+i}")
        for p in range(4): I(f"v_cvt_pk_bf16_f32 v{26+p}, v{SS+2*p}, v{SS+2*p+1}")
        I(f"""
        v_add_f32 v30, v{SS}, v{SS+1}
        v_add_f32 v31, v{SS+2}, v{SS+3}
        v_add_f32 v32, v{SS+4}, v{SS+5}
        v_add_f32 v33, v{SS+6}, v{SS+7}
        v_add_f32 v30, v30, v31
        v_add_f32 v32, v32, v33
        v_add_f32 v30, v30, v32
        v_add_f32 v5, v5, v30
        """)
    def vread(nb):
        I(f"ds_read_b64_tr_b16 v[{KF+4*nb}:{KF+4*nb+1}], v{10+nb}")
        I(f"ds_read_b64_tr_b16 v[{KF+4*nb+2}:{KF+4*nb+3}], v{10+nb} offset:4096")
    def pv(nb):
        I(f"v_mfma_f32_16x16x32_bf16 v[{56+4*nb}:{59+4*nb}], v[26:29], v[{KF+4*nb}:{KF+4*nb+3}], v[{56+4*nb}:{59+4*nb}]")
    def pv_part():
        for nb in range(7): vread(nb)
        I("s_waitcnt lgkmcnt(6)")
        for nb in range(4): pv(nb)
        vread(7)
        I("s_waitcnt lgkmcnt(2)")
        for nb in range(4, 7): pv(nb)
        I("s_add_u32 s46, s46, 4")
        I("v_mov_b32 v30, s46")
        I("s_waitcnt lgkmcnt(0)")
        I("ds_write_b32 v38, v30")
        pv(7)
        advance()
    def vaddr():
        I("v_add_u32 v10, s47, v3")
        for nb in range(1, 8): I(f"v_xor_b32 v{10+nb}, {nb << 5}, v10")
    def unpack_scores():
        for p in range(4):
            I(f"v_lshlrev_b32 v{SS+2*p}, 16, v{28+p}")
            I(f"v_and_b32 v{SS+2*p+1}, s43, v{28+p}")
    a.label("L_c_vtile")
    I(f"""
    s_sub_u32 s49, s46, s50
    s_lshl_b32 s49, s49, 6
    v_add_u32 v14, s49, v39
    ds_read_b128 v[28:31], v14
    """)
    vaddr()
    I("s_waitcnt lgkmcnt(0)")
    unpack_scores()
    softmax_part()
    wait_tile("L_c_v", 'V')
    pv_part()
    I("s_cmp_lt_u32 s46, s51")
    I("s_cbranch_scc1 L_c_vtile")
    a.label("L_c_ptile")
    I("s_cmp_ge_u32 s46, s52")
    I("s_cbranch_scc1 L_c_fin")
    a.label("L_c_ps_poll")
    spin()
    I("""
    ds_read_b128 v[34:37], v7
    s_waitcnt lgkmcnt(0)
    v_readfirstlane_b32 s52, v36
    v_readfirstlane_b32 s48, v34
    s_cmp_ge_u32 s46, s52
    s_cbranch_scc1 L_c_fin
    s_cmp_ge_i32 s48, s46
    s_cbranch_scc0 L_c_ps_poll
    """)
    I(f"""
    s_lshr_b32 s49, s47, 7
    v_add_u32 v14, s49, v129
    ds_read_b128 v[28:31], v14
    """)
    vaddr()
    I("s_waitcnt lgkmcnt(0)")
    unpack_scores()
    I(f"""
    v_max3_f32 v34, v{SS}, v{SS+1}, v{SS+2}
    v_max3_f32 v35, v{SS+3}, v{SS+4}, v{SS+5}
    v_max3_f32 v34, v34, v{SS+6}, v{SS+7}
    v_max_f32 v34, v34, v35
    v_mov_b32 v35, v34
    v_permlane32_swap_b32 v34, v35
    v_max_f32 v34, v34, v35
    v_mov_b32 v35, v34
    v_permlane16_swap_b32 v34, v35
    v_max_f32 v34, v34, v35
    v_cmp_gt_f32 vcc, v34, v4
    s_cbranch_vccz L_c_norescale
    v_sub_f32 v35, v4, v34
    v_mul_f32 v35, s44, v35
    v_exp_f32 v35, v35
    v_mov_b32 v4, v34
    v_mul_f32 v6, s44, v34
    v_mul_f32 v5, v5, v35
    """)
    for r in range(56, 88): I(f"v_mul_f32 v{r}, v{r}, v35")
    a.label("L_c_norescale")
    softmax_part()
    wait_tile("L_c_pv", 'T')
    pv_part()
    I("s_branch L_c_ptile")
    a.label("L_c_fin")
    stamp(3)
    I(f"""
    v_mov_b32 v30, v5
    v_mov_b32 v4, v6
    ds_write_b32 v120, v56 offset:0
    v_permlane32_swap_b32 v5, v30
    ds_write_b32 v120, v60 offset:64
    ds_write_b32 v120, v64 offset:128
    v_add_f32 v5, v5, v30
    ds_write_b32 v120, v68 offset:192
    v_mov_b32 v30, v5
    ds_write_b32 v120, v72 offset:256
    ds_write_b32 v120, v76 offset:320
    v_permlane16_swap_b32 v5, v30
    ds_write_b32 v120, v80 offset:384
    ds_write_b32 v120, v84 offset:448
    v_add_f32 v5, v5, v30
    ds_write_b64 v121, v[4:5]
    s_mov_b64 exec, 1
    ds_add_rtn_u32 v32, v122, v123
    s_mov_b64 exec, -1
    ds_read_b128 v[20:23], v126
    ds_read_b128 v[24:27], v126 offset:16
    ds_read_b64 v[12:13], v124
    ds_read_b64 v[14:15], v124 offset:512
    ds_read_b64 v[16:17], v124 offset:1024
    ds_read_b64 v[18:19], v124 offset:1536
    s_waitcnt lgkmcnt(0)
    v_readfirstlane_b32 s41, v32
    v_max3_f32 v28, v20, v22, v24
    s_cmp_eq_u32 s41, 3
    s_cbranch_scc0 L_end
    ds_write_b32 v127, v123
    v_max_f32 v28, v28, v26
    v_sub_f32 v20, v20, v28
    v_sub_f32 v22, v22, v28
    v_sub_f32 v24, v24, v28
    v_sub_f32 v26, v26, v28
    v_exp_f32 v20, v20
    v_exp_f32 v22, v22
    v_exp_f32 v24, v24
    v_exp_f32 v26, v26
    v_pk_mul_f32 v[12:13], v[12:13], v[20:21] op_sel_hi:[1,0]
    v_mul_f32 v29, v21, v20
    v_pk_fma_f32 v[12:13], v[14:15], v[22:23], v[12:13] op_sel_hi:[1,0,1]
    v_fmac_f32 v29, v23, v22
    v_pk_fma_f32 v[12:13], v[16:17], v[24:25], v[12:13] op_sel_hi:[1,0,1]
    v_fmac_f32 v29, v25, v24
    v_pk_fma_f32 v[12:13], v[18:19], v[26:27], v[12:13] op_sel_hi:[1,0,1]
    v_fmac_f32 v29, v27, v26
    global_store_dwordx2 v125, v[12:13], s[26:27] sc1
    s_mov_b64 exec, 0xffff
    global_store_dwordx2 v125, v[28:29], s[26:27] offset:512 sc1
    s_mov_b64 exec, -1
    """)
    stamp(4)
    flush_stamps()
    I("s_endpgm")

    a.label("L_tail")
    I("s_sub_u32 s40, s28, 5")
    I("s_mov_b32 s43, 0xffff0000")
    if P['rolemap'] == "x01":
        I(f"""
        s_mov_b32 s54, 0
        s_mov_b32 s44, 0
        s_and_b32 s45, s2, 7
        s_cmp_lt_u32 s45, 2
        s_cbranch_scc0 L_t_x0
        s_mov_b32 s54, 1
        s_lshl_b32 s44, s29, 1
        s_add_u32 s44, s44, s45
        s_branch L_t_rdone
        """)
        a.label("L_t_x0")
        I(f"""
        s_mul_i32 s46, s29, 43
        s_lshr_b32 s46, s46, 8
        s_mul_i32 s46, s46, 6
        s_sub_u32 s46, s29, s46
        s_sub_u32 s45, s45, 2
        s_sub_u32 s45, s45, s46
        s_add_u32 s45, s45, 6
        s_cmp_ge_u32 s45, 6
        s_cselect_b32 s46, 6, 0
        s_sub_u32 s45, s45, s46
        s_cmp_eq_u32 s45, 0
        s_cbranch_scc0 L_t_x1
        s_mov_b32 s54, 2
        s_mov_b32 s44, s29
        s_branch L_t_rdone
        """)
        a.label("L_t_x1")
        I(f"""
        s_cmp_eq_u32 s45, 3
        s_cbranch_scc0 L_t_x2
        s_cmp_lt_u32 s29, 11
        s_cbranch_scc0 L_t_rdone
        s_mov_b32 s54, 2
        s_add_u32 s44, s29, 32
        s_branch L_t_rdone
        """)
        a.label("L_t_x2")
        I(f"""
        s_cmp_eq_u32 s45, 1
        s_cbranch_scc0 L_t_rdone
        s_cmp_lt_u32 s29, 16
        s_cbranch_scc0 L_t_rdone
        s_mov_b32 s54, 3
        s_mov_b32 s44, s29
        s_branch L_t_rdone
        """)
    I(f"""
    s_mov_b32 s54, 0
    s_mov_b32 s44, 0
    s_cmp_eq_u32 s31, 4
    s_cbranch_scc0 L_t_r0
    s_cmp_lt_u32 s29, 16
    s_cbranch_scc0 L_t_rdone
    s_mov_b32 s54, 3
    s_mov_b32 s44, s29
    s_branch L_t_rdone
    """)
    a.label("L_t_r0")
    I(f"""
    s_cmp_lt_u32 s29, 11
    s_cbranch_scc0 L_t_r1
    s_cmp_lt_u32 s31, 3
    s_cbranch_scc0 L_t_rdone
    s_mov_b32 s54, 1
    s_mov_b32 s44, s29
    s_cmp_eq_u32 s31, 0
    s_cbranch_scc1 L_t_rdone
    s_mov_b32 s54, 2
    s_lshl_b32 s44, s29, 1
    s_add_u32 s44, s44, s31
    s_sub_u32 s44, s44, 1
    s_branch L_t_rdone
    """)
    a.label("L_t_r1")
    I(f"""
    s_cmp_lt_u32 s29, 22
    s_cbranch_scc0 L_t_r2
    s_cmp_lt_u32 s31, 4
    s_cbranch_scc0 L_t_rdone
    s_mov_b32 s54, 2
    s_add_u32 s44, s29, 11
    s_cmp_eq_u32 s31, 3
    s_cbranch_scc1 L_t_rdone
    s_mov_b32 s54, 1
    s_mul_i32 s44, s29, 3
    s_add_u32 s44, s44, s31
    s_sub_u32 s44, s44, 22
    s_branch L_t_rdone
    """)
    a.label("L_t_r2")
    I(f"""
    s_cmp_lt_u32 s31, 3
    s_cbranch_scc0 L_t_rdone
    s_mov_b32 s54, 2
    s_add_u32 s44, s29, 11
    s_cmp_eq_u32 s31, 2
    s_cbranch_scc1 L_t_rdone
    s_mov_b32 s54, 1
    s_lshl_b32 s44, s29, 1
    s_add_u32 s44, s44, s31
    """)
    a.label("L_t_rdone")
    I("s_barrier")
    I(f"""
    v_lshrrev_b32 v8, 4, v1
    v_and_b32 v9, 15, v1
    s_cmp_eq_u32 s40, 0
    s_cbranch_scc0 L_t_noclear
    """)
    I(f"""
    v_mov_b32 v10, -1
    v_mov_b32 v11, -1
    v_mov_b32 v12, -1
    v_mov_b32 v13, -1
    s_mul_i32 s41, s3, {PREC}
    v_lshlrev_b32 v4, 3, v1
    v_add_u32 v4, s41, v4
    global_store_dwordx2 v4, v[10:11], s[26:27] sc1
    s_mov_b64 exec, 0xffff
    global_store_dwordx2 v4, v[10:11], s[26:27] offset:512 sc1
    s_mov_b64 exec, -1
    s_cmp_eq_u32 s30, 0
    s_cbranch_scc0 L_t_clr_tk
    s_lshl_b32 s41, s29, 8
    s_add_u32 s41, s41, {WS_TK}
    v_mov_b32 v4, s41
    v_mov_b32 v5, 0
    global_store_dword v4, v5, s[26:27] sc1
    global_store_dword v4, v5, s[26:27] offset:128 sc1
    """)
    a.label("L_t_clr_tk")
    I(f"""
    s_cmp_eq_u32 s54, 1
    s_cbranch_scc0 L_t_clr_f
    s_lshl_b32 s41, s44, 8
    s_add_u32 s41, s41, {WS_Y}
    v_lshlrev_b32 v4, 2, v1
    v_add_u32 v4, s41, v4
    global_store_dword v4, v10, s[26:27] sc1
    s_branch L_t_clr_done
    """)
    a.label("L_t_clr_f")
    I(f"""
    s_cmp_eq_u32 s54, 2
    s_cbranch_scc0 L_t_clr_done
    s_lshl_b32 s41, s44, 11
    s_add_u32 s41, s41, {WS_P}
    v_lshlrev_b32 v4, 4, v1
    v_add_u32 v4, s41, v4
    global_store_dwordx4 v4, v[10:13], s[26:27] sc1
    global_store_dwordx4 v4, v[10:13], s[26:27] offset:1024 sc1
    """)
    a.label("L_t_clr_done")
    I(f"""
    s_waitcnt vmcnt(0)
    v_mov_b32 v4, {M['CLEARED']}
    v_mov_b32 v5, 1
    ds_write_b32 v4, v5
    """)
    a.label("L_t_noclear")
    def kall(lbl):
        I(f"v_mov_b32 v4, {M['PCNT']}")
        a.label(f"{lbl}_pc")
        spin()
        I(f"""
        ds_read_b32 v5, v4
        s_waitcnt lgkmcnt(0)
        v_readfirstlane_b32 s42, v5
        s_cmp_ge_u32 s42, 256
        s_cbranch_scc1 {lbl}_pcok
        s_sleep 16
        s_branch {lbl}_pc
        """)
        a.label(f"{lbl}_pcok")
        I(f"""
        v_mov_b32 v4, {M['NONCE']}
        ds_read_b64 v[16:17], v4
        s_lshl_b32 s42, s3, 3
        s_add_u32 s42, s42, {WS_KD}
        v_mov_b32 v4, s42
        s_waitcnt lgkmcnt(0)
        s_mov_b64 exec, 1
        global_store_dwordx2 v4, v[16:17], s[26:27] sc1
        s_mov_b64 exec, -1
        s_lshl_b32 s42, s29, 6
        s_add_u32 s42, s42, {WS_KD}
        v_and_b32 v4, 7, v1
        v_lshlrev_b32 v4, 3, v4
        v_add_u32 v4, s42, v4
        """)
        a.label(f"{lbl}_kd")
        spin()
        I(f"""
        global_load_dwordx2 v[20:21], v4, s[26:27] sc1
        s_waitcnt vmcnt(0)
        v_xor_b32 v5, v16, v20
        v_xor_b32 v18, v17, v21
        v_or_b32 v5, v5, v18
        v_cmp_ne_u32 vcc, 0, v5
        s_cbranch_vccz {lbl}_kdok
        s_sleep 16
        s_branch {lbl}_kd
        """)
        a.label(f"{lbl}_kdok")
        I(f"""
        v_mov_b32 v4, {M['KALL']}
        v_mov_b32 v5, 1
        ds_write_b32 v4, v5
        """)
    if P['ptouch']:
        I("""
        s_cmp_eq_u32 s40, 1
        s_cbranch_scc0 L_t_notouch
        """)
        I(f"v_mov_b32 v4, {M['QREADY']}")
        lds_wait("L_t_tqw", 4, 5, 8)
        I("""
        s_lshl_b32 s41, s29, 23
        s_add_u32 s64, s6, s41
        s_addc_u32 s65, s7, 0
        s_add_u32 s66, s8, s41
        s_addc_u32 s67, s9, 0
        """)
        for p in range(4):
            I(f"s_mov_b32 s41, {p * 0x200000 + 0x100000}")
            I(f"s_load_dword s{68+p}, s[64:65], s41")
            I(f"s_load_dword s{72+p}, s[66:67], s41")
        I("s_waitcnt lgkmcnt(0)")
        a.label("L_t_notouch")
    I(f"""
    s_cmp_eq_u32 s54, 0
    s_cbranch_scc0 L_t_hasrole
    s_cmp_eq_u32 s40, 0
    s_cbranch_scc0 L_end
    """)
    kall("L_n_k")
    I("s_endpgm")
    a.label("L_t_hasrole")
    I(f"""
    s_cmp_eq_u32 s54, 3
    s_cbranch_scc0 L_t_wf
    s_cmp_eq_u32 s40, 0
    s_cbranch_scc1 L_t_o
    s_endpgm
    """)
    a.label("L_t_wf")
    if P['w_at_start']:
        I("s_cmp_eq_u32 s54, 1")
        I("s_cbranch_scc1 L_t_w")
    if P['stage_at'] != "start":
        I(f"v_mov_b32 v4, {M['QREADY'] if P['stage_at'] == 'ready' else M['QPUB']}")
        lds_wait("L_t_qw", 4, 5, 8)
    I("s_cmp_eq_u32 s54, 2")
    I("s_cbranch_scc1 L_t_f")

    STG = M['STAGE']
    SNT = P['stage_nt']
    def stage_setup():
        I(f"s_lshl_b32 s41, s40, 12")
        I(f"s_add_u32 s41, s41, {STG}")
    cur_role = [""]
    def dma(addr, u, step_bytes):
        if P['skip_stage'] or (cur_role[0] and cur_role[0] in P['skip_role']): return
        I(f"s_add_u32 m0, s41, {u*1024}")
        I(f"s_nop 0")
        I(f"global_load_lds_dwordx4 v[{addr}:{addr+1}], off {SNT}")
        if step_bytes:
            I(f"v_add_co_u32 v{addr}, vcc, {step_bytes}, v{addr}")
            I(f"v_addc_co_u32 v{addr+1}, vcc, 0, v{addr+1}, vcc")
    def tr_reads(trbase, offs, dst):
        I("s_waitcnt vmcnt(0)")
        d = dst
        for off in offs:
            I(f"ds_read_b64_tr_b16 v[{d}:{d+1}], v{trbase} offset:{off[0]}")
            I(f"ds_read_b64_tr_b16 v[{d+2}:{d+3}], v{trbase} offset:{off[1]}")
            d += 4
        I("s_waitcnt lgkmcnt(0)")
    def tr_addr(reg, rowstride):
        I(f"v_lshrrev_b32 v10, 2, v9")
        I(f"v_lshlrev_b32 v11, 3, v8")
        I(f"v_add_u32 v10, v10, v11")
        I(f"v_mul_u32_u24 v10, {rowstride}, v10")
        I(f"v_and_b32 v11, 3, v9")
        I(f"v_lshlrev_b32 v11, 3, v11")
        I(f"v_add_u32 v10, v10, v11")
        I(f"v_add_u32 v{reg}, s41, v10")
    def wait_flags_and_go(lbl, pre=None):
        I("s_cmp_eq_u32 s40, 0")
        I(f"s_cbranch_scc0 {lbl}_nok")
        kall(f"{lbl}_k")
        a.label(f"{lbl}_nok")
        if (P['stage_at'] != "ready" or (P['w_at_start'] and lbl == "L_w")) and lbl != "L_o":
            I(f"v_mov_b32 v4, {M['QREADY']}")
            lds_wait(f"{lbl}_qr", 4, 5, 8)
        I(f"""
        v_mov_b32 v4, {M['NONCE']}
        ds_read_b64 v[16:17], v4
        v_lshlrev_b32 v4, 4, v1
        v_add_u32 v4, {WS_CLR}, v4
        s_waitcnt lgkmcnt(0)
        """)
        a.label(f"{lbl}_clr")
        spin()
        I(f"""
        global_load_dwordx4 v[20:23], v4, s[26:27] sc1
        global_load_dwordx4 v[24:27], v4, s[26:27] offset:1024 sc1
        s_waitcnt vmcnt(0)
        """)
        I("v_xor_b32 v5, v16, v20")
        for r in (22, 24, 26):
            I(f"v_xor_b32 v18, v16, v{r}")
            I("v_or_b32 v5, v5, v18")
        for r in (21, 23, 25, 27):
            I(f"v_xor_b32 v18, v17, v{r}")
            I("v_or_b32 v5, v5, v18")
        I(f"""
        v_cmp_ne_u32 vcc, 0, v5
        s_cbranch_vccz {lbl}_go0
        s_sleep 32
        s_branch {lbl}_clr
        """)
        a.label(f"{lbl}_go0")
        if lbl == "L_o":
            I(f"""
            s_cmp_eq_u32 s44, 0
            s_cbranch_scc0 L_o_keep
            v_mov_b32 v4, 0
            v_mov_b32 v20, 0
            v_mov_b32 v21, 0
            s_mov_b64 exec, 1
            global_store_dwordx2 v4, v[20:21], s[24:25] sc1
            s_mov_b64 exec, -1
            """)
            a.label("L_o_keep")
        if pre:
            I(f"v_mov_b32 v4, {M['FILLED'] + 8}")
            a.label(f"{lbl}_fv")
            spin()
            I(f"""
            ds_read_b32 v5, v4
            s_waitcnt lgkmcnt(0)
            v_readfirstlane_b32 s42, v5
            s_cmp_lg_u32 s42, 0x7fffffff
            s_cbranch_scc1 {lbl}_fv_ok
            s_sleep 2
            s_branch {lbl}_fv
            """)
            a.label(f"{lbl}_fv_ok")
            pre()
        I(f"v_mov_b32 v4, {M['TAILGO']}")
        lds_wait(f"{lbl}_go", 4, 5, P['sleep_t'])
        if P['tprio']: I(f"s_setprio {P['tprio']}")
    def any_reset(regs, tmp):
        rs = list(regs)
        I(f"v_max3_u32 v{tmp}, v{rs[0]}, v{rs[1]}, v{rs[2]}")
        rs = rs[3:]
        while len(rs) >= 2:
            I(f"v_max3_u32 v{tmp}, v{tmp}, v{rs[0]}, v{rs[1]}"); rs = rs[2:]
        if rs: I(f"v_max_u32 v{tmp}, v{tmp}, v{rs[0]}")
        I(f"v_cmp_eq_u32 vcc, -1, v{tmp}")
    def poll2(lbl, issue, nloads, regsA, regsB, tmp, first, key, peel=None):
        if key not in P['dbl']:
            if peel:
                issue(regsA[0])
                I("s_waitcnt vmcnt(0)")
                peel()
                any_reset(regsA, tmp)
                I(f"s_cbranch_vccz {lbl}_got")
            a.label(f"{lbl}")
            spin()
            issue(regsA[0])
            I("s_waitcnt vmcnt(0)")
            any_reset(regsA, tmp)
            slp = {'W': P['wsleep'], 'F': P['fsleep'], 'O': P['osleep'], 'y': P['osleep']}[key]
            if slp:
                I(f"s_cbranch_vccz {lbl}_ok")
                I(f"s_sleep {slp}")
                I(f"s_branch {lbl}")
                a.label(f"{lbl}_ok")
            else:
                I(f"s_cbranch_vccnz {lbl}")
            if peel: a.label(f"{lbl}_got")
            first(regsA[0])
            return
        issue(regsA[0])
        if P['stag']: I(f"s_sleep {P['stag']}")
        a.label(f"{lbl}")
        spin()
        issue(regsB[0])
        I(f"s_waitcnt vmcnt({nloads})")
        any_reset(regsA, tmp)
        I(f"s_cbranch_vccz {lbl}_a")
        issue(regsA[0])
        I(f"s_waitcnt vmcnt({nloads})")
        any_reset(regsB, tmp)
        I(f"s_cbranch_vccnz {lbl}")
        first(regsB[0])
        I(f"s_branch {lbl}_join")
        a.label(f"{lbl}_a")
        first(regsA[0])
        a.label(f"{lbl}_join")
    def gemv_kslice(abase, wb, acc, tmp):
        for ks in range(4):
            I(f"ds_read_b128 v[{tmp+4*ks}:{tmp+4*ks+3}], v{abase} offset:{ks*64}")
        for ks in range(4):
            I(f"s_waitcnt lgkmcnt({3-ks})")
            for nb in range(4):
                c = "0" if ks == 0 else f"v[{acc+4*nb}:{acc+4*nb+3}]"
                I(f"v_mfma_f32_16x16x32_bf16 v[{acc+4*nb}:{acc+4*nb+3}], v[{tmp+4*ks}:{tmp+4*ks+3}], v[{wb+16*ks+4*nb}:{wb+16*ks+4*nb+3}], {c}")
    def part_to_lds(acc, waddr, raddr):
        for nb in range(4): I(f"ds_write_b32 v{waddr}, v{acc+4*nb} offset:{64*nb}")
        I(f"""
        s_waitcnt lgkmcnt(0)
        s_barrier
        ds_read_b32 v12, v{raddr}
        ds_read_b32 v13, v{raddr} offset:256
        ds_read_b32 v14, v{raddr} offset:512
        ds_read_b32 v15, v{raddr} offset:768
        s_waitcnt lgkmcnt(0)
        v_add_f32 v12, v12, v13
        v_add_f32 v14, v14, v15
        v_add_f32 v12, v12, v14
        """)
    def yp_addrs(waddr, raddr):
        I(f"""
        s_lshl_b32 s47, s40, 8
        s_add_u32 s47, s47, {M['YP']}
        v_lshlrev_b32 v{waddr}, 2, v9
        v_add_u32 v{waddr}, s47, v{waddr}
        v_lshlrev_b32 v{raddr}, 2, v1
        v_add_u32 v{raddr}, {M['YP']}, v{raddr}
        """)

    def wait_vphase(lbl):
        if not P['split']: return
        I(f"v_mov_b32 v4, {M['PCNT']}")
        a.label(lbl)
        spin()
        I(f"""
        ds_read_b32 v5, v4
        s_waitcnt lgkmcnt(0)
        v_readfirstlane_b32 s42, v5
        s_cmp_ge_u32 s42, 256
        s_cbranch_scc1 {lbl}_ok
        s_sleep 16
        s_branch {lbl}
        """)
        a.label(f"{lbl}_ok")
    WB = 64
    a.label("L_t_w")
    cur_role[0] = "W"
    if P['ptouch']:
        I("""
        s_lshr_b32 s45, s44, 3
        s_lshl_b32 s45, s45, 19
        s_load_dword s68, s[12:13], s45
        s_waitcnt lgkmcnt(0)
        """)
    stage_setup()
    tr_addr(14, 128)
    I(f"""
    s_lshr_b32 s45, s44, 3
    s_and_b32 s46, s44, 7
    s_lshl_b32 s47, s45, 19
    s_lshl_b32 s48, s40, 17
    s_add_u32 s47, s47, s48
    s_lshl_b32 s48, s46, 7
    s_add_u32 s47, s47, s48
    v_lshrrev_b32 v10, 3, v1
    v_lshlrev_b32 v10, 10, v10
    v_and_b32 v11, 7, v1
    v_lshlrev_b32 v11, 4, v11
    v_add_u32 v10, v10, v11
    v_add_u32 v10, s47, v10
    v_mov_b32 v13, s13
    v_add_co_u32 v12, vcc, s12, v10
    v_addc_co_u32 v13, vcc, 0, v13, vcc
    """)
    WL = P['w_late']
    WE = 4 - WL
    for ks in range(WE):
        if (WL == 0 and ks == 2) or (WL == 2 and ks == 1 and P['w_split']): wait_vphase("L_w_vp")
        for u in range(4): dma(12, u, 8 * 1024)
        tr_reads(14, [(nb * 32, 4 * 128 + nb * 32) for nb in range(4)], WB + 16 * ks)
    if WL:
        I(f"""
        s_mov_b32 s64, s12
        s_and_b32 s65, s13, 0xffff
        s_mov_b32 s66, 0x400000
        s_mov_b32 s67, 0x20000
        v_lshrrev_b32 v45, 3, v1
        v_lshlrev_b32 v45, 10, v45
        v_and_b32 v11, 7, v1
        v_lshlrev_b32 v11, 4, v11
        v_add_u32 v45, v45, v11
        s_lshl_b32 s55, s40, 14
        s_lshl_b32 s56, s45, 19
        s_lshl_b32 s57, s40, 17
        s_add_u32 s56, s56, s57
        s_lshl_b32 s57, s46, 7
        s_add_u32 s56, s56, s57
        s_mov_b32 s41, s55
        """)
        tr_addr(47, 128)
    stamp(8)
    I(f"""
    s_lshl_b32 s47, s45, 2
    s_add_u32 s47, s47, s40
    s_mul_i32 s48, s47, {8 * PREC}
    """)
    WPRE = P['pre'] and WL >= 1
    WR = P['w_reg']
    assert WE + (1 if WPRE else 0) + WR <= 4
    WREGS = (128, 144, 28)[:WR]
    def w_pre():
        for u in range(4):
            I(f"s_add_u32 m0, s59, {u * 1024}")
            I(f"s_add_u32 s58, s56, {(32 * WE + 8 * u) * 1024}")
            I(f"buffer_load_dwordx4 v45, s[64:67], s58 offen {SNT} lds")
        for i, rb in enumerate(WREGS):
            ks = WE + 1 + i
            for u in range(4):
                I(f"s_add_u32 s58, s56, {(32 * ks + 8 * u) * 1024}")
                I(f"buffer_load_dwordx4 v[{rb+4*u}:{rb+4*u+3}], v45, s[64:67], s58 offen {SNT}")
    if WPRE:
        I(f"s_lshl_b32 s59, s40, 12")
        I(f"s_add_u32 s59, s59, {STG}")
        I("s_mov_b32 s41, s59")
        tr_addr(46, 128)
        I("v_lshlrev_b32 v44, 4, v1")
        I("v_add_u32 v44, s55, v44")
    wait_flags_and_go("L_w", w_pre if WPRE else None)
    for ks in range(WE + (1 if WPRE else 0) + WR, 4):
        for u in range(4):
            I(f"s_add_u32 m0, s55, {ks * 4096 + u * 1024}")
            I(f"s_add_u32 s58, s56, {(32 * ks + 8 * u) * 1024}")
            I(f"buffer_load_dwordx4 v45, s[64:67], s58 offen {SNT} lds")
    if WR:
        I(f"s_waitcnt vmcnt({4 * (4 - WE - 1 - WR)})")
        for i, rb in enumerate(WREGS):
            ks = WE + 1 + i
            for u in range(4):
                I(f"ds_write_b128 v44, v[{rb+4*u}:{rb+4*u+3}] offset:{ks * 4096 + u * 1024}")
        I("s_waitcnt lgkmcnt(0)")
    I(f"""
    v_lshrrev_b32 v15, 5, v1
    v_mul_u32_u24 v15, {PREC}, v15
    v_add_u32 v15, s48, v15
    v_and_b32 v10, 31, v1
    v_lshlrev_b32 v14, 4, v10
    v_add_u32 v14, v15, v14
    v_add_u32 v15, 512, v15
    v_lshlrev_b32 v10, 3, v10
    s_lshl_b32 s47, s40, 8
    s_add_u32 s47, s47, {M['OALL']}
    v_add_u32 v7, s47, v10
    v_lshlrev_b32 v10, 4, v8
    v_add_u32 v10, s47, v10
    s_lshl_b32 s47, s44, 8
    s_add_u32 s47, s47, {WS_Y}
    v_lshlrev_b32 v6, 2, v1
    v_add_u32 v6, s47, v6
    """)
    yp_addrs(11, 5)
    def w_late_tr():
        d = WB + 16 * WE
        for ks in range(WE, 4):
            st = WPRE and ks == WE
            base, off = (46, 0) if st else (47, ks * 4096)
            for nb in range(4):
                I(f"ds_read_b64_tr_b16 v[{d}:{d+1}], v{base} offset:{off + nb * 32}")
                I(f"ds_read_b64_tr_b16 v[{d+2}:{d+3}], v{base} offset:{off + 4 * 128 + nb * 32}")
                d += 4
            I("s_waitcnt lgkmcnt(0)")
    if WL and not P['peel']:
        I("s_waitcnt vmcnt(0)")
        w_late_tr()
    stamp(9)
    def w_issue(b):
        for i in range(4): I(f"global_load_dwordx4 v[{b+4*i}:{b+4*i+3}], v14, s[26:27] offset:{2*PREC*i} sc1")
        for i in range(4): I(f"global_load_dwordx2 v[{b+16+2*i}:{b+17+2*i}], v15, s[26:27] offset:{2*PREC*i} sc1")
    def w_first(b):
        m = b + 16
        I(f"""
        v_max3_f32 v2, v{m}, v{m+2}, v{m+4}
        v_max_f32 v2, v2, v{m+6}
        v_mov_b32 v3, v2
        v_permlane32_swap_b32 v2, v3
        v_max_f32 v2, v2, v3
        v_sub_f32 v{m}, v{m}, v2
        v_sub_f32 v{m+2}, v{m+2}, v2
        v_sub_f32 v{m+4}, v{m+4}, v2
        v_sub_f32 v{m+6}, v{m+6}, v2
        v_exp_f32 v{m}, v{m}
        v_exp_f32 v{m+2}, v{m+2}
        v_exp_f32 v{m+4}, v{m+4}
        v_exp_f32 v{m+6}, v{m+6}
        v_pk_mul_f32 v[12:13], v[{b}:{b+1}], v[{m}:{m+1}] op_sel_hi:[1,0]
        v_pk_mul_f32 v[2:3], v[{b+2}:{b+3}], v[{m}:{m+1}] op_sel_hi:[1,0]
        v_mul_f32 v4, v{m}, v{m+1}
        """)
        for i in range(1, 4):
            I(f"v_pk_fma_f32 v[12:13], v[{b+4*i}:{b+4*i+1}], v[{m+2*i}:{m+2*i+1}], v[12:13] op_sel_hi:[1,0,1]")
            I(f"v_pk_fma_f32 v[2:3], v[{b+4*i+2}:{b+4*i+3}], v[{m+2*i}:{m+2*i+1}], v[2:3] op_sel_hi:[1,0,1]")
            I(f"v_fmac_f32 v4, v{m+2*i}, v{m+2*i+1}")
    poll2("L_w_poll", w_issue, 8, list(range(16, 40)), list(range(40, 64)), 13, w_first, 'W', peel=(w_late_tr if WL and P['peel'] else None))
    stamp(10)
    I("""
    v_mov_b32 v128, v12
    v_mov_b32 v129, v13
    v_mov_b32 v130, v2
    v_mov_b32 v131, v3
    v_mov_b32 v132, v4
    v_permlane32_swap_b32 v12, v128
    v_permlane32_swap_b32 v13, v129
    v_permlane32_swap_b32 v2, v130
    v_permlane32_swap_b32 v3, v131
    v_permlane32_swap_b32 v4, v132
    v_add_f32 v4, v4, v132
    v_pk_add_f32 v[12:13], v[12:13], v[128:129]
    v_rcp_f32 v132, v4
    v_pk_add_f32 v[2:3], v[2:3], v[130:131]
    v_pk_mul_f32 v[12:13], v[12:13], v[132:133] op_sel_hi:[1,0]
    v_pk_mul_f32 v[2:3], v[2:3], v[132:133] op_sel_hi:[1,0]
    v_cvt_pk_bf16_f32 v12, v12, v13
    v_cvt_pk_bf16_f32 v13, v2, v3
    ds_write_b64 v7, v[12:13]
    s_waitcnt lgkmcnt(0)
    """)
    gemv_kslice(10, WB, 144, 128)
    part_to_lds(144, 11, 5)
    I(f"""
    s_cmp_eq_u32 s40, 0
    s_cbranch_scc0 L_end
    global_store_dword v6, v12, s[26:27] sc1
    """)
    stamp(11)
    flush_stamps()
    I("s_endpgm")

    a.label("L_t_f")
    cur_role[0] = "F"
    if P['wtouch']:
        I("""
        v_mov_b32 v4, 0
        global_load_dword v5, v4, s[16:17] nt
        global_load_dword v10, v4, s[18:19] nt
        global_load_dword v11, v4, s[20:21] nt
        s_waitcnt vmcnt(0)
        """)
    if P['ptouch']:
        I("""
        s_load_dword s68, s[16:17], 0
        s_load_dword s69, s[18:19], 0
        s_load_dword s70, s[20:21], 0
        s_waitcnt lgkmcnt(0)
        """)
    stage_setup()
    tr_addr(14, 64)
    I(f"""
    s_lshl_b32 s46, s44, 6
    s_mul_i32 s47, s40, {128 * 2752}
    s_add_u32 s46, s46, s47
    v_lshrrev_b32 v10, 2, v1
    v_mul_u32_u24 v10, 2752, v10
    v_and_b32 v11, 3, v1
    v_lshlrev_b32 v11, 4, v11
    v_add_u32 v10, v10, v11
    v_add_u32 v10, s46, v10
    v_mov_b32 v13, s17
    v_add_co_u32 v12, vcc, s16, v10
    v_addc_co_u32 v13, vcc, 0, v13, vcc
    v_mov_b32 v17, s19
    v_add_co_u32 v16, vcc, s18, v10
    v_addc_co_u32 v17, vcc, 0, v17, vcc
    """)
    DB = WB + 64
    LATE_G = 'g' in P['f_late']; LATE_D = 'd' in P['f_late']
    GU_OFFS = [(0, 256), (32, 256 + 32), (2048, 2048 + 256), (2048 + 32, 2048 + 256 + 32)]
    D_OFFS = [(nb * 32, 4 * 128 + nb * 32) for nb in range(4)]
    GE = P['g_early'] if LATE_G else 4
    if LATE_G:
        for ks in range(GE):
            dma(12, 0, 16 * 2752); dma(12, 1, 16 * 2752)
            dma(16, 2, 16 * 2752); dma(16, 3, 16 * 2752)
            tr_reads(14, GU_OFFS, WB + 16 * ks)
    if not LATE_G:
        for ks in range(4):
            if ks == 3 and not LATE_D: wait_vphase("L_f_vp")
            if ks == 2 and LATE_D: wait_vphase("L_f_vp")
            dma(12, 0, 16 * 2752); dma(12, 1, 16 * 2752)
            dma(16, 2, 16 * 2752); dma(16, 3, 16 * 2752)
            tr_reads(14, GU_OFFS, WB + 16 * ks)
    if not LATE_D:
        tr_addr(14, 128)
        for rr in range(2):
            if LATE_G and rr == 1: wait_vphase("L_f_vp")
            I(f"""
            s_lshl_b32 s46, s44, 15
            s_lshl_b32 s47, s40, 8
            s_add_u32 s46, s46, s47
            s_add_u32 s46, s46, {128*rr}
            v_lshrrev_b32 v10, 3, v1
            v_lshlrev_b32 v10, 10, v10
            v_and_b32 v11, 7, v1
            v_lshlrev_b32 v11, 4, v11
            v_add_u32 v10, v10, v11
            v_add_u32 v10, s46, v10
            v_mov_b32 v13, s21
            v_add_co_u32 v12, vcc, s20, v10
            v_addc_co_u32 v13, vcc, 0, v13, vcc
            """)
            for u in range(4): dma(12, u, 8 * 1024)
            tr_reads(14, D_OFFS, DB + 16 * rr)
    if LATE_G or LATE_D:
        I(f"""
        s_mov_b32 s64, s16
        s_and_b32 s65, s17, 0xffff
        s_mov_b32 s66, {512 * 2752}
        s_mov_b32 s67, 0x20000
        s_mov_b32 s68, s18
        s_and_b32 s69, s19, 0xffff
        s_mov_b32 s70, {512 * 2752}
        s_mov_b32 s71, 0x20000
        s_mov_b32 s72, s20
        s_and_b32 s73, s21, 0xffff
        s_mov_b32 s74, {1376 * 1024}
        s_mov_b32 s75, 0x20000
        v_lshrrev_b32 v44, 2, v1
        v_mul_u32_u24 v44, 2752, v44
        v_and_b32 v11, 3, v1
        v_lshlrev_b32 v11, 4, v11
        v_add_u32 v44, v44, v11
        v_lshrrev_b32 v45, 3, v1
        v_lshlrev_b32 v45, 10, v45
        v_and_b32 v11, 7, v1
        v_lshlrev_b32 v11, 4, v11
        v_add_u32 v45, v45, v11
        s_mul_i32 s55, s40, 24576
        s_mul_i32 s56, s40, {128 * 2752}
        s_lshl_b32 s57, s44, 6
        s_add_u32 s56, s56, s57
        s_lshl_b32 s57, s44, 15
        s_lshl_b32 s58, s40, 8
        s_add_u32 s57, s57, s58
        s_mov_b32 s41, s55
        """)
        tr_addr(46, 64)
        I("s_add_u32 s41, s55, 16384")
        tr_addr(47, 128)
    I(f"""
    v_and_b32 v10, 31, v1
    v_lshlrev_b32 v11, 3, v10
    s_lshl_b32 s46, s40, 8
    v_add_u32 v11, s46, v11
    global_load_dwordx2 v[6:7], v11, s[4:5]
    s_waitcnt vmcnt(0)
    """)
    stamp(12)
    FPRE = P['pre'] and LATE_G and GE < 4
    FR = P['f_reg'] if FPRE else 0
    assert GE + (1 if FPRE else 0) + FR <= 4
    FREGS = (16, 128 + 32)[:FR] if FR <= 1 else None
    assert FR <= 1
    def f_pre():
        for u in range(4):
            I(f"s_add_u32 m0, s59, {u * 1024}")
            I(f"s_add_u32 s58, s56, {(32 * GE + 16 * (u & 1)) * 2752}")
            I(f"buffer_load_dwordx4 v44, s[{64 if u < 2 else 68}:{67 if u < 2 else 71}], s58 offen {SNT} lds")
        for i, rb in enumerate(FREGS):
            ks = GE + 1 + i
            for u in range(4):
                I(f"s_add_u32 s58, s56, {(32 * ks + 16 * (u & 1)) * 2752}")
                I(f"buffer_load_dwordx4 v[{rb+12+4*u}:{rb+12+4*u+3}], v44, s[{64 if u < 2 else 68}:{67 if u < 2 else 71}], s58 offen {SNT}")
    if FPRE:
        I(f"s_lshl_b32 s59, s40, 12")
        I(f"s_add_u32 s59, s59, {STG}")
        I("s_mov_b32 s41, s59")
        tr_addr(62, 64)
        I("v_lshlrev_b32 v63, 4, v1")
        I("v_add_u32 v63, s55, v63")
    wait_flags_and_go("L_f", f_pre if FPRE else None)
    nlate_d = 0
    if LATE_G:
        for ks in range(GE + (1 if FPRE else 0) + FR, 4):
            for u in range(4):
                I(f"s_add_u32 m0, s55, {ks * 4096 + u * 1024}")
                I(f"s_add_u32 s58, s56, {(32 * ks + 16 * (u & 1)) * 2752}")
                I(f"buffer_load_dwordx4 v44, s[{64 if u < 2 else 68}:{67 if u < 2 else 71}], s58 offen {SNT} lds")
    if LATE_D:
        for rr in range(2):
            for u in range(4):
                I(f"s_add_u32 m0, s55, {16384 + rr * 4096 + u * 1024}")
                I(f"s_add_u32 s58, s57, {rr * 128 + u * 8192}")
                I(f"buffer_load_dwordx4 v45, s[72:75], s58 offen {SNT} lds")
                nlate_d += 1
    if FR:
        nafter = 4 * (4 - GE - 1 - FR) + nlate_d
        I(f"s_waitcnt vmcnt({nafter})")
        for i, rb in enumerate(FREGS):
            ks = GE + 1 + i
            for u in range(4):
                I(f"ds_write_b128 v63, v[{rb+12+4*u}:{rb+12+4*u+3}] offset:{ks * 4096 + u * 1024}")
        I("s_waitcnt lgkmcnt(0)")
    I(f"""
    v_lshlrev_b32 v48, 16, v6
    v_and_b32 v49, s43, v6
    v_lshlrev_b32 v50, 16, v7
    v_and_b32 v51, s43, v7
    v_and_b32 v10, 31, v1
    v_lshlrev_b32 v14, 4, v10
    v_lshrrev_b32 v11, 5, v1
    v_lshlrev_b32 v11, 11, v11
    v_add_u32 v14, v14, v11
    s_lshl_b32 s46, s40, 9
    s_add_u32 s46, s46, {WS_Y}
    v_add_u32 v14, s46, v14
    v_add_u32 v15, 4096, v14
    v_add_u32 v2, 8192, v14
    v_add_u32 v3, 12288, v14
    s_lshl_b32 s47, s40, 3
    s_add_u32 s47, s47, {M['OALL']}
    v_mov_b32 v52, s47
    v_mov_b32 v53, {M['OALL']}
    s_lshl_b32 s47, s40, 8
    s_add_u32 s47, s47, {M['XN2']}
    v_lshlrev_b32 v54, 3, v10
    v_add_u32 v54, s47, v54
    v_lshlrev_b32 v55, 4, v8
    v_add_u32 v55, s47, v55
    s_lshl_b32 s47, s40, 6
    s_add_u32 s47, s47, {M['HH']}
    v_lshlrev_b32 v58, 1, v10
    v_add_u32 v58, s47, v58
    v_lshlrev_b32 v59, 4, v8
    v_add_u32 v59, s47, v59
    s_lshl_b32 s47, s44, 11
    s_lshl_b32 s46, s40, 9
    s_add_u32 s47, s47, s46
    s_add_u32 s47, s47, {WS_P}
    v_lshlrev_b32 v60, 2, v1
    v_add_u32 v60, s47, v60
    s_mov_b32 s60, 0xffff0000
    s_mov_b32 s61, 0xffff0000
    s_mov_b32 s62, 0
    s_mov_b32 s63, -1
    """)
    yp_addrs(56, 57)
    def late_tr(base, offs_list, dst):
        d = dst; n = 0
        for off in offs_list:
            I(f"ds_read_b64_tr_b16 v[{d}:{d+1}], v{base} offset:{off[0]}")
            I(f"ds_read_b64_tr_b16 v[{d+2}:{d+3}], v{base} offset:{off[1]}")
            d += 4; n += 2
            if n % 8 == 0: I("s_waitcnt lgkmcnt(0)")
    def f_late_tr():
        if LATE_G: late_tr(46, [(o[0] + ks * 4096, o[1] + ks * 4096) for ks in range(GE, 4) for o in GU_OFFS], WB + 16 * GE)
        if LATE_D: late_tr(47, [(o[0] + rr * 4096, o[1] + rr * 4096) for rr in range(2) for o in D_OFFS], DB)
    FPEEL = (LATE_G or LATE_D) and P['peel']
    if not FPEEL:
        if LATE_G:
            I(f"s_waitcnt vmcnt({nlate_d})")
            if FPRE:
                late_tr(62, GU_OFFS, WB + 16 * GE)
                late_tr(46, [(o[0] + ks * 4096, o[1] + ks * 4096) for ks in range(GE + 1, 4) for o in GU_OFFS], WB + 16 * (GE + 1))
            else:
                late_tr(46, [(o[0] + ks * 4096, o[1] + ks * 4096) for ks in range(GE, 4) for o in GU_OFFS], WB + 16 * GE)
        if LATE_D:
            I("s_waitcnt vmcnt(0)")
            late_tr(47, [(o[0] + rr * 4096, o[1] + rr * 4096) for rr in range(2) for o in D_OFFS], DB)
    stamp(13)
    def f_issue(b):
        for i, ad in enumerate((14, 15, 2, 3)):
            I(f"global_load_dwordx4 v[{b+4*i}:{b+4*i+3}], v{ad}, s[26:27] sc1")
    def f_first(b):
        I(f"""
        v_pk_add_f32 v[4:5], v[{b}:{b+1}], v[{b+4}:{b+5}]
        v_pk_add_f32 v[6:7], v[{b+2}:{b+3}], v[{b+6}:{b+7}]
        v_pk_add_f32 v[10:11], v[{b+8}:{b+9}], v[{b+12}:{b+13}]
        v_pk_add_f32 v[12:13], v[{b+10}:{b+11}], v[{b+14}:{b+15}]
        v_pk_add_f32 v[4:5], v[4:5], v[10:11]
        v_pk_add_f32 v[6:7], v[6:7], v[12:13]
        """)
    poll2("L_f_poll", f_issue, 4, list(range(16, 32)), list(range(32, 48)), 61, f_first, 'F', peel=(f_late_tr if FPEEL else None))
    stamp(14)
    I(f"""
    v_mov_b32 v160, v4
    v_mov_b32 v161, v5
    v_mov_b32 v162, v6
    v_mov_b32 v163, v7
    v_permlane32_swap_b32 v4, v160
    v_permlane32_swap_b32 v5, v161
    v_permlane32_swap_b32 v6, v162
    v_permlane32_swap_b32 v7, v163
    v_pk_add_f32 v[4:5], v[4:5], v[160:161]
    v_pk_add_f32 v[6:7], v[6:7], v[162:163]
    v_cvt_pk_bf16_f32 v160, v4, v5
    v_cvt_pk_bf16_f32 v161, v6, v7
    v_lshlrev_b32 v4, 16, v160
    v_and_b32 v5, s43, v160
    v_lshlrev_b32 v6, 16, v161
    v_and_b32 v7, s43, v161
    v_pk_add_f32 v[4:5], v[4:5], v[48:49]
    v_pk_add_f32 v[6:7], v[6:7], v[50:51]
    v_cvt_pk_bf16_f32 v160, v4, v5
    v_cvt_pk_bf16_f32 v161, v6, v7
    v_lshlrev_b32 v4, 16, v160
    v_and_b32 v5, s43, v160
    v_lshlrev_b32 v6, 16, v161
    v_and_b32 v7, s43, v161
    v_add_f32 v8, v4, v5
    v_mul_f32 v9, v4, v4
    v_add_f32 v10, v6, v7
    v_fmac_f32 v9, v5, v5
    v_add_f32 v8, v8, v10
    v_fmac_f32 v9, v6, v6
    v_fmac_f32 v9, v7, v7
    """)
    for r in (8, 4, 2, 1):
        I(f"v_add_f32_dpp v8, v8, v8 row_ror:{r} row_mask:0xf bank_mask:0xf")
        I(f"v_add_f32_dpp v9, v9, v9 row_ror:{r} row_mask:0xf bank_mask:0xf")
    I(f"""
    v_mov_b32 v10, v8
    v_mov_b32 v11, v9
    s_nop 0
    v_permlane16_swap_b32 v8, v10
    v_permlane16_swap_b32 v9, v11
    v_add_f32 v8, v8, v10
    v_add_f32 v9, v9, v11
    ds_write_b64 v52, v[8:9]
    s_waitcnt lgkmcnt(0)
    s_barrier
    ds_read_b128 v[8:11], v53
    ds_read_b128 v[12:15], v53 offset:16
    s_waitcnt lgkmcnt(0)
    v_pk_add_f32 v[8:9], v[8:9], v[10:11]
    v_pk_add_f32 v[12:13], v[12:13], v[14:15]
    v_pk_add_f32 v[8:9], v[8:9], v[12:13]
    v_mul_f32 v8, 0x3b000000, v8
    v_mul_f32 v9, 0x3b000000, v9
    v_cvt_pk_bf16_f32 v10, v8, v8
    v_fma_f32 v9, -v8, v8, v9
    v_and_b32 v10, s43, v10
    v_max_f32 v9, 0, v9
    v_cvt_pk_bf16_f32 v9, v9, v9
    v_sub_f32 v4, v4, v10
    v_and_b32 v9, s43, v9
    v_sub_f32 v5, v5, v10
    v_add_f32 v9, {hex(EPS)}, v9
    v_sub_f32 v6, v6, v10
    v_cvt_pk_bf16_f32 v9, v9, v9
    v_sub_f32 v7, v7, v10
    v_and_b32 v9, s43, v9
    v_cvt_pk_bf16_f32 v160, v4, v5
    v_sqrt_f32 v9, v9
    v_cvt_pk_bf16_f32 v161, v6, v7
    v_lshlrev_b32 v4, 16, v160
    v_cvt_pk_bf16_f32 v9, v9, v9
    v_and_b32 v5, s43, v160
    v_and_b32 v12, s43, v9
    v_lshlrev_b32 v6, 16, v161
    v_rcp_f32 v12, v12
    v_and_b32 v7, s43, v161
    v_pk_mul_f32 v[4:5], v[4:5], v[12:13] op_sel_hi:[1,0]
    v_pk_mul_f32 v[6:7], v[6:7], v[12:13] op_sel_hi:[1,0]
    v_cvt_pk_bf16_f32 v160, v4, v5
    v_cvt_pk_bf16_f32 v161, v6, v7
    ds_write_b64 v54, v[160:161]
    s_waitcnt vmcnt(0) lgkmcnt(0)
    """)
    gemv_kslice(55, WB, 32, 16)
    part_to_lds(32, 56, 57)
    I(f"""
    v_cvt_pk_bf16_f32 v12, v12, v12
    v_and_b32 v12, s43, v12
    v_mov_b32 v13, v12
    v_permlane32_swap_b32 v12, v13
    v_mul_f32 v12, v12, v13
    v_cvt_pk_bf16_f32 v12, v12, v12
    ds_write_b16 v58, v12
    s_waitcnt lgkmcnt(0)
    ds_read_b128 v[16:19], v59
    s_waitcnt lgkmcnt(0)
    """)
    for nb in range(8):
        I(f"v_mfma_f32_16x16x32_bf16 v[{20+4*nb}:{23+4*nb}], v[16:19], v[{DB+4*nb}:{DB+4*nb+3}], 0")
    for j in range(2):
        b = 20 + 16 * j
        I(f"v_cndmask_b32 v{12+2*j}, v{b}, v{b+4}, s[60:61]")
        I(f"v_cndmask_b32 v{13+2*j}, v{b+8}, v{b+12}, s[60:61]")
        I(f"v_cndmask_b32 v{12+2*j}, v{12+2*j}, v{13+2*j}, s[62:63]")
        I(f"global_store_dword v60, v{12+2*j}, s[26:27] offset:{256*j} sc1")
    stamp(15)
    flush_stamps()
    I("s_endpgm")

    def resid(xr, out):
        I(f"""
        v_cvt_pk_bf16_f32 v16, v16, v17
        v_cvt_pk_bf16_f32 v17, v18, v19
        v_lshlrev_b32 v20, 16, v16
        v_and_b32 v21, s43, v16
        v_lshlrev_b32 v22, 16, v17
        v_and_b32 v23, s43, v17
        v_lshlrev_b32 v24, 16, v{xr}
        v_and_b32 v25, s43, v{xr}
        v_lshlrev_b32 v26, 16, v{xr+1}
        v_and_b32 v27, s43, v{xr+1}
        v_pk_add_f32 v[20:21], v[20:21], v[24:25]
        v_pk_add_f32 v[22:23], v[22:23], v[26:27]
        v_cvt_pk_bf16_f32 v{out}, v20, v21
        v_cvt_pk_bf16_f32 v{out+1}, v22, v23
        """)
    a.label("L_t_o")
    I(f"""
    v_and_b32 v10, 7, v1
    v_lshlrev_b32 v11, 3, v10
    s_lshl_b32 s46, s44, 6
    v_add_u32 v11, s46, v11
    global_load_dwordx2 v[6:7], v11, s[4:5]
    v_mov_b32 v3, v11
    v_lshlrev_b32 v14, 4, v10
    v_lshrrev_b32 v12, 3, v1
    v_lshlrev_b32 v12, 11, v12
    v_add_u32 v14, v14, v12
    s_lshl_b32 s46, s44, 7
    v_add_u32 v14, s46, v14
    v_add_u32 v15, {WS_Y}, v14
    s_add_u32 s32, s26, {WS_P}
    s_addc_u32 s33, s27, 0
    s_and_b32 s33, s33, 0xffff
    s_mov_b32 s34, {NF * 2048}
    s_mov_b32 s35, 0x20000
    v_mov_b32 v4, {M['QREADY']}
    s_waitcnt vmcnt(0)
    """)
    if P['touch_out']:
        I("""
        v_mov_b32 v16, 0
        v_mov_b32 v17, 0
        s_mov_b64 exec, 0xff
        global_store_dwordx2 v3, v[16:17], s[22:23]
        s_mov_b64 exec, -1
        """)
    lds_wait("L_o_qw", 4, 5, 8)
    wait_flags_and_go("L_o")
    stamp(16)
    def red_r8(base, tmp):
        for c in range(4): I(f"v_add_f32_dpp v{base+c}, v{base+c}, v{base+c} row_ror:8 row_mask:0xf bank_mask:0xf")
        for c in range(4): I(f"v_mov_b32 v{tmp+c}, v{base+c}")
        for c in range(4): I(f"v_permlane16_swap_b32 v{base+c}, v{tmp+c}")
        for c in range(4): I(f"v_add_f32 v{base+c}, v{base+c}, v{tmp+c}")
        for c in range(4): I(f"v_mov_b32 v{tmp+c}, v{base+c}")
        for c in range(4): I(f"v_permlane32_swap_b32 v{base+c}, v{tmp+c}")
        for c in range(4): I(f"v_add_f32 v{base+c}, v{base+c}, v{tmp+c}")
    I("v_mov_b32 v70, v3")
    def oy_issue(b): I(f"global_load_dwordx4 v[{b}:{b+3}], v15, s[26:27] sc1")
    def oy_first(b):
        for c in range(4): I(f"v_mov_b32 v{72+c}, v{b+c}")
    poll2("L_o_polly", oy_issue, 1, list(range(16, 20)), list(range(24, 28)), 28, oy_first, 'y')
    red_r8(72, 76)
    I(f"""
    v_cvt_pk_bf16_f32 v72, v72, v73
    v_cvt_pk_bf16_f32 v73, v74, v75
    v_lshlrev_b32 v76, 16, v72
    v_and_b32 v77, s43, v72
    v_lshlrev_b32 v78, 16, v73
    v_and_b32 v79, s43, v73
    v_lshlrev_b32 v80, 16, v6
    v_and_b32 v81, s43, v6
    v_lshlrev_b32 v82, 16, v7
    v_and_b32 v83, s43, v7
    v_pk_add_f32 v[76:77], v[76:77], v[80:81]
    v_pk_add_f32 v[78:79], v[78:79], v[82:83]
    v_cvt_pk_bf16_f32 v72, v76, v77
    v_cvt_pk_bf16_f32 v73, v78, v79
    v_lshlrev_b32 v66, 16, v72
    v_and_b32 v67, s43, v72
    v_lshlrev_b32 v68, 16, v73
    v_and_b32 v69, s43, v73
    s_waitcnt vmcnt(0)
    """)
    stamp(17)
    def op_issue(b):
        for u in range(6):
            I(f"s_mov_b32 s46, {u * 8 * 2048}")
            I(f"buffer_load_dwordx4 v[{b+4*u}:{b+4*u+3}], v14, s[32:35], s46 offen sc1")
    def op_first(b):
        I(f"""
        v_pk_add_f32 v[72:73], v[{b}:{b+1}], v[{b+4}:{b+5}]
        v_pk_add_f32 v[74:75], v[{b+2}:{b+3}], v[{b+6}:{b+7}]
        v_pk_add_f32 v[76:77], v[{b+8}:{b+9}], v[{b+12}:{b+13}]
        v_pk_add_f32 v[78:79], v[{b+10}:{b+11}], v[{b+14}:{b+15}]
        v_pk_add_f32 v[80:81], v[{b+16}:{b+17}], v[{b+20}:{b+21}]
        v_pk_add_f32 v[82:83], v[{b+18}:{b+19}], v[{b+22}:{b+23}]
        v_pk_add_f32 v[72:73], v[72:73], v[76:77]
        v_pk_add_f32 v[74:75], v[74:75], v[78:79]
        v_pk_add_f32 v[72:73], v[72:73], v[80:81]
        v_pk_add_f32 v[74:75], v[74:75], v[82:83]
        """)
    poll2("L_o_pollp", op_issue, 6, list(range(16, 40)), list(range(40, 64)), 71, op_first, 'O')
    stamp(18)
    red_r8(72, 76)
    I(f"""
    v_cvt_pk_bf16_f32 v72, v72, v73
    v_cvt_pk_bf16_f32 v73, v74, v75
    v_lshlrev_b32 v76, 16, v72
    v_and_b32 v77, s43, v72
    v_lshlrev_b32 v78, 16, v73
    v_and_b32 v79, s43, v73
    v_pk_add_f32 v[76:77], v[76:77], v[66:67]
    v_pk_add_f32 v[78:79], v[78:79], v[68:69]
    v_cvt_pk_bf16_f32 v72, v76, v77
    v_cvt_pk_bf16_f32 v73, v78, v79
    s_mov_b64 exec, 0xff
    global_store_dwordx2 v70, v[72:73], s[22:23] {P['out_sc']}
    s_mov_b64 exec, -1
    """)
    stamp(19)
    flush_stamps()
    a.label("L_end")
    I("s_endpgm")
    a.raw('.section .rodata,"a"')
    a.raw(".p2align 6")
    a.raw(f".amdhsa_kernel {KN}_kernel")
    a.raw("  .amdhsa_next_free_vgpr 168")
    a.raw("  .amdhsa_next_free_sgpr 96")
    a.raw("  .amdhsa_accum_offset 168")
    a.raw("  .amdhsa_group_segment_fixed_size 0")
    a.raw("  .amdhsa_kernarg_size 96")
    a.raw("  .amdhsa_user_sgpr_count 2")
    a.raw("  .amdhsa_user_sgpr_kernarg_segment_ptr 1")
    a.raw("  .amdhsa_system_sgpr_workgroup_id_x 1")
    a.raw(".end_amdhsa_kernel")
    return a.text()

if __name__ == "__main__":
    out = sys.argv[1]
    kw = json.loads(sys.argv[2]) if len(sys.argv) > 2 else {}
    open(out, "w").write(gen(**kw))
    print("wrote", out)
```
